```python
import torch

def _softmax(x, axis=-1):
    return torch.softmax(x, dim=axis)
def _gelu(x):
    return torch.nn.functional.gelu(x, approximate="tanh")
def _silu(x):
    return torch.nn.functional.silu(x)
def _sigmoid(x):
    return torch.sigmoid(x)
def _layernorm(x, axis=-1, eps=1e-5):
    m = x.mean(dim=axis, keepdim=True)
    v = x.var(dim=axis, keepdim=True, unbiased=False)
    return (x - m) / torch.sqrt(v + eps)
def _scatter_add(tgt, idx, src, axis=0):
    return tgt.clone().index_add_(axis, idx, src)
def _segment_sum(src, seg, n):
    out = torch.zeros((n,) + src.shape[1:], dtype=src.dtype)
    return out.index_add_(0, seg, src)
def _pad(x, pw):
    flat = tuple(v for pair in reversed(pw) for v in pair)
    return torch.nn.functional.pad(x, flat)

kernel_name = 'parallel_sum__sliding_block_cached__geglu_ffn__decode'

def setup_inputs():

    _w = (lambda a: (lambda t: t.to(torch.bfloat16) if t.is_floating_point() else t)(torch.as_tensor(a)))
    def _A_setup():
        B, Sq, D = 8, 1, 576
        Hq, Hkv, Sk, Dh = 32, 16, 8192, 128
        assert Hq % Hkv == 0, (Hq, Hkv)
        return {
            "x": _w((lambda *s: torch.randn(*s, dtype=torch.bfloat16) * 0.05)(B, Sq, D)),
            "k_cache": _w((lambda *s: torch.randn(*s, dtype=torch.bfloat16) * 3.2)(B, Hkv, Sk, Dh)),
            "v_cache": _w((lambda *s: torch.randn(*s, dtype=torch.bfloat16) * 1.6)(B, Hkv, Sk, Dh)),
            "wq": _w((lambda *s: torch.randn(*s, dtype=torch.bfloat16) * 3.2)(D, Hq * Dh) * (D ** -0.5)),
            "wo": _w((lambda *s: torch.randn(*s, dtype=torch.bfloat16) * 1.6)(Hq * Dh, D) * ((Hq * Dh) ** -0.5)),
        }
    _A_in = _A_setup()

    def _B_setup():
        B, S, D, F = 8, 1, 576, 4608
        return {
            "x": _w((lambda *s: torch.randn(*s, dtype=torch.bfloat16) * 0.05)(B, S, D)),
            "w_gate": _w((lambda *s: torch.randn(*s, dtype=torch.bfloat16) * 0.05)(D, F)),
            "w_up": _w((lambda *s: torch.randn(*s, dtype=torch.bfloat16) * 0.05)(D, F)),
            "w_down": _w((lambda *s: torch.randn(*s, dtype=torch.bfloat16) * 0.05)(F, D)),
        }
    _B_in = _B_setup()

    return {
        "A_x": _A_in["x"],
        "A_k_cache": _A_in["k_cache"],
        "A_v_cache": _A_in["v_cache"],
        "A_wq": _A_in["wq"],
        "A_wo": _A_in["wo"],
        "B_x": _B_in["x"],
        "B_w_gate": _B_in["w_gate"],
        "B_w_up": _B_in["w_up"],
        "B_w_down": _B_in["w_down"],
    }

def reference(A_x, A_k_cache, A_v_cache, A_wq, A_wo, B_x, B_w_gate, B_w_up, B_w_down):
    def _A_ref(x, k_cache, v_cache, wq, wo):
        B, Sq, D = x.shape
        Hq, Dh = 32, 128
        Hkv, Sk = k_cache.shape[1], k_cache.shape[2]
        W = min(4096, max(256, Sk // 4))
        rep = Hq // Hkv
        q = (lambda x, *d: x.permute(*d))((x @ wq).reshape(B, Sq, Hq, Dh), 0, 2, 1, 3)
        k = (lambda x, n, axis: torch.repeat_interleave(x, n, dim=axis))(k_cache[:, :, Sk - W:, :], rep, axis=1)
        v = (lambda x, n, axis: torch.repeat_interleave(x, n, dim=axis))(v_cache[:, :, Sk - W:, :], rep, axis=1)
        scores = torch.einsum("bhqd,bhkd->bhqk", q, k) * (Dh ** -0.5)
        p = _softmax(scores, axis=-1)
        o = torch.einsum("bhqk,bhkd->bhqd", p, v)
        return (lambda x, *d: x.permute(*d))(o, 0, 2, 1, 3).reshape(B, Sq, Hq * Dh) @ wo

    def _B_ref(x, w_gate, w_up, w_down):
        return (_gelu(x @ w_gate) * (x @ w_up)) @ w_down

    x = A_x
    xn = _layernorm(x, axis=-1)
    return x + _A_ref(xn, A_k_cache, A_v_cache, A_wq, A_wo) + _B_ref(xn, B_w_gate, B_w_up, B_w_down)
```

```python
import re

REG = re.compile(r"\b([vsa])(?:(\d+)|\[(\d+):(\d+)\])")
TRANS = ("v_exp_f32", "v_log_f32", "v_rcp_f32", "v_rsq_f32", "v_sqrt_f32", "v_sin_f32", "v_cos_f32")

def regs_of(tok):
    out = set()
    for m in REG.finditer(tok):
        k = m.group(1)
        if m.group(2) is not None: out.add((k, int(m.group(2))))
        else: out.update((k, i) for i in range(int(m.group(3)), int(m.group(4)) + 1))
    if re.search(r"\bvcc\b", tok): out.add(("s", "vcc"))
    if re.search(r"\bexec\b", tok): out.add(("s", "exec"))
    return out

def split_ops(s):
    ops, depth, cur = [], 0, ""
    for ch in s:
        if ch == "[": depth += 1
        if ch == "]": depth -= 1
        if ch == "," and depth == 0: ops.append(cur.strip()); cur = ""
        else: cur += ch
    if cur.strip(): ops.append(cur.strip())
    return ops

class I:
    def __init__(self, text):
        self.text = text
        self.label = text[:-1] if text.endswith(":") else None
        self.dst, self.src = set(), set()
        self.A = self.B = self.C = set()
        self.op = ""; self.kind = "other"; self.target = None; self.data = set()
        if self.label or text.startswith(".") or text.startswith(";"):
            self.kind = "label" if self.label else "dir"; return
        p = text.split(None, 1); self.op = op = p[0]
        ops = split_ops(p[1]) if len(p) > 1 else []
        if ops: ops[-1] = ops[-1].split(" ")[0] if not ops[-1].startswith("hwreg") else ops[-1]
        R = [regs_of(o) for o in ops]
        allr = set().union(*R) if R else set()
        rest = set().union(*R[1:]) if len(R) > 1 else set()
        if op.startswith("v_mfma"):
            self.kind = "mfma"; self.dst = R[0]; self.A, self.B, self.C = R[1], R[2], R[3]; self.src = rest
        elif op.startswith("v_"):
            self.kind = "valu"; self.dst = R[0]; self.src = rest
            if "swap" in op: self.dst = allr; self.src = allr
            if op.startswith("v_fmac") or "_dpp" in op: self.src = allr
            if "_co_" in op: self.dst = R[0] | R[1]; self.src = set().union(*R[2:])
        elif op.startswith("buffer_store") or op.startswith("global_store") or op.startswith("buffer_atomic"):
            self.kind = "vmem"; self.src = allr
            self.data = R[0] if op.startswith("buffer") else R[1]
        elif op.startswith("buffer_load") or op.startswith("global_load"):
            self.kind = "vmem"; self.dst = R[0]; self.src = rest
        elif op.startswith("ds_write") or op.startswith("ds_add"):
            self.kind = "ds"; self.src = allr
        elif op.startswith("ds_"):
            self.kind = "ds"; self.dst = R[0]; self.src = rest
        elif op.startswith("s_cbranch") or op == "s_branch":
            self.kind = "branch"; self.target = ops[0]
        elif op.startswith("s_"):
            self.kind = "salu"
            if op.startswith("s_cmp") or op in ("s_waitcnt", "s_nop", "s_barrier", "s_endpgm", "s_setprio"): self.src = allr
            else: self.dst = R[0] if R else set(); self.src = rest
        else:
            raise ValueError(text)
    def states(self):
        if self.kind in ("label", "dir"): return 0
        if self.op == "s_nop": return int(self.text.split()[1]) + 1
        return 1

def vv(s): return {r for r in s if r[0] in "va"}
def ss(s): return {r for r in s if r[0] == "s"}

def need(p, c):
    n = 0
    if p.kind == "valu":
        w = vv(p.dst)
        if c.kind == "mfma" and w & c.src: n = max(n, 2)
        if c.kind == "valu":
            if "_dpp" in c.op and w & c.src: n = max(n, 2)
            if "permlane" in c.op and w & c.src: n = max(n, 2)
            if c.op.startswith("v_read") and w & c.src: n = max(n, 1)
            if p.op.startswith(TRANS) and w & c.src: n = max(n, 1)
        sw = ss(p.dst)
        if sw:
            if c.kind == "valu" and sw & c.src: n = max(n, 2)
            if c.kind == "vmem" and sw & c.src: n = max(n, 5)
            if c.kind == "salu" and sw & c.src: n = max(n, 1)
    if p.kind == "mfma":
        assert "16x16x32" in p.op
        if c.kind == "mfma":
            if p.dst & (c.A | c.B): n = max(n, 8)
            if p.dst & c.C and p.dst != c.C: n = max(n, 6)
            if p.dst & c.dst and p.dst != c.C: n = max(n, 6)
        elif c.kind in ("valu", "vmem", "ds"):
            if p.dst & (c.src | c.dst): n = max(n, 8)
            if c.kind == "valu" and p.C & c.dst: n = max(n, 3)
    if p.kind == "vmem" and len(p.data) >= 3 and c.kind in ("valu", "mfma", "ds", "vmem") and p.data & c.dst: n = max(n, 2)
    return n

class Asm:
    def __init__(self): self.ins = []
    def __call__(self, text):
        for t in text.split("\n"):
            t = t.strip()
            if t: self.ins.append(I(t))
    def pad(self):
        WIN = 12
        at_label = {}
        for _ in range(3):
            out, hist = [], []
            for i in self.ins:
                if i.kind == "label":
                    hist = hist + at_label.get(i.label, [])
                    out.append(i); continue
                if i.kind == "dir": out.append(i); continue
                k = max([need(p, i) - d for p, d in hist] + [0])
                if k > 0:
                    out.append(I("s_nop %d" % (k - 1))); hist = [(p, d + k) for p, d in hist]
                out.append(i)
                st = i.states()
                hist = [(p, d + st) for p, d in hist if d + st < WIN] + [(i, 0)]
                if i.kind == "branch":
                    at_label[i.target] = at_label.get(i.target, []) + hist
                    if i.op == "s_branch": hist = []
                if i.op == "s_endpgm": hist = []
            self.ins = out
    def text(self):
        return "\n".join((i.text if i.kind in ("label", "dir") else "    " + i.text) for i in self.ins) + "\n"

class VM:
    def __init__(self, a): self.a = a; self.n = 0; self.done = 0
    def issue(self, text):
        self.a(text); self.n += 1; return self.n
    def wait(self, tok):
        if tok > self.done:
            k = self.n - tok
            assert k <= 63
            self.a("s_waitcnt vmcnt(%d)" % k); self.done = tok
    def depth(self, d):
        self.wait(self.n - d)
    def copy(self):
        v = VM(self.a); v.n = self.n; v.done = self.done; return v
```

```python
import sys, struct
from asmlib import Asm, VM
KN = "parallel_sum__sliding_block_cached__geglu_ffn__decode_kernel"

def f32(x): return "0x%08x" % struct.unpack("<I", struct.pack("<f", x))[0]
def vr(b, n=4): return "v[%d:%d]" % (b, b + n - 1) if n > 1 else "v%d" % b
DPP = "row_mask:0xf bank_mask:0xf"

WS_L1, WS_STAT, WS_O, WS_P, WS_SINK, WS_TS = 0, 0x40000, 0x50000, 0x80000, 0x100000, 0x200000
L_XN, L_Q, L_H, L_OP, L_LP = 0, 9216, 10240, 16384, 20480
LDS_BYTES = 28672
SPIN = 400000
L2E = 1.4426950408889634

sK, sV, sX, sWS, sW1, sW2, sDBG, sOUT = ("s[%d:%d]" % (b, b + 3) for b in (40, 44, 48, 52, 56, 60, 64, 68))

def srd(a, base, ptr, nbytes):
    a("s_mov_b32 s%d, s%d" % (base, ptr)); a("s_mov_b32 s%d, s%d" % (base + 1, ptr + 1))
    a("s_mov_b32 s%d, %s" % (base + 2, nbytes)); a("s_mov_b32 s%d, 0x20000" % (base + 3))

class Stamps:
    def __init__(self, a, on): self.a, self.on, self.n = a, on, 0
    def __call__(self, idx):
        if self.on: self.a("s_memrealtime s[%d:%d]" % (76 + 2 * idx, 77 + 2 * idx))
    def flush(self, n=12):
        if not self.on: return
        a = self.a
        a("s_waitcnt lgkmcnt(0)")
        a("s_mul_i32 s4, s2, 5"); a("s_add_u32 s4, s4, s3"); a("s_lshl_b32 s4, s4, 6"); a("s_add_u32 s4, s4, %d" % WS_TS)
        a("s_mov_b64 exec, 1"); a("v_mov_b32 v0, 0")
        for q in range(n // 4):
            for i in range(4): a("v_mov_b32 v%d, s%d" % (4 + 4 * q + i, 76 + 2 * (4 * q + i)))
            a("buffer_store_dwordx4 %s, v0, %s, s4 offen offset:%d" % (vr(4 + 4 * q), sWS, 16 * q))

def allreduce(a, op, v, t, steps):
    for s in steps:
        if s < 16: a("%s_dpp v%d, v%d, v%d row_ror:%d %s" % (op, v, v, v, s, DPP))
        else:
            a("v_mov_b32 v%d, v%d" % (t, v)); a("v_permlane%d_swap_b32 v%d, v%d" % (s, v, t)); a("%s v%d, v%d, v%d" % (op, v, v, t))

def round_bf16(a, v):
    a("v_cvt_pk_bf16_f32 v%d, v%d, v%d" % (v, v, v)); a("v_and_b32 v%d, 0xffff0000, v%d" % (v, v))

def gen(d=8, d0=4, nd0=12, R=52, ts=0, kcatch=2, stat_at=112, w2rate=2, hs="sc1", hl="sc1", w1blk=5, nfree=32, fl="sc1", flag="atom", umap=1, da=12, burst=16, lnp=2):
    a = Asm(); T = Stamps(a, ts)
    uid = [0]
    def spin(body, label):
        a("s_mov_b32 s11, %d" % SPIN)
        a(label + ":"); body()
        a("s_cmp_eq_u64 vcc, exec"); a("s_cbranch_scc1 %s_ok" % label)
        a("s_sub_u32 s11, s11, 1"); a("s_cmp_lg_u32 s11, 0"); a("s_cbranch_scc1 %s" % label)
        a(label + "_ok:")

    a(KN + ":")
    T(0)
    a("s_cmp_ge_u32 s2, 256"); a("s_cbranch_scc1 L_end")
    a("s_load_dwordx16 s[16:31], s[0:1], 0"); a("s_load_dwordx8 s[32:39], s[0:1], 64")
    a("s_getpc_b64 s[4:5]")
    a("L_pc:")
    a("v_lshlrev_b32 v1, 7, v0"); a("v_min_u32 v1, L_codeend-L_pc-4, v1")
    a("global_load_dword v255, v1, s[4:5]")
    a("v_lshrrev_b32 v1, 6, v0"); a("v_and_b32 v0, 63, v0"); a("v_readfirstlane_b32 s3, v1")
    a("s_lshr_b32 s6, s2, 1")
    a("s_and_b32 s7, s2, 1")
    a("s_mul_i32 s8, s2, 57"); a("s_lshr_b32 s8, s8, 9")
    a("s_mul_i32 s9, s8, 9"); a("s_sub_u32 s9, s2, s9")
    a("s_mov_b32 s12, 0x05040100"); a("s_mov_b32 s13, 0x07060302")
    a("s_cmp_eq_u32 s3, 4"); a("s_cbranch_scc1 L_aux")

    vm = VM(a); vm.n = 1
    vKo, vVo, vT0, vT1, vM, vL, vF, vW2o = 1, 2, 3, 4, 5, 6, 7, 8
    vMask, vQ0, vQ1, vAcc = 12, 16, 20, 24
    vD = [28, 32]
    pool = list(range(36, 252, 4))
    assert len(pool) >= R + 2
    a("v_lshrrev_b32 v3, 4, v0"); a("v_lshlrev_b32 v3, 6, v3")
    a("v_and_b32 v4, 3, v0"); a("v_lshl_or_b32 v3, v4, 4, v3")
    a("v_bfe_u32 v4, v0, 2, 2"); a("v_lshl_or_b32 v%d, v4, 8, v3" % vKo)
    a("v_lshlrev_b32 v%d, 4, v0" % vVo)
    a("s_lshl_b32 s14, s6, 21"); a("s_lshl_b32 s15, s7, 18"); a("s_add_u32 s14, s14, s15")
    a("s_lshl_b32 s15, s3, 11"); a("s_add_u32 s14, s14, s15"); a("s_add_u32 s14, s14, %d" % (6144 * 256))
    a("v_lshrrev_b32 v3, 5, v0"); a("v_mul_u32_u24 v3, 1152, v3"); a("v_and_b32 v4, 31, v0"); a("v_lshl_add_u32 v3, v4, 2, v3")
    a("s_mul_i32 s15, s3, 2304")
    a("s_waitcnt lgkmcnt(0)")
    srd(a, 48, 16, 9216); srd(a, 40, 18, "0x10000000")
    xr = [pool[-1 - i // 4] + i % 4 for i in range(9)]
    xf = [pool[-4 - i // 4] + i % 4 for i in range(18)]
    for i in range(9): tx = vm.issue("buffer_load_dword v%d, v3, %s, s15 offen offset:%d" % (xr[i], sX, 128 * i))
    slot, tok = {}, {}
    free = pool[:]
    issued = [0]
    w2 = []
    def issue_next():
        n = issued[0]; issued[0] += 1
        if n < 128:
            r = free.pop(0); slot[n] = r
            c, t = divmod(n % 64, 2)
            if t == 0: a("s_add_u32 s10, s14, %d" % (c * 8192))
            tok[n] = vm.issue("buffer_load_dwordx4 %s, v%d, %s, s10 offen offset:%d nt" % (vr(r), vKo if n < 64 else vVo, sK if n < 64 else sV, 1024 * t))
    def issue_w2(vmx, k):
        kb, j = divmod(k, 8)
        if k % 2 == 0: w2q.append(free.pop(0))
        r = w2q[-1] + 2 * (k % 2)
        if j % 4 == 0: a("s_add_u32 s10, s72, %d" % ((32 * kb + j) * 1152))
        w2.append((r, vmx.issue("buffer_load_dwordx2 %s, v%d, %s, s10 offen offset:%d nt" % (vr(r, 2), vW2o, sW2, 1152 * (j % 4)))))
    w2q = []
    for _ in range(d0): issue_next()
    srd(a, 44, 20, "0x10000000"); srd(a, 52, 38, "0x40000000")
    vm.wait(tx)
    for i in range(9):
        a("v_lshlrev_b32 v%d, 16, v%d" % (xf[2 * i], xr[i])); a("v_and_b32 v%d, 0xffff0000, v%d" % (xf[2 * i + 1], xr[i]))
    a("v_add_f32 v5, v%d, v%d" % (xf[0], xf[1])); a("v_add_f32 v6, v%d, v%d" % (xf[2], xf[3]))
    for i in range(4, 18, 2):
        a("v_add_f32 v5, v5, v%d" % xf[i]); a("v_add_f32 v6, v6, v%d" % xf[i + 1])
    a("v_add_f32 v5, v5, v6")
    allreduce(a, "v_add_f32", 5, 6, [8, 4, 2, 1, 16])
    for _ in range(lnp): vm.depth(d0 - 1); issue_next()
    a("v_mul_f32 v5, %s, v5" % f32(1 / 576)); a("v_mov_b32 v7, v5"); round_bf16(a, 7)
    a("v_sub_f32 v5, v5, v7")
    for i in range(18): a("v_sub_f32 v%d, v%d, v7" % (xf[i], xf[i]))
    a("v_mul_f32 v8, v%d, v%d" % (xf[0], xf[0])); a("v_mul_f32 v6, v%d, v%d" % (xf[1], xf[1]))
    for i in range(2, 18, 2):
        a("v_fmac_f32 v8, v%d, v%d" % (xf[i], xf[i])); a("v_fmac_f32 v6, v%d, v%d" % (xf[i + 1], xf[i + 1]))
    a("v_add_f32 v8, v8, v6")
    allreduce(a, "v_add_f32", 8, 6, [8, 4, 2, 1, 16])
    a("v_mul_f32 v8, %s, v8" % f32(1 / 576)); a("v_fma_f32 v8, -v5, v5, v8"); a("v_max_f32 v8, 0, v8"); round_bf16(a, 8)
    a("v_add_f32 v8, %s, v8" % f32(1e-5)); round_bf16(a, 8)
    a("v_sqrt_f32 v8, v8"); round_bf16(a, 8); a("v_rcp_f32 v8, v8")
    a("v_bfe_u32 v4, v0, 2, 3"); a("v_lshlrev_b32 v4, 7, v4"); a("v_and_b32 v6, 3, v0"); a("v_lshl_or_b32 v4, v6, 2, v4")
    a("v_lshrrev_b32 v6, 5, v0"); a("v_lshl_or_b32 v4, v6, 4, v4"); a("s_lshl_b32 s15, s3, 5"); a("v_add_u32 v4, s15, v4")
    for i in range(9): a("v_cvt_pk_bf16_f32 v%d, v%d, v%d" % (xr[i], xf[2 * i], xf[2 * i + 1]))
    for i in range(9):
        a("v_lshlrev_b32 v%d, 16, v%d" % (xf[2 * i], xr[i])); a("v_and_b32 v%d, 0xffff0000, v%d" % (xf[2 * i + 1], xr[i]))
    for i in range(18): a("v_mul_f32 v%d, v%d, v8" % (xf[i], xf[i]))
    for i in range(9):
        a("v_cvt_pk_bf16_f32 v%d, v%d, v%d" % (xr[i], xf[2 * i], xf[2 * i + 1]))
        a("ds_write_b32 v4, v%d offset:%d" % (xr[i], L_XN + 1024 * i))
    for _ in range(lnp): vm.depth(d0 - 1); issue_next()
    a("s_waitcnt lgkmcnt(0)"); a("s_barrier")
    T(1)
    a("v_bfe_u32 v3, v0, 3, 1"); a("v_bfe_u32 v4, v0, 1, 1"); a("v_lshl_or_b32 v3, v3, 1, v4")
    a("v_and_b32 v4, 1, v0"); a("v_lshlrev_b32 v4, 4, v4"); a("v_mov_b32 v5, 0xffff"); a("v_lshlrev_b32 v4, v4, v5")
    for r in range(4):
        a("v_cmp_eq_u32 vcc, %d, v3" % r); a("v_cndmask_b32 v%d, 0, v4, vcc" % (vMask + r))
    a("v_lshrrev_b32 v3, 4, v0"); a("v_mul_u32_u24 v3, %d, v3" % (8 * 1152)); a("v_and_b32 v4, 15, v0"); a("v_lshl_add_u32 v%d, v4, 3, v3" % vW2o)
    a("s_cmp_lt_u32 s2, 144")
    a("s_cselect_b32 s60, s24, s32"); a("s_cselect_b32 s61, s25, s33")
    a("s_mov_b32 s62, 4718592"); a("s_cselect_b32 s62, s62, 5308416"); a("s_mov_b32 s63, 0x20000")
    a("s_cselect_b32 s72, 0, 16"); a("s_cselect_b32 s73, 64, 96")
    a("s_sub_u32 s72, s8, s72"); a("s_lshl_b32 s72, s72, 2"); a("s_add_u32 s72, s72, s3"); a("s_mul_i32 s72, s72, s73")
    a("s_mul_i32 s72, s72, 1152"); a("s_lshl_b32 s73, s9, 7"); a("s_add_u32 s72, s72, s73")
    a("s_cmp_lt_u32 s2, 252"); a("s_cselect_b32 s62, s62, 0")
    while issued[0] < R:
        vm.depth((d0 if issued[0] < nd0 else d) - 1); issue_next()
        if issued[0] == nfree:
            a("s_cmp_lt_u32 s2, 208"); a("s_cbranch_scc1 L_nofb"); a("s_barrier"); a("L_nofb:")
    T(2)
    a("s_barrier")
    T(3)
    a("ds_read_b128 %s, v%d offset:%d" % (vr(vQ0), vVo, L_Q))
    a("v_and_b32 v3, 8, v0"); a("v_cmp_eq_u32 vcc, 0, v3"); a("v_mov_b32 v%d, 0xff800000" % vM)
    a("s_mov_b32 s15, %s" % f32(128 ** -0.5))
    a("s_waitcnt lgkmcnt(0)")
    for i in range(4): a("v_cndmask_b32 v%d, v%d, 0, vcc" % (vQ1 + i, vQ0 + i))
    for i in range(4): a("v_cndmask_b32 v%d, 0, v%d, vcc" % (vQ0 + i, vQ0 + i))
    vD += [free.pop(), free.pop()]
    S = []
    def paced():
        if issued[0] < 128: vm.depth(d - 1); issue_next()
    def qk(c):
        D = vD[c % 4]
        vm.wait(tok[2 * c + 1])
        a("v_mfma_f32_16x16x32_bf16 %s, %s, %s, 0" % (vr(D), vr(slot[2 * c]), vr(vQ0)))
        a("v_mfma_f32_16x16x32_bf16 %s, %s, %s, %s" % (vr(D), vr(slot[2 * c + 1]), vr(vQ1), vr(D)))
        free.extend([slot[2 * c], slot[2 * c + 1]])
    def extract(c):
        if c % 4 == 0: S.extend(range(free[-1], free[-1] + 4)); free.pop()
        x, y, DA, DB = S[c], S[c + 1], vD[c % 4], vD[(c + 1) % 4]
        for i in range(4):
            for s_, D in ((x, DA), (y, DB)):
                if i == 0: a("v_mov_b32_dpp v%d, v%d quad_perm:[0,0,0,0] %s" % (s_, D, DPP))
                else: a("v_add_f32_dpp v%d, v%d, v%d quad_perm:[%d,%d,%d,%d] %s" % (s_, D + i, s_, i, i, i, i, DPP))
        for rep in range(2):
            a("v_cvt_pk_bf16_f32 v3, v%d, v%d" % (x, y))
            a("v_lshlrev_b32 v%d, 16, v3" % x); a("v_and_b32 v%d, 0xffff0000, v3" % y)
            if rep == 0: a("v_mul_f32 v%d, s15, v%d" % (x, x)); a("v_mul_f32 v%d, s15, v%d" % (y, y))
        a("v_max3_f32 v%d, v%d, v%d, v%d" % (vM, vM, x, y))
    for c in range(0, 32, 2):
        while issued[0] < 2 * c + 4 + d - 1 and issued[0] < 128: paced()
        qk(c); qk(c + 1)
        for _ in range(4 // kcatch if kcatch <= 4 else 1): paced()
        if c >= 2: extract(c - 2)
    extract(30)
    free.extend(vD[2:])
    T(4)
    paced()
    allreduce(a, "v_max_f32", vM, 3, [8, 16, 32])
    a("s_mov_b32 s15, %s" % f32(L2E)); a("v_mul_f32 v%d, s15, v%d" % (vM, vM)); a("v_mov_b32 v%d, 0" % vL); a("v_mov_b32 v4, 0")
    for c in range(0, 32, 4):
        for i in range(4): a("v_fma_f32 v%d, v%d, s15, -v%d" % (S[c + i], S[c + i], vM))
        for i in range(4): a("v_exp_f32 v%d, v%d" % (S[c + i], S[c + i]))
        for i in range(4): a("v_add_f32 v%d, v%d, v%d" % ((vL, 4)[i % 2], (vL, 4)[i % 2], S[c + i]))
        for i in range(4): a("v_cvt_pk_bf16_f32 v%d, v%d, v%d" % (S[c + i], S[c + i], S[c + i]))
        if c % 8 == 4: paced()
    a("v_add_f32 v%d, v%d, v4" % (vL, vL))
    allreduce(a, "v_add_f32", vL, 3, [8, 16, 32])
    a("v_min_u32 v10, -2, v%d" % vM); a("v_min_u32 v11, -2, v%d" % vL)
    a("v_lshlrev_b32 v9, 1, v0")
    a("v_and_b32 v9, 0x78, v9")
    a("s_lshl_b32 s73, s6, 7"); a("s_add_u32 s73, s73, %d" % WS_STAT)
    a("s_lshl_b32 s4, s7, 2"); a("s_add_u32 s4, s4, s3"); a("s_lshl_b32 s4, s4, 4"); a("s_add_u32 s4, s4, s73")
    a("s_mov_b64 exec, 0x11")
    vm.issue("buffer_store_dwordx2 v[10:11], v9, %s, s4 offen %s" % (sWS, hs))
    a("s_mov_b64 exec, -1")
    T(5)
    vB = vD[:2]
    def prepB(n):
        c, t = divmod(n - 64, 2)
        for r in range(4):
            if (r >> 1) == t: a("v_and_b32 v%d, v%d, v%d" % (vB[n % 2] + r, S[c], vMask + r))
            else: a("v_and_b32_dpp v%d, v%d, v%d row_ror:8 %s" % (vB[n % 2] + r, S[c], vMask + r, DPP))
    def stat_valid(): a("v_max_u32 v3, v10, v11"); a("v_cmp_ne_u32 vcc, -1, v3")
    prepB(64)
    tstat = None; nw2 = 0
    for n in range(64, 128):
        while issued[0] < min(n + d, 128): paced()
        if tstat is None and issued[0] >= stat_at:
            tstat = vm.issue("buffer_load_dwordx2 v[10:11], v9, %s, s73 offen %s" % (sWS, hl))
        vm.wait(tok[n])
        a("v_mfma_f32_16x16x32_bf16 %s, %s, %s, %s" % (vr(vAcc), vr(slot[n]), vr(vB[n % 2]), "0" if n == 64 else vr(vAcc)))
        free.append(slot[n])
        if n % 2 == 1 and issued[0] < 128 and issued[0] > n + d: paced()
        if issued[0] >= 128:
            for _ in range(w2rate):
                if nw2 < 16: issue_w2(vm, nw2); nw2 += 1
        if n < 127: prepB(n + 1)
        if tstat and tstat > 0 and vm.done >= tstat:
            stat_valid(); a("s_cmp_eq_u64 vcc, exec"); a("s_cbranch_scc1 L_stat_ok")
            def body():
                a("buffer_load_dwordx2 v[10:11], v9, %s, s73 offen %s" % (sWS, hl)); a("s_waitcnt vmcnt(0)"); stat_valid()
            spin(body, "L_stat")
            a("v_mov_b32 v%d, v10" % vF); allreduce(a, "v_max_f32", vF, 3, [8, 16, 32])
            a("v_sub_f32 v10, v10, v%d" % vF); a("v_sub_f32 v%d, v%d, v%d" % (vF, vM, vF))
            a("v_exp_f32 v10, v10"); a("v_exp_f32 v%d, v%d" % (vF, vF)); a("v_mul_f32 v10, v10, v11")
            allreduce(a, "v_add_f32", 10, 3, [8, 16, 32])
            a("v_rcp_f32 v10, v10"); a("v_mul_f32 v%d, v%d, v10" % (vF, vF))
            a("v_bfe_u32 v3, v0, 2, 1"); a("v_lshlrev_b32 v3, 9, v3"); a("v_lshrrev_b32 v4, 4, v0"); a("v_lshl_or_b32 v3, v4, 7, v3")
            a("v_bfe_u32 v4, v0, 3, 1"); a("v_lshl_or_b32 v3, v4, 4, v3"); a("v_and_b32 v4, 3, v0"); a("v_lshl_or_b32 v9, v4, 2, v3")
            a("s_lshl_b32 s4, s3, 10"); a("s_add_u32 s4, s4, %d" % L_OP); a("v_add_u32 v9, s4, v9")
            tstat = -1
    assert tstat == -1
    T(6)
    while nw2 < 16: issue_w2(vm, nw2); nw2 += 1
    for i in range(4): a("v_mul_f32 v%d, v%d, v%d" % (vAcc + i, vAcc + i, vF))
    a("ds_write2_b32 v9, v%d, v%d offset0:0 offset1:8" % (vAcc, vAcc + 1))
    a("ds_write2_b32 v9, v%d, v%d offset0:16 offset1:24" % (vAcc + 2, vAcc + 3))
    a("s_waitcnt lgkmcnt(0)"); a("s_barrier")
    a("s_cmp_ge_u32 s2, 252"); a("s_cbranch_scc1 L_sdone")
    vA = [free.pop(0) for _ in range(3)]
    vE = [free.pop(0) for _ in range(4)]
    vP = [[free.pop(0) for _ in range(4)] for _ in range(3)]
    def perms(kb, vmx):
        vmx.wait(w2[8 * kb + 7][1])
        for i in range(4):
            for q in range(4):
                a("v_perm_b32 v%d, v%d, v%d, s%d" % (vP[kb][i] + q, w2[8 * kb + 2 * q + 1][0] + i // 2, w2[8 * kb + 2 * q][0] + i // 2, 12 + i % 2))
    def mm(kb):
        for i in range(4):
            a("v_mfma_f32_16x16x32_bf16 %s, %s, %s, %s" % (vr(vE[i]), vr(vA[kb]), vr(vP[kb][i]), "0" if kb == 0 else vr(vE[i])))
    a("s_cmp_ge_u32 s2, 144"); a("s_cbranch_scc1 L_down")
    v1 = vm.copy()
    a("v_and_b32 v3, 15, v0"); a("v_lshlrev_b32 v3, 9, v3"); a("v_and_b32 v4, 48, v0"); a("v_or_b32 v9, v3, v4")
    a("s_lshl_b32 s4, s8, 13"); a("s_lshl_b32 s5, s3, 7"); a("s_add_u32 s4, s4, s5"); a("s_add_u32 s4, s4, %d" % WS_O)
    perms(0, v1); perms(1, v1)
    T(7)
    def body():
        for kb in range(2): a("buffer_load_dwordx4 %s, v9, %s, s4 offen offset:%d %s" % (vr(vA[kb]), sWS, 64 * kb, hl))
        a("s_waitcnt vmcnt(1)")
        a("v_max3_u32 v3, v%d, v%d, v%d" % (vA[0], vA[0] + 1, vA[0] + 2))
        a("s_waitcnt vmcnt(0)")
        a("v_max3_u32 v4, v%d, v%d, v%d" % (vA[1], vA[1] + 1, vA[1] + 2))
        a("v_max3_u32 v3, v3, v%d, v%d" % (vA[0] + 3, vA[1] + 3))
        a("v_max_u32 v3, v3, v4"); a("v_cmp_ne_u32 vcc, -1, v3")
    spin(body, "L_opoll")
    T(8)
    mm(0); mm(1)
    a("s_branch L_l2fin")
    a("L_down:")
    v2 = vm.copy()
    for k in range(16, 24): issue_w2(v2, k)
    a("v_lshrrev_b32 v3, 4, v0"); a("v_lshlrev_b32 v3, 7, v3"); a("v_bfe_u32 v4, v0, 1, 3"); a("v_lshl_or_b32 v3, v4, 4, v3")
    a("s_mul_i32 s4, s3, 1536"); a("v_add_u32 v3, s4, v3")
    for kb in range(3): a("ds_read_b128 %s, v3 offset:%d" % (vr(vA[kb]), L_H + 512 * kb))
    a("v_and_b32 v4, 1, v0"); a("v_cmp_eq_u32 vcc, 0, v4"); a("s_waitcnt lgkmcnt(0)")
    for kb in range(3):
        for i in range(4): a("v_cndmask_b32 v%d, 0, v%d, vcc" % (vA[kb] + i, vA[kb] + i))
    T(7)
    for kb in range(3): perms(kb, v2); mm(kb)
    T(8)
    a("L_l2fin:")
    vO = vP[0][:2]
    a("s_lshl_b32 s4, s3, 11"); a("v_add_u32 v9, s4, v%d" % vVo)
    for x in range(2):
        for i in range(4): a("v_add_f32 v%d, v%d, v%d" % (vO[x] + i, vE[i] + 2 * x, vE[i] + 2 * x + 1))
        a("ds_write_b128 v9, %s offset:%d" % (vr(vO[x]), L_LP + 1024 * x))
    a("s_lshl_b32 s4, s3, 10"); a("v_add_u32 v9, s4, v%d" % vVo)
    a("v_lshrrev_b32 v3, 4, v0"); a("v_mul_u32_u24 v3, %d, v3" % (2 * 7168)); a("v_and_b32 v4, 15, v0"); a("v_lshl_add_u32 v3, v4, 4, v3")
    a("s_mul_i32 s4, s9, %d" % (8 * 7168)); a("s_lshl_b32 s5, s8, 8"); a("s_add_u32 s4, s4, s5")
    a("s_mul_i32 s5, s3, 7168"); a("s_add_u32 s4, s4, s5"); a("s_add_u32 s4, s4, %d" % WS_P)
    a("s_waitcnt lgkmcnt(0)"); a("s_barrier")
    a("s_cmp_ge_u32 s3, 2"); a("s_cbranch_scc1 L_sdone")
    for w in range(4): a("ds_read_b128 %s, v9 offset:%d" % (vr(vE[w]), L_LP + 2048 * w))
    a("s_waitcnt lgkmcnt(2)")
    for i in range(4): a("v_add_f32 v%d, v%d, v%d" % (vE[0] + i, vE[0] + i, vE[1] + i))
    a("s_waitcnt lgkmcnt(0)")
    for i in range(4): a("v_add_f32 v%d, v%d, v%d" % (vE[2] + i, vE[2] + i, vE[3] + i))
    for i in range(4): a("v_add_f32 v%d, v%d, v%d" % (vE[0] + i, vE[0] + i, vE[2] + i))
    for i in range(4): a("v_min_u32 v%d, -2, v%d" % (vE[0] + i, vE[0] + i))
    a("buffer_store_dwordx4 %s, v3, %s, s4 offen %s" % (vr(vE[0]), sWS, hs))
    a("L_sdone:")
    T(9); T.flush()
    a("s_endpgm")

    a("L_aux:")
    vm = VM(a); vm.n = 1
    vLin, vWo = 1, 2
    vXN, vAc, vTp, vRing = 8, 44, 76, 84
    a("v_lshlrev_b32 v%d, 4, v0" % vLin)
    if umap:
        a("s_and_b32 s100, s2, 7"); a("s_mul_i32 s100, s100, 26"); a("s_lshr_b32 s4, s2, 3"); a("s_add_u32 s100, s100, s4")
        a("s_cmp_lt_u32 s2, 208"); a("s_cselect_b32 s100, s100, s2")
    else: a("s_mov_b32 s100, s2")
    a("v_mov_b32 v4, -1"); a("v_mov_b32 v5, -1"); a("v_mov_b32 v6, -1"); a("v_mov_b32 v7, -1")
    a("s_cmp_lt_u32 s100, 64"); a("s_movk_i32 s14, 8192"); a("s_cselect_b32 s14, s14, 9216"); a("s_mov_b32 s58, 4718592"); a("s_cselect_b32 s58, s58, 5308416"); a("s_cselect_b32 s15, 0, 64")
    a("s_cmp_lt_u32 s100, 136"); a("s_cselect_b32 s15, s15, 136"); a("s_sub_u32 s15, s100, s15"); a("s_lshl_b32 s15, s15, 7")
    a("v_lshrrev_b32 v3, 3, v0"); a("v_lshlrev_b32 v3, 3, v3"); a("v_mul_u32_u24 v3, s14, v3"); a("v_and_b32 v2, 7, v0"); a("v_lshl_add_u32 v%d, v2, 4, v3" % vWo)
    a("s_mul_i32 s75, s14, 57")
    a("s_waitcnt lgkmcnt(0)")
    a("s_cmp_lt_u32 s100, 136"); a("s_cselect_b32 s56, s28, s30"); a("s_cselect_b32 s57, s29, s31")
    a("s_cmp_lt_u32 s100, 64"); a("s_cselect_b32 s56, s22, s56"); a("s_cselect_b32 s57, s23, s57"); a("s_mov_b32 s59, 0x20000")
    a("s_cmp_lt_u32 s2, 208"); a("s_cselect_b32 s58, s58, 0")
    srd(a, 52, 38, "0x40000000")
    w1 = []
    def issue_w1():
        blk, j = divmod(len(w1), 8)
        r = vRing + 32 * (blk % w1blk) + 4 * j
        w1.append(vm.issue("buffer_load_dwordx4 %s, v%d, %s, s15 offen nt" % (vr(r), vWo, sW1)))
        a("s_add_u32 s15, s15, %s" % ("s75" if j == 7 else "s14"))
    a("s_and_b32 s4, s6, 15"); a("s_lshl_b32 s4, s4, 13"); a("s_lshr_b32 s5, s2, 5"); a("s_lshl_b32 s5, s5, 1"); a("s_add_u32 s5, s5, s7")
    a("s_lshl_b32 s5, s5, 9"); a("s_add_u32 s4, s4, s5"); a("s_add_u32 s74, s4, %d" % WS_O)
    a("v_lshlrev_b32 v3, 3, v0")
    vm.issue("buffer_store_dwordx2 v[4:5], v3, %s, s74 offen %s" % (sWS, hs))
    a("s_lshl_b32 s4, s2, 6"); a("s_add_u32 s4, s4, %d" % WS_STAT)
    a("s_mov_b64 exec, 0xf")
    vm.issue("buffer_store_dwordx4 v[4:7], v%d, %s, s4 offen %s" % (vLin, sWS, hs))
    a("s_mov_b64 exec, -1")
    a("v_lshrrev_b32 v3, 4, v0"); a("v_mul_u32_u24 v3, %d, v3" % (2 * 7168)); a("v_and_b32 v76, 15, v0"); a("v_lshl_add_u32 v3, v76, 4, v3")
    a("s_mul_i32 s4, s9, %d" % (8 * 7168)); a("s_lshl_b32 s5, s8, 8"); a("s_add_u32 s4, s4, s5"); a("s_add_u32 s4, s4, %d" % WS_P)
    a("s_cmp_lt_u32 s2, 252"); a("s_cselect_b32 s4, s4, %d" % WS_SINK)
    vm.issue("buffer_store_dwordx4 v[4:7], v3, %s, s4 offen %s" % (sWS, hs))
    a("s_add_u32 s4, s4, 7168")
    vm.issue("buffer_store_dwordx4 v[4:7], v3, %s, s4 offen %s" % (sWS, hs))
    a("s_lshl_b32 s4, s100, 10")
    tclr = vm.issue("buffer_store_dwordx4 v[4:7], v%d, %s, s4 offen %s" % (vLin, sWS, hs))
    for _ in range(burst): issue_w1()
    srd(a, 64, 36, 256); srd(a, 48, 16, 9216); srd(a, 68, 34, 9216)
    a("s_barrier")
    T(1)
    a("v_mov_b32 v76, 1"); a("v_mov_b32 v77, 0")
    vm.wait(tclr)
    a("s_mov_b64 exec, 1")
    if flag == "byte": vm.issue("buffer_store_byte v76, v77, %s, s2 offen %s" % (sDBG, hs))
    elif flag == "atom":
        a("s_and_b32 s4, s2, 3"); a("s_lshl_b32 s4, s4, 3"); a("s_lshl_b32 s4, 1, s4"); a("v_mov_b32 v76, s4"); a("s_and_b32 s4, s2, 0xfc")
        vm.issue("buffer_atomic_or v76, v77, %s, s4 offen sc1" % (sDBG))
    a("s_mov_b64 exec, -1")
    T(3)
    a("s_cmp_ge_u32 s2, 208"); a("s_cbranch_scc1 L_nol1")
    for i in range(9): a("ds_read_b128 %s, v%d offset:%d" % (vr(vXN + 4 * i), vLin, L_XN + 1024 * i))
    a("s_waitcnt lgkmcnt(0)")
    def paced1(blk):
        if len(w1) < 72 and len(w1) < 8 * (blk + w1blk):
            if len(w1) >= da: vm.wait(w1[len(w1) - da])
            issue_w1()
    for blk in range(9):
        while len(w1) < min(72, 8 * blk + 7 + da): paced1(blk)
        vm.wait(w1[8 * blk + 7])
        base = vRing + 32 * (blk % w1blk)
        for i in range(8):
            t = vTp + 4 * (i % 2)
            for q in range(4): a("v_perm_b32 v%d, v%d, v%d, s%d" % (t + q, base + 4 * (2 * q + 1) + i // 2, base + 4 * (2 * q) + i // 2, 12 + i % 2))
            if i > 0:
                D = vAc + 4 * (i - 1)
                a("v_mfma_f32_16x16x32_bf16 %s, %s, %s, %s" % (vr(D), vr(vXN + 4 * blk), vr(vTp + 4 * ((i - 1) % 2)), "0" if blk == 0 else vr(D)))
            if i % 4 == 0: paced1(blk)
        D = vAc + 28
        a("v_mfma_f32_16x16x32_bf16 %s, %s, %s, %s" % (vr(D), vr(vXN + 4 * blk), vr(vTp + 4), "0" if blk == 0 else vr(D)))
    T(2)
    a("v_bfe_u32 v3, v0, 4, 1"); a("v_lshlrev_b32 v3, 2, v3"); a("v_lshrrev_b32 v4, 5, v0"); a("v_lshl_or_b32 v3, v4, 1, v3")
    a("v_bfe_u32 v4, v0, 3, 1"); a("v_or_b32 v3, v3, v4"); a("v_lshlrev_b32 v3, 7, v3"); a("v_and_b32 v4, 7, v0"); a("v_lshl_or_b32 v3, v4, 4, v3")
    a("s_lshl_b32 s4, s100, 10")
    for i in range(8):
        for ii in range(2): a("v_permlane32_swap_b32 v%d, v%d" % (vAc + 4 * i + ii, vAc + 4 * i + ii + 2))
    for i in range(8): a("v_add_f32_dpp v%d, v%d, v%d row_ror:8 row_mask:0xf bank_mask:0x3" % (vTp + i, vAc + 4 * i + 2, vAc + 4 * i))
    for i in range(8): a("v_add_f32_dpp v%d, v%d, v%d row_ror:8 row_mask:0xf bank_mask:0xc" % (vTp + i, vAc + 4 * i + 1, vAc + 4 * i + 3))
    for q in range(4): a("v_cvt_pk_bf16_f32 v%d, v%d, v%d" % (4 + q, vTp + 2 * q, vTp + 2 * q + 1))
    for q in range(4): a("v_min_u32 v%d, -2, v%d" % (4 + q, 4 + q))
    a("buffer_store_dwordx4 v[4:7], v3, %s, s4 offen %s" % (sWS, hs))
    a("s_branch L_l1done")
    a("L_nol1:")
    a("s_barrier")
    a("L_l1done:")
    a("v_lshlrev_b32 v10, 2, v0")
    T(10)
    a("v_bfe_u32 v3, v0, 2, 1"); a("v_lshlrev_b32 v3, 11, v3"); a("v_lshrrev_b32 v4, 5, v0"); a("v_lshl_or_b32 v3, v4, 10, v3")
    a("v_bfe_u32 v4, v0, 4, 1"); a("v_lshl_or_b32 v3, v4, 6, v3"); a("v_and_b32 v4, 3, v0"); a("v_lshl_or_b32 v3, v4, 4, v3")
    a("s_and_b32 s4, s6, 15"); a("s_lshl_b32 s4, s4, 12"); a("s_lshr_b32 s5, s2, 5"); a("s_lshl_b32 s5, s5, 7"); a("s_add_u32 s4, s4, s5")
    a("s_mov_b32 s5, 0x01010101")
    def body():
        a("buffer_load_dword v8, v10, %s, 0 offen %s" % (sDBG, hl)); a("s_waitcnt vmcnt(0)"); a("v_cmp_eq_u32 vcc, s5, v8")
    if fl != hl:
        a("buffer_load_dword v8, v10, %s, 0 offen %s" % (sDBG, fl)); a("s_waitcnt vmcnt(0)"); a("v_cmp_eq_u32 vcc, s5, v8")
        a("s_cmp_eq_u64 vcc, exec"); a("s_cbranch_scc1 L_flags_ok")
    if flag != "none": spin(body, "L_flags")
    T(4)
    def body():
        a("buffer_load_dwordx4 v[4:7], v3, %s, s4 offen %s" % (sWS, hl)); a("s_waitcnt vmcnt(0)")
        a("v_max3_u32 v8, v4, v5, v6"); a("v_max_u32 v8, v8, v7"); a("v_cmp_ne_u32 vcc, -1, v8")
    spin(body, "L_qpoll")
    T(11)
    a("ds_write_b128 v%d, v[4:7] offset:%d" % (vLin, L_Q))
    a("s_waitcnt lgkmcnt(0)"); a("s_barrier")
    T(5)
    a("s_cmp_lt_u32 s2, 144"); a("s_cbranch_scc1 L_noh")
    a("s_cmp_ge_u32 s2, 252"); a("s_cbranch_scc1 L_noh")
    vm = VM(a)
    vG, vU = 16, 40
    a("s_mul_i32 s4, s8, 6144"); a("s_sub_u32 s4, s4, %d" % (16 * 6144 - 64 * 1024))
    def body():
        for y in range(6):
            a("s_add_u32 s5, s4, %d" % (1024 * y)); a("buffer_load_dwordx4 %s, v%d, %s, s5 offen %s" % (vr(vG + 4 * y), vLin, sWS, hl))
            a("s_add_u32 s5, s4, %d" % (1024 * (72 + y))); a("buffer_load_dwordx4 %s, v%d, %s, s5 offen %s" % (vr(vU + 4 * y), vLin, sWS, hl))
        a("s_waitcnt vmcnt(0)")
        a("v_max_u32 v8, v%d, v%d" % (vG, vG + 1))
        for r in range(vG + 2, vG + 48, 2): a("v_max3_u32 v8, v8, v%d, v%d" % (r, r + 1))
        a("v_cmp_ne_u32 vcc, -1, v8")
    spin(body, "L_gpoll")
    a("v_and_b32 v3, 7, v0"); a("v_lshlrev_b32 v3, 7, v3"); a("v_lshrrev_b32 v4, 3, v0"); a("v_lshl_or_b32 v3, v4, 4, v3")
    a("s_mov_b32 s4, %s" % f32(0.044715)); a("s_mov_b32 s5, %s" % f32(-2 * (2 / 3.141592653589793) ** 0.5 * L2E))
    g, e = list(range(64, 72)), list(range(72, 80))
    def unpack(dst, src):
        for q in range(4): a("v_lshlrev_b32 v%d, 16, v%d" % (dst[2 * q], src + q)); a("v_and_b32 v%d, 0xffff0000, v%d" % (dst[2 * q + 1], src + q))
    def pack(dst, src):
        for q in range(4): a("v_cvt_pk_bf16_f32 v%d, v%d, v%d" % (dst + q, src[2 * q], src[2 * q + 1]))
    for y in range(6):
        unpack(g, vG + 4 * y)
        for i in range(8): a("v_mul_f32 v%d, v%d, v%d" % (e[i], g[i], g[i]))
        for i in range(8): a("v_fma_f32 v%d, v%d, s4, 1.0" % (e[i], e[i]))
        for i in range(8): a("v_mul_f32 v%d, v%d, v%d" % (e[i], e[i], g[i]))
        for i in range(8): a("v_mul_f32 v%d, s5, v%d" % (e[i], e[i]))
        for i in range(8): a("v_exp_f32 v%d, v%d" % (e[i], e[i]))
        for i in range(8): a("v_add_f32 v%d, 1.0, v%d" % (e[i], e[i]))
        for i in range(8): a("v_rcp_f32 v%d, v%d" % (e[i], e[i]))
        for i in range(8): a("v_mul_f32 v%d, v%d, v%d" % (g[i], g[i], e[i]))
        pack(vG + 4 * y, g); unpack(g, vG + 4 * y); unpack(e, vU + 4 * y)
        for i in range(8): a("v_mul_f32 v%d, v%d, v%d" % (g[i], g[i], e[i]))
        pack(vG + 4 * y, g)
        a("ds_write_b128 v3, %s offset:%d" % (vr(vG + 4 * y), L_H + 1024 * y))
    a("L_noh:")
    a("s_sub_u32 s4, s2, 184"); a("s_max_i32 s4, s4, 0"); a("s_mul_i32 s14, s4, 7168"); a("s_add_u32 s14, s14, %d" % WS_P)
    a("s_and_b32 s5, s4, 7"); a("s_mul_i32 s5, s5, 1152"); a("s_lshr_b32 s4, s4, 3"); a("s_lshl_b32 s4, s4, 7"); a("s_add_u32 s15, s4, s5")
    a("v_and_b32 v3, 15, v0"); a("v_lshlrev_b32 v3, 3, v3"); a("v_lshrrev_b32 v4, 4, v0"); a("v_lshl_or_b32 v2, v4, 1, v3")
    a("buffer_load_ushort v12, v2, %s, s15 offen" % sX)
    a("v_lshlrev_b32 v3, 3, v0")
    T(6)
    a("s_waitcnt vmcnt(0) lgkmcnt(0)"); a("s_barrier")
    for w in range(4): a("ds_read_b128 %s, v%d offset:%d" % (vr(16 + 4 * w), vLin, L_OP + 1024 * w))
    a("s_waitcnt lgkmcnt(2)")
    for i in range(4): a("v_add_f32 v%d, v%d, v%d" % (16 + i, 16 + i, 20 + i))
    a("s_waitcnt lgkmcnt(0)")
    for i in range(4): a("v_add_f32 v%d, v%d, v%d" % (24 + i, 24 + i, 28 + i))
    for i in range(4): a("v_add_f32 v%d, v%d, v%d" % (16 + i, 16 + i, 24 + i))
    a("v_cvt_pk_bf16_f32 v4, v16, v17"); a("v_cvt_pk_bf16_f32 v5, v18, v19"); a("v_min_u32 v4, -2, v4"); a("v_min_u32 v5, -2, v5")
    a("buffer_store_dwordx2 v[4:5], v3, %s, s74 offen %s" % (sWS, hs))
    T(7)
    a("s_barrier")
    a("s_cmp_lt_u32 s2, 184"); a("s_cbranch_scc1 L_adone")
    a("v_lshlrev_b32 v12, 16, v12")
    def gather(ys, label, dst):
        def body():
            for k, y in enumerate(ys):
                if y == 4: a("s_add_u32 s5, s14, 4096")
                a("buffer_load_dwordx4 %s, v%d, %s, %s offen offset:%d %s" % (vr(16 + 4 * k), vLin, sWS, "s14" if y < 4 else "s5", 1024 * (y % 4), hl))
            for k in range(len(ys)):
                a("s_waitcnt vmcnt(%d)" % (len(ys) - 1 - k))
                b = 16 + 4 * k
                if k == 0: a("v_max_u32 v3, v%d, v%d" % (b, b + 1))
                else: a("v_max3_u32 v3, v3, v%d, v%d" % (b, b + 1))
                a("v_max3_u32 v3, v3, v%d, v%d" % (b + 2, b + 3))
            a("v_cmp_ne_u32 vcc, -1, v3")
        spin(body, label)
        for k in range(1, len(ys)):
            for i in range(4): a("v_add_f32 v%d, v%d, v%d" % (16 + i, 16 + i, 16 + 4 * k + i))
        a("v_permlane32_swap_b32 v16, v18"); a("v_permlane32_swap_b32 v17, v19")
        a("v_add_f32 v16, v16, v18"); a("v_add_f32 v17, v17, v19")
        a("v_permlane16_swap_b32 v16, v17"); a("v_add_f32 v%d, v16, v17" % dst)
        round_bf16(a, dst)
    gather([4, 5, 6], "L_ypoll", 13)
    T(8)
    gather([0, 1, 2, 3], "L_apoll", 14)
    a("v_add_f32 v12, v12, v14"); round_bf16(a, 12); a("v_add_f32 v12, v12, v13"); a("v_cvt_pk_bf16_f32 v12, v12, v12")
    a("buffer_store_short v12, v2, %s, s15 offen" % sOUT)
    a("L_adone:")
    T(9); T.flush()
    a("L_end:")
    a("s_endpgm")
    a("L_codeend:")
    a.pad()
    head = open("parallel_sum__sliding_block_cached__geglu_ffn__decode.s.ref").read().split("; Override")[0]
    head += "; @launch grid=(256,1,1) block=(320,1,1) lds=%d\n" % LDS_BYTES
    head += '.amdgcn_target "amdgcn-amd-amdhsa--gfx950"\n.text\n.globl %s\n.p2align 8\n.type %s,@function\n' % (KN, KN)
    tail = '.section .rodata,"a"\n.p2align 6\n.amdhsa_kernel %s\n  .amdhsa_next_free_vgpr 256\n  .amdhsa_next_free_sgpr 102\n  .amdhsa_accum_offset 256\n' % KN
    tail += "  .amdhsa_group_segment_fixed_size 0\n  .amdhsa_kernarg_size 96\n  .amdhsa_user_sgpr_count 2\n  .amdhsa_user_sgpr_kernarg_segment_ptr 1\n  .amdhsa_system_sgpr_workgroup_id_x 1\n.end_amdhsa_kernel\n"
    return head + a.text() + tail

if __name__ == "__main__":
    kw = eval("dict(%s)" % (sys.argv[2] if len(sys.argv) > 2 else ""))
    open(sys.argv[1], "w").write(gen(**kw))

def report(t, verbose):
    import numpy as np
    def st(name, x):
        x = x.reshape(x.shape[0], -1)
        print("   %-28s min %6.2f mean %6.2f max %6.2f" % (name, np.median(x.min(axis=1)), np.median(x.mean(axis=1)), np.median(x.max(axis=1))))
    s, x = t[:, :, :4], t[:, :, 4]
    for i, n in enumerate(["start", "S0", "ring full", "S1", "K done", "softmax done", "V done"]): st("stream " + n, s[..., i])
    st("stream wo perms done", s[:, :144, :, 7]); st("stream o seen", s[:, :144, :, 8]); st("stream wo end", s[:, :144, :2, 9])
    st("stream down mm done", s[:, 144:252, :, 8]); st("stream down end", s[:, 144:252, :2, 9])
    st("aux L1 mm done", x[:, :208, 2])
    for i, n in [(3, "flag sent"), (10, "flag check start"), (4, "flags seen"), (11, "q seen"), (5, "S1"), (6, "h done"), (7, "o sent")]: st("aux " + n, x[..., i])
    if verbose:
        u = t[-1]
        print("L1 done by wg"); print(u[:, 4, 10].reshape(32, 8).T)
        print("ring full by wg"); print(u[:, 0, 2].reshape(32, 8).T)
        print("V done by wg"); print(u[:, 0, 6].reshape(32, 8).T)
    st("aux y seen", x[:, 184:, 8]); st("aux out sent", x[:, 184:, 9])
```

```python
import sys, struct
from asmlib import Asm, VM
KN = "parallel_sum__sliding_block_cached__geglu_ffn__decode_kernel"

def f32(x): return "0x%08x" % struct.unpack("<I", struct.pack("<f", x))[0]
def vr(b, n=4): return "v[%d:%d]" % (b, b + n - 1) if n > 1 else "v%d" % b
DPP = "row_mask:0xf bank_mask:0xf"

WS_L1, WS_STAT, WS_O, WS_P, WS_SINK, WS_TS = 0, 0x40000, 0x50000, 0x80000, 0x100000, 0x200000
L_XN, L_Q, L_H, L_OP, L_LP = 0, 9216, 10240, 16384, 20480
LDS_BYTES = 28672
SPIN = 400000
L2E = 1.4426950408889634

sK, sV, sX, sWS, sW1, sW2, sDBG, sOUT = ("s[%d:%d]" % (b, b + 3) for b in (40, 44, 48, 52, 56, 60, 64, 68))

def srd(a, base, ptr, nbytes):
    a("s_mov_b32 s%d, s%d" % (base, ptr)); a("s_mov_b32 s%d, s%d" % (base + 1, ptr + 1))
    a("s_mov_b32 s%d, %s" % (base + 2, nbytes)); a("s_mov_b32 s%d, 0x20000" % (base + 3))

class Stamps:
    def __init__(self, a, on): self.a, self.on, self.n = a, on, 0
    def __call__(self, idx):
        if self.on: self.a("s_memrealtime s[%d:%d]" % (76 + 2 * idx, 77 + 2 * idx))
    def flush(self, n=12):
        if not self.on: return
        a = self.a
        a("s_waitcnt lgkmcnt(0)")
        a("s_mul_i32 s4, s2, 5"); a("s_add_u32 s4, s4, s3"); a("s_lshl_b32 s4, s4, 6"); a("s_add_u32 s4, s4, %d" % WS_TS)
        a("s_mov_b64 exec, 1"); a("v_mov_b32 v0, 0")
        for q in range(n // 4):
            for i in range(4): a("v_mov_b32 v%d, s%d" % (4 + 4 * q + i, 76 + 2 * (4 * q + i)))
            a("buffer_store_dwordx4 %s, v0, %s, s4 offen offset:%d" % (vr(4 + 4 * q), sWS, 16 * q))

def allreduce(a, op, v, t, steps):
    for s in steps:
        if s < 16: a("%s_dpp v%d, v%d, v%d row_ror:%d %s" % (op, v, v, v, s, DPP))
        else:
            a("v_mov_b32 v%d, v%d" % (t, v)); a("v_permlane%d_swap_b32 v%d, v%d" % (s, v, t)); a("%s v%d, v%d, v%d" % (op, v, v, t))

def round_bf16(a, v):
    a("v_cvt_pk_bf16_f32 v%d, v%d, v%d" % (v, v, v)); a("v_and_b32 v%d, 0xffff0000, v%d" % (v, v))

def gen(d=8, d0=4, nd0=12, R=52, ts=0, kcatch=2, stat_at=112, w2rate=2, hs="sc1", hl="sc1", w1blk=5, nfree=32, fl="sc1", flag="atom", umap=1, da=12, burst=16, lnp=2, pf=1, touch=0):
    a = Asm(); T = Stamps(a, ts)
    uid = [0]
    def spin(body, label):
        a("s_mov_b32 s11, %d" % SPIN)
        a(label + ":"); body()
        a("s_cmp_eq_u64 vcc, exec"); a("s_cbranch_scc1 %s_ok" % label)
        a("s_sub_u32 s11, s11, 1"); a("s_cmp_lg_u32 s11, 0"); a("s_cbranch_scc1 %s" % label)
        a(label + "_ok:")

    a(KN + ":")
    T(0)
    a("s_cmp_ge_u32 s2, 256"); a("s_cbranch_scc1 L_end")
    a("s_load_dwordx16 s[16:31], s[0:1], 0"); a("s_load_dwordx8 s[32:39], s[0:1], 64")
    a("s_getpc_b64 s[4:5]")
    a("L_pc:")
    a("v_lshlrev_b32 v1, 7, v0"); a("v_min_u32 v1, %s, v1" % ("L_codeend-L_pc-4" if pf else "4"))
    a("global_load_dword v255, v1, s[4:5]")
    a("v_lshrrev_b32 v1, 6, v0"); a("v_and_b32 v0, 63, v0"); a("v_readfirstlane_b32 s3, v1")
    a("s_lshr_b32 s6, s2, 1")
    a("s_and_b32 s7, s2, 1")
    a("s_mul_i32 s8, s2, 57"); a("s_lshr_b32 s8, s8, 9")
    a("s_mul_i32 s9, s8, 9"); a("s_sub_u32 s9, s2, s9")
    a("s_mov_b32 s12, 0x05040100"); a("s_mov_b32 s13, 0x07060302")
    a("s_cmp_eq_u32 s3, 4"); a("s_cbranch_scc1 L_aux")

    vm = VM(a); vm.n = 1
    vKo, vVo, vT0, vT1, vM, vL, vF, vW2o = 1, 2, 3, 4, 5, 6, 7, 8
    vMask, vQ0, vQ1, vAcc = 12, 16, 20, 24
    vD = [28, 32]
    pool = list(range(36, 252, 4))
    assert len(pool) >= R + 2
    a("v_lshrrev_b32 v3, 4, v0"); a("v_lshlrev_b32 v3, 6, v3")
    a("v_and_b32 v4, 3, v0"); a("v_lshl_or_b32 v3, v4, 4, v3")
    a("v_bfe_u32 v4, v0, 2, 2"); a("v_lshl_or_b32 v%d, v4, 8, v3" % vKo)
    a("v_lshlrev_b32 v%d, 4, v0" % vVo)
    a("s_lshl_b32 s14, s6, 21"); a("s_lshl_b32 s15, s7, 18"); a("s_add_u32 s14, s14, s15")
    a("s_lshl_b32 s15, s3, 11"); a("s_add_u32 s14, s14, s15"); a("s_add_u32 s14, s14, %d" % (6144 * 256))
    a("v_lshrrev_b32 v3, 5, v0"); a("v_mul_u32_u24 v3, 1152, v3"); a("v_and_b32 v4, 31, v0"); a("v_lshl_add_u32 v3, v4, 2, v3")
    a("s_mul_i32 s15, s3, 2304")
    a("s_waitcnt lgkmcnt(0)")
    srd(a, 48, 16, 9216); srd(a, 40, 18, "0x10000000")
    xr = [pool[-1 - i // 4] + i % 4 for i in range(9)]
    xf = [pool[-4 - i // 4] + i % 4 for i in range(18)]
    for i in range(9): tx = vm.issue("buffer_load_dword v%d, v3, %s, s15 offen offset:%d" % (xr[i], sX, 128 * i))
    slot, tok = {}, {}
    free = pool[:]
    issued = [0]
    w2 = []
    def issue_next():
        n = issued[0]; issued[0] += 1
        if n < 128:
            r = free.pop(0); slot[n] = r
            c, t = divmod(n % 64, 2)
            if t == 0: a("s_add_u32 s10, s14, %d" % (c * 8192))
            tok[n] = vm.issue("buffer_load_dwordx4 %s, v%d, %s, s10 offen offset:%d nt" % (vr(r), vKo if n < 64 else vVo, sK if n < 64 else sV, 1024 * t))
    def issue_w2(vmx, k):
        kb, j = divmod(k, 8)
        if k % 2 == 0: w2q.append(free.pop(0))
        r = w2q[-1] + 2 * (k % 2)
        if j % 4 == 0: a("s_add_u32 s10, s72, %d" % ((32 * kb + j) * 1152))
        w2.append((r, vmx.issue("buffer_load_dwordx2 %s, v%d, %s, s10 offen offset:%d nt" % (vr(r, 2), vW2o, sW2, 1152 * (j % 4)))))
    w2q = []
    for _ in range(d0): issue_next()
    srd(a, 44, 20, "0x10000000"); srd(a, 52, 38, "0x40000000")
    vm.wait(tx)
    for i in range(9):
        a("v_lshlrev_b32 v%d, 16, v%d" % (xf[2 * i], xr[i])); a("v_and_b32 v%d, 0xffff0000, v%d" % (xf[2 * i + 1], xr[i]))
    a("v_add_f32 v5, v%d, v%d" % (xf[0], xf[1])); a("v_add_f32 v6, v%d, v%d" % (xf[2], xf[3]))
    for i in range(4, 18, 2):
        a("v_add_f32 v5, v5, v%d" % xf[i]); a("v_add_f32 v6, v6, v%d" % xf[i + 1])
    a("v_add_f32 v5, v5, v6")
    allreduce(a, "v_add_f32", 5, 6, [8, 4, 2, 1, 16])
    for _ in range(lnp): vm.depth(d0 - 1); issue_next()
    a("v_mul_f32 v5, %s, v5" % f32(1 / 576)); a("v_mov_b32 v7, v5"); round_bf16(a, 7)
    a("v_sub_f32 v5, v5, v7")
    for i in range(18): a("v_sub_f32 v%d, v%d, v7" % (xf[i], xf[i]))
    a("v_mul_f32 v8, v%d, v%d" % (xf[0], xf[0])); a("v_mul_f32 v6, v%d, v%d" % (xf[1], xf[1]))
    for i in range(2, 18, 2):
        a("v_fmac_f32 v8, v%d, v%d" % (xf[i], xf[i])); a("v_fmac_f32 v6, v%d, v%d" % (xf[i + 1], xf[i + 1]))
    a("v_add_f32 v8, v8, v6")
    allreduce(a, "v_add_f32", 8, 6, [8, 4, 2, 1, 16])
    a("v_mul_f32 v8, %s, v8" % f32(1 / 576)); a("v_fma_f32 v8, -v5, v5, v8"); a("v_max_f32 v8, 0, v8"); round_bf16(a, 8)
    a("v_add_f32 v8, %s, v8" % f32(1e-5)); round_bf16(a, 8)
    a("v_sqrt_f32 v8, v8"); round_bf16(a, 8); a("v_rcp_f32 v8, v8")
    a("v_bfe_u32 v4, v0, 2, 3"); a("v_lshlrev_b32 v4, 7, v4"); a("v_and_b32 v6, 3, v0"); a("v_lshl_or_b32 v4, v6, 2, v4")
    a("v_lshrrev_b32 v6, 5, v0"); a("v_lshl_or_b32 v4, v6, 4, v4"); a("s_lshl_b32 s15, s3, 5"); a("v_add_u32 v4, s15, v4")
    for i in range(9): a("v_cvt_pk_bf16_f32 v%d, v%d, v%d" % (xr[i], xf[2 * i], xf[2 * i + 1]))
    for i in range(9):
        a("v_lshlrev_b32 v%d, 16, v%d" % (xf[2 * i], xr[i])); a("v_and_b32 v%d, 0xffff0000, v%d" % (xf[2 * i + 1], xr[i]))
    for i in range(18): a("v_mul_f32 v%d, v%d, v8" % (xf[i], xf[i]))
    for i in range(9):
        a("v_cvt_pk_bf16_f32 v%d, v%d, v%d" % (xr[i], xf[2 * i], xf[2 * i + 1]))
        a("ds_write_b32 v4, v%d offset:%d" % (xr[i], L_XN + 1024 * i))
    for _ in range(lnp): vm.depth(d0 - 1); issue_next()
    a("s_waitcnt lgkmcnt(0)"); a("s_barrier")
    T(1)
    a("v_bfe_u32 v3, v0, 3, 1"); a("v_bfe_u32 v4, v0, 1, 1"); a("v_lshl_or_b32 v3, v3, 1, v4")
    a("v_and_b32 v4, 1, v0"); a("v_lshlrev_b32 v4, 4, v4"); a("v_mov_b32 v5, 0xffff"); a("v_lshlrev_b32 v4, v4, v5")
    for r in range(4):
        a("v_cmp_eq_u32 vcc, %d, v3" % r); a("v_cndmask_b32 v%d, 0, v4, vcc" % (vMask + r))
    a("v_lshrrev_b32 v3, 4, v0"); a("v_mul_u32_u24 v3, %d, v3" % (8 * 1152)); a("v_and_b32 v4, 15, v0"); a("v_lshl_add_u32 v%d, v4, 3, v3" % vW2o)
    a("s_cmp_lt_u32 s2, 144")
    a("s_cselect_b32 s60, s24, s32"); a("s_cselect_b32 s61, s25, s33")
    a("s_mov_b32 s62, 4718592"); a("s_cselect_b32 s62, s62, 5308416"); a("s_mov_b32 s63, 0x20000")
    a("s_cselect_b32 s72, 0, 16"); a("s_cselect_b32 s73, 64, 96")
    a("s_sub_u32 s72, s8, s72"); a("s_lshl_b32 s72, s72, 2"); a("s_add_u32 s72, s72, s3"); a("s_mul_i32 s72, s72, s73")
    a("s_mul_i32 s72, s72, 1152"); a("s_lshl_b32 s73, s9, 7"); a("s_add_u32 s72, s72, s73")
    a("s_cmp_lt_u32 s2, 252"); a("s_cselect_b32 s62, s62, 0")
    if touch:
        a("v_mov_b32 v3, 0"); srd(a, 68, 34, 9216)
        vm.issue("buffer_load_dword v254, v3, %s, s14 offen nt" % sV)
        vm.issue("buffer_load_dword v253, v3, %s, s72 offen nt" % sW2)
        vm.issue("buffer_load_dword v252, v3, %s, 0 offen nt" % sOUT)
    while issued[0] < R:
        vm.depth((d0 if issued[0] < nd0 else d) - 1); issue_next()
        if issued[0] == nfree:
            a("s_cmp_lt_u32 s2, 208"); a("s_cbranch_scc1 L_nofb"); a("s_barrier"); a("L_nofb:")
    T(2)
    a("s_barrier")
    T(3)
    a("ds_read_b128 %s, v%d offset:%d" % (vr(vQ0), vVo, L_Q))
    a("v_and_b32 v3, 8, v0"); a("v_cmp_eq_u32 vcc, 0, v3"); a("v_mov_b32 v%d, 0xff800000" % vM)
    a("s_mov_b32 s15, %s" % f32(128 ** -0.5))
    a("s_waitcnt lgkmcnt(0)")
    for i in range(4): a("v_cndmask_b32 v%d, v%d, 0, vcc" % (vQ1 + i, vQ0 + i))
    for i in range(4): a("v_cndmask_b32 v%d, 0, v%d, vcc" % (vQ0 + i, vQ0 + i))
    vD += [free.pop(), free.pop()]
    S = []
    def paced():
        if issued[0] < 128: vm.depth(d - 1); issue_next()
    def qk(c):
        D = vD[c % 4]
        vm.wait(tok[2 * c + 1])
        a("v_mfma_f32_16x16x32_bf16 %s, %s, %s, 0" % (vr(D), vr(slot[2 * c]), vr(vQ0)))
        a("v_mfma_f32_16x16x32_bf16 %s, %s, %s, %s" % (vr(D), vr(slot[2 * c + 1]), vr(vQ1), vr(D)))
        free.extend([slot[2 * c], slot[2 * c + 1]])
    def extract(c):
        if c % 4 == 0: S.extend(range(free[-1], free[-1] + 4)); free.pop()
        x, y, DA, DB = S[c], S[c + 1], vD[c % 4], vD[(c + 1) % 4]
        for i in range(4):
            for s_, D in ((x, DA), (y, DB)):
                if i == 0: a("v_mov_b32_dpp v%d, v%d quad_perm:[0,0,0,0] %s" % (s_, D, DPP))
                else: a("v_add_f32_dpp v%d, v%d, v%d quad_perm:[%d,%d,%d,%d] %s" % (s_, D + i, s_, i, i, i, i, DPP))
        for rep in range(2):
            a("v_cvt_pk_bf16_f32 v3, v%d, v%d" % (x, y))
            a("v_lshlrev_b32 v%d, 16, v3" % x); a("v_and_b32 v%d, 0xffff0000, v3" % y)
            if rep == 0: a("v_mul_f32 v%d, s15, v%d" % (x, x)); a("v_mul_f32 v%d, s15, v%d" % (y, y))
        a("v_max3_f32 v%d, v%d, v%d, v%d" % (vM, vM, x, y))
    for c in range(0, 32, 2):
        while issued[0] < 2 * c + 4 + d - 1 and issued[0] < 128: paced()
        qk(c); qk(c + 1)
        for _ in range(4 // kcatch if kcatch <= 4 else 1): paced()
        if c >= 2: extract(c - 2)
    extract(30)
    free.extend(vD[2:])
    T(4)
    paced()
    allreduce(a, "v_max_f32", vM, 3, [8, 16, 32])
    a("s_mov_b32 s15, %s" % f32(L2E)); a("v_mul_f32 v%d, s15, v%d" % (vM, vM)); a("v_mov_b32 v%d, 0" % vL); a("v_mov_b32 v4, 0")
    for c in range(0, 32, 4):
        for i in range(4): a("v_fma_f32 v%d, v%d, s15, -v%d" % (S[c + i], S[c + i], vM))
        for i in range(4): a("v_exp_f32 v%d, v%d" % (S[c + i], S[c + i]))
        for i in range(4): a("v_add_f32 v%d, v%d, v%d" % ((vL, 4)[i % 2], (vL, 4)[i % 2], S[c + i]))
        for i in range(4): a("v_cvt_pk_bf16_f32 v%d, v%d, v%d" % (S[c + i], S[c + i], S[c + i]))
        if c % 8 == 4: paced()
    a("v_add_f32 v%d, v%d, v4" % (vL, vL))
    allreduce(a, "v_add_f32", vL, 3, [8, 16, 32])
    a("v_min_u32 v10, -2, v%d" % vM); a("v_min_u32 v11, -2, v%d" % vL)
    a("v_lshlrev_b32 v9, 1, v0")
    a("v_and_b32 v9, 0x78, v9")
    a("s_lshl_b32 s73, s6, 7"); a("s_add_u32 s73, s73, %d" % WS_STAT)
    a("s_lshl_b32 s4, s7, 2"); a("s_add_u32 s4, s4, s3"); a("s_lshl_b32 s4, s4, 4"); a("s_add_u32 s4, s4, s73")
    a("s_mov_b64 exec, 0x11")
    vm.issue("buffer_store_dwordx2 v[10:11], v9, %s, s4 offen %s" % (sWS, hs))
    a("s_mov_b64 exec, -1")
    T(5)
    vB = vD[:2]
    def prepB(n):
        c, t = divmod(n - 64, 2)
        for r in range(4):
            if (r >> 1) == t: a("v_and_b32 v%d, v%d, v%d" % (vB[n % 2] + r, S[c], vMask + r))
            else: a("v_and_b32_dpp v%d, v%d, v%d row_ror:8 %s" % (vB[n % 2] + r, S[c], vMask + r, DPP))
    def stat_valid(): a("v_max_u32 v3, v10, v11"); a("v_cmp_ne_u32 vcc, -1, v3")
    prepB(64)
    tstat = None; nw2 = 0
    for n in range(64, 128):
        while issued[0] < min(n + d, 128): paced()
        if tstat is None and issued[0] >= stat_at:
            tstat = vm.issue("buffer_load_dwordx2 v[10:11], v9, %s, s73 offen %s" % (sWS, hl))
        vm.wait(tok[n])
        a("v_mfma_f32_16x16x32_bf16 %s, %s, %s, %s" % (vr(vAcc), vr(slot[n]), vr(vB[n % 2]), "0" if n == 64 else vr(vAcc)))
        free.append(slot[n])
        if n % 2 == 1 and issued[0] < 128 and issued[0] > n + d: paced()
        if issued[0] >= 128:
            for _ in range(w2rate):
                if nw2 < 16: issue_w2(vm, nw2); nw2 += 1
        if n < 127: prepB(n + 1)
        if tstat and tstat > 0 and vm.done >= tstat:
            stat_valid(); a("s_cmp_eq_u64 vcc, exec"); a("s_cbranch_scc1 L_stat_ok")
            def body():
                a("buffer_load_dwordx2 v[10:11], v9, %s, s73 offen %s" % (sWS, hl)); a("s_waitcnt vmcnt(0)"); stat_valid()
            spin(body, "L_stat")
            a("v_mov_b32 v%d, v10" % vF); allreduce(a, "v_max_f32", vF, 3, [8, 16, 32])
            a("v_sub_f32 v10, v10, v%d" % vF); a("v_sub_f32 v%d, v%d, v%d" % (vF, vM, vF))
            a("v_exp_f32 v10, v10"); a("v_exp_f32 v%d, v%d" % (vF, vF)); a("v_mul_f32 v10, v10, v11")
            allreduce(a, "v_add_f32", 10, 3, [8, 16, 32])
            a("v_rcp_f32 v10, v10"); a("v_mul_f32 v%d, v%d, v10" % (vF, vF))
            a("v_bfe_u32 v3, v0, 2, 1"); a("v_lshlrev_b32 v3, 9, v3"); a("v_lshrrev_b32 v4, 4, v0"); a("v_lshl_or_b32 v3, v4, 7, v3")
            a("v_bfe_u32 v4, v0, 3, 1"); a("v_lshl_or_b32 v3, v4, 4, v3"); a("v_and_b32 v4, 3, v0"); a("v_lshl_or_b32 v9, v4, 2, v3")
            a("s_lshl_b32 s4, s3, 10"); a("s_add_u32 s4, s4, %d" % L_OP); a("v_add_u32 v9, s4, v9")
            tstat = -1
    assert tstat == -1
    T(6)
    while nw2 < 16: issue_w2(vm, nw2); nw2 += 1
    for i in range(4): a("v_mul_f32 v%d, v%d, v%d" % (vAcc + i, vAcc + i, vF))
    a("ds_write2_b32 v9, v%d, v%d offset0:0 offset1:8" % (vAcc, vAcc + 1))
    a("ds_write2_b32 v9, v%d, v%d offset0:16 offset1:24" % (vAcc + 2, vAcc + 3))
    a("s_waitcnt lgkmcnt(0)"); a("s_barrier")
    a("s_cmp_ge_u32 s2, 252"); a("s_cbranch_scc1 L_sdone")
    vA = [free.pop(0) for _ in range(3)]
    vE = [free.pop(0) for _ in range(4)]
    vP = [[free.pop(0) for _ in range(4)] for _ in range(3)]
    def perms(kb, vmx):
        vmx.wait(w2[8 * kb + 7][1])
        for i in range(4):
            for q in range(4):
                a("v_perm_b32 v%d, v%d, v%d, s%d" % (vP[kb][i] + q, w2[8 * kb + 2 * q + 1][0] + i // 2, w2[8 * kb + 2 * q][0] + i // 2, 12 + i % 2))
    def mm(kb):
        for i in range(4):
            a("v_mfma_f32_16x16x32_bf16 %s, %s, %s, %s" % (vr(vE[i]), vr(vA[kb]), vr(vP[kb][i]), "0" if kb == 0 else vr(vE[i])))
    a("s_cmp_ge_u32 s2, 144"); a("s_cbranch_scc1 L_down")
    v1 = vm.copy()
    a("v_and_b32 v3, 15, v0"); a("v_lshlrev_b32 v3, 9, v3"); a("v_and_b32 v4, 48, v0"); a("v_or_b32 v9, v3, v4")
    a("s_lshl_b32 s4, s8, 13"); a("s_lshl_b32 s5, s3, 7"); a("s_add_u32 s4, s4, s5"); a("s_add_u32 s4, s4, %d" % WS_O)
    perms(0, v1); perms(1, v1)
    T(7)
    def body():
        for kb in range(2): a("buffer_load_dwordx4 %s, v9, %s, s4 offen offset:%d %s" % (vr(vA[kb]), sWS, 64 * kb, hl))
        a("s_waitcnt vmcnt(1)")
        a("v_max3_u32 v3, v%d, v%d, v%d" % (vA[0], vA[0] + 1, vA[0] + 2))
        a("s_waitcnt vmcnt(0)")
        a("v_max3_u32 v4, v%d, v%d, v%d" % (vA[1], vA[1] + 1, vA[1] + 2))
        a("v_max3_u32 v3, v3, v%d, v%d" % (vA[0] + 3, vA[1] + 3))
        a("v_max_u32 v3, v3, v4"); a("v_cmp_ne_u32 vcc, -1, v3")
    spin(body, "L_opoll")
    T(8)
    mm(0); mm(1)
    a("s_branch L_l2fin")
    a("L_down:")
    v2 = vm.copy()
    for k in range(16, 24): issue_w2(v2, k)
    a("v_lshrrev_b32 v3, 4, v0"); a("v_lshlrev_b32 v3, 7, v3"); a("v_bfe_u32 v4, v0, 1, 3"); a("v_lshl_or_b32 v3, v4, 4, v3")
    a("s_mul_i32 s4, s3, 1536"); a("v_add_u32 v3, s4, v3")
    for kb in range(3): a("ds_read_b128 %s, v3 offset:%d" % (vr(vA[kb]), L_H + 512 * kb))
    a("v_and_b32 v4, 1, v0"); a("v_cmp_eq_u32 vcc, 0, v4"); a("s_waitcnt lgkmcnt(0)")
    for kb in range(3):
        for i in range(4): a("v_cndmask_b32 v%d, 0, v%d, vcc" % (vA[kb] + i, vA[kb] + i))
    T(7)
    for kb in range(3): perms(kb, v2); mm(kb)
    T(8)
    a("L_l2fin:")
    vO = vP[0][:2]
    a("s_lshl_b32 s4, s3, 11"); a("v_add_u32 v9, s4, v%d" % vVo)
    for x in range(2):
        for i in range(4): a("v_add_f32 v%d, v%d, v%d" % (vO[x] + i, vE[i] + 2 * x, vE[i] + 2 * x + 1))
        a("ds_write_b128 v9, %s offset:%d" % (vr(vO[x]), L_LP + 1024 * x))
    a("s_lshl_b32 s4, s3, 10"); a("v_add_u32 v9, s4, v%d" % vVo)
    a("v_lshrrev_b32 v3, 4, v0"); a("v_mul_u32_u24 v3, %d, v3" % (2 * 7168)); a("v_and_b32 v4, 15, v0"); a("v_lshl_add_u32 v3, v4, 4, v3")
    a("s_mul_i32 s4, s9, %d" % (8 * 7168)); a("s_lshl_b32 s5, s8, 8"); a("s_add_u32 s4, s4, s5")
    a("s_mul_i32 s5, s3, 7168"); a("s_add_u32 s4, s4, s5"); a("s_add_u32 s4, s4, %d" % WS_P)
    a("s_waitcnt lgkmcnt(0)"); a("s_barrier")
    a("s_cmp_ge_u32 s3, 2"); a("s_cbranch_scc1 L_sdone")
    for w in range(4): a("ds_read_b128 %s, v9 offset:%d" % (vr(vE[w]), L_LP + 2048 * w))
    a("s_waitcnt lgkmcnt(2)")
    for i in range(4): a("v_add_f32 v%d, v%d, v%d" % (vE[0] + i, vE[0] + i, vE[1] + i))
    a("s_waitcnt lgkmcnt(0)")
    for i in range(4): a("v_add_f32 v%d, v%d, v%d" % (vE[2] + i, vE[2] + i, vE[3] + i))
    for i in range(4): a("v_add_f32 v%d, v%d, v%d" % (vE[0] + i, vE[0] + i, vE[2] + i))
    for i in range(4): a("v_min_u32 v%d, -2, v%d" % (vE[0] + i, vE[0] + i))
    a("buffer_store_dwordx4 %s, v3, %s, s4 offen %s" % (vr(vE[0]), sWS, hs))
    a("L_sdone:")
    T(9); T.flush()
    a("s_endpgm")

    a("L_aux:")
    vm = VM(a); vm.n = 1
    vLin, vWo = 1, 2
    vXN, vAc, vTp, vRing = 8, 44, 76, 84
    a("v_lshlrev_b32 v%d, 4, v0" % vLin)
    if umap:
        a("s_and_b32 s100, s2, 7"); a("s_mul_i32 s100, s100, 26"); a("s_lshr_b32 s4, s2, 3"); a("s_add_u32 s100, s100, s4")
        a("s_cmp_lt_u32 s2, 208"); a("s_cselect_b32 s100, s100, s2")
    else: a("s_mov_b32 s100, s2")
    a("v_mov_b32 v4, -1"); a("v_mov_b32 v5, -1"); a("v_mov_b32 v6, -1"); a("v_mov_b32 v7, -1")
    a("s_cmp_lt_u32 s100, 64"); a("s_movk_i32 s14, 8192"); a("s_cselect_b32 s14, s14, 9216"); a("s_mov_b32 s58, 4718592"); a("s_cselect_b32 s58, s58, 5308416"); a("s_cselect_b32 s15, 0, 64")
    a("s_cmp_lt_u32 s100, 136"); a("s_cselect_b32 s15, s15, 136"); a("s_sub_u32 s15, s100, s15"); a("s_lshl_b32 s15, s15, 7")
    a("v_lshrrev_b32 v3, 3, v0"); a("v_lshlrev_b32 v3, 3, v3"); a("v_mul_u32_u24 v3, s14, v3"); a("v_and_b32 v2, 7, v0"); a("v_lshl_add_u32 v%d, v2, 4, v3" % vWo)
    a("s_mul_i32 s75, s14, 57")
    a("s_waitcnt lgkmcnt(0)")
    a("s_cmp_lt_u32 s100, 136"); a("s_cselect_b32 s56, s28, s30"); a("s_cselect_b32 s57, s29, s31")
    a("s_cmp_lt_u32 s100, 64"); a("s_cselect_b32 s56, s22, s56"); a("s_cselect_b32 s57, s23, s57"); a("s_mov_b32 s59, 0x20000")
    a("s_cmp_lt_u32 s2, 208"); a("s_cselect_b32 s58, s58, 0")
    srd(a, 52, 38, "0x40000000")
    w1 = []
    def issue_w1():
        blk, j = divmod(len(w1), 8)
        r = vRing + 32 * (blk % w1blk) + 4 * j
        w1.append(vm.issue("buffer_load_dwordx4 %s, v%d, %s, s15 offen nt" % (vr(r), vWo, sW1)))
        a("s_add_u32 s15, s15, %s" % ("s75" if j == 7 else "s14"))
    a("s_and_b32 s4, s6, 15"); a("s_lshl_b32 s4, s4, 13"); a("s_lshr_b32 s5, s2, 5"); a("s_lshl_b32 s5, s5, 1"); a("s_add_u32 s5, s5, s7")
    a("s_lshl_b32 s5, s5, 9"); a("s_add_u32 s4, s4, s5"); a("s_add_u32 s74, s4, %d" % WS_O)
    a("v_lshlrev_b32 v3, 3, v0")
    vm.issue("buffer_store_dwordx2 v[4:5], v3, %s, s74 offen %s" % (sWS, hs))
    a("s_lshl_b32 s4, s2, 6"); a("s_add_u32 s4, s4, %d" % WS_STAT)
    a("s_mov_b64 exec, 0xf")
    vm.issue("buffer_store_dwordx4 v[4:7], v%d, %s, s4 offen %s" % (vLin, sWS, hs))
    a("s_mov_b64 exec, -1")
    a("v_lshrrev_b32 v3, 4, v0"); a("v_mul_u32_u24 v3, %d, v3" % (2 * 7168)); a("v_and_b32 v76, 15, v0"); a("v_lshl_add_u32 v3, v76, 4, v3")
    a("s_mul_i32 s4, s9, %d" % (8 * 7168)); a("s_lshl_b32 s5, s8, 8"); a("s_add_u32 s4, s4, s5"); a("s_add_u32 s4, s4, %d" % WS_P)
    a("s_cmp_lt_u32 s2, 252"); a("s_cselect_b32 s4, s4, %d" % WS_SINK)
    vm.issue("buffer_store_dwordx4 v[4:7], v3, %s, s4 offen %s" % (sWS, hs))
    a("s_add_u32 s4, s4, 7168")
    vm.issue("buffer_store_dwordx4 v[4:7], v3, %s, s4 offen %s" % (sWS, hs))
    a("s_lshl_b32 s4, s100, 10")
    tclr = vm.issue("buffer_store_dwordx4 v[4:7], v%d, %s, s4 offen %s" % (vLin, sWS, hs))
    for _ in range(burst): issue_w1()
    srd(a, 64, 36, 256); srd(a, 48, 16, 9216); srd(a, 68, 34, 9216)
    a("s_barrier")
    T(1)
    a("v_mov_b32 v76, 1"); a("v_mov_b32 v77, 0")
    vm.wait(tclr)
    a("s_mov_b64 exec, 1")
    if flag == "byte": vm.issue("buffer_store_byte v76, v77, %s, s2 offen %s" % (sDBG, hs))
    elif flag == "atom":
        a("s_and_b32 s4, s2, 3"); a("s_lshl_b32 s4, s4, 3"); a("s_lshl_b32 s4, 1, s4"); a("v_mov_b32 v76, s4"); a("s_and_b32 s4, s2, 0xfc")
        vm.issue("buffer_atomic_or v76, v77, %s, s4 offen sc1" % (sDBG))
    a("s_mov_b64 exec, -1")
    T(3)
    a("s_cmp_ge_u32 s2, 208"); a("s_cbranch_scc1 L_nol1")
    for i in range(9): a("ds_read_b128 %s, v%d offset:%d" % (vr(vXN + 4 * i), vLin, L_XN + 1024 * i))
    a("s_waitcnt lgkmcnt(0)")
    def paced1(blk):
        if len(w1) < 72 and len(w1) < 8 * (blk + w1blk):
            if len(w1) >= da: vm.wait(w1[len(w1) - da])
            issue_w1()
    for blk in range(9):
        while len(w1) < min(72, 8 * blk + 7 + da): paced1(blk)
        vm.wait(w1[8 * blk + 7])
        base = vRing + 32 * (blk % w1blk)
        for i in range(8):
            t = vTp + 4 * (i % 2)
            for q in range(4): a("v_perm_b32 v%d, v%d, v%d, s%d" % (t + q, base + 4 * (2 * q + 1) + i // 2, base + 4 * (2 * q) + i // 2, 12 + i % 2))
            if i > 0:
                D = vAc + 4 * (i - 1)
                a("v_mfma_f32_16x16x32_bf16 %s, %s, %s, %s" % (vr(D), vr(vXN + 4 * blk), vr(vTp + 4 * ((i - 1) % 2)), "0" if blk == 0 else vr(D)))
            if i % 4 == 0: paced1(blk)
        D = vAc + 28
        a("v_mfma_f32_16x16x32_bf16 %s, %s, %s, %s" % (vr(D), vr(vXN + 4 * blk), vr(vTp + 4), "0" if blk == 0 else vr(D)))
    T(2)
    a("v_bfe_u32 v3, v0, 4, 1"); a("v_lshlrev_b32 v3, 2, v3"); a("v_lshrrev_b32 v4, 5, v0"); a("v_lshl_or_b32 v3, v4, 1, v3")
    a("v_bfe_u32 v4, v0, 3, 1"); a("v_or_b32 v3, v3, v4"); a("v_lshlrev_b32 v3, 7, v3"); a("v_and_b32 v4, 7, v0"); a("v_lshl_or_b32 v3, v4, 4, v3")
    a("s_lshl_b32 s4, s100, 10")
    for i in range(8):
        for ii in range(2): a("v_permlane32_swap_b32 v%d, v%d" % (vAc + 4 * i + ii, vAc + 4 * i + ii + 2))
    for i in range(8): a("v_add_f32_dpp v%d, v%d, v%d row_ror:8 row_mask:0xf bank_mask:0x3" % (vTp + i, vAc + 4 * i + 2, vAc + 4 * i))
    for i in range(8): a("v_add_f32_dpp v%d, v%d, v%d row_ror:8 row_mask:0xf bank_mask:0xc" % (vTp + i, vAc + 4 * i + 1, vAc + 4 * i + 3))
    for q in range(4): a("v_cvt_pk_bf16_f32 v%d, v%d, v%d" % (4 + q, vTp + 2 * q, vTp + 2 * q + 1))
    for q in range(4): a("v_min_u32 v%d, -2, v%d" % (4 + q, 4 + q))
    a("buffer_store_dwordx4 v[4:7], v3, %s, s4 offen %s" % (sWS, hs))
    a("s_branch L_l1done")
    a("L_nol1:")
    a("s_barrier")
    a("L_l1done:")
    a("v_lshlrev_b32 v10, 2, v0")
    T(10)
    a("v_bfe_u32 v3, v0, 2, 1"); a("v_lshlrev_b32 v3, 11, v3"); a("v_lshrrev_b32 v4, 5, v0"); a("v_lshl_or_b32 v3, v4, 10, v3")
    a("v_bfe_u32 v4, v0, 4, 1"); a("v_lshl_or_b32 v3, v4, 6, v3"); a("v_and_b32 v4, 3, v0"); a("v_lshl_or_b32 v3, v4, 4, v3")
    a("s_and_b32 s4, s6, 15"); a("s_lshl_b32 s4, s4, 12"); a("s_lshr_b32 s5, s2, 5"); a("s_lshl_b32 s5, s5, 7"); a("s_add_u32 s4, s4, s5")
    a("s_mov_b32 s5, 0x01010101")
    def body():
        a("buffer_load_dword v8, v10, %s, 0 offen %s" % (sDBG, hl)); a("s_waitcnt vmcnt(0)"); a("v_cmp_eq_u32 vcc, s5, v8")
    if fl != hl:
        a("buffer_load_dword v8, v10, %s, 0 offen %s" % (sDBG, fl)); a("s_waitcnt vmcnt(0)"); a("v_cmp_eq_u32 vcc, s5, v8")
        a("s_cmp_eq_u64 vcc, exec"); a("s_cbranch_scc1 L_flags_ok")
    if flag != "none": spin(body, "L_flags")
    T(4)
    def body():
        a("buffer_load_dwordx4 v[4:7], v3, %s, s4 offen %s" % (sWS, hl)); a("s_waitcnt vmcnt(0)")
        a("v_max3_u32 v8, v4, v5, v6"); a("v_max_u32 v8, v8, v7"); a("v_cmp_ne_u32 vcc, -1, v8")
    spin(body, "L_qpoll")
    T(11)
    a("ds_write_b128 v%d, v[4:7] offset:%d" % (vLin, L_Q))
    a("s_waitcnt lgkmcnt(0)"); a("s_barrier")
    T(5)
    a("s_cmp_lt_u32 s2, 144"); a("s_cbranch_scc1 L_noh")
    a("s_cmp_ge_u32 s2, 252"); a("s_cbranch_scc1 L_noh")
    vm = VM(a)
    vG, vU = 16, 40
    a("s_mul_i32 s4, s8, 6144"); a("s_sub_u32 s4, s4, %d" % (16 * 6144 - 64 * 1024))
    def body():
        for y in range(6):
            a("s_add_u32 s5, s4, %d" % (1024 * y)); a("buffer_load_dwordx4 %s, v%d, %s, s5 offen %s" % (vr(vG + 4 * y), vLin, sWS, hl))
            a("s_add_u32 s5, s4, %d" % (1024 * (72 + y))); a("buffer_load_dwordx4 %s, v%d, %s, s5 offen %s" % (vr(vU + 4 * y), vLin, sWS, hl))
        a("s_waitcnt vmcnt(0)")
        a("v_max_u32 v8, v%d, v%d" % (vG, vG + 1))
        for r in range(vG + 2, vG + 48, 2): a("v_max3_u32 v8, v8, v%d, v%d" % (r, r + 1))
        a("v_cmp_ne_u32 vcc, -1, v8")
    spin(body, "L_gpoll")
    a("v_and_b32 v3, 7, v0"); a("v_lshlrev_b32 v3, 7, v3"); a("v_lshrrev_b32 v4, 3, v0"); a("v_lshl_or_b32 v3, v4, 4, v3")
    a("s_mov_b32 s4, %s" % f32(0.044715)); a("s_mov_b32 s5, %s" % f32(-2 * (2 / 3.141592653589793) ** 0.5 * L2E))
    g, e = list(range(64, 72)), list(range(72, 80))
    def unpack(dst, src):
        for q in range(4): a("v_lshlrev_b32 v%d, 16, v%d" % (dst[2 * q], src + q)); a("v_and_b32 v%d, 0xffff0000, v%d" % (dst[2 * q + 1], src + q))
    def pack(dst, src):
        for q in range(4): a("v_cvt_pk_bf16_f32 v%d, v%d, v%d" % (dst + q, src[2 * q], src[2 * q + 1]))
    for y in range(6):
        unpack(g, vG + 4 * y)
        for i in range(8): a("v_mul_f32 v%d, v%d, v%d" % (e[i], g[i], g[i]))
        for i in range(8): a("v_fma_f32 v%d, v%d, s4, 1.0" % (e[i], e[i]))
        for i in range(8): a("v_mul_f32 v%d, v%d, v%d" % (e[i], e[i], g[i]))
        for i in range(8): a("v_mul_f32 v%d, s5, v%d" % (e[i], e[i]))
        for i in range(8): a("v_exp_f32 v%d, v%d" % (e[i], e[i]))
        for i in range(8): a("v_add_f32 v%d, 1.0, v%d" % (e[i], e[i]))
        for i in range(8): a("v_rcp_f32 v%d, v%d" % (e[i], e[i]))
        for i in range(8): a("v_mul_f32 v%d, v%d, v%d" % (g[i], g[i], e[i]))
        pack(vG + 4 * y, g); unpack(g, vG + 4 * y); unpack(e, vU + 4 * y)
        for i in range(8): a("v_mul_f32 v%d, v%d, v%d" % (g[i], g[i], e[i]))
        pack(vG + 4 * y, g)
        a("ds_write_b128 v3, %s offset:%d" % (vr(vG + 4 * y), L_H + 1024 * y))
    a("L_noh:")
    a("s_sub_u32 s4, s2, 184"); a("s_max_i32 s4, s4, 0"); a("s_mul_i32 s14, s4, 7168"); a("s_add_u32 s14, s14, %d" % WS_P)
    a("s_and_b32 s5, s4, 7"); a("s_mul_i32 s5, s5, 1152"); a("s_lshr_b32 s4, s4, 3"); a("s_lshl_b32 s4, s4, 7"); a("s_add_u32 s15, s4, s5")
    a("v_and_b32 v3, 15, v0"); a("v_lshlrev_b32 v3, 3, v3"); a("v_lshrrev_b32 v4, 4, v0"); a("v_lshl_or_b32 v2, v4, 1, v3")
    a("buffer_load_ushort v12, v2, %s, s15 offen" % sX)
    a("v_lshlrev_b32 v3, 3, v0")
    T(6)
    a("s_waitcnt vmcnt(0) lgkmcnt(0)"); a("s_barrier")
    for w in range(4): a("ds_read_b128 %s, v%d offset:%d" % (vr(16 + 4 * w), vLin, L_OP + 1024 * w))
    a("s_waitcnt lgkmcnt(2)")
    for i in range(4): a("v_add_f32 v%d, v%d, v%d" % (16 + i, 16 + i, 20 + i))
    a("s_waitcnt lgkmcnt(0)")
    for i in range(4): a("v_add_f32 v%d, v%d, v%d" % (24 + i, 24 + i, 28 + i))
    for i in range(4): a("v_add_f32 v%d, v%d, v%d" % (16 + i, 16 + i, 24 + i))
    a("v_cvt_pk_bf16_f32 v4, v16, v17"); a("v_cvt_pk_bf16_f32 v5, v18, v19"); a("v_min_u32 v4, -2, v4"); a("v_min_u32 v5, -2, v5")
    a("buffer_store_dwordx2 v[4:5], v3, %s, s74 offen %s" % (sWS, hs))
    T(7)
    a("s_barrier")
    a("s_cmp_lt_u32 s2, 184"); a("s_cbranch_scc1 L_adone")
    a("v_lshlrev_b32 v12, 16, v12")
    def gather(ys, label, dst):
        def body():
            for k, y in enumerate(ys):
                if y == 4: a("s_add_u32 s5, s14, 4096")
                a("buffer_load_dwordx4 %s, v%d, %s, %s offen offset:%d %s" % (vr(16 + 4 * k), vLin, sWS, "s14" if y < 4 else "s5", 1024 * (y % 4), hl))
            for k in range(len(ys)):
                a("s_waitcnt vmcnt(%d)" % (len(ys) - 1 - k))
                b = 16 + 4 * k
                if k == 0: a("v_max_u32 v3, v%d, v%d" % (b, b + 1))
                else: a("v_max3_u32 v3, v3, v%d, v%d" % (b, b + 1))
                a("v_max3_u32 v3, v3, v%d, v%d" % (b + 2, b + 3))
            a("v_cmp_ne_u32 vcc, -1, v3")
        spin(body, label)
        for k in range(1, len(ys)):
            for i in range(4): a("v_add_f32 v%d, v%d, v%d" % (16 + i, 16 + i, 16 + 4 * k + i))
        a("v_permlane32_swap_b32 v16, v18"); a("v_permlane32_swap_b32 v17, v19")
        a("v_add_f32 v16, v16, v18"); a("v_add_f32 v17, v17, v19")
        a("v_permlane16_swap_b32 v16, v17"); a("v_add_f32 v%d, v16, v17" % dst)
        round_bf16(a, dst)
    gather([4, 5, 6], "L_ypoll", 13)
    T(8)
    gather([0, 1, 2, 3], "L_apoll", 14)
    a("v_add_f32 v12, v12, v14"); round_bf16(a, 12); a("v_add_f32 v12, v12, v13"); a("v_cvt_pk_bf16_f32 v12, v12, v12")
    a("buffer_store_short v12, v2, %s, s15 offen" % sOUT)
    a("L_adone:")
    T(9); T.flush()
    a("L_end:")
    a("s_endpgm")
    a("L_codeend:")
    a.pad()
    head = open("parallel_sum__sliding_block_cached__geglu_ffn__decode.s.ref").read().split("; Override")[0]
    head += "; @launch grid=(256,1,1) block=(320,1,1) lds=%d\n" % LDS_BYTES
    head += '.amdgcn_target "amdgcn-amd-amdhsa--gfx950"\n.text\n.globl %s\n.p2align 8\n.type %s,@function\n' % (KN, KN)
    tail = '.section .rodata,"a"\n.p2align 6\n.amdhsa_kernel %s\n  .amdhsa_next_free_vgpr 256\n  .amdhsa_next_free_sgpr 102\n  .amdhsa_accum_offset 256\n' % KN
    tail += "  .amdhsa_group_segment_fixed_size 0\n  .amdhsa_kernarg_size 96\n  .amdhsa_user_sgpr_count 2\n  .amdhsa_user_sgpr_kernarg_segment_ptr 1\n  .amdhsa_system_sgpr_workgroup_id_x 1\n.end_amdhsa_kernel\n"
    return head + a.text() + tail

if __name__ == "__main__":
    kw = eval("dict(%s)" % (sys.argv[2] if len(sys.argv) > 2 else ""))
    open(sys.argv[1], "w").write(gen(**kw))

def report(t, verbose):
    import numpy as np
    def st(name, x):
        x = x.reshape(x.shape[0], -1)
        print("   %-28s min %6.2f mean %6.2f max %6.2f" % (name, np.median(x.min(axis=1)), np.median(x.mean(axis=1)), np.median(x.max(axis=1))))
    s, x = t[:, :, :4], t[:, :, 4]
    for i, n in enumerate(["start", "S0", "ring full", "S1", "K done", "softmax done", "V done"]): st("stream " + n, s[..., i])
    st("stream wo perms done", s[:, :144, :, 7]); st("stream o seen", s[:, :144, :, 8]); st("stream wo end", s[:, :144, :2, 9])
    st("stream down mm done", s[:, 144:252, :, 8]); st("stream down end", s[:, 144:252, :2, 9])
    st("aux L1 mm done", x[:, :208, 2])
    for i, n in [(3, "flag sent"), (10, "flag check start"), (4, "flags seen"), (11, "q seen"), (5, "S1"), (6, "h done"), (7, "o sent")]: st("aux " + n, x[..., i])
    if verbose:
        u = t[-1]
        print("L1 done by wg"); print(u[:, 4, 10].reshape(32, 8).T)
        print("ring full by wg"); print(u[:, 0, 2].reshape(32, 8).T)
        print("V done by wg"); print(u[:, 0, 6].reshape(32, 8).T)
    st("aux y seen", x[:, 184:, 8]); st("aux out sent", x[:, 184:, 9])
```

```python
import re

REG = re.compile(r"\b([vsa])(?:(\d+)|\[(\d+):(\d+)\])")
TRANS = ("v_exp_f32", "v_log_f32", "v_rcp_f32", "v_rsq_f32", "v_sqrt_f32", "v_sin_f32", "v_cos_f32")

def regs_of(tok):
    out = set()
    for m in REG.finditer(tok):
        k = m.group(1)
        if m.group(2) is not None: out.add((k, int(m.group(2))))
        else: out.update((k, i) for i in range(int(m.group(3)), int(m.group(4)) + 1))
    if re.search(r"\bvcc(_lo|_hi)?\b", tok): out.add(("s", "vcc"))
    if re.search(r"\bexec(_lo|_hi)?\b", tok): out.add(("s", "exec"))
    return out

def split_ops(s):
    ops, depth, cur = [], 0, ""
    for ch in s:
        if ch in "[(": depth += 1
        if ch in "])": depth -= 1
        if ch == "," and depth == 0: ops.append(cur.strip()); cur = ""
        else: cur += ch
    if cur.strip(): ops.append(cur.strip())
    return ops

class I:
    def __init__(self, text):
        self.text = text
        self.label = text[:-1] if text.endswith(":") and not text.startswith(";") else None
        self.dst, self.src = set(), set()
        self.A = self.B = self.C = set()
        self.op = ""; self.kind = "other"; self.target = None; self.data = set()
        if self.label or text.startswith(".") or text.startswith(";"):
            self.kind = "label" if self.label else "dir"; return
        p = text.split(None, 1); self.op = op = p[0]
        ops = split_ops(p[1]) if len(p) > 1 else []
        if ops: ops[-1] = ops[-1].split(" ")[0] if not ops[-1].startswith("hwreg") else ops[-1]
        R = [regs_of(o) for o in ops]
        allr = set().union(*R) if R else set()
        rest = set().union(*R[1:]) if len(R) > 1 else set()
        if op.startswith("v_mfma"):
            self.kind = "mfma"; self.dst = R[0]; self.A, self.B, self.C = R[1], R[2], R[3]; self.src = rest
        elif op.startswith("v_"):
            self.kind = "valu"; self.dst = R[0]; self.src = rest
            if "swap" in op: self.dst = allr; self.src = allr
            if op.startswith("v_fmac") or "_dpp" in op: self.src = allr
            if "_co_" in op: self.dst = R[0] | R[1]; self.src = set().union(*R[2:])
        elif op.startswith("buffer_store") or op.startswith("global_store") or op.startswith("buffer_atomic"):
            self.kind = "vmem"; self.src = allr
            self.data = R[0] if op.startswith("buffer") else R[1]
            if "atomic" in op and " sc0" in text: self.dst = R[0]
        elif op.startswith("buffer_load") or op.startswith("global_load"):
            self.kind = "vmem"; self.dst = R[0]; self.src = rest
        elif op.startswith("ds_write") or op.startswith("ds_add"):
            self.kind = "ds"; self.src = allr
        elif op.startswith("ds_"):
            self.kind = "ds"; self.dst = R[0]; self.src = rest
        elif op.startswith("s_cbranch") or op == "s_branch":
            self.kind = "branch"; self.target = ops[0]
        elif op.startswith("s_"):
            self.kind = "salu"
            if op.startswith("s_cmp") or op.startswith("s_atomic") or op in ("s_waitcnt", "s_nop", "s_barrier", "s_endpgm", "s_setprio"): self.src = allr
            else: self.dst = R[0] if R else set(); self.src = rest
        else:
            raise ValueError(text)
    def states(self):
        if self.kind in ("label", "dir"): return 0
        if self.op == "s_nop": return int(self.text.split()[1]) + 1
        return 1

def vv(s): return {r for r in s if r[0] in "va"}
def ss(s): return {r for r in s if r[0] == "s"}

def need(p, c):
    n = 0
    if p.kind == "valu":
        w = vv(p.dst)
        if c.kind == "mfma" and w & c.src: n = max(n, 2)
        if c.kind == "valu":
            if "_dpp" in c.op and w & c.src: n = max(n, 2)
            if "permlane" in c.op and w & c.src: n = max(n, 2)
            if c.op.startswith("v_read") and w & c.src: n = max(n, 1)
            if p.op.startswith(TRANS) and w & c.src: n = max(n, 1)
        sw = ss(p.dst)
        if sw:
            if c.kind == "valu" and sw & c.src: n = max(n, 2)
            if c.kind == "vmem" and sw & c.src: n = max(n, 5)
            if c.kind == "salu" and sw & c.src: n = max(n, 1)
    if p.kind == "mfma":
        assert "16x16x32" in p.op
        if c.kind == "mfma":
            if p.dst & (c.A | c.B): n = max(n, 8)
            if p.dst & c.C and p.dst != c.C: n = max(n, 6)
            if p.dst & c.dst and p.dst != c.C: n = max(n, 6)
        elif c.kind in ("valu", "vmem", "ds"):
            if p.dst & (c.src | c.dst): n = max(n, 8)
            if c.kind == "valu" and p.C & c.dst: n = max(n, 3)
    if p.kind == "vmem" and len(p.data) >= 3 and c.kind in ("valu", "mfma", "ds", "vmem") and p.data & c.dst: n = max(n, 2)
    return n

class Asm:
    def __init__(self): self.ins = []
    def __call__(self, text):
        for t in text.split("\n"):
            t = t.strip()
            if t: self.ins.append(I(t))
    def pad(self):
        WIN = 12
        at_label = {}
        for _ in range(3):
            out, hist = [], []
            for i in self.ins:
                if i.kind == "label":
                    hist = hist + at_label.get(i.label, [])
                    out.append(i); continue
                if i.kind == "dir": out.append(i); continue
                k = max([need(p, i) - d for p, d in hist] + [0])
                if k > 0:
                    out.append(I("s_nop %d" % (k - 1))); hist = [(p, d + k) for p, d in hist]
                out.append(i)
                st = i.states()
                hist = [(p, d + st) for p, d in hist if d + st < WIN] + [(i, 0)]
                if i.kind == "branch":
                    at_label[i.target] = at_label.get(i.target, []) + hist
                    if i.op == "s_branch": hist = []
                if i.op == "s_endpgm": hist = []
            self.ins = out
    def text(self):
        return "\n".join((i.text if i.kind in ("label", "dir") else "    " + i.text) for i in self.ins) + "\n"

class VM:
    def __init__(self, a): self.a = a; self.n = 0; self.done = 0
    def issue(self, text):
        self.a(text); self.n += 1; return self.n
    def wait(self, tok):
        if tok > self.done:
            k = self.n - tok
            assert k <= 63
            self.a("s_waitcnt vmcnt(%d)" % k); self.done = tok
    def depth(self, d):
        self.wait(self.n - d)
    def copy(self):
        v = VM(self.a); v.n = self.n; v.done = self.done; return v
```

```python
import sys, struct
from asmlib import Asm, VM
KN = "parallel_sum__sliding_block_cached__geglu_ffn__decode_kernel"

def f32(x): return "0x%08x" % struct.unpack("<I", struct.pack("<f", x))[0]
def vr(b, n=4): return "v[%d:%d]" % (b, b + n - 1) if n > 1 else "v%d" % b
DPP = "row_mask:0xf bank_mask:0xf"

WS_L1, WS_STAT, WS_O, WS_P, WS_SINK, WS_TS, WS_CTR = 0, 0x40000, 0x140000, 0x80000, 0x100000, 0x200000, 0x48000
L_F, L_Q, L_H, L_OP, L_LP, L_C = 0, 1024, 2048, 8192, 12288, 20480
LDS_BYTES = 21504
SPIN = 400000
L2E = 1.4426950408889634

sK, sV, sX, sWS, sW1, sW2, sDBG, sOUT = ("s[%d:%d]" % (b, b + 3) for b in (40, 44, 48, 52, 56, 60, 64, 68))

def srd(a, base, ptr, nbytes):
    a("s_mov_b32 s%d, s%d" % (base, ptr)); a("s_mov_b32 s%d, s%d" % (base + 1, ptr + 1))
    a("s_mov_b32 s%d, %s" % (base + 2, nbytes)); a("s_mov_b32 s%d, 0x20000" % (base + 3))

class Stamps:
    def __init__(self, a, on): self.a, self.on, self.n = a, on, 0
    def __call__(self, idx):
        if self.on: self.a("s_memrealtime s[%d:%d]" % (76 + 2 * idx, 77 + 2 * idx))
    def flush(self, n=12):
        if not self.on: return
        a = self.a
        a("s_waitcnt lgkmcnt(0)")
        a("s_mul_i32 s4, s2, 6"); a("s_add_u32 s4, s4, s3"); a("s_lshl_b32 s4, s4, 6"); a("s_add_u32 s4, s4, %d" % WS_TS)
        a("s_mov_b64 exec, 1"); a("v_mov_b32 v0, 0")
        for q in range(n // 4):
            for i in range(4): a("v_mov_b32 v%d, s%d" % (4 + 4 * q + i, 76 + 2 * (4 * q + i)))
            a("buffer_store_dwordx4 %s, v0, %s, s4 offen offset:%d" % (vr(4 + 4 * q), sWS, 16 * q))

def allreduce(a, op, v, t, steps):
    for s in steps:
        if s == 0: a("%s_dpp v%d, v%d, v%d quad_perm:[1,0,3,2] %s" % (op, v, v, v, DPP))
        elif s < 16: a("%s_dpp v%d, v%d, v%d row_ror:%d %s" % (op, v, v, v, s, DPP))
        else:
            a("v_mov_b32 v%d, v%d" % (t, v)); a("v_permlane%d_swap_b32 v%d, v%d" % (s, v, t)); a("%s v%d, v%d, v%d" % (op, v, v, t))

def round_bf16(a, v):
    a("v_cvt_pk_bf16_f32 v%d, v%d, v%d" % (v, v, v)); a("v_and_b32 v%d, 0xffff0000, v%d" % (v, v))

def gen(d=6, d0=3, nd0=24, dend=6, nramp=96, R=52, ts=0, kcatch=2, stat_at=104, w2rate=4, hs="sc1", hl="sc1",
        nfree=32, da=11, burst=11, pf=1, flagblk=6, lnstep=28, pre=0, noclear=0, noq=0, nol1=0, kvmap=0, npo=1, npa=1, thr=16, osf='', w2pre=12, b0=3, loc=1, e3=100, orep=1, fb=0, lo=4, hi=6, mstep=8, theta=16, fbend=120, mlag=5, gain=16, duty=0.5, G=32, lv=(4, 5, 6), th=(8, 22), r0=16):
    hi = lv[-1]
    a = Asm(); T = Stamps(a, ts)
    uid = [0]
    def spin(body, label):
        a("s_mov_b32 s11, %d" % SPIN)
        a(label + ":"); body()
        a("s_cmp_eq_u64 vcc, exec"); a("s_cbranch_scc1 %s_ok" % label)
        a("s_sub_u32 s11, s11, 1"); a("s_cmp_lg_u32 s11, 0"); a("s_cbranch_scc1 %s" % label)
        a(label + "_ok:")

    def mpoll(label, groups, npipe, pre=False):
        nl = sum(len(g[1]) for g in groups)
        def issue():
            for m, loads, _ in groups:
                a("s_mov_b64 exec, s[%d:%d]" % (m, m + 1))
                for t in loads: a(t)
        def check():
            for m, _, regs in groups:
                if len(groups) > 1: a("s_mov_b64 exec, s[%d:%d]" % (m, m + 1))
                a("v_max3_u32 v3, v%d, v%d, v%d" % tuple(regs[:3]))
                rest = regs[3:]
                while len(rest) >= 2: a("v_max3_u32 v3, v3, v%d, v%d" % tuple(rest[:2])); rest = rest[2:]
                if rest: a("v_max_u32 v3, v3, v%d" % rest[0])
                a("v_cmp_eq_u32 s[%d:%d], -1, v3" % (m, m + 1))
            m0 = groups[0][0]
            a("s_or_b64 vcc, s[%d:%d], s[%d:%d]" % (m0, m0 + 1, groups[-1][0], groups[-1][0] + 1))
            a("s_cbranch_scc0 %s_ok" % label)
        a("s_mov_b32 s11, %d" % SPIN)
        if pre: check()
        a(label + ":"); issue(); a("s_waitcnt vmcnt(0)"); check()
        if npipe > 1:
            a("s_bcnt1_i32_b64 s5, vcc"); a("s_cmp_le_u32 s5, %d" % thr); a("s_cbranch_scc1 %s_fast" % label)
        a("s_sub_u32 s11, s11, 1"); a("s_cmp_lg_u32 s11, 0"); a("s_cbranch_scc1 %s" % label)
        if npipe > 1:
            a("s_branch %s_ok" % label)
            a(label + "_fast:"); issue(); a("s_waitcnt vmcnt(%d)" % (nl * (npipe - 1))); check()
            a("s_sub_u32 s11, s11, 1"); a("s_cmp_lg_u32 s11, 0"); a("s_cbranch_scc1 %s_fast" % label)
        a(label + "_ok:")
        a("s_mov_b64 exec, -1")

    def roles():
        a("s_and_b32 s9, s2, 7"); a("s_lshr_b32 s8, s2, 3")
        a("s_cmp_lt_u32 s8, 16"); a("s_cbranch_scc1 L_role%d" % uid[0])
        a("s_sub_u32 s8, s8, 16"); a("s_cmp_eq_u32 s9, 0"); a("s_cselect_b32 s9, 8, s9"); a("s_cbranch_scc1 L_role%d" % uid[0])
        a("s_mul_i32 s8, s8, 7"); a("s_add_u32 s9, s8, s9"); a("s_sub_u32 s9, s9, 1")
        a("s_mul_i32 s8, s9, 57"); a("s_lshr_b32 s8, s8, 9"); a("s_mul_i32 s4, s8, 9"); a("s_sub_u32 s9, s9, s4"); a("s_add_u32 s8, s8, 16")
        a("L_role%d:" % uid[0]); uid[0] += 1

    a(KN + ":")
    T(0)
    a("s_cmp_ge_u32 s2, 256"); a("s_cbranch_scc1 L_end")
    a("s_load_dwordx16 s[16:31], s[0:1], 0"); a("s_load_dwordx8 s[32:39], s[0:1], 64")
    a("s_getpc_b64 s[4:5]")
    a("L_pc:")
    a("v_lshlrev_b32 v1, 7, v0"); a("v_min_u32 v1, %s, v1" % ("L_codeend-L_pc-4" if pf else "4"))
    a("global_load_dword v255, v1, s[4:5]")
    a("v_lshrrev_b32 v1, 6, v0"); a("v_and_b32 v0, 63, v0"); a("v_readfirstlane_b32 s3, v1")
    if kvmap == 0: a("s_mov_b32 s101, s2")
    else:
        a("s_and_b32 s101, s2, 7"); a("s_lshl_b32 s101, s101, 5"); a("s_lshr_b32 s6, s2, 3"); a("s_add_u32 s101, s101, s6")
    a("s_lshr_b32 s6, s101, 1")
    a("s_and_b32 s7, s101, 1")
    a("s_mov_b32 s12, 0x05040100"); a("s_mov_b32 s13, 0x07060302")
    a("s_cmp_ge_u32 s3, 4"); a("s_cbranch_scc1 L_aux")

    vm = VM(a); vm.n = 1
    vKo, vVo, vT0, vT1, vM, vL, vF, vW2o = 1, 2, 3, 4, 5, 6, 7, 8
    vMask, vQ0, vQ1, vAcc = 12, 16, 20, 24
    vD = [28, 32]
    pool = list(range(36, 252, 4))
    assert len(pool) >= R + 2
    a("v_lshrrev_b32 v3, 4, v0"); a("v_lshlrev_b32 v3, 6, v3")
    a("v_and_b32 v4, 3, v0"); a("v_lshl_or_b32 v3, v4, 4, v3")
    a("v_bfe_u32 v4, v0, 2, 2"); a("v_lshl_or_b32 v%d, v4, 8, v3" % vKo)
    a("v_lshlrev_b32 v%d, 4, v0" % vVo)
    a("s_lshl_b32 s14, s6, 21"); a("s_lshl_b32 s15, s7, 18"); a("s_add_u32 s14, s14, s15")
    a("s_lshl_b32 s15, s3, 11"); a("s_add_u32 s14, s14, s15"); a("s_add_u32 s14, s14, %d" % (6144 * 256))
    a("s_waitcnt lgkmcnt(0)")
    srd(a, 40, 18, "0x10000000")
    slot, tok = {}, {}
    free = pool[:]
    issued = [0]
    w2 = {}
    def issue_next():
        n = issued[0]; issued[0] += 1
        if n < 128:
            r = free.pop(0); slot[n] = r
            c, t = divmod(n % 64, 2)
            if t == 0: a("s_add_u32 s10, s14, %d" % (c * 8192))
            tok[n] = vm.issue("buffer_load_dwordx4 %s, v%d, %s, s10 offen offset:%d nt" % (vr(r), vKo if n < 64 else vVo, sK if n < 64 else sV, 1024 * t))
    def issue_w2(vmx, k):
        kb, j = divmod(k, 8)
        if k % 2 == 0: w2q.append(free.pop(0))
        r = w2q[-1] + 2 * (k % 2)
        if j % 4 == 0: a("s_add_u32 s5, s72, %d" % ((32 * kb + j) * 1152))
        w2[k] = (r, vmx.issue("buffer_load_dwordx2 %s, v%d, %s, s5 offen offset:%d nt" % (vr(r, 2), vW2o, sW2 if kb < 2 else sW1, 1152 * (j % 4))))
    w2q = []
    for _ in range(max(b0, d0)): issue_next()
    srd(a, 44, 20, "0x10000000"); srd(a, 52, 38, "0x40000000")
    roles()
    a("v_bfe_u32 v3, v0, 3, 1"); a("v_bfe_u32 v4, v0, 1, 1"); a("v_lshl_or_b32 v3, v3, 1, v4")
    a("v_and_b32 v4, 1, v0"); a("v_lshlrev_b32 v4, 4, v4"); a("v_mov_b32 v5, 0xffff"); a("v_lshlrev_b32 v4, v4, v5")
    for r in range(4):
        a("v_cmp_eq_u32 vcc, %d, v3" % r); a("v_cndmask_b32 v%d, 0, v4, vcc" % (vMask + r))
    a("v_lshrrev_b32 v3, 4, v0"); a("v_mul_u32_u24 v3, %d, v3" % (8 * 1152)); a("v_and_b32 v4, 15, v0"); a("v_lshl_add_u32 v%d, v4, 3, v3" % vW2o)
    a("s_cmp_lt_u32 s8, 16")
    a("s_cselect_b32 s60, s24, s32"); a("s_cselect_b32 s61, s25, s33")
    a("s_mov_b32 s62, 4718592"); a("s_cselect_b32 s62, s62, 5308416"); a("s_mov_b32 s63, 0x20000")
    a("s_cselect_b32 s72, 0, 16"); a("s_cselect_b32 s73, 64, 96")
    a("s_sub_u32 s72, s8, s72"); a("s_lshl_b32 s72, s72, 2"); a("s_add_u32 s72, s72, s3"); a("s_mul_i32 s72, s72, s73")
    a("s_mul_i32 s72, s72, 1152"); a("s_lshl_b32 s73, s9, 7"); a("s_add_u32 s72, s72, s73")
    a("s_cmp_lt_u32 s8, 28"); a("s_cselect_b32 s62, s62, 0")
    a("s_mov_b32 s56, s60"); a("s_mov_b32 s57, s61"); a("s_mov_b32 s59, 0x20000"); a("s_cmp_lt_u32 s8, 16"); a("s_cselect_b32 s58, 0, s62")
    srd(a, 48, 16, 9216); srd(a, 68, 34, 9216)
    a("s_lshr_b32 s4, s8, 1"); a("s_and_b32 s4, s4, 7"); a("s_and_b32 s5, s8, 1"); a("s_lshl_b32 s5, s5, 1"); a("s_and_b32 s15, s3, 1"); a("s_add_u32 s5, s5, s15")
    a("s_lshl_b32 s74, s9, 3"); a("s_add_u32 s74, s74, s4"); a("s_mul_i32 s74, s74, 7168"); a("s_lshl_b32 s15, s5, 6"); a("s_add_u32 s74, s74, s15"); a("s_add_u32 s74, s74, %d" % WS_P)
    a("s_mul_i32 s75, s4, 1152"); a("s_lshl_b32 s15, s9, 7"); a("s_add_u32 s75, s75, s15"); a("s_lshl_b32 s15, s5, 5"); a("s_add_u32 s75, s75, s15")
    a("v_and_b32 v3, 3, v0"); a("v_lshlrev_b32 v3, 3, v3"); a("v_lshrrev_b32 v4, 4, v0"); a("v_lshl_or_b32 v253, v4, 1, v3")
    vm.issue("buffer_load_ushort v254, v253, %s, s75 offen" % sX)
    ctl = {"on": False, "k": 0, "tok": None}
    def D(n):
        if n < nd0: return d0
        base = hi if (fb and n >= R) else d
        if n < nramp: return base
        return base + max(0, dend - base) * (n - nramp + 1) // (128 - nramp)
    def paced():
        n = issued[0]
        if n < 128:
            if n - D(n) >= 0: vm.wait(tok[n - D(n)])
            if ctl["on"]:
                if n == ctl["tok"]:
                    k = ctl["k"]; g = gain[min(k, len(gain) - 1)] if isinstance(gain, (list, tuple)) else gain
                    a("s_cmp_lg_u32 s3, 0"); a("s_cbranch_scc1 L_cw%d" % n)
                    a("s_waitcnt lgkmcnt(0)"); a("s_sub_u32 s97, s97, %d" % (G * k))
                    a("v_mov_b32 v252, s97"); a("ds_write_b32 v%d, v252 offset:%d" % (vVo, L_C))
                    a("L_cw%d:" % n)
                if ctl["tok"] and n > ctl["tok"]:
                    o_ = n - ctl["tok"]
                    if o_ % 2 == 1: a("ds_read_b32 v252, v%d offset:%d" % (vVo, L_C))
                    else:
                        a("s_waitcnt lgkmcnt(0)"); a("v_readfirstlane_b32 s95, v252")
                        if o_ >= 6 or mlag + o_ + 2 > mstep: ctl["k"] += 1; ctl["tok"] = None
                used = False
                for l_, t_ in reversed(list(zip(lv[:-1], th))):
                    m = n - (D(n) - hi + l_)
                    if tok[m] > vm.done:
                        a("s_cmp_ge_i32 s95, %d" % t_); a("s_cbranch_scc1 L_hi%d" % n); a("s_waitcnt vmcnt(%d)" % (vm.n - tok[m])); used = True
                if used: a("L_hi%d:" % n)
            issue_next()
            if ctl["on"] and (n - R) % mstep == 0 and n <= fbend:
                assert ctl["tok"] is None
                a("s_cmp_lg_u32 s3, 0"); a("s_cbranch_scc1 L_ca%d" % n)
                a("s_mov_b32 s97, 1"); a("s_atomic_add s97, s[38:39], s99 glc"); ctl["tok"] = n + mlag
                a("L_ca%d:" % n)
    def ahead(n):
        while issued[0] < 128 and issued[0] - D(issued[0]) < n: paced()
    while issued[0] < R:
        paced()
        if issued[0] == 24: T(1)
        if issued[0] == nfree:
            a("s_cmp_lt_u32 s2, 208"); a("s_cbranch_scc1 L_nofb"); a("s_barrier"); a("L_nofb:")
    T(2)
    a("s_barrier")
    T(3)
    a("ds_read_b128 %s, v%d offset:%d" % (vr(vQ0), vVo, L_Q))
    a("v_mov_b32 v4, 0"); a("ds_read_b32 v4, v4 offset:%d" % L_F)
    a("v_and_b32 v3, 8, v0"); a("v_cmp_eq_u32 vcc, 0, v3"); a("v_mov_b32 v%d, 0xff800000" % vM)
    a("s_mov_b32 s15, %s" % f32(128 ** -0.5))
    a("s_waitcnt lgkmcnt(0)")
    a("v_readfirstlane_b32 s100, v4")
    for i in range(4): a("v_cndmask_b32 v%d, v%d, 0, vcc" % (vQ1 + i, vQ0 + i))
    for i in range(4): a("v_cndmask_b32 v%d, 0, v%d, vcc" % (vQ0 + i, vQ0 + i))
    if fb:
        a("s_lshr_b32 s99, s2, 3"); a("s_and_b32 s99, s99, %d" % (256 // G - 1)); a("s_lshl_b32 s99, s99, 8"); a("s_add_u32 s99, s99, %d" % WS_CTR)
        a("s_mov_b32 s95, %d" % r0); ctl["on"] = True
    vD += [free.pop(), free.pop()]
    S = []
    def qk(c):
        D = vD[c % 4]
        vm.wait(tok[2 * c + 1])
        a("v_mfma_f32_16x16x32_bf16 %s, %s, %s, 0" % (vr(D), vr(slot[2 * c]), vr(vQ0)))
        a("v_mfma_f32_16x16x32_bf16 %s, %s, %s, %s" % (vr(D), vr(slot[2 * c + 1]), vr(vQ1), vr(D)))
        free.extend([slot[2 * c], slot[2 * c + 1]])
    def extract(c):
        if c % 4 == 0: S.extend(range(free[-1], free[-1] + 4)); free.pop()
        x, y, DA, DB = S[c], S[c + 1], vD[c % 4], vD[(c + 1) % 4]
        for i in range(4):
            for s_, D in ((x, DA), (y, DB)):
                if i == 0: a("v_mov_b32_dpp v%d, v%d quad_perm:[0,0,0,0] %s" % (s_, D, DPP))
                else: a("v_add_f32_dpp v%d, v%d, v%d quad_perm:[%d,%d,%d,%d] %s" % (s_, D + i, s_, i, i, i, i, DPP))
        for rep in range(2):
            a("v_cvt_pk_bf16_f32 v3, v%d, v%d" % (x, y))
            a("v_lshlrev_b32 v%d, 16, v3" % x); a("v_and_b32 v%d, 0xffff0000, v3" % y)
            if rep == 0: a("v_mul_f32 v%d, s15, v%d" % (x, x)); a("v_mul_f32 v%d, s15, v%d" % (y, y))
        a("v_max3_f32 v%d, v%d, v%d, v%d" % (vM, vM, x, y))
    for c in range(0, 32, 2):
        ahead(2 * c + 3)
        qk(c); qk(c + 1)
        for _ in range(4 // kcatch if kcatch <= 4 else 1): paced()
        if c >= 2: extract(c - 2)
    extract(30)
    free.extend(vD[2:])
    T(4)
    paced()
    allreduce(a, "v_max_f32", vM, 3, [8, 16, 32])
    a("s_mov_b32 s15, %s" % f32(L2E)); a("v_mul_f32 v%d, s15, v%d" % (vM, vM)); a("v_mov_b32 v%d, 0" % vL); a("v_mov_b32 v4, 0")
    for c in range(0, 32, 4):
        for i in range(4): a("v_fma_f32 v%d, v%d, s15, -v%d" % (S[c + i], S[c + i], vM))
        for i in range(4): a("v_exp_f32 v%d, v%d" % (S[c + i], S[c + i]))
        for i in range(4): a("v_add_f32 v%d, v%d, v%d" % ((vL, 4)[i % 2], (vL, 4)[i % 2], S[c + i]))
        for i in range(4): a("v_cvt_pk_bf16_f32 v%d, v%d, v%d" % (S[c + i], S[c + i], S[c + i]))
        if c % 8 == 4: paced()
    a("v_add_f32 v%d, v%d, v4" % (vL, vL))
    allreduce(a, "v_add_f32", vL, 3, [8, 16, 32])
    a("v_min_u32 v10, -2, v%d" % vM); a("v_min_u32 v11, -2, v%d" % vL)
    a("v_lshlrev_b32 v9, 1, v0")
    a("v_and_b32 v9, 0x78, v9")
    a("s_lshl_b32 s73, s6, 7"); a("s_add_u32 s73, s73, %d" % WS_STAT)
    a("s_lshl_b32 s4, s7, 2"); a("s_add_u32 s4, s4, s3"); a("s_lshl_b32 s4, s4, 4"); a("s_add_u32 s4, s4, s73")
    a("s_mov_b64 exec, 0x11")
    if not noclear & 4: vm.issue("buffer_store_dwordx2 v[10:11], v9, %s, s4 offen %s" % (sWS, hs))
    a("s_mov_b64 exec, -1")
    T(5)
    vB = vD[:2]
    def prepB(n):
        c, t = divmod(n - 64, 2)
        for r in range(4):
            if (r >> 1) == t: a("v_and_b32 v%d, v%d, v%d" % (vB[n % 2] + r, S[c], vMask + r))
            else: a("v_and_b32_dpp v%d, v%d, v%d row_ror:8 %s" % (vB[n % 2] + r, S[c], vMask + r, DPP))
    def stat_valid(): a("v_max_u32 v3, v10, v11"); a("v_cmp_ne_u32 vcc, -1, v3")
    prepB(64)
    tstat = None; nw2 = 0; n3 = 16
    for n in range(64, 128):
        ahead(n)
        if tstat is None and issued[0] >= stat_at:
            tstat = vm.issue("buffer_load_dwordx2 v[10:11], v9, %s, s73 offen %s" % (sWS, hl))
        vm.wait(tok[n])
        a("v_mfma_f32_16x16x32_bf16 %s, %s, %s, %s" % (vr(vAcc), vr(slot[n]), vr(vB[n % 2]), "0" if n == 64 else vr(vAcc)))
        free.append(slot[n])
        if n % 2 == 1 and issued[0] < 128 and issued[0] - D(issued[0]) > n: paced()
        if n >= e3 and n3 < 24 and issued[0] < 128: issue_w2(vm, n3); n3 += 1
        if issued[0] >= 128:
            assert n3 in (16, 24)
            for _ in range(w2rate):
                if nw2 < w2pre: issue_w2(vm, nw2); nw2 += 1
        if n < 127: prepB(n + 1)
        if tstat and tstat > 0 and vm.done >= tstat:
            a("s_mov_b64 s[66:67], vcc")
            if noclear & 4: a("s_branch L_stat_ok")
            stat_valid(); a("s_cmp_eq_u64 vcc, exec"); a("s_cbranch_scc1 L_stat_ok")
            def body():
                a("buffer_load_dwordx2 v[10:11], v9, %s, s73 offen %s" % (sWS, hl)); a("s_waitcnt vmcnt(0)"); stat_valid()
            spin(body, "L_stat")
            a("s_mov_b64 vcc, s[66:67]")
            a("v_mov_b32 v%d, v10" % vF); allreduce(a, "v_max_f32", vF, 3, [8, 16, 32])
            a("v_sub_f32 v10, v10, v%d" % vF); a("v_sub_f32 v%d, v%d, v%d" % (vF, vM, vF))
            a("v_exp_f32 v10, v10"); a("v_exp_f32 v%d, v%d" % (vF, vF)); a("v_mul_f32 v10, v10, v11")
            allreduce(a, "v_add_f32", 10, 3, [8, 16, 32])
            a("v_rcp_f32 v10, v10"); a("v_mul_f32 v%d, v%d, v10" % (vF, vF))
            a("v_bfe_u32 v3, v0, 2, 1"); a("v_lshlrev_b32 v3, 9, v3"); a("v_lshrrev_b32 v4, 4, v0"); a("v_lshl_or_b32 v3, v4, 7, v3")
            a("v_bfe_u32 v4, v0, 3, 1"); a("v_lshl_or_b32 v3, v4, 4, v3"); a("v_and_b32 v4, 3, v0"); a("v_lshl_or_b32 v9, v4, 2, v3")
            a("s_lshl_b32 s4, s3, 10"); a("s_add_u32 s4, s4, %d" % L_OP); a("v_add_u32 v9, s4, v9")
            tstat = -1
    assert tstat == -1
    T(6)
    for i in range(4): a("v_mul_f32 v%d, v%d, v%d" % (vAcc + i, vAcc + i, vF))
    a("ds_write2_b32 v9, v%d, v%d offset0:0 offset1:8" % (vAcc, vAcc + 1))
    a("ds_write2_b32 v9, v%d, v%d offset0:16 offset1:24" % (vAcc + 2, vAcc + 3))
    a("s_waitcnt lgkmcnt(0)"); a("s_barrier")
    a("s_cmp_ge_u32 s8, 28"); a("s_cbranch_scc1 L_sdone")
    while nw2 < 16: issue_w2(vm, nw2); nw2 += 1
    vA = [free.pop(0) for _ in range(3)]
    vE = [free.pop(0) for _ in range(4)]
    vP = [[free.pop(0) for _ in range(4)] for _ in range(3)]
    def perms(kb, vmx):
        vmx.wait(w2[8 * kb + 7][1])
        for i in range(4):
            for q in range(4):
                a("v_perm_b32 v%d, v%d, v%d, s%d" % (vP[kb][i] + q, w2[8 * kb + 2 * q + 1][0] + i // 2, w2[8 * kb + 2 * q][0] + i // 2, 12 + i % 2))
    def mm(kb, first):
        for i in range(4):
            a("v_mfma_f32_16x16x32_bf16 %s, %s, %s, %s" % (vr(vE[i]), vr(vA[kb]), vr(vP[kb][i]), "0" if first else vr(vE[i])))
    a("s_cmp_ge_u32 s8, 16"); a("s_cbranch_scc1 L_down")
    v1 = vm.copy()
    a("v_and_b32 v3, 15, v0"); a("v_lshlrev_b32 v3, 9, v3"); a("v_and_b32 v4, 48, v0"); a("v_or_b32 v9, v3, v4")
    a("s_lshl_b32 s4, s8, 13"); a("s_lshl_b32 s5, s3, 7"); a("s_add_u32 s4, s4, s5"); a("s_add_u32 s4, s4, %d" % WS_O)
    if orep > 1: a("s_and_b32 s5, s9, %d" % (orep - 1)); a("s_lshl_b32 s5, s5, 17"); a("s_add_u32 s4, s4, s5")
    perms(0, v1); perms(1, v1)
    T(7)
    A4, Y4 = vP[2][0], vP[2][1]
    a("s_cmp_lt_u32 s3, 2"); a("s_cbranch_scc1 L_nopre")
    a("v_lshrrev_b32 v4, 2, v0"); a("v_lshlrev_b32 v4, 8, v4"); a("v_and_b32 v10, 3, v0"); a("v_lshl_or_b32 v10, v10, 4, v4")
    for i in range(4): a("v_mov_b32 v%d, 0" % (Y4 + i))
    a("s_mov_b32 s66, -1"); a("s_mov_b32 s67, 0xffff"); a("s_add_u32 s73, s74, 4096")
    a("v_lshlrev_b32 v254, 16, v254")
    ldA = "buffer_load_dwordx4 %s, v10, %s, s74 offen %s" % (vr(A4), sWS, hl)
    ldY = "buffer_load_dwordx4 %s, v10, %s, s73 offen %s" % (vr(Y4), sWS, hl)
    a(ldA); a("s_mov_b64 exec, s[66:67]"); a(ldY)
    a("L_nopre:")
    a("s_mov_b64 s[64:65], -1")
    mpoll("L_opoll", [(64, ["buffer_load_dwordx4 %s, v9, %s, s4 offen offset:%d %s" % (vr(vA[kb]), sWS, 64 * kb, hl) for kb in range(2)],
                       [vA[kb] + i for kb in range(2) for i in range(4)])], npo)
    T(8)
    if ts: a("s_sub_u32 s96, %d, s11" % SPIN)
    mm(0, True); mm(1, False)
    a("s_branch L_l2fin")
    a("L_down:")
    v2 = vm.copy()
    for k in range(n3, 24): issue_w2(v2, k)
    a("v_lshrrev_b32 v3, 4, v0"); a("v_lshlrev_b32 v3, 7, v3"); a("v_bfe_u32 v4, v0, 1, 3"); a("v_lshl_or_b32 v3, v4, 4, v3")
    a("s_mul_i32 s4, s3, 1536"); a("v_add_u32 v3, s4, v3")
    for kb in range(3): a("ds_read_b128 %s, v3 offset:%d" % (vr(vA[kb]), L_H + 512 * kb))
    a("v_and_b32 v4, 1, v0"); a("v_cmp_eq_u32 vcc, 0, v4"); a("s_waitcnt lgkmcnt(0)")
    for kb in range(3):
        for i in range(4): a("v_cndmask_b32 v%d, 0, v%d, vcc" % (vA[kb] + i, vA[kb] + i))
    T(7)
    for kb in ((2, 0, 1) if n3 == 24 else (0, 1, 2)): perms(kb, v2); mm(kb, kb == (2 if n3 == 24 else 0))
    T(8)
    a("L_l2fin:")
    vO = vP[0][:2]
    a("s_lshl_b32 s4, s3, 11"); a("v_add_u32 v9, s4, v%d" % vVo)
    for x in range(2):
        for i in range(4): a("v_add_f32 v%d, v%d, v%d" % (vO[x] + i, vE[i] + 2 * x, vE[i] + 2 * x + 1))
        a("ds_write_b128 v9, %s offset:%d" % (vr(vO[x]), L_LP + 1024 * x))
    a("s_lshl_b32 s4, s3, 10"); a("v_add_u32 v9, s4, v%d" % vVo)
    a("v_lshrrev_b32 v3, 4, v0"); a("v_mul_u32_u24 v3, %d, v3" % (2 * 7168)); a("v_and_b32 v4, 15, v0"); a("v_lshl_add_u32 v3, v4, 4, v3")
    a("s_mul_i32 s4, s9, %d" % (8 * 7168)); a("s_lshl_b32 s5, s8, 8"); a("s_add_u32 s4, s4, s5")
    a("s_mul_i32 s5, s3, 7168"); a("s_add_u32 s4, s4, s5"); a("s_add_u32 s4, s4, %d" % WS_P)
    a("s_waitcnt lgkmcnt(0)"); a("s_barrier")
    a("s_cmp_ge_u32 s3, 2"); a("s_cbranch_scc1 L_final")
    for w in range(4): a("ds_read_b128 %s, v9 offset:%d" % (vr(vE[w]), L_LP + 2048 * w))
    a("s_cmp_eq_u32 s100, 0")
    a("s_waitcnt lgkmcnt(2)")
    for i in range(4): a("v_add_f32 v%d, v%d, v%d" % (vE[0] + i, vE[0] + i, vE[1] + i))
    a("s_waitcnt lgkmcnt(0)")
    for i in range(4): a("v_add_f32 v%d, v%d, v%d" % (vE[2] + i, vE[2] + i, vE[3] + i))
    for i in range(4): a("v_add_f32 v%d, v%d, v%d" % (vE[0] + i, vE[0] + i, vE[2] + i))
    for i in range(4): a("v_min_u32 v%d, -2, v%d" % (vE[0] + i, vE[0] + i))
    a("s_cbranch_scc1 L_pfar")
    a("buffer_store_dwordx4 %s, v3, %s, s4 offen" % (vr(vE[0]), sWS))
    a("s_branch L_sdone")
    a("L_pfar:")
    a("buffer_store_dwordx4 %s, v3, %s, s4 offen %s" % (vr(vE[0]), sWS, hs))
    a("s_branch L_sdone")
    a("L_final:")
    a("s_cmp_ge_u32 s8, 16"); a("s_cbranch_scc1 L_sdone")
    T(7)
    a("s_mov_b64 s[64:65], -1")
    mpoll("L_ppoll", [(64, [ldA], list(range(A4, A4 + 4))), (66, [ldY], list(range(Y4, Y4 + 4)))], npa, True)
    if ts: a("s_sub_u32 s98, %d, s11" % SPIN)
    B4, Z4 = vP[2][2], vP[2][3]
    for i in range(4): a("v_mov_b32 v%d, v%d" % (B4 + i, A4 + i)); a("v_mov_b32 v%d, v%d" % (Z4 + i, Y4 + i))
    for r in (B4, Z4): a("v_permlane32_swap_b32 v%d, v%d" % (r, r + 2)); a("v_permlane32_swap_b32 v%d, v%d" % (r + 1, r + 3))
    for r in (B4, Z4): a("v_add_f32 v%d, v%d, v%d" % (r, r, r + 2)); a("v_add_f32 v%d, v%d, v%d" % (r + 1, r + 1, r + 3))
    for r in (B4, Z4): a("v_permlane16_swap_b32 v%d, v%d" % (r, r + 1))
    for r in (B4, Z4): a("v_add_f32 v%d, v%d, v%d" % (r, r, r + 1))
    for k in (8, 4):
        for r in (B4, Z4): a("v_add_f32_dpp v%d, v%d, v%d row_ror:%d %s" % (r, r, r, k, DPP))
    a("v_cvt_pk_bf16_f32 v3, v%d, v%d" % (B4, Z4)); a("v_lshlrev_b32 v4, 16, v3"); a("v_and_b32 v3, 0xffff0000, v3")
    a("v_add_f32 v4, v254, v4"); round_bf16(a, 4); a("v_add_f32 v4, v4, v3"); a("v_cvt_pk_bf16_f32 v4, v4, v4")
    a("s_mov_b32 exec_lo, 0x000f000f"); a("s_mov_b32 exec_hi, 0x000f000f")
    a("buffer_store_short v4, v253, %s, s75 offen %s" % (sOUT, osf))
    a("L_sdone:")
    T(9); T.flush()
    a("s_endpgm")

    a("L_aux:")
    vm = VM(a); vm.n = 1
    vLin, vWo = 1, 2
    vXN, vAc, vTp, vRing, w1blk = 8, 44, 244, 116, 4
    a("v_lshlrev_b32 v%d, 4, v0" % vLin)
    if 1:
        a("s_and_b32 s100, s2, 7"); a("s_mul_i32 s100, s100, 26"); a("s_lshr_b32 s4, s2, 3"); a("s_add_u32 s100, s100, s4")
        a("s_cmp_lt_u32 s2, 208"); a("s_cselect_b32 s100, s100, s2")
    a("s_and_b32 s4, s6, 15"); a("s_lshl_b32 s4, s4, 13"); a("s_lshr_b32 s5, s101, 5"); a("s_lshl_b32 s5, s5, 1"); a("s_add_u32 s5, s5, s7")
    a("s_lshl_b32 s5, s5, 9"); a("s_add_u32 s4, s4, s5"); a("s_add_u32 s74, s4, %d" % WS_O)
    a("s_cmp_eq_u32 s3, 5"); a("s_cbranch_scc1 L_clear")
    a("s_cmp_lt_u32 s100, 64"); a("s_movk_i32 s14, 8192"); a("s_cselect_b32 s14, s14, 9216"); a("s_mov_b32 s58, 4718592"); a("s_cselect_b32 s58, s58, 5308416"); a("s_cselect_b32 s15, 0, 64")
    a("s_cmp_lt_u32 s100, 136"); a("s_cselect_b32 s15, s15, 136"); a("s_sub_u32 s15, s100, s15"); a("s_lshl_b32 s15, s15, 7")
    a("v_lshrrev_b32 v3, 3, v0"); a("v_lshlrev_b32 v3, 3, v3"); a("v_mul_u32_u24 v3, s14, v3"); a("v_and_b32 v2, 7, v0"); a("v_lshl_add_u32 v%d, v2, 4, v3" % vWo)
    a("v_bfe_u32 v3, v0, 1, 3"); a("v_mul_u32_u24 v3, 1152, v3"); a("v_lshrrev_b32 v4, 4, v0"); a("v_lshl_add_u32 v3, v4, 5, v3")
    a("v_and_b32 v4, 1, v0"); a("v_lshl_add_u32 v3, v4, 4, v3")
    a("s_mul_i32 s75, s14, 57")
    a("s_waitcnt lgkmcnt(0)")
    a("s_cmp_lt_u32 s100, 136"); a("s_cselect_b32 s56, s28, s30"); a("s_cselect_b32 s57, s29, s31")
    a("s_cmp_lt_u32 s100, 64"); a("s_cselect_b32 s56, s22, s56"); a("s_cselect_b32 s57, s23, s57"); a("s_mov_b32 s59, 0x20000")
    a("s_cmp_lt_u32 s2, %d" % (0 if nol1 else 208)); a("s_cselect_b32 s58, s58, 0")
    w1 = []
    def issue_w1():
        blk, j = divmod(len(w1), 8)
        r = vRing + 32 * (blk % w1blk) + 4 * j
        w1.append(vm.issue("buffer_load_dwordx4 %s, v%d, %s, s15 offen nt" % (vr(r), vWo, sW1)))
        a("s_add_u32 s15, s15, %s" % ("s75" if j == 7 else "s14"))
    srd(a, 48, 16, 9216)
    for _ in range(pre): issue_w1()
    for i in range(9): tx = vm.issue("buffer_load_dwordx4 %s, v3, %s, 0 offen offset:%d" % (vr(vXN + 4 * i), sX, 128 * i))
    while len(w1) < burst: issue_w1()
    srd(a, 52, 38, "0x40000000")
    srd(a, 64, 36, 256)
    a("s_cmp_ge_u32 s2, 208"); a("s_cbranch_scc1 L_nol1")
    def paced1(blk):
        if len(w1) < 72 and len(w1) < 8 * (blk + w1blk):
            if len(w1) >= da: vm.wait(w1[len(w1) - da])
            issue_w1()
    ln = Asm(); xf = 44
    def unpack_all():
        for i in range(36): ln("v_lshlrev_b32 v%d, 16, v%d" % (xf + 2 * i, vXN + i)); ln("v_and_b32 v%d, 0xffff0000, v%d" % (xf + 2 * i + 1, vXN + i))
    def pack_all():
        for i in range(36): ln("v_cvt_pk_bf16_f32 v%d, v%d, v%d" % (vXN + i, xf + 2 * i, xf + 2 * i + 1))
    for i in range(4): ln("v_mov_b32 v%d, 0x3f803f80" % (244 + i))
    for i in range(9): ln("v_mfma_f32_16x16x32_bf16 v[248:251], v[244:247], %s, %s" % (vr(vXN + 4 * i), "0" if i == 0 else "v[248:251]"))
    unpack_all()
    allreduce(ln, "v_add_f32", 248, 249, [0])
    ln("v_mul_f32 v248, %s, v248" % f32(1 / 576)); ln("v_mov_b32 v4, v248"); round_bf16(ln, 4)
    ln("v_sub_f32 v248, v248, v4"); ln("v_sub_f32 v4, 0, v4"); ln("v_mov_b32 v5, v4")
    for i in range(36): ln("v_pk_add_f32 %s, %s, v[4:5]" % (vr(xf + 2 * i, 2), vr(xf + 2 * i, 2)))
    for i in range(36):
        acc = vr(244 + 2 * (i % 2), 2); x2 = vr(xf + 2 * i, 2)
        ln("v_pk_mul_f32 %s, %s, %s" % (acc, x2, x2) if i < 2 else "v_pk_fma_f32 %s, %s, %s, %s" % (acc, x2, x2, acc))
    ln("v_pk_add_f32 v[244:245], v[244:245], v[246:247]"); ln("v_add_f32 v4, v244, v245")
    allreduce(ln, "v_add_f32", 4, 5, [0, 16, 32])
    ln("v_mul_f32 v4, %s, v4" % f32(1 / 576)); ln("v_fma_f32 v4, -v248, v248, v4"); ln("v_max_f32 v4, 0, v4"); round_bf16(ln, 4)
    ln("v_add_f32 v4, %s, v4" % f32(1e-5)); round_bf16(ln, 4)
    ln("v_sqrt_f32 v4, v4"); round_bf16(ln, 4); ln("v_rcp_f32 v4, v4")
    pack_all(); ln("v_mov_b32 v5, v4"); unpack_all()
    for i in range(36): ln("v_pk_mul_f32 %s, %s, v[4:5]" % (vr(xf + 2 * i, 2), vr(xf + 2 * i, 2)))
    pack_all()
    vm.wait(tx)
    for k, ins in enumerate(ln.ins):
        a(ins.text)
        if k % lnstep == lnstep - 1:
            paced1(0)
    T(1)
    tflag = None
    for blk in range(9):
        while len(w1) < min(72, 8 * blk + 7 + da): paced1(blk)
        if blk == flagblk:
            a("v_lshlrev_b32 v253, 2, v0"); tflag = vm.issue("buffer_load_dword v252, v253, %s, 0 offen %s" % (sDBG, hl))
        vm.wait(w1[8 * blk + 7])
        base = vRing + 32 * (blk % w1blk)
        for i in range(8):
            t = vTp + 4 * (i % 2)
            for q in range(4): a("v_perm_b32 v%d, v%d, v%d, s%d" % (t + q, base + 4 * (2 * q + 1) + i // 2, base + 4 * (2 * q) + i // 2, 12 + i % 2))
            if i > 0:
                D = vAc + 4 * (i - 1)
                a("v_mfma_f32_16x16x32_bf16 %s, %s, %s, %s" % (vr(D), vr(vXN + 4 * blk), vr(vTp + 4 * ((i - 1) % 2)), "0" if blk == 0 else vr(D)))
            if i % 4 == 0: paced1(blk)
        D = vAc + 28
        a("v_mfma_f32_16x16x32_bf16 %s, %s, %s, %s" % (vr(D), vr(vXN + 4 * blk), vr(vTp + 4), "0" if blk == 0 else vr(D)))
    T(2)
    for i in range(8): a("v_add_f32_dpp v%d, v%d, v%d row_ror:8 row_mask:0xf bank_mask:0x3" % (vTp + i, vAc + 4 * i + 1, vAc + 4 * i))
    for i in range(8): a("v_add_f32_dpp v%d, v%d, v%d row_ror:8 row_mask:0xf bank_mask:0xc" % (vTp + i, vAc + 4 * i + 2, vAc + 4 * i + 3))
    for q in range(4): a("v_cvt_pk_bf16_f32 v%d, v%d, v%d" % (12 + q, vTp + 2 * q, vTp + 2 * q + 1))
    for q in range(4): a("v_min_u32 v%d, -2, v%d" % (12 + q, 12 + q))
    assert vm.done >= tflag
    a("s_branch L_l1done")
    a("L_nol1:")
    a("s_barrier")
    a("v_mov_b32 v252, 0")
    a("L_l1done:")
    roles()
    T(10)
    a("s_mov_b32 s5, 0x80808080")
    if noclear & 2: a("s_branch L_flags_ok")
    a("v_and_b32 v8, s5, v252"); a("v_cmp_eq_u32 vcc, s5, v8"); a("s_cmp_eq_u64 vcc, exec"); a("s_cbranch_scc1 L_flags_ok")
    a("v_lshlrev_b32 v10, 2, v0")
    def body():
        a("buffer_load_dword v252, v10, %s, 0 offen %s" % (sDBG, hl)); a("s_waitcnt vmcnt(0)"); a("v_and_b32 v8, s5, v252"); a("v_cmp_eq_u32 vcc, s5, v8")
    spin(body, "L_flags")
    a("s_cmp_ge_u32 s2, 208"); a("s_cbranch_scc1 L_nol1st")
    a("s_lshl_b32 s4, s100, 10")
    a("buffer_store_dwordx4 v[12:15], v%d, %s, s4 offen %s" % (vLin, sWS, hs))
    a("L_nol1st:")
    a("s_getreg_b32 s4, hwreg(HW_REG_XCC_ID, 0, 4)"); a("s_and_b32 s5, s2, 3"); a("s_lshl_b32 s5, s5, 3")
    a("v_bfe_u32 v8, v252, s5, 4"); a("v_cmp_ne_u32 vcc, s4, v8")
    a("s_bfe_u32 s4, s2, 0x10002"); a("s_lshl_b32 s4, 0x55555555, s4"); a("s_cmp_lt_u32 s2, 128"); a("s_cselect_b32 s5, vcc_lo, vcc_hi")
    a("s_and_b32 s4, s4, s5"); a("s_cselect_b32 s4, %d, %d" % (1 if noclear & 2 else 0, loc)); a("s_cmp_lt_u32 s8, 16"); a("s_cselect_b32 s4, s4, 0")
    a("v_mov_b32 v8, s4"); a("v_mov_b32 v9, 0"); a("ds_write_b32 v9, v8 offset:%d" % L_F); a("v_mov_b32 v11, %d" % r0); a("ds_write_b32 v9, v11 offset:%d" % L_C)
    a("v_bfe_u32 v3, v0, 2, 1"); a("v_lshlrev_b32 v3, 11, v3"); a("v_lshrrev_b32 v4, 5, v0"); a("v_lshl_or_b32 v3, v4, 10, v3")
    a("v_bfe_u32 v4, v0, 4, 1"); a("v_lshl_or_b32 v3, v4, 6, v3"); a("v_and_b32 v4, 3, v0"); a("v_lshl_or_b32 v3, v4, 4, v3")
    a("s_and_b32 s4, s6, 15"); a("s_lshl_b32 s4, s4, 12"); a("s_lshr_b32 s5, s101, 5"); a("s_lshl_b32 s5, s5, 7"); a("s_add_u32 s4, s4, s5")
    T(4)
    def body():
        a("buffer_load_dwordx4 v[4:7], v3, %s, s4 offen %s" % (sWS, hl)); a("s_waitcnt vmcnt(0)")
        a("v_max3_u32 v8, v4, v5, v6"); a("v_max_u32 v8, v8, v7"); a("v_cmp_ne_u32 vcc, -1, v8")
    if not noq: spin(body, "L_qpoll")
    else:
        for i in range(4): a("v_mov_b32 v%d, 0x3c003c00" % (4 + i))
    T(11)
    a("ds_write_b128 v%d, v[4:7] offset:%d" % (vLin, L_Q))
    a("s_waitcnt lgkmcnt(0)"); a("s_barrier")
    T(5)
    a("s_cmp_lt_u32 s8, 16"); a("s_cbranch_scc1 L_noh")
    a("s_cmp_ge_u32 s8, 28"); a("s_cbranch_scc1 L_noh")
    vm = VM(a)
    vG, vU = 16, 40
    a("s_mul_i32 s4, s8, 6144"); a("s_sub_u32 s4, s4, %d" % (16 * 6144 - 64 * 1024))
    def body():
        for y in range(6):
            a("s_add_u32 s5, s4, %d" % (1024 * y)); a("buffer_load_dwordx4 %s, v%d, %s, s5 offen %s" % (vr(vG + 4 * y), vLin, sWS, hl))
            a("s_add_u32 s5, s4, %d" % (1024 * (72 + y))); a("buffer_load_dwordx4 %s, v%d, %s, s5 offen %s" % (vr(vU + 4 * y), vLin, sWS, hl))
        a("s_waitcnt vmcnt(0)")
        a("v_max_u32 v8, v%d, v%d" % (vG, vG + 1))
        for r in range(vG + 2, vG + 48, 2): a("v_max3_u32 v8, v8, v%d, v%d" % (r, r + 1))
        a("v_cmp_ne_u32 vcc, -1, v8")
    if not noq: spin(body, "L_gpoll")
    a("v_and_b32 v3, 7, v0"); a("v_lshlrev_b32 v3, 7, v3"); a("v_lshrrev_b32 v4, 3, v0"); a("v_lshl_or_b32 v3, v4, 4, v3")
    a("s_mov_b32 s4, %s" % f32(0.044715)); a("s_mov_b32 s5, %s" % f32(-2 * (2 / 3.141592653589793) ** 0.5 * L2E))
    g, e = list(range(64, 72)), list(range(72, 80))
    def unpack(dst, src):
        for q in range(4): a("v_lshlrev_b32 v%d, 16, v%d" % (dst[2 * q], src + q)); a("v_and_b32 v%d, 0xffff0000, v%d" % (dst[2 * q + 1], src + q))
    def pack(dst, src):
        for q in range(4): a("v_cvt_pk_bf16_f32 v%d, v%d, v%d" % (dst + q, src[2 * q], src[2 * q + 1]))
    for y in range(6):
        unpack(g, vG + 4 * y)
        for i in range(8): a("v_mul_f32 v%d, v%d, v%d" % (e[i], g[i], g[i]))
        for i in range(8): a("v_fma_f32 v%d, v%d, s4, 1.0" % (e[i], e[i]))
        for i in range(8): a("v_mul_f32 v%d, v%d, v%d" % (e[i], e[i], g[i]))
        for i in range(8): a("v_mul_f32 v%d, s5, v%d" % (e[i], e[i]))
        for i in range(8): a("v_exp_f32 v%d, v%d" % (e[i], e[i]))
        for i in range(8): a("v_add_f32 v%d, 1.0, v%d" % (e[i], e[i]))
        for i in range(8): a("v_rcp_f32 v%d, v%d" % (e[i], e[i]))
        for i in range(8): a("v_mul_f32 v%d, v%d, v%d" % (g[i], g[i], e[i]))
        pack(vG + 4 * y, g); unpack(g, vG + 4 * y); unpack(e, vU + 4 * y)
        for i in range(8): a("v_mul_f32 v%d, v%d, v%d" % (g[i], g[i], e[i]))
        pack(vG + 4 * y, g)
        a("ds_write_b128 v3, %s offset:%d" % (vr(vG + 4 * y), L_H + 1024 * y))
    a("L_noh:")
    a("v_lshlrev_b32 v3, 3, v0")
    T(6)
    a("s_waitcnt vmcnt(0) lgkmcnt(0)"); a("s_barrier")
    for w in range(4): a("ds_read_b128 %s, v%d offset:%d" % (vr(16 + 4 * w), vLin, L_OP + 1024 * w))
    a("s_waitcnt lgkmcnt(2)")
    for i in range(4): a("v_add_f32 v%d, v%d, v%d" % (16 + i, 16 + i, 20 + i))
    a("s_waitcnt lgkmcnt(0)")
    for i in range(4): a("v_add_f32 v%d, v%d, v%d" % (24 + i, 24 + i, 28 + i))
    for i in range(4): a("v_add_f32 v%d, v%d, v%d" % (16 + i, 16 + i, 24 + i))
    a("v_cvt_pk_bf16_f32 v4, v16, v17"); a("v_cvt_pk_bf16_f32 v5, v18, v19"); a("v_min_u32 v4, -2, v4"); a("v_min_u32 v5, -2, v5")
    for r_ in range(orep):
        if r_: a("s_add_u32 s74, s74, 0x20000")
        a("buffer_store_dwordx2 v[4:5], v3, %s, s74 offen %s" % (sWS, hs))
    T(7)
    a("s_barrier")
    a("L_adone:")
    T(9); T.flush()
    a("s_endpgm")
    a("L_clear:")
    roles()
    a("v_mov_b32 v4, -1"); a("v_mov_b32 v5, -1"); a("v_mov_b32 v6, -1"); a("v_mov_b32 v7, -1")
    a("s_waitcnt lgkmcnt(0)")
    srd(a, 52, 38, "0x40000000"); srd(a, 64, 36, 256)
    if noclear & 1: a("s_branch L_clrskip")
    a("v_lshlrev_b32 v3, 3, v0")
    for r_ in range(orep):
        if r_: a("s_add_u32 s74, s74, 0x20000")
        a("buffer_store_dwordx2 v[4:5], v3, %s, s74 offen %s" % (sWS, hs))
    a("s_lshl_b32 s4, s101, 6"); a("s_add_u32 s4, s4, %d" % WS_STAT)
    a("s_mov_b64 exec, 0xf")
    a("buffer_store_dwordx4 v[4:7], v%d, %s, s4 offen %s" % (vLin, sWS, hs))
    a("s_mov_b64 exec, -1")
    a("v_lshrrev_b32 v3, 4, v0"); a("v_mul_u32_u24 v3, %d, v3" % (2 * 7168)); a("v_and_b32 v244, 15, v0"); a("v_lshl_add_u32 v3, v244, 4, v3")
    a("s_mul_i32 s4, s9, %d" % (8 * 7168)); a("s_lshl_b32 s5, s8, 8"); a("s_add_u32 s4, s4, s5"); a("s_add_u32 s4, s4, %d" % WS_P)
    a("s_cmp_lt_u32 s8, 28"); a("s_cselect_b32 s4, s4, %d" % WS_SINK)
    a("buffer_store_dwordx4 v[4:7], v3, %s, s4 offen %s" % (sWS, hs))
    a("s_add_u32 s4, s4, 7168")
    a("buffer_store_dwordx4 v[4:7], v3, %s, s4 offen %s" % (sWS, hs))
    a("s_lshl_b32 s4, s100, 10")
    a("buffer_store_dwordx4 v[4:7], v%d, %s, s4 offen %s" % (vLin, sWS, hs))
    a("L_clrskip:")
    a("s_and_b32 s4, s2, 3"); a("s_lshl_b32 s4, s4, 3"); a("s_getreg_b32 s5, hwreg(HW_REG_XCC_ID, 0, 4)"); a("s_or_b32 s5, s5, 0x80"); a("s_lshl_b32 s4, s5, s4"); a("v_mov_b32 v8, s4"); a("v_mov_b32 v9, 0"); a("s_and_b32 s4, s2, 0xfc")
    a("s_mov_b64 exec, 1")
    if fb:
        a("s_cmp_ge_u32 s2, 32"); a("s_cbranch_scc1 L_noctr")
        a("s_lshl_b32 s5, s2, 8"); a("s_add_u32 s5, s5, %d" % WS_CTR)
        a("buffer_store_dword v9, v9, %s, s5 offen %s" % (sWS, hs))
        a("L_noctr:")
    a("s_waitcnt vmcnt(0)")
    if not noclear & 2: a("buffer_atomic_or v8, v9, %s, s4 offen sc1" % sDBG)
    a("L_clrdone:")
    T(3); T.flush()
    a("L_end:")
    a("s_endpgm")
    a("L_codeend:")
    a.pad()
    head = open("parallel_sum__sliding_block_cached__geglu_ffn__decode.s.ref").read().split("; Override")[0]
    head += "; @launch grid=(256,1,1) block=(384,1,1) lds=%d\n" % LDS_BYTES
    head += '.amdgcn_target "amdgcn-amd-amdhsa--gfx950"\n.text\n.globl %s\n.p2align 8\n.type %s,@function\n' % (KN, KN)
    tail = '.section .rodata,"a"\n.p2align 6\n.amdhsa_kernel %s\n  .amdhsa_next_free_vgpr 256\n  .amdhsa_next_free_sgpr 102\n  .amdhsa_accum_offset 256\n' % KN
    tail += "  .amdhsa_group_segment_fixed_size 0\n  .amdhsa_kernarg_size 96\n  .amdhsa_user_sgpr_count 2\n  .amdhsa_user_sgpr_kernarg_segment_ptr 1\n  .amdhsa_system_sgpr_workgroup_id_x 1\n.end_amdhsa_kernel\n"
    return head + a.text() + tail

if __name__ == "__main__":
    kw = eval("dict(%s)" % (sys.argv[2] if len(sys.argv) > 2 else ""))
    open(sys.argv[1], "w").write(gen(**kw))

RAW = None
def report(t, verbose):
    import numpy as np
    def st(name, x):
        x = x.reshape(x.shape[0], -1)
        print("   %-28s min %6.2f mean %6.2f max %6.2f" % (name, np.median(x.min(axis=1)), np.median(x.mean(axis=1)), np.median(x.max(axis=1))))
    s, x = t[:, :, :4], t[:, :, 4]
    ids = np.arange(256); WO = (ids < 128) | (ids % 8 == 0); DN = ~WO & (((ids >> 3) - 16) * 7 + ids % 8 - 1 < 108)
    for i, n in enumerate(["start", "slot 24", "ring full", "S1", "K done", "softmax done", "V done"]): st("stream " + n, s[..., i])
    st("stream wo perms done", s[:, WO][:, :, :2, 7]); st("stream o seen", s[:, WO][..., 8]); st("stream wo end", s[:, WO][:, :, :2, 9])
    st("stream down mm done", s[:, DN][..., 8]); st("stream down end", s[:, DN][:, :, :2, 9])
    st("aux LN done", x[:, :208, 1]); st("aux L1 mm done", x[:, :208, 2])
    st("clear flag sent", t[:, :, 5, 3])
    for i, n in [(10, "flag check start"), (4, "flags seen"), (11, "q seen"), (5, "S1"), (6, "h done"), (7, "o sent")]: st("aux " + n, x[..., i])
    if verbose:
        for name, idx in (("start", 0), ("slot24", 1), ("ring full", 2), ("K done", 4), ("V done", 6)):
            v = s[..., idx]
            wg = v.max(axis=2)
            print("   %s: within-wg spread %.2f; within-xcd std of wg %.2f; std of xcd means %.2f" % (name, (v.max(axis=2) - v.min(axis=2)).mean(),
                  wg.reshape(len(wg), 32, 8).std(axis=1).mean(), wg.reshape(len(wg), 32, 8).mean(axis=1).std(axis=1).mean()))
            for it in range(-4, 0):
                w = wg[it].reshape(32, 8)
                print("      xcd mean", w.mean(axis=0), "max", w.max(axis=0))
            print("      mean over runs by w>>3:", (wg - wg.mean(axis=1, keepdims=True)).mean(axis=0).reshape(32, 8).mean(axis=1))
    base = -t[:, :, :, 0].min(axis=(1, 2))
    if RAW is not None:
        r = RAW[:, WO]
        n1 = r[:, :144, :2, 10] + 1; d1 = (r[:, :144, :2, 8] - r[:, :144, :2, 7]) / 100.0
        n2 = r[:, :144, 2:4, 11] + 1; d2 = (r[:, :144, 2:4, 9] - r[:, :144, 2:4, 7]) / 100.0
        print("   o poll: mean iters %.1f, us/iter %.3f ; a poll: mean iters %.1f, us/iter %.3f" % (n1.mean(), d1.sum() / n1.sum(), n2.mean(), d2.sum() / n2.sum()))
    n = len(s)
    vmax = s[..., 6].reshape(n, -1).max(axis=1); osent = x[..., 7].max(axis=1); oseen = s[:, WO][..., 8].reshape(n, -1).max(axis=1)
    wend = s[:, WO][:, :, :2, 9].reshape(n, -1).max(axis=1); out = s[:, WO][:, :, 2:4, 9].reshape(n, -1).max(axis=1)
    print("   per-run means: Vmean %.2f Vmax %.2f | +osent %.2f +oseen %.2f +wend %.2f +out %.2f | tail %.2f end %.2f" % (s[..., 6].mean(), vmax.mean(), (osent - vmax).mean(), (oseen - osent).mean(), (wend - oseen).mean(), (out - wend).mean(), (out - vmax).mean(), out.mean()))
    lag = lambda i: (lambda v: v - v.mean(axis=1, keepdims=True))(s[..., i].max(axis=2))
    lv = lag(6)
    for nm, i in (("slot24", 1), ("S1", 3), ("Kdone", 4)):
        l = lag(i); al = (l * lv).sum() / (l * l).sum(); res = lv - al * l
        print("   lag %s: std %.2f max %.2f corr %.2f slope %.2f | V lag std %.2f max %.2f -> residual std %.2f max %.2f" % (nm, l.std(), l.max(axis=1).mean(), np.corrcoef(l.ravel(), lv.ravel())[0, 1], al, lv.std(), lv.max(axis=1).mean(), res.std(), res.max(axis=1).mean()))
    u = np.where(ids < 208, (ids & 7) * 26 + (ids >> 3), 999); S3 = (u < 208) & (u % 8 == 3); FR = ids >= 208
    for nm, m in (("slice3", S3), ("free", FR), ("wq", (u < 64) & ~S3), ("gate/up", (u >= 64) & (u < 208) & ~S3), ("wo-unit", WO & ~S3 & ~FR), ("down-unit", DN & ~S3 & ~FR)):
        print("   class %-10s n=%3d lag slot24 %.2f S1 %.2f Kdone %.2f V %.2f | share of worst V %.2f" % (nm, m.sum(), lag(1)[:, m].mean(), lag(3)[:, m].mean(), lag(4)[:, m].mean(), lv[:, m].mean(), m[lv.argmax(axis=1)].mean()))
    print("   class xcd V lag", np.array([lv[:, ids % 8 == k].mean() for k in range(8)]), "start", np.array([lag(0)[:, ids % 8 == k].mean() for k in range(8)]))
    st("out sent", s[:, WO][:, :, 2:4, 9])
```

```python
import sys, struct
from asmlib import Asm, VM
KN = "parallel_sum__sliding_block_cached__geglu_ffn__decode_kernel"

def f32(x): return "0x%08x" % struct.unpack("<I", struct.pack("<f", x))[0]
def vr(b, n=4): return "v[%d:%d]" % (b, b + n - 1) if n > 1 else "v%d" % b
DPP = "row_mask:0xf bank_mask:0xf"

WS_L1, WS_STAT, WS_O, WS_P, WS_SINK, WS_TS, WS_CTR = 0, 0x40000, 0x140000, 0x80000, 0x100000, 0x200000, 0x48000
L_F, L_Q, L_H, L_OP, L_LP, L_C = 0, 1024, 2048, 8192, 12288, 20480
LDS_BYTES = 21504
SPIN = 400000
L2E = 1.4426950408889634

sK, sV, sX, sWS, sW1, sW2, sDBG, sOUT = ("s[%d:%d]" % (b, b + 3) for b in (40, 44, 48, 52, 56, 60, 64, 68))

def srd(a, base, ptr, nbytes):
    a("s_mov_b32 s%d, s%d" % (base, ptr)); a("s_mov_b32 s%d, s%d" % (base + 1, ptr + 1))
    a("s_mov_b32 s%d, %s" % (base + 2, nbytes)); a("s_mov_b32 s%d, 0x20000" % (base + 3))

class Stamps:
    def __init__(self, a, on): self.a, self.on, self.n = a, on, 0
    def __call__(self, idx):
        if self.on: self.a("s_memrealtime s[%d:%d]" % (76 + 2 * idx, 77 + 2 * idx))
    def flush(self, n=12):
        if not self.on: return
        a = self.a
        a("s_waitcnt lgkmcnt(0)")
        a("s_mul_i32 s4, s2, 6"); a("s_add_u32 s4, s4, s3"); a("s_lshl_b32 s4, s4, 6"); a("s_add_u32 s4, s4, %d" % WS_TS)
        a("s_mov_b64 exec, 1"); a("v_mov_b32 v0, 0")
        for q in range(n // 4):
            for i in range(4): a("v_mov_b32 v%d, s%d" % (4 + 4 * q + i, 76 + 2 * (4 * q + i)))
            a("buffer_store_dwordx4 %s, v0, %s, s4 offen offset:%d" % (vr(4 + 4 * q), sWS, 16 * q))

def allreduce(a, op, v, t, steps):
    for s in steps:
        if s == 0: a("%s_dpp v%d, v%d, v%d quad_perm:[1,0,3,2] %s" % (op, v, v, v, DPP))
        elif s < 16: a("%s_dpp v%d, v%d, v%d row_ror:%d %s" % (op, v, v, v, s, DPP))
        else:
            a("v_mov_b32 v%d, v%d" % (t, v)); a("v_permlane%d_swap_b32 v%d, v%d" % (s, v, t)); a("%s v%d, v%d, v%d" % (op, v, v, t))

def round_bf16(a, v):
    a("v_cvt_pk_bf16_f32 v%d, v%d, v%d" % (v, v, v)); a("v_and_b32 v%d, 0xffff0000, v%d" % (v, v))

def gen(d=6, d0=3, nd0=24, dend=6, nramp=96, R=52, ts=0, kcatch=2, stat_at=104, w2rate=4, hs="sc1", hl="sc1",
        nfree=32, da=11, burst=11, pf=1, flagblk=6, lnstep=28, pre=0, noclear=0, noq=0, nol1=0, kvmap=0, npo=1, npa=1, thr=16, osf='', w2pre=12, b0=3, loc=1, e3=100, orep=1, fb=0, lo=4, hi=6, mstep=8, theta=16, fbend=120, mlag=5, gain=16, duty=0.5, G=32, lv=(4, 5, 6), th=(8, 22), r0=16, kf='nt', vf='nt', st=0):
    hi = lv[-1]
    a = Asm(); T = Stamps(a, ts)
    uid = [0]
    def spin(body, label):
        a("s_mov_b32 s11, %d" % SPIN)
        a(label + ":"); body()
        a("s_cmp_eq_u64 vcc, exec"); a("s_cbranch_scc1 %s_ok" % label)
        a("s_sub_u32 s11, s11, 1"); a("s_cmp_lg_u32 s11, 0"); a("s_cbranch_scc1 %s" % label)
        a(label + "_ok:")

    def mpoll(label, groups, npipe, pre=False):
        nl = sum(len(g[1]) for g in groups)
        def issue():
            for m, loads, _ in groups:
                a("s_mov_b64 exec, s[%d:%d]" % (m, m + 1))
                for t in loads: a(t)
        def check():
            for m, _, regs in groups:
                if len(groups) > 1: a("s_mov_b64 exec, s[%d:%d]" % (m, m + 1))
                a("v_max3_u32 v3, v%d, v%d, v%d" % tuple(regs[:3]))
                rest = regs[3:]
                while len(rest) >= 2: a("v_max3_u32 v3, v3, v%d, v%d" % tuple(rest[:2])); rest = rest[2:]
                if rest: a("v_max_u32 v3, v3, v%d" % rest[0])
                a("v_cmp_eq_u32 s[%d:%d], -1, v3" % (m, m + 1))
            m0 = groups[0][0]
            a("s_or_b64 vcc, s[%d:%d], s[%d:%d]" % (m0, m0 + 1, groups[-1][0], groups[-1][0] + 1))
            a("s_cbranch_scc0 %s_ok" % label)
        a("s_mov_b32 s11, %d" % SPIN)
        if pre: check()
        a(label + ":"); issue(); a("s_waitcnt vmcnt(0)"); check()
        if npipe > 1:
            a("s_bcnt1_i32_b64 s5, vcc"); a("s_cmp_le_u32 s5, %d" % thr); a("s_cbranch_scc1 %s_fast" % label)
        a("s_sub_u32 s11, s11, 1"); a("s_cmp_lg_u32 s11, 0"); a("s_cbranch_scc1 %s" % label)
        if npipe > 1:
            a("s_branch %s_ok" % label)
            a(label + "_fast:"); issue(); a("s_waitcnt vmcnt(%d)" % (nl * (npipe - 1))); check()
            a("s_sub_u32 s11, s11, 1"); a("s_cmp_lg_u32 s11, 0"); a("s_cbranch_scc1 %s_fast" % label)
        a(label + "_ok:")
        a("s_mov_b64 exec, -1")

    def roles():
        a("s_and_b32 s9, s2, 7"); a("s_lshr_b32 s8, s2, 3")
        a("s_cmp_lt_u32 s8, 16"); a("s_cbranch_scc1 L_role%d" % uid[0])
        a("s_sub_u32 s8, s8, 16"); a("s_cmp_eq_u32 s9, 0"); a("s_cselect_b32 s9, 8, s9"); a("s_cbranch_scc1 L_role%d" % uid[0])
        a("s_mul_i32 s8, s8, 7"); a("s_add_u32 s9, s8, s9"); a("s_sub_u32 s9, s9, 1")
        a("s_mul_i32 s8, s9, 57"); a("s_lshr_b32 s8, s8, 9"); a("s_mul_i32 s4, s8, 9"); a("s_sub_u32 s9, s9, s4"); a("s_add_u32 s8, s8, 16")
        a("L_role%d:" % uid[0]); uid[0] += 1

    a(KN + ":")
    T(0)
    a("s_cmp_ge_u32 s2, 256"); a("s_cbranch_scc1 L_end")
    a("s_load_dwordx16 s[16:31], s[0:1], 0"); a("s_load_dwordx8 s[32:39], s[0:1], 64")
    a("s_getpc_b64 s[4:5]")
    a("L_pc:")
    a("v_lshlrev_b32 v1, 7, v0"); a("v_min_u32 v1, %s, v1" % ("L_codeend-L_pc-4" if pf else "4"))
    a("global_load_dword v255, v1, s[4:5]")
    a("v_lshrrev_b32 v1, 6, v0"); a("v_and_b32 v0, 63, v0"); a("v_readfirstlane_b32 s3, v1")
    if kvmap == 0: a("s_mov_b32 s101, s2")
    else:
        a("s_and_b32 s101, s2, 7"); a("s_lshl_b32 s101, s101, 5"); a("s_lshr_b32 s6, s2, 3"); a("s_add_u32 s101, s101, s6")
    a("s_lshr_b32 s6, s101, 1")
    a("s_and_b32 s7, s101, 1")
    a("s_mov_b32 s12, 0x05040100"); a("s_mov_b32 s13, 0x07060302")
    a("s_cmp_ge_u32 s3, 4"); a("s_cbranch_scc1 L_aux")

    vm = VM(a); vm.n = 1
    vKo, vVo, vT0, vT1, vM, vL, vF, vW2o = 1, 2, 3, 4, 5, 6, 7, 8
    vMask, vQ0, vQ1, vAcc = 12, 16, 20, 24
    vD = [28, 32]
    pool = list(range(36, 252, 4))
    assert len(pool) >= R + 2
    a("v_lshrrev_b32 v3, 4, v0"); a("v_lshlrev_b32 v3, 6, v3")
    a("v_and_b32 v4, 3, v0"); a("v_lshl_or_b32 v3, v4, 4, v3")
    a("v_bfe_u32 v4, v0, 2, 2"); a("v_lshl_or_b32 v%d, v4, 8, v3" % vKo)
    a("v_lshlrev_b32 v%d, 4, v0" % vVo)
    a("s_lshl_b32 s14, s6, 21"); a("s_lshl_b32 s15, s7, 18"); a("s_add_u32 s14, s14, s15")
    a("s_lshl_b32 s15, s3, 11"); a("s_add_u32 s14, s14, s15"); a("s_add_u32 s14, s14, %d" % (6144 * 256))
    a("s_waitcnt lgkmcnt(0)")
    srd(a, 40, 18, "0x10000000")
    slot, tok = {}, {}
    free = pool[:]
    issued = [0]
    w2 = {}
    def issue_next():
        n = issued[0]; issued[0] += 1
        if n < 128:
            r = free.pop(0); slot[n] = r
            c, t = divmod(n % 64, 2)
            if t == 0: a("s_add_u32 s10, s14, %d" % (c * 8192))
            tok[n] = vm.issue("buffer_load_dwordx4 %s, v%d, %s, s10 offen offset:%d %s" % (vr(r), vKo if n < 64 else vVo, sK if n < 64 else sV, 1024 * t, kf if n < 64 else vf))
    def issue_w2(vmx, k):
        kb, j = divmod(k, 8)
        if k % 2 == 0: w2q.append(free.pop(0))
        r = w2q[-1] + 2 * (k % 2)
        if j % 4 == 0: a("s_add_u32 s5, s72, %d" % ((32 * kb + j) * 1152))
        w2[k] = (r, vmx.issue("buffer_load_dwordx2 %s, v%d, %s, s5 offen offset:%d nt" % (vr(r, 2), vW2o, sW2 if kb < 2 else sW1, 1152 * (j % 4))))
    w2q = []
    for _ in range(max(b0, d0)): issue_next()
    srd(a, 44, 20, "0x10000000"); srd(a, 52, 38, "0x40000000")
    roles()
    a("v_bfe_u32 v3, v0, 3, 1"); a("v_bfe_u32 v4, v0, 1, 1"); a("v_lshl_or_b32 v3, v3, 1, v4")
    a("v_and_b32 v4, 1, v0"); a("v_lshlrev_b32 v4, 4, v4"); a("v_mov_b32 v5, 0xffff"); a("v_lshlrev_b32 v4, v4, v5")
    for r in range(4):
        a("v_cmp_eq_u32 vcc, %d, v3" % r); a("v_cndmask_b32 v%d, 0, v4, vcc" % (vMask + r))
    a("v_lshrrev_b32 v3, 4, v0"); a("v_mul_u32_u24 v3, %d, v3" % (8 * 1152)); a("v_and_b32 v4, 15, v0"); a("v_lshl_add_u32 v%d, v4, 3, v3" % vW2o)
    a("s_cmp_lt_u32 s8, 16")
    a("s_cselect_b32 s60, s24, s32"); a("s_cselect_b32 s61, s25, s33")
    a("s_mov_b32 s62, 4718592"); a("s_cselect_b32 s62, s62, 5308416"); a("s_mov_b32 s63, 0x20000")
    a("s_cselect_b32 s72, 0, 16"); a("s_cselect_b32 s73, 64, 96")
    a("s_sub_u32 s72, s8, s72"); a("s_lshl_b32 s72, s72, 2"); a("s_add_u32 s72, s72, s3"); a("s_mul_i32 s72, s72, s73")
    a("s_mul_i32 s72, s72, 1152"); a("s_lshl_b32 s73, s9, 7"); a("s_add_u32 s72, s72, s73")
    a("s_cmp_lt_u32 s8, 28"); a("s_cselect_b32 s62, s62, 0")
    a("s_mov_b32 s56, s60"); a("s_mov_b32 s57, s61"); a("s_mov_b32 s59, 0x20000"); a("s_cmp_lt_u32 s8, 16"); a("s_cselect_b32 s58, 0, s62")
    srd(a, 48, 16, 9216); srd(a, 68, 34, 9216)
    a("s_lshr_b32 s4, s8, 1"); a("s_and_b32 s4, s4, 7"); a("s_and_b32 s5, s8, 1"); a("s_lshl_b32 s5, s5, 1"); a("s_and_b32 s15, s3, 1"); a("s_add_u32 s5, s5, s15")
    a("s_lshl_b32 s74, s9, 3"); a("s_add_u32 s74, s74, s4"); a("s_mul_i32 s74, s74, 7168"); a("s_lshl_b32 s15, s5, 6"); a("s_add_u32 s74, s74, s15"); a("s_add_u32 s74, s74, %d" % WS_P)
    a("s_mul_i32 s75, s4, 1152"); a("s_lshl_b32 s15, s9, 7"); a("s_add_u32 s75, s75, s15"); a("s_lshl_b32 s15, s5, 5"); a("s_add_u32 s75, s75, s15")
    a("v_and_b32 v3, 3, v0"); a("v_lshlrev_b32 v3, 3, v3"); a("v_lshrrev_b32 v4, 4, v0"); a("v_lshl_or_b32 v253, v4, 1, v3")
    vm.issue("buffer_load_ushort v254, v253, %s, s75 offen" % sX)
    ctl = {"on": False, "k": 0, "tok": None}
    def D(n):
        if n < nd0: return d0
        base = hi if (fb and n >= R) else d
        if n < nramp: return base
        return base + max(0, dend - base) * (n - nramp + 1) // (128 - nramp)
    def paced():
        n = issued[0]
        if n < 128:
            if n - D(n) >= 0: vm.wait(tok[n - D(n)])
            if ctl["on"]:
                if n == ctl["tok"]:
                    k = ctl["k"]; g = gain[min(k, len(gain) - 1)] if isinstance(gain, (list, tuple)) else gain
                    a("s_cmp_lg_u32 s3, 0"); a("s_cbranch_scc1 L_cw%d" % n)
                    a("s_waitcnt lgkmcnt(0)"); a("s_sub_u32 s97, s97, %d" % (G * k))
                    a("v_mov_b32 v252, s97"); a("ds_write_b32 v%d, v252 offset:%d" % (vVo, L_C))
                    a("L_cw%d:" % n)
                if ctl["tok"] and n > ctl["tok"]:
                    o_ = n - ctl["tok"]
                    if o_ % 2 == 1: a("ds_read_b32 v252, v%d offset:%d" % (vVo, L_C))
                    else:
                        a("s_waitcnt lgkmcnt(0)"); a("v_readfirstlane_b32 s95, v252")
                        if o_ >= 6 or mlag + o_ + 2 > mstep: ctl["k"] += 1; ctl["tok"] = None
                used = False
                for l_, t_ in reversed(list(zip(lv[:-1], th))):
                    m = n - (D(n) - hi + l_)
                    if tok[m] > vm.done:
                        a("s_cmp_ge_i32 s95, %d" % t_); a("s_cbranch_scc1 L_hi%d" % n); a("s_waitcnt vmcnt(%d)" % (vm.n - tok[m])); used = True
                if used: a("L_hi%d:" % n)
            issue_next()
            if ctl["on"] and (n - R) % mstep == 0 and n <= fbend:
                assert ctl["tok"] is None
                a("s_cmp_lg_u32 s3, 0"); a("s_cbranch_scc1 L_ca%d" % n)
                a("s_mov_b32 s97, 1"); a("s_atomic_add s97, s[38:39], s99 glc"); ctl["tok"] = n + mlag
                a("L_ca%d:" % n)
    def ahead(n):
        while issued[0] < 128 and issued[0] - D(issued[0]) < n: paced()
    while issued[0] < R:
        paced()
        if issued[0] == 24: T(1)
        if issued[0] == nfree:
            a("s_cmp_lt_u32 s2, 208"); a("s_cbranch_scc1 L_nofb"); a("s_barrier"); a("L_nofb:")
    T(2)
    a("s_barrier")
    T(3)
    a("ds_read_b128 %s, v%d offset:%d" % (vr(vQ0), vVo, L_Q))
    a("v_mov_b32 v4, 0"); a("ds_read_b32 v4, v4 offset:%d" % L_F)
    a("v_and_b32 v3, 8, v0"); a("v_cmp_eq_u32 vcc, 0, v3"); a("v_mov_b32 v%d, 0xff800000" % vM)
    a("s_mov_b32 s15, %s" % f32(128 ** -0.5))
    a("s_waitcnt lgkmcnt(0)")
    a("v_readfirstlane_b32 s100, v4")
    for i in range(4): a("v_cndmask_b32 v%d, v%d, 0, vcc" % (vQ1 + i, vQ0 + i))
    for i in range(4): a("v_cndmask_b32 v%d, 0, v%d, vcc" % (vQ0 + i, vQ0 + i))
    if fb:
        a("s_lshr_b32 s99, s2, 3"); a("s_and_b32 s99, s99, %d" % (256 // G - 1)); a("s_lshl_b32 s99, s99, 8"); a("s_add_u32 s99, s99, %d" % WS_CTR)
        a("s_mov_b32 s95, %d" % r0); ctl["on"] = True
    vD += [free.pop(), free.pop()]
    S = []
    def qk(c):
        D = vD[c % 4]
        vm.wait(tok[2 * c + 1])
        a("v_mfma_f32_16x16x32_bf16 %s, %s, %s, 0" % (vr(D), vr(slot[2 * c]), vr(vQ0)))
        a("v_mfma_f32_16x16x32_bf16 %s, %s, %s, %s" % (vr(D), vr(slot[2 * c + 1]), vr(vQ1), vr(D)))
        free.extend([slot[2 * c], slot[2 * c + 1]])
    def extract(c):
        if c % 4 == 0: S.extend(range(free[-1], free[-1] + 4)); free.pop()
        x, y, DA, DB = S[c], S[c + 1], vD[c % 4], vD[(c + 1) % 4]
        for i in range(4):
            for s_, D in ((x, DA), (y, DB)):
                if i == 0: a("v_mov_b32_dpp v%d, v%d quad_perm:[0,0,0,0] %s" % (s_, D, DPP))
                else: a("v_add_f32_dpp v%d, v%d, v%d quad_perm:[%d,%d,%d,%d] %s" % (s_, D + i, s_, i, i, i, i, DPP))
        for rep in range(2):
            a("v_cvt_pk_bf16_f32 v3, v%d, v%d" % (x, y))
            a("v_lshlrev_b32 v%d, 16, v3" % x); a("v_and_b32 v%d, 0xffff0000, v3" % y)
            if rep == 0: a("v_mul_f32 v%d, s15, v%d" % (x, x)); a("v_mul_f32 v%d, s15, v%d" % (y, y))
        a("v_max3_f32 v%d, v%d, v%d, v%d" % (vM, vM, x, y))
    for c in range(0, 32, 2):
        ahead(2 * c + 3)
        qk(c); qk(c + 1)
        for _ in range(4 // kcatch if kcatch <= 4 else 1): paced()
        if c >= 2: extract(c - 2)
    extract(30)
    free.extend(vD[2:])
    T(4)
    paced()
    allreduce(a, "v_max_f32", vM, 3, [8, 16, 32])
    a("s_mov_b32 s15, %s" % f32(L2E)); a("v_mul_f32 v%d, s15, v%d" % (vM, vM)); a("v_mov_b32 v%d, 0" % vL); a("v_mov_b32 v4, 0")
    for c in range(0, 32, 4):
        for i in range(4): a("v_fma_f32 v%d, v%d, s15, -v%d" % (S[c + i], S[c + i], vM))
        for i in range(4): a("v_exp_f32 v%d, v%d" % (S[c + i], S[c + i]))
        for i in range(4): a("v_add_f32 v%d, v%d, v%d" % ((vL, 4)[i % 2], (vL, 4)[i % 2], S[c + i]))
        for i in range(4): a("v_cvt_pk_bf16_f32 v%d, v%d, v%d" % (S[c + i], S[c + i], S[c + i]))
        if c % 8 == 4: paced()
    a("v_add_f32 v%d, v%d, v4" % (vL, vL))
    allreduce(a, "v_add_f32", vL, 3, [8, 16, 32])
    a("v_min_u32 v10, -2, v%d" % vM); a("v_min_u32 v11, -2, v%d" % vL)
    a("v_lshlrev_b32 v9, 1, v0")
    a("v_and_b32 v9, 0x78, v9")
    a("s_lshl_b32 s73, s6, 7"); a("s_add_u32 s73, s73, %d" % WS_STAT)
    a("s_lshl_b32 s4, s7, 2"); a("s_add_u32 s4, s4, s3"); a("s_lshl_b32 s4, s4, 4"); a("s_add_u32 s4, s4, s73")
    a("s_mov_b64 exec, 0x11")
    if not noclear & 4: vm.issue("buffer_store_dwordx2 v[10:11], v9, %s, s4 offen %s" % (sWS, hs))
    a("s_mov_b64 exec, -1")
    T(5)
    vB = vD[:2]
    def prepB(n):
        c, t = divmod(n - 64, 2)
        for r in range(4):
            if (r >> 1) == t: a("v_and_b32 v%d, v%d, v%d" % (vB[n % 2] + r, S[c], vMask + r))
            else: a("v_and_b32_dpp v%d, v%d, v%d row_ror:8 %s" % (vB[n % 2] + r, S[c], vMask + r, DPP))
    def stat_valid(): a("v_max_u32 v3, v10, v11"); a("v_cmp_ne_u32 vcc, -1, v3")
    prepB(64)
    tstat = None; nw2 = 0; n3 = 16
    for n in range(64, 128):
        ahead(n)
        if tstat is None and issued[0] >= stat_at:
            tstat = vm.issue("buffer_load_dwordx2 v[10:11], v9, %s, s73 offen %s" % (sWS, hl))
        vm.wait(tok[n])
        a("v_mfma_f32_16x16x32_bf16 %s, %s, %s, %s" % (vr(vAcc), vr(slot[n]), vr(vB[n % 2]), "0" if n == 64 else vr(vAcc)))
        free.append(slot[n])
        if n % 2 == 1 and issued[0] < 128 and issued[0] - D(issued[0]) > n: paced()
        if n >= e3 and n3 < 24 and issued[0] < 128: issue_w2(vm, n3); n3 += 1
        if issued[0] >= 128:
            assert n3 in (16, 24)
            for _ in range(w2rate):
                if nw2 < w2pre: issue_w2(vm, nw2); nw2 += 1
        if n < 127: prepB(n + 1)
        if tstat and tstat > 0 and vm.done >= tstat:
            a("s_mov_b64 s[66:67], vcc")
            if noclear & 4: a("s_branch L_stat_ok")
            stat_valid(); a("s_cmp_eq_u64 vcc, exec"); a("s_cbranch_scc1 L_stat_ok")
            def body():
                a("buffer_load_dwordx2 v[10:11], v9, %s, s73 offen %s" % (sWS, hl)); a("s_waitcnt vmcnt(0)"); stat_valid()
            spin(body, "L_stat")
            a("s_mov_b64 vcc, s[66:67]")
            a("v_mov_b32 v%d, v10" % vF); allreduce(a, "v_max_f32", vF, 3, [8, 16, 32])
            a("v_sub_f32 v10, v10, v%d" % vF); a("v_sub_f32 v%d, v%d, v%d" % (vF, vM, vF))
            a("v_exp_f32 v10, v10"); a("v_exp_f32 v%d, v%d" % (vF, vF)); a("v_mul_f32 v10, v10, v11")
            allreduce(a, "v_add_f32", 10, 3, [8, 16, 32])
            a("v_rcp_f32 v10, v10"); a("v_mul_f32 v%d, v%d, v10" % (vF, vF))
            a("v_bfe_u32 v3, v0, 2, 1"); a("v_lshlrev_b32 v3, 9, v3"); a("v_lshrrev_b32 v4, 4, v0"); a("v_lshl_or_b32 v3, v4, 7, v3")
            a("v_bfe_u32 v4, v0, 3, 1"); a("v_lshl_or_b32 v3, v4, 4, v3"); a("v_and_b32 v4, 3, v0"); a("v_lshl_or_b32 v9, v4, 2, v3")
            a("s_lshl_b32 s4, s3, 10"); a("s_add_u32 s4, s4, %d" % L_OP); a("v_add_u32 v9, s4, v9")
            tstat = -1
    assert tstat == -1
    T(6)
    for i in range(4): a("v_mul_f32 v%d, v%d, v%d" % (vAcc + i, vAcc + i, vF))
    a("ds_write2_b32 v9, v%d, v%d offset0:0 offset1:8" % (vAcc, vAcc + 1))
    a("ds_write2_b32 v9, v%d, v%d offset0:16 offset1:24" % (vAcc + 2, vAcc + 3))
    a("s_waitcnt lgkmcnt(0)"); a("s_barrier")
    a("s_cmp_ge_u32 s8, 28"); a("s_cbranch_scc1 L_sdone")
    while nw2 < 16: issue_w2(vm, nw2); nw2 += 1
    vA = [free.pop(0) for _ in range(3)]
    vE = [free.pop(0) for _ in range(4)]
    vP = [[free.pop(0) for _ in range(4)] for _ in range(3)]
    def perms(kb, vmx):
        vmx.wait(w2[8 * kb + 7][1])
        for i in range(4):
            for q in range(4):
                a("v_perm_b32 v%d, v%d, v%d, s%d" % (vP[kb][i] + q, w2[8 * kb + 2 * q + 1][0] + i // 2, w2[8 * kb + 2 * q][0] + i // 2, 12 + i % 2))
    def mm(kb, first):
        for i in range(4):
            a("v_mfma_f32_16x16x32_bf16 %s, %s, %s, %s" % (vr(vE[i]), vr(vA[kb]), vr(vP[kb][i]), "0" if first else vr(vE[i])))
    a("s_cmp_ge_u32 s8, 16"); a("s_cbranch_scc1 L_down")
    v1 = vm.copy()
    a("v_and_b32 v3, 15, v0"); a("v_lshlrev_b32 v3, 9, v3"); a("v_and_b32 v4, 48, v0"); a("v_or_b32 v9, v3, v4")
    a("s_lshl_b32 s4, s8, 13"); a("s_lshl_b32 s5, s3, 7"); a("s_add_u32 s4, s4, s5"); a("s_add_u32 s4, s4, %d" % WS_O)
    if orep > 1: a("s_and_b32 s5, s9, %d" % (orep - 1)); a("s_lshl_b32 s5, s5, 17"); a("s_add_u32 s4, s4, s5")
    perms(0, v1); perms(1, v1)
    T(7)
    A4, Y4 = vP[2][0], vP[2][1]
    a("s_cmp_lt_u32 s3, 2"); a("s_cbranch_scc1 L_nopre")
    a("v_lshrrev_b32 v4, 2, v0"); a("v_lshlrev_b32 v4, 8, v4"); a("v_and_b32 v10, 3, v0"); a("v_lshl_or_b32 v10, v10, 4, v4")
    for i in range(4): a("v_mov_b32 v%d, 0" % (Y4 + i))
    a("s_mov_b32 s66, -1"); a("s_mov_b32 s67, 0xffff"); a("s_add_u32 s73, s74, 4096")
    a("v_lshlrev_b32 v254, 16, v254")
    ldA = "buffer_load_dwordx4 %s, v10, %s, s74 offen %s" % (vr(A4), sWS, hl)
    ldY = "buffer_load_dwordx4 %s, v10, %s, s73 offen %s" % (vr(Y4), sWS, hl)
    a(ldA); a("s_mov_b64 exec, s[66:67]"); a(ldY)
    a("L_nopre:")
    a("s_mov_b64 s[64:65], -1")
    mpoll("L_opoll", [(64, ["buffer_load_dwordx4 %s, v9, %s, s4 offen offset:%d %s" % (vr(vA[kb]), sWS, 64 * kb, hl) for kb in range(2)],
                       [vA[kb] + i for kb in range(2) for i in range(4)])], npo)
    T(8)
    if ts: a("s_sub_u32 s96, %d, s11" % SPIN)
    mm(0, True); mm(1, False)
    a("s_branch L_l2fin")
    a("L_down:")
    v2 = vm.copy()
    for k in range(n3, 24): issue_w2(v2, k)
    a("v_lshrrev_b32 v3, 4, v0"); a("v_lshlrev_b32 v3, 7, v3"); a("v_bfe_u32 v4, v0, 1, 3"); a("v_lshl_or_b32 v3, v4, 4, v3")
    a("s_mul_i32 s4, s3, 1536"); a("v_add_u32 v3, s4, v3")
    for kb in range(3): a("ds_read_b128 %s, v3 offset:%d" % (vr(vA[kb]), L_H + 512 * kb))
    a("v_and_b32 v4, 1, v0"); a("v_cmp_eq_u32 vcc, 0, v4"); a("s_waitcnt lgkmcnt(0)")
    for kb in range(3):
        for i in range(4): a("v_cndmask_b32 v%d, 0, v%d, vcc" % (vA[kb] + i, vA[kb] + i))
    T(7)
    for kb in ((2, 0, 1) if n3 == 24 else (0, 1, 2)): perms(kb, v2); mm(kb, kb == (2 if n3 == 24 else 0))
    T(8)
    a("L_l2fin:")
    vO = vP[0][:2]
    a("s_lshl_b32 s4, s3, 11"); a("v_add_u32 v9, s4, v%d" % vVo)
    for x in range(2):
        for i in range(4): a("v_add_f32 v%d, v%d, v%d" % (vO[x] + i, vE[i] + 2 * x, vE[i] + 2 * x + 1))
        a("ds_write_b128 v9, %s offset:%d" % (vr(vO[x]), L_LP + 1024 * x))
    a("s_lshl_b32 s4, s3, 10"); a("v_add_u32 v9, s4, v%d" % vVo)
    a("v_lshrrev_b32 v3, 4, v0"); a("v_mul_u32_u24 v3, %d, v3" % (2 * 7168)); a("v_and_b32 v4, 15, v0"); a("v_lshl_add_u32 v3, v4, 4, v3")
    a("s_mul_i32 s4, s9, %d" % (8 * 7168)); a("s_lshl_b32 s5, s8, 8"); a("s_add_u32 s4, s4, s5")
    a("s_mul_i32 s5, s3, 7168"); a("s_add_u32 s4, s4, s5"); a("s_add_u32 s4, s4, %d" % WS_P)
    a("s_waitcnt lgkmcnt(0)"); a("s_barrier")
    a("s_cmp_ge_u32 s3, 2"); a("s_cbranch_scc1 L_final")
    for w in range(4): a("ds_read_b128 %s, v9 offset:%d" % (vr(vE[w]), L_LP + 2048 * w))
    a("s_cmp_eq_u32 s100, 0")
    a("s_waitcnt lgkmcnt(2)")
    for i in range(4): a("v_add_f32 v%d, v%d, v%d" % (vE[0] + i, vE[0] + i, vE[1] + i))
    a("s_waitcnt lgkmcnt(0)")
    for i in range(4): a("v_add_f32 v%d, v%d, v%d" % (vE[2] + i, vE[2] + i, vE[3] + i))
    for i in range(4): a("v_add_f32 v%d, v%d, v%d" % (vE[0] + i, vE[0] + i, vE[2] + i))
    for i in range(4): a("v_min_u32 v%d, -2, v%d" % (vE[0] + i, vE[0] + i))
    a("s_cbranch_scc1 L_pfar")
    a("buffer_store_dwordx4 %s, v3, %s, s4 offen" % (vr(vE[0]), sWS))
    a("s_branch L_sdone")
    a("L_pfar:")
    a("buffer_store_dwordx4 %s, v3, %s, s4 offen %s" % (vr(vE[0]), sWS, hs))
    a("s_branch L_sdone")
    a("L_final:")
    a("s_cmp_ge_u32 s8, 16"); a("s_cbranch_scc1 L_sdone")
    T(7)
    a("s_mov_b64 s[64:65], -1")
    mpoll("L_ppoll", [(64, [ldA], list(range(A4, A4 + 4))), (66, [ldY], list(range(Y4, Y4 + 4)))], npa, True)
    if ts: a("s_sub_u32 s98, %d, s11" % SPIN)
    B4, Z4 = vP[2][2], vP[2][3]
    for i in range(4): a("v_mov_b32 v%d, v%d" % (B4 + i, A4 + i)); a("v_mov_b32 v%d, v%d" % (Z4 + i, Y4 + i))
    for r in (B4, Z4): a("v_permlane32_swap_b32 v%d, v%d" % (r, r + 2)); a("v_permlane32_swap_b32 v%d, v%d" % (r + 1, r + 3))
    for r in (B4, Z4): a("v_add_f32 v%d, v%d, v%d" % (r, r, r + 2)); a("v_add_f32 v%d, v%d, v%d" % (r + 1, r + 1, r + 3))
    for r in (B4, Z4): a("v_permlane16_swap_b32 v%d, v%d" % (r, r + 1))
    for r in (B4, Z4): a("v_add_f32 v%d, v%d, v%d" % (r, r, r + 1))
    for k in (8, 4):
        for r in (B4, Z4): a("v_add_f32_dpp v%d, v%d, v%d row_ror:%d %s" % (r, r, r, k, DPP))
    a("v_cvt_pk_bf16_f32 v3, v%d, v%d" % (B4, Z4)); a("v_lshlrev_b32 v4, 16, v3"); a("v_and_b32 v3, 0xffff0000, v3")
    a("v_add_f32 v4, v254, v4"); round_bf16(a, 4); a("v_add_f32 v4, v4, v3"); a("v_cvt_pk_bf16_f32 v4, v4, v4")
    a("s_mov_b32 exec_lo, 0x000f000f"); a("s_mov_b32 exec_hi, 0x000f000f")
    a("buffer_store_short v4, v253, %s, s75 offen %s" % (sOUT, osf))
    a("L_sdone:")
    T(9); T.flush()
    a("s_endpgm")

    a("L_aux:")
    vm = VM(a); vm.n = 1
    vLin, vWo = 1, 2
    vXN, vAc, vTp, vRing, w1blk = 8, 44, 244, 116, 4
    a("v_lshlrev_b32 v%d, 4, v0" % vLin)
    if 1:
        a("s_and_b32 s100, s2, 7"); a("s_mul_i32 s100, s100, 26"); a("s_lshr_b32 s4, s2, 3"); a("s_add_u32 s100, s100, s4")
        a("s_cmp_lt_u32 s2, 208"); a("s_cselect_b32 s100, s100, s2")
    a("s_and_b32 s4, s6, 15"); a("s_lshl_b32 s4, s4, 13"); a("s_lshr_b32 s5, s101, 5"); a("s_lshl_b32 s5, s5, 1"); a("s_add_u32 s5, s5, s7")
    a("s_lshl_b32 s5, s5, 9"); a("s_add_u32 s4, s4, s5"); a("s_add_u32 s74, s4, %d" % WS_O)
    a("s_cmp_eq_u32 s3, 5"); a("s_cbranch_scc1 L_clear")
    a("s_cmp_lt_u32 s100, 64"); a("s_movk_i32 s14, 8192"); a("s_cselect_b32 s14, s14, 9216"); a("s_mov_b32 s58, 4718592"); a("s_cselect_b32 s58, s58, 5308416"); a("s_cselect_b32 s15, 0, 64")
    a("s_cmp_lt_u32 s100, 136"); a("s_cselect_b32 s15, s15, 136"); a("s_sub_u32 s15, s100, s15"); a("s_lshl_b32 s15, s15, 7")
    a("v_lshrrev_b32 v3, 3, v0"); a("v_lshlrev_b32 v3, 3, v3"); a("v_mul_u32_u24 v3, s14, v3"); a("v_and_b32 v2, 7, v0"); a("v_lshl_add_u32 v%d, v2, 4, v3" % vWo)
    a("v_bfe_u32 v3, v0, 1, 3"); a("v_mul_u32_u24 v3, 1152, v3"); a("v_lshrrev_b32 v4, 4, v0"); a("v_lshl_add_u32 v3, v4, 5, v3")
    a("v_and_b32 v4, 1, v0"); a("v_lshl_add_u32 v3, v4, 4, v3")
    a("s_mul_i32 s75, s14, 57")
    a("s_waitcnt lgkmcnt(0)")
    a("s_cmp_lt_u32 s100, 136"); a("s_cselect_b32 s56, s28, s30"); a("s_cselect_b32 s57, s29, s31")
    a("s_cmp_lt_u32 s100, 64"); a("s_cselect_b32 s56, s22, s56"); a("s_cselect_b32 s57, s23, s57"); a("s_mov_b32 s59, 0x20000")
    a("s_cmp_lt_u32 s2, %d" % (0 if nol1 else 208)); a("s_cselect_b32 s58, s58, 0")
    w1 = []
    def issue_w1():
        blk, j = divmod(len(w1), 8)
        r = vRing + 32 * (blk % w1blk) + 4 * j
        w1.append(vm.issue("buffer_load_dwordx4 %s, v%d, %s, s15 offen nt" % (vr(r), vWo, sW1)))
        a("s_add_u32 s15, s15, %s" % ("s75" if j == 7 else "s14"))
    srd(a, 48, 16, 9216)
    for _ in range(pre): issue_w1()
    for i in range(9): tx = vm.issue("buffer_load_dwordx4 %s, v3, %s, 0 offen offset:%d" % (vr(vXN + 4 * i), sX, 128 * i))
    while len(w1) < burst: issue_w1()
    srd(a, 52, 38, "0x40000000")
    srd(a, 64, 36, 256)
    a("s_cmp_ge_u32 s2, 208"); a("s_cbranch_scc1 L_nol1")
    def paced1(blk):
        if len(w1) < 72 and len(w1) < 8 * (blk + w1blk):
            if len(w1) >= da: vm.wait(w1[len(w1) - da])
            issue_w1()
    ln = Asm(); xf = 44
    def unpack_all():
        for i in range(36): ln("v_lshlrev_b32 v%d, 16, v%d" % (xf + 2 * i, vXN + i)); ln("v_and_b32 v%d, 0xffff0000, v%d" % (xf + 2 * i + 1, vXN + i))
    def pack_all():
        for i in range(36): ln("v_cvt_pk_bf16_f32 v%d, v%d, v%d" % (vXN + i, xf + 2 * i, xf + 2 * i + 1))
    for i in range(4): ln("v_mov_b32 v%d, 0x3f803f80" % (244 + i))
    for i in range(9): ln("v_mfma_f32_16x16x32_bf16 v[248:251], v[244:247], %s, %s" % (vr(vXN + 4 * i), "0" if i == 0 else "v[248:251]"))
    unpack_all()
    allreduce(ln, "v_add_f32", 248, 249, [0])
    ln("v_mul_f32 v248, %s, v248" % f32(1 / 576)); ln("v_mov_b32 v4, v248"); round_bf16(ln, 4)
    ln("v_sub_f32 v248, v248, v4"); ln("v_sub_f32 v4, 0, v4"); ln("v_mov_b32 v5, v4")
    for i in range(36): ln("v_pk_add_f32 %s, %s, v[4:5]" % (vr(xf + 2 * i, 2), vr(xf + 2 * i, 2)))
    for i in range(36):
        acc = vr(244 + 2 * (i % 2), 2); x2 = vr(xf + 2 * i, 2)
        ln("v_pk_mul_f32 %s, %s, %s" % (acc, x2, x2) if i < 2 else "v_pk_fma_f32 %s, %s, %s, %s" % (acc, x2, x2, acc))
    ln("v_pk_add_f32 v[244:245], v[244:245], v[246:247]"); ln("v_add_f32 v4, v244, v245")
    allreduce(ln, "v_add_f32", 4, 5, [0, 16, 32])
    ln("v_mul_f32 v4, %s, v4" % f32(1 / 576)); ln("v_fma_f32 v4, -v248, v248, v4"); ln("v_max_f32 v4, 0, v4"); round_bf16(ln, 4)
    ln("v_add_f32 v4, %s, v4" % f32(1e-5)); round_bf16(ln, 4)
    ln("v_sqrt_f32 v4, v4"); round_bf16(ln, 4); ln("v_rcp_f32 v4, v4")
    pack_all(); ln("v_mov_b32 v5, v4"); unpack_all()
    for i in range(36): ln("v_pk_mul_f32 %s, %s, v[4:5]" % (vr(xf + 2 * i, 2), vr(xf + 2 * i, 2)))
    pack_all()
    vm.wait(tx)
    for k, ins in enumerate(ln.ins):
        a(ins.text)
        if k % lnstep == lnstep - 1:
            paced1(0)
    T(1)
    tflag = None
    for blk in range(9):
        while len(w1) < min(72, 8 * blk + 7 + da): paced1(blk)
        if blk == flagblk:
            a("v_lshlrev_b32 v253, 2, v0"); tflag = vm.issue("buffer_load_dword v252, v253, %s, 0 offen %s" % (sDBG, hl))
        vm.wait(w1[8 * blk + 7])
        base = vRing + 32 * (blk % w1blk)
        for i in range(8):
            t = vTp + 4 * (i % 2)
            for q in range(4): a("v_perm_b32 v%d, v%d, v%d, s%d" % (t + q, base + 4 * (2 * q + 1) + i // 2, base + 4 * (2 * q) + i // 2, 12 + i % 2))
            if i > 0:
                D = vAc + 4 * (i - 1)
                a("v_mfma_f32_16x16x32_bf16 %s, %s, %s, %s" % (vr(D), vr(vXN + 4 * blk), vr(vTp + 4 * ((i - 1) % 2)), "0" if blk == 0 else vr(D)))
            if i % 4 == 0: paced1(blk)
        D = vAc + 28
        a("v_mfma_f32_16x16x32_bf16 %s, %s, %s, %s" % (vr(D), vr(vXN + 4 * blk), vr(vTp + 4), "0" if blk == 0 else vr(D)))
    T(2)
    for i in range(8): a("v_add_f32_dpp v%d, v%d, v%d row_ror:8 row_mask:0xf bank_mask:0x3" % (vTp + i, vAc + 4 * i + 1, vAc + 4 * i))
    for i in range(8): a("v_add_f32_dpp v%d, v%d, v%d row_ror:8 row_mask:0xf bank_mask:0xc" % (vTp + i, vAc + 4 * i + 2, vAc + 4 * i + 3))
    for q in range(4): a("v_cvt_pk_bf16_f32 v%d, v%d, v%d" % (12 + q, vTp + 2 * q, vTp + 2 * q + 1))
    for q in range(4): a("v_min_u32 v%d, -2, v%d" % (12 + q, 12 + q))
    assert vm.done >= tflag
    a("s_branch L_l1done")
    a("L_nol1:")
    a("s_barrier")
    a("v_mov_b32 v252, 0")
    a("L_l1done:")
    roles()
    T(10)
    a("s_mov_b32 s5, 0x80808080")
    if noclear & 2: a("s_branch L_flags_ok")
    a("v_and_b32 v8, s5, v252"); a("v_cmp_eq_u32 vcc, s5, v8"); a("s_cmp_eq_u64 vcc, exec"); a("s_cbranch_scc1 L_flags_ok")
    a("v_lshlrev_b32 v10, 2, v0")
    def body():
        a("buffer_load_dword v252, v10, %s, 0 offen %s" % (sDBG, hl)); a("s_waitcnt vmcnt(0)"); a("v_and_b32 v8, s5, v252"); a("v_cmp_eq_u32 vcc, s5, v8")
    spin(body, "L_flags")
    a("s_cmp_ge_u32 s2, 208"); a("s_cbranch_scc1 L_nol1st")
    a("s_lshl_b32 s4, s100, 10")
    a("buffer_store_dwordx4 v[12:15], v%d, %s, s4 offen %s" % (vLin, sWS, hs))
    a("L_nol1st:")
    a("s_getreg_b32 s4, hwreg(HW_REG_XCC_ID, 0, 4)"); a("s_and_b32 s5, s2, 3"); a("s_lshl_b32 s5, s5, 3")
    a("v_bfe_u32 v8, v252, s5, 4"); a("v_cmp_ne_u32 vcc, s4, v8")
    a("s_bfe_u32 s4, s2, 0x10002"); a("s_lshl_b32 s4, 0x55555555, s4"); a("s_cmp_lt_u32 s2, 128"); a("s_cselect_b32 s5, vcc_lo, vcc_hi")
    a("s_and_b32 s4, s4, s5"); a("s_cselect_b32 s4, %d, %d" % (1 if noclear & 2 else 0, loc)); a("s_cmp_lt_u32 s8, 16"); a("s_cselect_b32 s4, s4, 0")
    a("v_mov_b32 v8, s4"); a("v_mov_b32 v9, 0"); a("ds_write_b32 v9, v8 offset:%d" % L_F); a("v_mov_b32 v11, %d" % r0); a("ds_write_b32 v9, v11 offset:%d" % L_C)
    a("v_bfe_u32 v3, v0, 2, 1"); a("v_lshlrev_b32 v3, 11, v3"); a("v_lshrrev_b32 v4, 5, v0"); a("v_lshl_or_b32 v3, v4, 10, v3")
    a("v_bfe_u32 v4, v0, 4, 1"); a("v_lshl_or_b32 v3, v4, 6, v3"); a("v_and_b32 v4, 3, v0"); a("v_lshl_or_b32 v3, v4, 4, v3")
    a("s_and_b32 s4, s6, 15"); a("s_lshl_b32 s4, s4, 12"); a("s_lshr_b32 s5, s101, 5"); a("s_lshl_b32 s5, s5, 7"); a("s_add_u32 s4, s4, s5")
    T(4)
    def body():
        a("buffer_load_dwordx4 v[4:7], v3, %s, s4 offen %s" % (sWS, hl)); a("s_waitcnt vmcnt(0)")
        a("v_max3_u32 v8, v4, v5, v6"); a("v_max_u32 v8, v8, v7"); a("v_cmp_ne_u32 vcc, -1, v8")
    if not noq: spin(body, "L_qpoll")
    else:
        for i in range(4): a("v_mov_b32 v%d, 0x3c003c00" % (4 + i))
    T(11)
    a("ds_write_b128 v%d, v[4:7] offset:%d" % (vLin, L_Q))
    a("s_waitcnt lgkmcnt(0)"); a("s_barrier")
    T(5)
    a("s_cmp_lt_u32 s8, 16"); a("s_cbranch_scc1 L_noh")
    a("s_cmp_ge_u32 s8, 28"); a("s_cbranch_scc1 L_noh")
    vm = VM(a)
    vG, vU = 16, 40
    a("s_mul_i32 s4, s8, 6144"); a("s_sub_u32 s4, s4, %d" % (16 * 6144 - 64 * 1024))
    def body():
        for y in range(6):
            a("s_add_u32 s5, s4, %d" % (1024 * y)); a("buffer_load_dwordx4 %s, v%d, %s, s5 offen %s" % (vr(vG + 4 * y), vLin, sWS, hl))
            a("s_add_u32 s5, s4, %d" % (1024 * (72 + y))); a("buffer_load_dwordx4 %s, v%d, %s, s5 offen %s" % (vr(vU + 4 * y), vLin, sWS, hl))
        a("s_waitcnt vmcnt(0)")
        a("v_max_u32 v8, v%d, v%d" % (vG, vG + 1))
        for r in range(vG + 2, vG + 48, 2): a("v_max3_u32 v8, v8, v%d, v%d" % (r, r + 1))
        a("v_cmp_ne_u32 vcc, -1, v8")
    if not noq: spin(body, "L_gpoll")
    a("v_and_b32 v3, 7, v0"); a("v_lshlrev_b32 v3, 7, v3"); a("v_lshrrev_b32 v4, 3, v0"); a("v_lshl_or_b32 v3, v4, 4, v3")
    a("s_mov_b32 s4, %s" % f32(0.044715)); a("s_mov_b32 s5, %s" % f32(-2 * (2 / 3.141592653589793) ** 0.5 * L2E))
    g, e = list(range(64, 72)), list(range(72, 80))
    def unpack(dst, src):
        for q in range(4): a("v_lshlrev_b32 v%d, 16, v%d" % (dst[2 * q], src + q)); a("v_and_b32 v%d, 0xffff0000, v%d" % (dst[2 * q + 1], src + q))
    def pack(dst, src):
        for q in range(4): a("v_cvt_pk_bf16_f32 v%d, v%d, v%d" % (dst + q, src[2 * q], src[2 * q + 1]))
    for y in range(6):
        unpack(g, vG + 4 * y)
        for i in range(8): a("v_mul_f32 v%d, v%d, v%d" % (e[i], g[i], g[i]))
        for i in range(8): a("v_fma_f32 v%d, v%d, s4, 1.0" % (e[i], e[i]))
        for i in range(8): a("v_mul_f32 v%d, v%d, v%d" % (e[i], e[i], g[i]))
        for i in range(8): a("v_mul_f32 v%d, s5, v%d" % (e[i], e[i]))
        for i in range(8): a("v_exp_f32 v%d, v%d" % (e[i], e[i]))
        for i in range(8): a("v_add_f32 v%d, 1.0, v%d" % (e[i], e[i]))
        for i in range(8): a("v_rcp_f32 v%d, v%d" % (e[i], e[i]))
        for i in range(8): a("v_mul_f32 v%d, v%d, v%d" % (g[i], g[i], e[i]))
        pack(vG + 4 * y, g); unpack(g, vG + 4 * y); unpack(e, vU + 4 * y)
        for i in range(8): a("v_mul_f32 v%d, v%d, v%d" % (g[i], g[i], e[i]))
        pack(vG + 4 * y, g)
        a("ds_write_b128 v3, %s offset:%d" % (vr(vG + 4 * y), L_H + 1024 * y))
    a("L_noh:")
    a("v_lshlrev_b32 v3, 3, v0")
    T(6)
    a("s_waitcnt vmcnt(0) lgkmcnt(0)"); a("s_barrier")
    for w in range(4): a("ds_read_b128 %s, v%d offset:%d" % (vr(16 + 4 * w), vLin, L_OP + 1024 * w))
    a("s_waitcnt lgkmcnt(2)")
    for i in range(4): a("v_add_f32 v%d, v%d, v%d" % (16 + i, 16 + i, 20 + i))
    a("s_waitcnt lgkmcnt(0)")
    for i in range(4): a("v_add_f32 v%d, v%d, v%d" % (24 + i, 24 + i, 28 + i))
    for i in range(4): a("v_add_f32 v%d, v%d, v%d" % (16 + i, 16 + i, 24 + i))
    a("v_cvt_pk_bf16_f32 v4, v16, v17"); a("v_cvt_pk_bf16_f32 v5, v18, v19"); a("v_min_u32 v4, -2, v4"); a("v_min_u32 v5, -2, v5")
    for r_ in range(orep):
        if r_: a("s_add_u32 s74, s74, 0x20000")
        a("buffer_store_dwordx2 v[4:5], v3, %s, s74 offen %s" % (sWS, hs))
    T(7)
    a("s_barrier")
    a("L_adone:")
    T(9); T.flush()
    a("s_endpgm")
    a("L_clear:")
    roles()
    a("v_mov_b32 v4, -1"); a("v_mov_b32 v5, -1"); a("v_mov_b32 v6, -1"); a("v_mov_b32 v7, -1")
    a("s_waitcnt lgkmcnt(0)")
    srd(a, 52, 38, "0x40000000"); srd(a, 64, 36, 256)
    if st:
        a("s_lshl_b32 s4, s6, 21"); a("s_lshl_b32 s5, s7, 18"); a("s_add_u32 s4, s4, s5"); a("s_add_u32 s4, s4, %d" % (6144 * 256))
        a("s_load_dword s40, s[20:21], s4")
        a("s_bfe_u32 s4, s2, 0x20003"); a("s_mul_i32 s4, s4, 1500000"); a("s_and_b32 s4, s4, 0xffffff80")
        a("s_load_dword s41, s[24:25], s4"); a("s_load_dword s42, s[32:33], s4"); a("s_load_dword s43, s[34:35], 0")
        a("s_load_dword s44, s[32:33], 0xffff0"); a("s_mov_b32 s4, 5308400"); a("s_load_dword s45, s[32:33], s4"); a("s_mov_b32 s4, 4718576"); a("s_load_dword s46, s[24:25], s4")
    if noclear & 1: a("s_branch L_clrskip")
    a("v_lshlrev_b32 v3, 3, v0")
    for r_ in range(orep):
        if r_: a("s_add_u32 s74, s74, 0x20000")
        a("buffer_store_dwordx2 v[4:5], v3, %s, s74 offen %s" % (sWS, hs))
    a("s_lshl_b32 s4, s101, 6"); a("s_add_u32 s4, s4, %d" % WS_STAT)
    a("s_mov_b64 exec, 0xf")
    a("buffer_store_dwordx4 v[4:7], v%d, %s, s4 offen %s" % (vLin, sWS, hs))
    a("s_mov_b64 exec, -1")
    a("v_lshrrev_b32 v3, 4, v0"); a("v_mul_u32_u24 v3, %d, v3" % (2 * 7168)); a("v_and_b32 v244, 15, v0"); a("v_lshl_add_u32 v3, v244, 4, v3")
    a("s_mul_i32 s4, s9, %d" % (8 * 7168)); a("s_lshl_b32 s5, s8, 8"); a("s_add_u32 s4, s4, s5"); a("s_add_u32 s4, s4, %d" % WS_P)
    a("s_cmp_lt_u32 s8, 28"); a("s_cselect_b32 s4, s4, %d" % WS_SINK)
    a("buffer_store_dwordx4 v[4:7], v3, %s, s4 offen %s" % (sWS, hs))
    a("s_add_u32 s4, s4, 7168")
    a("buffer_store_dwordx4 v[4:7], v3, %s, s4 offen %s" % (sWS, hs))
    a("s_lshl_b32 s4, s100, 10")
    a("buffer_store_dwordx4 v[4:7], v%d, %s, s4 offen %s" % (vLin, sWS, hs))
    a("L_clrskip:")
    a("s_and_b32 s4, s2, 3"); a("s_lshl_b32 s4, s4, 3"); a("s_getreg_b32 s5, hwreg(HW_REG_XCC_ID, 0, 4)"); a("s_or_b32 s5, s5, 0x80"); a("s_lshl_b32 s4, s5, s4"); a("v_mov_b32 v8, s4"); a("v_mov_b32 v9, 0"); a("s_and_b32 s4, s2, 0xfc")
    a("s_mov_b64 exec, 1")
    if fb:
        a("s_cmp_ge_u32 s2, 32"); a("s_cbranch_scc1 L_noctr")
        a("s_lshl_b32 s5, s2, 8"); a("s_add_u32 s5, s5, %d" % WS_CTR)
        a("buffer_store_dword v9, v9, %s, s5 offen %s" % (sWS, hs))
        a("L_noctr:")
    a("s_waitcnt vmcnt(0)")
    if not noclear & 2: a("buffer_atomic_or v8, v9, %s, s4 offen sc1" % sDBG)
    a("L_clrdone:")
    T(3); T.flush()
    a("L_end:")
    a("s_endpgm")
    a("L_codeend:")
    a.pad()
    head = open("parallel_sum__sliding_block_cached__geglu_ffn__decode.s.ref").read().split("; Override")[0]
    head += "; @launch grid=(256,1,1) block=(384,1,1) lds=%d\n" % LDS_BYTES
    head += '.amdgcn_target "amdgcn-amd-amdhsa--gfx950"\n.text\n.globl %s\n.p2align 8\n.type %s,@function\n' % (KN, KN)
    tail = '.section .rodata,"a"\n.p2align 6\n.amdhsa_kernel %s\n  .amdhsa_next_free_vgpr 256\n  .amdhsa_next_free_sgpr 102\n  .amdhsa_accum_offset 256\n' % KN
    tail += "  .amdhsa_group_segment_fixed_size 0\n  .amdhsa_kernarg_size 96\n  .amdhsa_user_sgpr_count 2\n  .amdhsa_user_sgpr_kernarg_segment_ptr 1\n  .amdhsa_system_sgpr_workgroup_id_x 1\n.end_amdhsa_kernel\n"
    return head + a.text() + tail

if __name__ == "__main__":
    kw = eval("dict(%s)" % (sys.argv[2] if len(sys.argv) > 2 else ""))
    open(sys.argv[1], "w").write(gen(**kw))

RAW = None
def report(t, verbose):
    import numpy as np
    def st(name, x):
        x = x.reshape(x.shape[0], -1)
        print("   %-28s min %6.2f mean %6.2f max %6.2f" % (name, np.median(x.min(axis=1)), np.median(x.mean(axis=1)), np.median(x.max(axis=1))))
    s, x = t[:, :, :4], t[:, :, 4]
    ids = np.arange(256); WO = (ids < 128) | (ids % 8 == 0); DN = ~WO & (((ids >> 3) - 16) * 7 + ids % 8 - 1 < 108)
    for i, n in enumerate(["start", "slot 24", "ring full", "S1", "K done", "softmax done", "V done"]): st("stream " + n, s[..., i])
    st("stream wo perms done", s[:, WO][:, :, :2, 7]); st("stream o seen", s[:, WO][..., 8]); st("stream wo end", s[:, WO][:, :, :2, 9])
    st("stream down mm done", s[:, DN][..., 8]); st("stream down end", s[:, DN][:, :, :2, 9])
    st("aux LN done", x[:, :208, 1]); st("aux L1 mm done", x[:, :208, 2])
    st("clear flag sent", t[:, :, 5, 3])
    for i, n in [(10, "flag check start"), (4, "flags seen"), (11, "q seen"), (5, "S1"), (6, "h done"), (7, "o sent")]: st("aux " + n, x[..., i])
    if verbose:
        for name, idx in (("start", 0), ("slot24", 1), ("ring full", 2), ("K done", 4), ("V done", 6)):
            v = s[..., idx]
            wg = v.max(axis=2)
            print("   %s: within-wg spread %.2f; within-xcd std of wg %.2f; std of xcd means %.2f" % (name, (v.max(axis=2) - v.min(axis=2)).mean(),
                  wg.reshape(len(wg), 32, 8).std(axis=1).mean(), wg.reshape(len(wg), 32, 8).mean(axis=1).std(axis=1).mean()))
            for it in range(-4, 0):
                w = wg[it].reshape(32, 8)
                print("      xcd mean", w.mean(axis=0), "max", w.max(axis=0))
            print("      mean over runs by w>>3:", (wg - wg.mean(axis=1, keepdims=True)).mean(axis=0).reshape(32, 8).mean(axis=1))
    base = -t[:, :, :, 0].min(axis=(1, 2))
    if RAW is not None:
        r = RAW[:, WO]
        n1 = r[:, :144, :2, 10] + 1; d1 = (r[:, :144, :2, 8] - r[:, :144, :2, 7]) / 100.0
        n2 = r[:, :144, 2:4, 11] + 1; d2 = (r[:, :144, 2:4, 9] - r[:, :144, 2:4, 7]) / 100.0
        print("   o poll: mean iters %.1f, us/iter %.3f ; a poll: mean iters %.1f, us/iter %.3f" % (n1.mean(), d1.sum() / n1.sum(), n2.mean(), d2.sum() / n2.sum()))
    n = len(s)
    vmax = s[..., 6].reshape(n, -1).max(axis=1); osent = x[..., 7].max(axis=1); oseen = s[:, WO][..., 8].reshape(n, -1).max(axis=1)
    wend = s[:, WO][:, :, :2, 9].reshape(n, -1).max(axis=1); out = s[:, WO][:, :, 2:4, 9].reshape(n, -1).max(axis=1)
    print("   per-run means: Vmean %.2f Vmax %.2f | +osent %.2f +oseen %.2f +wend %.2f +out %.2f | tail %.2f end %.2f" % (s[..., 6].mean(), vmax.mean(), (osent - vmax).mean(), (oseen - osent).mean(), (wend - oseen).mean(), (out - wend).mean(), (out - vmax).mean(), out.mean()))
    lag = lambda i: (lambda v: v - v.mean(axis=1, keepdims=True))(s[..., i].max(axis=2))
    lv = lag(6)
    for nm, i in (("slot24", 1), ("S1", 3), ("Kdone", 4)):
        l = lag(i); al = (l * lv).sum() / (l * l).sum(); res = lv - al * l
        print("   lag %s: std %.2f max %.2f corr %.2f slope %.2f | V lag std %.2f max %.2f -> residual std %.2f max %.2f" % (nm, l.std(), l.max(axis=1).mean(), np.corrcoef(l.ravel(), lv.ravel())[0, 1], al, lv.std(), lv.max(axis=1).mean(), res.std(), res.max(axis=1).mean()))
    u = np.where(ids < 208, (ids & 7) * 26 + (ids >> 3), 999); S3 = (u < 208) & (u % 8 == 3); FR = ids >= 208
    for nm, m in (("slice3", S3), ("free", FR), ("wq", (u < 64) & ~S3), ("gate/up", (u >= 64) & (u < 208) & ~S3), ("wo-unit", WO & ~S3 & ~FR), ("down-unit", DN & ~S3 & ~FR)):
        print("   class %-10s n=%3d lag slot24 %.2f S1 %.2f Kdone %.2f V %.2f | share of worst V %.2f" % (nm, m.sum(), lag(1)[:, m].mean(), lag(3)[:, m].mean(), lag(4)[:, m].mean(), lv[:, m].mean(), m[lv.argmax(axis=1)].mean()))
    print("   class xcd V lag", np.array([lv[:, ids % 8 == k].mean() for k in range(8)]), "start", np.array([lag(0)[:, ids % 8 == k].mean() for k in range(8)]))
    st("out sent", s[:, WO][:, :, 2:4, 9])
```

```python
import sys, struct
from asmlib import Asm, VM
KN = "parallel_sum__sliding_block_cached__geglu_ffn__decode_kernel"

def f32(x): return "0x%08x" % struct.unpack("<I", struct.pack("<f", x))[0]
def vr(b, n=4): return "v[%d:%d]" % (b, b + n - 1) if n > 1 else "v%d" % b
DPP = "row_mask:0xf bank_mask:0xf"

WS_L1, WS_STAT, WS_O, WS_P, WS_SINK, WS_TS, WS_CTR = 0, 0x40000, 0x140000, 0x80000, 0x100000, 0x200000, 0x48000
L_F, L_Q, L_H, L_OP, L_LP, L_C = 0, 1024, 2048, 8192, 12288, 20480
LDS_BYTES = 21504
SPIN = 400000
L2E = 1.4426950408889634

sK, sV, sX, sWS, sW1, sW2, sDBG, sOUT = ("s[%d:%d]" % (b, b + 3) for b in (40, 44, 48, 52, 56, 60, 64, 68))

def srd(a, base, ptr, nbytes):
    a("s_mov_b32 s%d, s%d" % (base, ptr)); a("s_mov_b32 s%d, s%d" % (base + 1, ptr + 1))
    a("s_mov_b32 s%d, %s" % (base + 2, nbytes)); a("s_mov_b32 s%d, 0x20000" % (base + 3))

class Stamps:
    def __init__(self, a, on): self.a, self.on, self.n = a, on, 0
    def __call__(self, idx):
        if self.on: self.a("s_memrealtime s[%d:%d]" % (76 + 2 * idx, 77 + 2 * idx))
    def flush(self, n=12):
        if not self.on: return
        a = self.a
        a("s_waitcnt lgkmcnt(0)")
        a("s_mul_i32 s4, s2, 6"); a("s_add_u32 s4, s4, s3"); a("s_lshl_b32 s4, s4, 6"); a("s_add_u32 s4, s4, %d" % WS_TS)
        a("s_mov_b64 exec, 1"); a("v_mov_b32 v0, 0")
        for q in range(n // 4):
            for i in range(4): a("v_mov_b32 v%d, s%d" % (4 + 4 * q + i, 76 + 2 * (4 * q + i)))
            a("buffer_store_dwordx4 %s, v0, %s, s4 offen offset:%d" % (vr(4 + 4 * q), sWS, 16 * q))

def allreduce(a, op, v, t, steps):
    for s in steps:
        if s == 0: a("%s_dpp v%d, v%d, v%d quad_perm:[1,0,3,2] %s" % (op, v, v, v, DPP))
        elif s < 16: a("%s_dpp v%d, v%d, v%d row_ror:%d %s" % (op, v, v, v, s, DPP))
        else:
            a("v_mov_b32 v%d, v%d" % (t, v)); a("v_permlane%d_swap_b32 v%d, v%d" % (s, v, t)); a("%s v%d, v%d, v%d" % (op, v, v, t))

def round_bf16(a, v):
    a("v_cvt_pk_bf16_f32 v%d, v%d, v%d" % (v, v, v)); a("v_and_b32 v%d, 0xffff0000, v%d" % (v, v))

def gen(d=6, d0=3, nd0=24, dend=6, nramp=96, R=52, ts=0, kcatch=2, stat_at=104, w2rate=4, hs="sc1", hl="sc1",
        nfree=32, da=11, burst=11, pf=1, flagblk=6, lnstep=28, pre=0, noclear=0, noq=0, nol1=0, kvmap=0, npo=1, npa=1, thr=16, osf='', w2pre=12, b0=3, loc=1, e3=100, orep=1, fb=0, lo=4, hi=6, mstep=8, theta=16, fbend=120, mlag=5, gain=16, duty=0.5, G=32, lv=(4, 5, 6), th=(8, 22), r0=16, kf='nt', vf='nt', st=0, hold=0):
    hi = lv[-1]
    a = Asm(); T = Stamps(a, ts)
    uid = [0]
    def spin(body, label):
        a("s_mov_b32 s11, %d" % SPIN)
        a(label + ":"); body()
        a("s_cmp_eq_u64 vcc, exec"); a("s_cbranch_scc1 %s_ok" % label)
        a("s_sub_u32 s11, s11, 1"); a("s_cmp_lg_u32 s11, 0"); a("s_cbranch_scc1 %s" % label)
        a(label + "_ok:")

    def mpoll(label, groups, npipe, pre=False):
        nl = sum(len(g[1]) for g in groups)
        def issue():
            for m, loads, _ in groups:
                a("s_mov_b64 exec, s[%d:%d]" % (m, m + 1))
                for t in loads: a(t)
        def check():
            for m, _, regs in groups:
                if len(groups) > 1: a("s_mov_b64 exec, s[%d:%d]" % (m, m + 1))
                a("v_max3_u32 v3, v%d, v%d, v%d" % tuple(regs[:3]))
                rest = regs[3:]
                while len(rest) >= 2: a("v_max3_u32 v3, v3, v%d, v%d" % tuple(rest[:2])); rest = rest[2:]
                if rest: a("v_max_u32 v3, v3, v%d" % rest[0])
                a("v_cmp_eq_u32 s[%d:%d], -1, v3" % (m, m + 1))
            m0 = groups[0][0]
            a("s_or_b64 vcc, s[%d:%d], s[%d:%d]" % (m0, m0 + 1, groups[-1][0], groups[-1][0] + 1))
            a("s_cbranch_scc0 %s_ok" % label)
        a("s_mov_b32 s11, %d" % SPIN)
        if pre: check()
        a(label + ":"); issue(); a("s_waitcnt vmcnt(0)"); check()
        if npipe > 1:
            a("s_bcnt1_i32_b64 s5, vcc"); a("s_cmp_le_u32 s5, %d" % thr); a("s_cbranch_scc1 %s_fast" % label)
        a("s_sub_u32 s11, s11, 1"); a("s_cmp_lg_u32 s11, 0"); a("s_cbranch_scc1 %s" % label)
        if npipe > 1:
            a("s_branch %s_ok" % label)
            a(label + "_fast:"); issue(); a("s_waitcnt vmcnt(%d)" % (nl * (npipe - 1))); check()
            a("s_sub_u32 s11, s11, 1"); a("s_cmp_lg_u32 s11, 0"); a("s_cbranch_scc1 %s_fast" % label)
        a(label + "_ok:")
        a("s_mov_b64 exec, -1")

    def roles():
        a("s_and_b32 s9, s2, 7"); a("s_lshr_b32 s8, s2, 3")
        a("s_cmp_lt_u32 s8, 16"); a("s_cbranch_scc1 L_role%d" % uid[0])
        a("s_sub_u32 s8, s8, 16"); a("s_cmp_eq_u32 s9, 0"); a("s_cselect_b32 s9, 8, s9"); a("s_cbranch_scc1 L_role%d" % uid[0])
        a("s_mul_i32 s8, s8, 7"); a("s_add_u32 s9, s8, s9"); a("s_sub_u32 s9, s9, 1")
        a("s_mul_i32 s8, s9, 57"); a("s_lshr_b32 s8, s8, 9"); a("s_mul_i32 s4, s8, 9"); a("s_sub_u32 s9, s9, s4"); a("s_add_u32 s8, s8, 16")
        a("L_role%d:" % uid[0]); uid[0] += 1

    a(KN + ":")
    T(0)
    if hold: a("s_memrealtime s[76:77]")
    a("s_cmp_ge_u32 s2, 256"); a("s_cbranch_scc1 L_end")
    a("s_load_dwordx16 s[16:31], s[0:1], 0"); a("s_load_dwordx8 s[32:39], s[0:1], 64")
    a("s_getpc_b64 s[4:5]")
    a("L_pc:")
    a("v_lshlrev_b32 v1, 7, v0"); a("v_min_u32 v1, %s, v1" % ("L_codeend-L_pc-4" if pf else "4"))
    a("global_load_dword v255, v1, s[4:5]")
    a("v_lshrrev_b32 v1, 6, v0"); a("v_and_b32 v0, 63, v0"); a("v_readfirstlane_b32 s3, v1")
    if kvmap == 0: a("s_mov_b32 s101, s2")
    else:
        a("s_and_b32 s101, s2, 7"); a("s_lshl_b32 s101, s101, 5"); a("s_lshr_b32 s6, s2, 3"); a("s_add_u32 s101, s101, s6")
    a("s_lshr_b32 s6, s101, 1")
    a("s_and_b32 s7, s101, 1")
    a("s_mov_b32 s12, 0x05040100"); a("s_mov_b32 s13, 0x07060302")
    a("s_cmp_ge_u32 s3, 4"); a("s_cbranch_scc1 L_aux")

    vm = VM(a); vm.n = 1
    vKo, vVo, vT0, vT1, vM, vL, vF, vW2o = 1, 2, 3, 4, 5, 6, 7, 8
    vMask, vQ0, vQ1, vAcc = 12, 16, 20, 24
    vD = [28, 32]
    pool = list(range(36, 252, 4))
    assert len(pool) >= R + 2
    a("v_lshrrev_b32 v3, 4, v0"); a("v_lshlrev_b32 v3, 6, v3")
    a("v_and_b32 v4, 3, v0"); a("v_lshl_or_b32 v3, v4, 4, v3")
    a("v_bfe_u32 v4, v0, 2, 2"); a("v_lshl_or_b32 v%d, v4, 8, v3" % vKo)
    a("v_lshlrev_b32 v%d, 4, v0" % vVo)
    a("s_lshl_b32 s14, s6, 21"); a("s_lshl_b32 s15, s7, 18"); a("s_add_u32 s14, s14, s15")
    a("s_lshl_b32 s15, s3, 11"); a("s_add_u32 s14, s14, s15"); a("s_add_u32 s14, s14, %d" % (6144 * 256))
    a("s_waitcnt lgkmcnt(0)")
    if ts == 2: T(10)
    srd(a, 40, 18, "0x10000000")
    slot, tok = {}, {}
    free = pool[:]
    issued = [0]
    w2 = {}
    def issue_next():
        n = issued[0]; issued[0] += 1
        if n < 128:
            r = free.pop(0); slot[n] = r
            c, t = divmod(n % 64, 2)
            if t == 0: a("s_add_u32 s10, s14, %d" % (c * 8192))
            tok[n] = vm.issue("buffer_load_dwordx4 %s, v%d, %s, s10 offen offset:%d %s" % (vr(r), vKo if n < 64 else vVo, sK if n < 64 else sV, 1024 * t, kf if n < 64 else vf))
    def issue_w2(vmx, k):
        kb, j = divmod(k, 8)
        if k % 2 == 0: w2q.append(free.pop(0))
        r = w2q[-1] + 2 * (k % 2)
        if j % 4 == 0: a("s_add_u32 s5, s72, %d" % ((32 * kb + j) * 1152))
        w2[k] = (r, vmx.issue("buffer_load_dwordx2 %s, v%d, %s, s5 offen offset:%d nt" % (vr(r, 2), vW2o, sW2 if kb < 2 else sW1, 1152 * (j % 4))))
    w2q = []
    for _ in range(max(b0, d0)): issue_next()
    srd(a, 44, 20, "0x10000000"); srd(a, 52, 38, "0x40000000")
    roles()
    a("v_bfe_u32 v3, v0, 3, 1"); a("v_bfe_u32 v4, v0, 1, 1"); a("v_lshl_or_b32 v3, v3, 1, v4")
    a("v_and_b32 v4, 1, v0"); a("v_lshlrev_b32 v4, 4, v4"); a("v_mov_b32 v5, 0xffff"); a("v_lshlrev_b32 v4, v4, v5")
    for r in range(4):
        a("v_cmp_eq_u32 vcc, %d, v3" % r); a("v_cndmask_b32 v%d, 0, v4, vcc" % (vMask + r))
    a("v_lshrrev_b32 v3, 4, v0"); a("v_mul_u32_u24 v3, %d, v3" % (8 * 1152)); a("v_and_b32 v4, 15, v0"); a("v_lshl_add_u32 v%d, v4, 3, v3" % vW2o)
    a("s_cmp_lt_u32 s8, 16")
    a("s_cselect_b32 s60, s24, s32"); a("s_cselect_b32 s61, s25, s33")
    a("s_mov_b32 s62, 4718592"); a("s_cselect_b32 s62, s62, 5308416"); a("s_mov_b32 s63, 0x20000")
    a("s_cselect_b32 s72, 0, 16"); a("s_cselect_b32 s73, 64, 96")
    a("s_sub_u32 s72, s8, s72"); a("s_lshl_b32 s72, s72, 2"); a("s_add_u32 s72, s72, s3"); a("s_mul_i32 s72, s72, s73")
    a("s_mul_i32 s72, s72, 1152"); a("s_lshl_b32 s73, s9, 7"); a("s_add_u32 s72, s72, s73")
    a("s_cmp_lt_u32 s8, 28"); a("s_cselect_b32 s62, s62, 0")
    a("s_mov_b32 s56, s60"); a("s_mov_b32 s57, s61"); a("s_mov_b32 s59, 0x20000"); a("s_cmp_lt_u32 s8, 16"); a("s_cselect_b32 s58, 0, s62")
    srd(a, 48, 16, 9216); srd(a, 68, 34, 9216)
    a("s_lshr_b32 s4, s8, 1"); a("s_and_b32 s4, s4, 7"); a("s_and_b32 s5, s8, 1"); a("s_lshl_b32 s5, s5, 1"); a("s_and_b32 s15, s3, 1"); a("s_add_u32 s5, s5, s15")
    a("s_lshl_b32 s74, s9, 3"); a("s_add_u32 s74, s74, s4"); a("s_mul_i32 s74, s74, 7168"); a("s_lshl_b32 s15, s5, 6"); a("s_add_u32 s74, s74, s15"); a("s_add_u32 s74, s74, %d" % WS_P)
    a("s_mul_i32 s75, s4, 1152"); a("s_lshl_b32 s15, s9, 7"); a("s_add_u32 s75, s75, s15"); a("s_lshl_b32 s15, s5, 5"); a("s_add_u32 s75, s75, s15")
    a("v_and_b32 v3, 3, v0"); a("v_lshlrev_b32 v3, 3, v3"); a("v_lshrrev_b32 v4, 4, v0"); a("v_lshl_or_b32 v253, v4, 1, v3")
    vm.issue("buffer_load_ushort v254, v253, %s, s75 offen" % sX)
    ctl = {"on": False, "k": 0, "tok": None}
    def D(n):
        if n < nd0: return d0
        base = hi if (fb and n >= R) else d
        if n < nramp: return base
        return base + max(0, dend - base) * (n - nramp + 1) // (128 - nramp)
    def paced():
        n = issued[0]
        if n < 128:
            if n - D(n) >= 0: vm.wait(tok[n - D(n)])
            if ctl["on"]:
                if n == ctl["tok"]:
                    k = ctl["k"]; g = gain[min(k, len(gain) - 1)] if isinstance(gain, (list, tuple)) else gain
                    a("s_cmp_lg_u32 s3, 0"); a("s_cbranch_scc1 L_cw%d" % n)
                    a("s_waitcnt lgkmcnt(0)"); a("s_sub_u32 s97, s97, %d" % (G * k))
                    a("v_mov_b32 v252, s97"); a("ds_write_b32 v%d, v252 offset:%d" % (vVo, L_C))
                    a("L_cw%d:" % n)
                if ctl["tok"] and n > ctl["tok"]:
                    o_ = n - ctl["tok"]
                    if o_ % 2 == 1: a("ds_read_b32 v252, v%d offset:%d" % (vVo, L_C))
                    else:
                        a("s_waitcnt lgkmcnt(0)"); a("v_readfirstlane_b32 s95, v252")
                        if o_ >= 6 or mlag + o_ + 2 > mstep: ctl["k"] += 1; ctl["tok"] = None
                used = False
                for l_, t_ in reversed(list(zip(lv[:-1], th))):
                    m = n - (D(n) - hi + l_)
                    if tok[m] > vm.done:
                        a("s_cmp_ge_i32 s95, %d" % t_); a("s_cbranch_scc1 L_hi%d" % n); a("s_waitcnt vmcnt(%d)" % (vm.n - tok[m])); used = True
                if used: a("L_hi%d:" % n)
            issue_next()
            if ctl["on"] and (n - R) % mstep == 0 and n <= fbend:
                assert ctl["tok"] is None
                a("s_cmp_lg_u32 s3, 0"); a("s_cbranch_scc1 L_ca%d" % n)
                a("s_mov_b32 s97, 1"); a("s_atomic_add s97, s[38:39], s99 glc"); ctl["tok"] = n + mlag
                a("L_ca%d:" % n)
    def ahead(n):
        while issued[0] < 128 and issued[0] - D(issued[0]) < n: paced()
    while issued[0] < R:
        paced()
        if issued[0] == max(b0, d0) + 1 and ts == 2: T(11)
        if issued[0] == 24: T(1)
        if issued[0] == nfree:
            a("s_cmp_lt_u32 s2, 208"); a("s_cbranch_scc1 L_nofb"); a("s_barrier"); a("L_nofb:")
    T(2)
    a("s_barrier")
    T(3)
    a("ds_read_b128 %s, v%d offset:%d" % (vr(vQ0), vVo, L_Q))
    a("v_mov_b32 v4, 0"); a("ds_read_b32 v4, v4 offset:%d" % L_F)
    a("v_and_b32 v3, 8, v0"); a("v_cmp_eq_u32 vcc, 0, v3"); a("v_mov_b32 v%d, 0xff800000" % vM)
    a("s_mov_b32 s15, %s" % f32(128 ** -0.5))
    a("s_waitcnt lgkmcnt(0)")
    a("v_readfirstlane_b32 s100, v4")
    for i in range(4): a("v_cndmask_b32 v%d, v%d, 0, vcc" % (vQ1 + i, vQ0 + i))
    for i in range(4): a("v_cndmask_b32 v%d, 0, v%d, vcc" % (vQ0 + i, vQ0 + i))
    if fb:
        a("s_lshr_b32 s99, s2, 3"); a("s_and_b32 s99, s99, %d" % (256 // G - 1)); a("s_lshl_b32 s99, s99, 8"); a("s_add_u32 s99, s99, %d" % WS_CTR)
        a("s_mov_b32 s95, %d" % r0); ctl["on"] = True
    vD += [free.pop(), free.pop()]
    S = []
    def qk(c):
        D = vD[c % 4]
        vm.wait(tok[2 * c + 1])
        a("v_mfma_f32_16x16x32_bf16 %s, %s, %s, 0" % (vr(D), vr(slot[2 * c]), vr(vQ0)))
        a("v_mfma_f32_16x16x32_bf16 %s, %s, %s, %s" % (vr(D), vr(slot[2 * c + 1]), vr(vQ1), vr(D)))
        free.extend([slot[2 * c], slot[2 * c + 1]])
    def extract(c):
        if c % 4 == 0: S.extend(range(free[-1], free[-1] + 4)); free.pop()
        x, y, DA, DB = S[c], S[c + 1], vD[c % 4], vD[(c + 1) % 4]
        for i in range(4):
            for s_, D in ((x, DA), (y, DB)):
                if i == 0: a("v_mov_b32_dpp v%d, v%d quad_perm:[0,0,0,0] %s" % (s_, D, DPP))
                else: a("v_add_f32_dpp v%d, v%d, v%d quad_perm:[%d,%d,%d,%d] %s" % (s_, D + i, s_, i, i, i, i, DPP))
        for rep in range(2):
            a("v_cvt_pk_bf16_f32 v3, v%d, v%d" % (x, y))
            a("v_lshlrev_b32 v%d, 16, v3" % x); a("v_and_b32 v%d, 0xffff0000, v3" % y)
            if rep == 0: a("v_mul_f32 v%d, s15, v%d" % (x, x)); a("v_mul_f32 v%d, s15, v%d" % (y, y))
        a("v_max3_f32 v%d, v%d, v%d, v%d" % (vM, vM, x, y))
    for c in range(0, 32, 2):
        ahead(2 * c + 3)
        qk(c); qk(c + 1)
        for _ in range(4 // kcatch if kcatch <= 4 else 1): paced()
        if c >= 2: extract(c - 2)
    extract(30)
    free.extend(vD[2:])
    T(4)
    paced()
    allreduce(a, "v_max_f32", vM, 3, [8, 16, 32])
    a("s_mov_b32 s15, %s" % f32(L2E)); a("v_mul_f32 v%d, s15, v%d" % (vM, vM)); a("v_mov_b32 v%d, 0" % vL); a("v_mov_b32 v4, 0")
    for c in range(0, 32, 4):
        for i in range(4): a("v_fma_f32 v%d, v%d, s15, -v%d" % (S[c + i], S[c + i], vM))
        for i in range(4): a("v_exp_f32 v%d, v%d" % (S[c + i], S[c + i]))
        for i in range(4): a("v_add_f32 v%d, v%d, v%d" % ((vL, 4)[i % 2], (vL, 4)[i % 2], S[c + i]))
        for i in range(4): a("v_cvt_pk_bf16_f32 v%d, v%d, v%d" % (S[c + i], S[c + i], S[c + i]))
        if c % 8 == 4: paced()
    a("v_add_f32 v%d, v%d, v4" % (vL, vL))
    allreduce(a, "v_add_f32", vL, 3, [8, 16, 32])
    a("v_min_u32 v10, -2, v%d" % vM); a("v_min_u32 v11, -2, v%d" % vL)
    a("v_lshlrev_b32 v9, 1, v0")
    a("v_and_b32 v9, 0x78, v9")
    a("s_lshl_b32 s73, s6, 7"); a("s_add_u32 s73, s73, %d" % WS_STAT)
    a("s_lshl_b32 s4, s7, 2"); a("s_add_u32 s4, s4, s3"); a("s_lshl_b32 s4, s4, 4"); a("s_add_u32 s4, s4, s73")
    a("s_mov_b64 exec, 0x11")
    if not noclear & 4: vm.issue("buffer_store_dwordx2 v[10:11], v9, %s, s4 offen %s" % (sWS, hs))
    a("s_mov_b64 exec, -1")
    T(5)
    vB = vD[:2]
    def prepB(n):
        c, t = divmod(n - 64, 2)
        for r in range(4):
            if (r >> 1) == t: a("v_and_b32 v%d, v%d, v%d" % (vB[n % 2] + r, S[c], vMask + r))
            else: a("v_and_b32_dpp v%d, v%d, v%d row_ror:8 %s" % (vB[n % 2] + r, S[c], vMask + r, DPP))
    def stat_valid(): a("v_max_u32 v3, v10, v11"); a("v_cmp_ne_u32 vcc, -1, v3")
    prepB(64)
    tstat = None; nw2 = 0; n3 = 16
    for n in range(64, 128):
        ahead(n)
        if tstat is None and issued[0] >= stat_at:
            tstat = vm.issue("buffer_load_dwordx2 v[10:11], v9, %s, s73 offen %s" % (sWS, hl))
        vm.wait(tok[n])
        a("v_mfma_f32_16x16x32_bf16 %s, %s, %s, %s" % (vr(vAcc), vr(slot[n]), vr(vB[n % 2]), "0" if n == 64 else vr(vAcc)))
        free.append(slot[n])
        if n % 2 == 1 and issued[0] < 128 and issued[0] - D(issued[0]) > n: paced()
        if n >= e3 and n3 < 24 and issued[0] < 128: issue_w2(vm, n3); n3 += 1
        if issued[0] >= 128:
            assert n3 in (16, 24)
            for _ in range(w2rate):
                if nw2 < w2pre: issue_w2(vm, nw2); nw2 += 1
        if n < 127: prepB(n + 1)
        if tstat and tstat > 0 and vm.done >= tstat:
            a("s_mov_b64 s[66:67], vcc")
            if noclear & 4: a("s_branch L_stat_ok")
            stat_valid(); a("s_cmp_eq_u64 vcc, exec"); a("s_cbranch_scc1 L_stat_ok")
            def body():
                a("buffer_load_dwordx2 v[10:11], v9, %s, s73 offen %s" % (sWS, hl)); a("s_waitcnt vmcnt(0)"); stat_valid()
            spin(body, "L_stat")
            a("s_mov_b64 vcc, s[66:67]")
            a("v_mov_b32 v%d, v10" % vF); allreduce(a, "v_max_f32", vF, 3, [8, 16, 32])
            a("v_sub_f32 v10, v10, v%d" % vF); a("v_sub_f32 v%d, v%d, v%d" % (vF, vM, vF))
            a("v_exp_f32 v10, v10"); a("v_exp_f32 v%d, v%d" % (vF, vF)); a("v_mul_f32 v10, v10, v11")
            allreduce(a, "v_add_f32", 10, 3, [8, 16, 32])
            a("v_rcp_f32 v10, v10"); a("v_mul_f32 v%d, v%d, v10" % (vF, vF))
            a("v_bfe_u32 v3, v0, 2, 1"); a("v_lshlrev_b32 v3, 9, v3"); a("v_lshrrev_b32 v4, 4, v0"); a("v_lshl_or_b32 v3, v4, 7, v3")
            a("v_bfe_u32 v4, v0, 3, 1"); a("v_lshl_or_b32 v3, v4, 4, v3"); a("v_and_b32 v4, 3, v0"); a("v_lshl_or_b32 v9, v4, 2, v3")
            a("s_lshl_b32 s4, s3, 10"); a("s_add_u32 s4, s4, %d" % L_OP); a("v_add_u32 v9, s4, v9")
            tstat = -1
    assert tstat == -1
    T(6)
    for i in range(4): a("v_mul_f32 v%d, v%d, v%d" % (vAcc + i, vAcc + i, vF))
    a("ds_write2_b32 v9, v%d, v%d offset0:0 offset1:8" % (vAcc, vAcc + 1))
    a("ds_write2_b32 v9, v%d, v%d offset0:16 offset1:24" % (vAcc + 2, vAcc + 3))
    a("s_waitcnt lgkmcnt(0)"); a("s_barrier")
    a("s_cmp_ge_u32 s8, 28"); a("s_cbranch_scc1 L_sdone")
    while nw2 < 16: issue_w2(vm, nw2); nw2 += 1
    vA = [free.pop(0) for _ in range(3)]
    vE = [free.pop(0) for _ in range(4)]
    vP = [[free.pop(0) for _ in range(4)] for _ in range(3)]
    def perms(kb, vmx):
        vmx.wait(w2[8 * kb + 7][1])
        for i in range(4):
            for q in range(4):
                a("v_perm_b32 v%d, v%d, v%d, s%d" % (vP[kb][i] + q, w2[8 * kb + 2 * q + 1][0] + i // 2, w2[8 * kb + 2 * q][0] + i // 2, 12 + i % 2))
    def mm(kb, first):
        for i in range(4):
            a("v_mfma_f32_16x16x32_bf16 %s, %s, %s, %s" % (vr(vE[i]), vr(vA[kb]), vr(vP[kb][i]), "0" if first else vr(vE[i])))
    a("s_cmp_ge_u32 s8, 16"); a("s_cbranch_scc1 L_down")
    v1 = vm.copy()
    a("v_and_b32 v3, 15, v0"); a("v_lshlrev_b32 v3, 9, v3"); a("v_and_b32 v4, 48, v0"); a("v_or_b32 v9, v3, v4")
    a("s_lshl_b32 s4, s8, 13"); a("s_lshl_b32 s5, s3, 7"); a("s_add_u32 s4, s4, s5"); a("s_add_u32 s4, s4, %d" % WS_O)
    if orep > 1: a("s_and_b32 s5, s9, %d" % (orep - 1)); a("s_lshl_b32 s5, s5, 17"); a("s_add_u32 s4, s4, s5")
    perms(0, v1); perms(1, v1)
    T(7)
    A4, Y4 = vP[2][0], vP[2][1]
    a("s_cmp_lt_u32 s3, 2"); a("s_cbranch_scc1 L_nopre")
    a("v_lshrrev_b32 v4, 2, v0"); a("v_lshlrev_b32 v4, 8, v4"); a("v_and_b32 v10, 3, v0"); a("v_lshl_or_b32 v10, v10, 4, v4")
    for i in range(4): a("v_mov_b32 v%d, 0" % (Y4 + i))
    a("s_mov_b32 s66, -1"); a("s_mov_b32 s67, 0xffff"); a("s_add_u32 s73, s74, 4096")
    a("v_lshlrev_b32 v254, 16, v254")
    ldA = "buffer_load_dwordx4 %s, v10, %s, s74 offen %s" % (vr(A4), sWS, hl)
    ldY = "buffer_load_dwordx4 %s, v10, %s, s73 offen %s" % (vr(Y4), sWS, hl)
    a(ldA); a("s_mov_b64 exec, s[66:67]"); a(ldY)
    a("L_nopre:")
    a("s_mov_b64 s[64:65], -1")
    mpoll("L_opoll", [(64, ["buffer_load_dwordx4 %s, v9, %s, s4 offen offset:%d %s" % (vr(vA[kb]), sWS, 64 * kb, hl) for kb in range(2)],
                       [vA[kb] + i for kb in range(2) for i in range(4)])], npo)
    T(8)
    if ts == 1: a("s_sub_u32 s96, %d, s11" % SPIN)
    mm(0, True); mm(1, False)
    a("s_branch L_l2fin")
    a("L_down:")
    v2 = vm.copy()
    for k in range(n3, 24): issue_w2(v2, k)
    a("v_lshrrev_b32 v3, 4, v0"); a("v_lshlrev_b32 v3, 7, v3"); a("v_bfe_u32 v4, v0, 1, 3"); a("v_lshl_or_b32 v3, v4, 4, v3")
    a("s_mul_i32 s4, s3, 1536"); a("v_add_u32 v3, s4, v3")
    for kb in range(3): a("ds_read_b128 %s, v3 offset:%d" % (vr(vA[kb]), L_H + 512 * kb))
    a("v_and_b32 v4, 1, v0"); a("v_cmp_eq_u32 vcc, 0, v4"); a("s_waitcnt lgkmcnt(0)")
    for kb in range(3):
        for i in range(4): a("v_cndmask_b32 v%d, 0, v%d, vcc" % (vA[kb] + i, vA[kb] + i))
    T(7)
    for kb in ((2, 0, 1) if n3 == 24 else (0, 1, 2)): perms(kb, v2); mm(kb, kb == (2 if n3 == 24 else 0))
    T(8)
    a("L_l2fin:")
    vO = vP[0][:2]
    a("s_lshl_b32 s4, s3, 11"); a("v_add_u32 v9, s4, v%d" % vVo)
    for x in range(2):
        for i in range(4): a("v_add_f32 v%d, v%d, v%d" % (vO[x] + i, vE[i] + 2 * x, vE[i] + 2 * x + 1))
        a("ds_write_b128 v9, %s offset:%d" % (vr(vO[x]), L_LP + 1024 * x))
    a("s_lshl_b32 s4, s3, 10"); a("v_add_u32 v9, s4, v%d" % vVo)
    a("v_lshrrev_b32 v3, 4, v0"); a("v_mul_u32_u24 v3, %d, v3" % (2 * 7168)); a("v_and_b32 v4, 15, v0"); a("v_lshl_add_u32 v3, v4, 4, v3")
    a("s_mul_i32 s4, s9, %d" % (8 * 7168)); a("s_lshl_b32 s5, s8, 8"); a("s_add_u32 s4, s4, s5")
    a("s_mul_i32 s5, s3, 7168"); a("s_add_u32 s4, s4, s5"); a("s_add_u32 s4, s4, %d" % WS_P)
    a("s_waitcnt lgkmcnt(0)"); a("s_barrier")
    a("s_cmp_ge_u32 s3, 2"); a("s_cbranch_scc1 L_final")
    for w in range(4): a("ds_read_b128 %s, v9 offset:%d" % (vr(vE[w]), L_LP + 2048 * w))
    a("s_cmp_eq_u32 s100, 0")
    a("s_waitcnt lgkmcnt(2)")
    for i in range(4): a("v_add_f32 v%d, v%d, v%d" % (vE[0] + i, vE[0] + i, vE[1] + i))
    a("s_waitcnt lgkmcnt(0)")
    for i in range(4): a("v_add_f32 v%d, v%d, v%d" % (vE[2] + i, vE[2] + i, vE[3] + i))
    for i in range(4): a("v_add_f32 v%d, v%d, v%d" % (vE[0] + i, vE[0] + i, vE[2] + i))
    for i in range(4): a("v_min_u32 v%d, -2, v%d" % (vE[0] + i, vE[0] + i))
    a("s_cbranch_scc1 L_pfar")
    a("buffer_store_dwordx4 %s, v3, %s, s4 offen" % (vr(vE[0]), sWS))
    a("s_branch L_sdone")
    a("L_pfar:")
    a("buffer_store_dwordx4 %s, v3, %s, s4 offen %s" % (vr(vE[0]), sWS, hs))
    a("s_branch L_sdone")
    a("L_final:")
    a("s_cmp_ge_u32 s8, 16"); a("s_cbranch_scc1 L_sdone")
    T(7)
    a("s_mov_b64 s[64:65], -1")
    mpoll("L_ppoll", [(64, [ldA], list(range(A4, A4 + 4))), (66, [ldY], list(range(Y4, Y4 + 4)))], npa, True)
    if ts == 1: a("s_sub_u32 s98, %d, s11" % SPIN)
    B4, Z4 = vP[2][2], vP[2][3]
    for i in range(4): a("v_mov_b32 v%d, v%d" % (B4 + i, A4 + i)); a("v_mov_b32 v%d, v%d" % (Z4 + i, Y4 + i))
    for r in (B4, Z4): a("v_permlane32_swap_b32 v%d, v%d" % (r, r + 2)); a("v_permlane32_swap_b32 v%d, v%d" % (r + 1, r + 3))
    for r in (B4, Z4): a("v_add_f32 v%d, v%d, v%d" % (r, r, r + 2)); a("v_add_f32 v%d, v%d, v%d" % (r + 1, r + 1, r + 3))
    for r in (B4, Z4): a("v_permlane16_swap_b32 v%d, v%d" % (r, r + 1))
    for r in (B4, Z4): a("v_add_f32 v%d, v%d, v%d" % (r, r, r + 1))
    for k in (8, 4):
        for r in (B4, Z4): a("v_add_f32_dpp v%d, v%d, v%d row_ror:%d %s" % (r, r, r, k, DPP))
    a("v_cvt_pk_bf16_f32 v3, v%d, v%d" % (B4, Z4)); a("v_lshlrev_b32 v4, 16, v3"); a("v_and_b32 v3, 0xffff0000, v3")
    a("v_add_f32 v4, v254, v4"); round_bf16(a, 4); a("v_add_f32 v4, v4, v3"); a("v_cvt_pk_bf16_f32 v4, v4, v4")
    a("s_mov_b32 exec_lo, 0x000f000f"); a("s_mov_b32 exec_hi, 0x000f000f")
    a("buffer_store_short v4, v253, %s, s75 offen %s" % (sOUT, osf))
    a("L_sdone:")
    T(9); T.flush()
    a("s_endpgm")

    a("L_aux:")
    vm = VM(a); vm.n = 1
    vLin, vWo = 1, 2
    vXN, vAc, vTp, vRing, w1blk = 8, 44, 244, 116, 4
    a("v_lshlrev_b32 v%d, 4, v0" % vLin)
    if 1:
        a("s_and_b32 s100, s2, 7"); a("s_mul_i32 s100, s100, 26"); a("s_lshr_b32 s4, s2, 3"); a("s_add_u32 s100, s100, s4")
        a("s_cmp_lt_u32 s2, 208"); a("s_cselect_b32 s100, s100, s2")
    a("s_and_b32 s4, s6, 15"); a("s_lshl_b32 s4, s4, 13"); a("s_lshr_b32 s5, s101, 5"); a("s_lshl_b32 s5, s5, 1"); a("s_add_u32 s5, s5, s7")
    a("s_lshl_b32 s5, s5, 9"); a("s_add_u32 s4, s4, s5"); a("s_add_u32 s74, s4, %d" % WS_O)
    a("s_cmp_eq_u32 s3, 5"); a("s_cbranch_scc1 L_clear")
    a("s_cmp_lt_u32 s100, 64"); a("s_movk_i32 s14, 8192"); a("s_cselect_b32 s14, s14, 9216"); a("s_mov_b32 s58, 4718592"); a("s_cselect_b32 s58, s58, 5308416"); a("s_cselect_b32 s15, 0, 64")
    a("s_cmp_lt_u32 s100, 136"); a("s_cselect_b32 s15, s15, 136"); a("s_sub_u32 s15, s100, s15"); a("s_lshl_b32 s15, s15, 7")
    a("v_lshrrev_b32 v3, 3, v0"); a("v_lshlrev_b32 v3, 3, v3"); a("v_mul_u32_u24 v3, s14, v3"); a("v_and_b32 v2, 7, v0"); a("v_lshl_add_u32 v%d, v2, 4, v3" % vWo)
    a("v_bfe_u32 v3, v0, 1, 3"); a("v_mul_u32_u24 v3, 1152, v3"); a("v_lshrrev_b32 v4, 4, v0"); a("v_lshl_add_u32 v3, v4, 5, v3")
    a("v_and_b32 v4, 1, v0"); a("v_lshl_add_u32 v3, v4, 4, v3")
    a("s_mul_i32 s75, s14, 57")
    a("s_waitcnt lgkmcnt(0)")
    a("s_cmp_lt_u32 s100, 136"); a("s_cselect_b32 s56, s28, s30"); a("s_cselect_b32 s57, s29, s31")
    a("s_cmp_lt_u32 s100, 64"); a("s_cselect_b32 s56, s22, s56"); a("s_cselect_b32 s57, s23, s57"); a("s_mov_b32 s59, 0x20000")
    a("s_cmp_lt_u32 s2, %d" % (0 if nol1 else 208)); a("s_cselect_b32 s58, s58, 0")
    w1 = []
    def issue_w1():
        blk, j = divmod(len(w1), 8)
        r = vRing + 32 * (blk % w1blk) + 4 * j
        w1.append(vm.issue("buffer_load_dwordx4 %s, v%d, %s, s15 offen nt" % (vr(r), vWo, sW1)))
        a("s_add_u32 s15, s15, %s" % ("s75" if j == 7 else "s14"))
    srd(a, 48, 16, 9216)
    for _ in range(pre): issue_w1()
    for i in range(9): tx = vm.issue("buffer_load_dwordx4 %s, v3, %s, 0 offen offset:%d" % (vr(vXN + 4 * i), sX, 128 * i))
    while len(w1) < burst: issue_w1()
    srd(a, 52, 38, "0x40000000")
    srd(a, 64, 36, 256)
    a("s_cmp_ge_u32 s2, 208"); a("s_cbranch_scc1 L_nol1")
    def paced1(blk):
        if len(w1) < 72 and len(w1) < 8 * (blk + w1blk):
            if len(w1) >= da: vm.wait(w1[len(w1) - da])
            issue_w1()
    ln = Asm(); xf = 44
    def unpack_all():
        for i in range(36): ln("v_lshlrev_b32 v%d, 16, v%d" % (xf + 2 * i, vXN + i)); ln("v_and_b32 v%d, 0xffff0000, v%d" % (xf + 2 * i + 1, vXN + i))
    def pack_all():
        for i in range(36): ln("v_cvt_pk_bf16_f32 v%d, v%d, v%d" % (vXN + i, xf + 2 * i, xf + 2 * i + 1))
    for i in range(4): ln("v_mov_b32 v%d, 0x3f803f80" % (244 + i))
    for i in range(9): ln("v_mfma_f32_16x16x32_bf16 v[248:251], v[244:247], %s, %s" % (vr(vXN + 4 * i), "0" if i == 0 else "v[248:251]"))
    unpack_all()
    allreduce(ln, "v_add_f32", 248, 249, [0])
    ln("v_mul_f32 v248, %s, v248" % f32(1 / 576)); ln("v_mov_b32 v4, v248"); round_bf16(ln, 4)
    ln("v_sub_f32 v248, v248, v4"); ln("v_sub_f32 v4, 0, v4"); ln("v_mov_b32 v5, v4")
    for i in range(36): ln("v_pk_add_f32 %s, %s, v[4:5]" % (vr(xf + 2 * i, 2), vr(xf + 2 * i, 2)))
    for i in range(36):
        acc = vr(244 + 2 * (i % 2), 2); x2 = vr(xf + 2 * i, 2)
        ln("v_pk_mul_f32 %s, %s, %s" % (acc, x2, x2) if i < 2 else "v_pk_fma_f32 %s, %s, %s, %s" % (acc, x2, x2, acc))
    ln("v_pk_add_f32 v[244:245], v[244:245], v[246:247]"); ln("v_add_f32 v4, v244, v245")
    allreduce(ln, "v_add_f32", 4, 5, [0, 16, 32])
    ln("v_mul_f32 v4, %s, v4" % f32(1 / 576)); ln("v_fma_f32 v4, -v248, v248, v4"); ln("v_max_f32 v4, 0, v4"); round_bf16(ln, 4)
    ln("v_add_f32 v4, %s, v4" % f32(1e-5)); round_bf16(ln, 4)
    ln("v_sqrt_f32 v4, v4"); round_bf16(ln, 4); ln("v_rcp_f32 v4, v4")
    pack_all(); ln("v_mov_b32 v5, v4"); unpack_all()
    for i in range(36): ln("v_pk_mul_f32 %s, %s, v[4:5]" % (vr(xf + 2 * i, 2), vr(xf + 2 * i, 2)))
    pack_all()
    vm.wait(tx)
    for k, ins in enumerate(ln.ins):
        a(ins.text)
        if k % lnstep == lnstep - 1:
            paced1(0)
    T(1)
    tflag = None
    for blk in range(9):
        while len(w1) < min(72, 8 * blk + 7 + da): paced1(blk)
        if blk == flagblk:
            a("v_lshlrev_b32 v253, 2, v0"); tflag = vm.issue("buffer_load_dword v252, v253, %s, 0 offen %s" % (sDBG, hl))
        vm.wait(w1[8 * blk + 7])
        base = vRing + 32 * (blk % w1blk)
        for i in range(8):
            t = vTp + 4 * (i % 2)
            for q in range(4): a("v_perm_b32 v%d, v%d, v%d, s%d" % (t + q, base + 4 * (2 * q + 1) + i // 2, base + 4 * (2 * q) + i // 2, 12 + i % 2))
            if i > 0:
                D = vAc + 4 * (i - 1)
                a("v_mfma_f32_16x16x32_bf16 %s, %s, %s, %s" % (vr(D), vr(vXN + 4 * blk), vr(vTp + 4 * ((i - 1) % 2)), "0" if blk == 0 else vr(D)))
            if i % 4 == 0: paced1(blk)
        D = vAc + 28
        a("v_mfma_f32_16x16x32_bf16 %s, %s, %s, %s" % (vr(D), vr(vXN + 4 * blk), vr(vTp + 4), "0" if blk == 0 else vr(D)))
    T(2)
    for i in range(8): a("v_add_f32_dpp v%d, v%d, v%d row_ror:8 row_mask:0xf bank_mask:0x3" % (vTp + i, vAc + 4 * i + 1, vAc + 4 * i))
    for i in range(8): a("v_add_f32_dpp v%d, v%d, v%d row_ror:8 row_mask:0xf bank_mask:0xc" % (vTp + i, vAc + 4 * i + 2, vAc + 4 * i + 3))
    for q in range(4): a("v_cvt_pk_bf16_f32 v%d, v%d, v%d" % (12 + q, vTp + 2 * q, vTp + 2 * q + 1))
    for q in range(4): a("v_min_u32 v%d, -2, v%d" % (12 + q, 12 + q))
    assert vm.done >= tflag
    a("s_branch L_l1done")
    a("L_nol1:")
    a("s_barrier")
    a("v_mov_b32 v252, 0")
    a("L_l1done:")
    roles()
    T(10)
    a("s_mov_b32 s5, 0x80808080")
    if noclear & 2: a("s_branch L_flags_ok")
    a("v_and_b32 v8, s5, v252"); a("v_cmp_eq_u32 vcc, s5, v8"); a("s_cmp_eq_u64 vcc, exec"); a("s_cbranch_scc1 L_flags_ok")
    a("v_lshlrev_b32 v10, 2, v0")
    def body():
        a("buffer_load_dword v252, v10, %s, 0 offen %s" % (sDBG, hl)); a("s_waitcnt vmcnt(0)"); a("v_and_b32 v8, s5, v252"); a("v_cmp_eq_u32 vcc, s5, v8")
    spin(body, "L_flags")
    a("s_cmp_ge_u32 s2, 208"); a("s_cbranch_scc1 L_nol1st")
    a("s_lshl_b32 s4, s100, 10")
    a("buffer_store_dwordx4 v[12:15], v%d, %s, s4 offen %s" % (vLin, sWS, hs))
    a("L_nol1st:")
    a("s_getreg_b32 s4, hwreg(HW_REG_XCC_ID, 0, 4)"); a("s_and_b32 s5, s2, 3"); a("s_lshl_b32 s5, s5, 3")
    a("v_bfe_u32 v8, v252, s5, 4"); a("v_cmp_ne_u32 vcc, s4, v8")
    a("s_bfe_u32 s4, s2, 0x10002"); a("s_lshl_b32 s4, 0x55555555, s4"); a("s_cmp_lt_u32 s2, 128"); a("s_cselect_b32 s5, vcc_lo, vcc_hi")
    a("s_and_b32 s4, s4, s5"); a("s_cselect_b32 s4, %d, %d" % (1 if noclear & 2 else 0, loc)); a("s_cmp_lt_u32 s8, 16"); a("s_cselect_b32 s4, s4, 0")
    a("v_mov_b32 v8, s4"); a("v_mov_b32 v9, 0"); a("ds_write_b32 v9, v8 offset:%d" % L_F); a("v_mov_b32 v11, %d" % r0); a("ds_write_b32 v9, v11 offset:%d" % L_C)
    a("v_bfe_u32 v3, v0, 2, 1"); a("v_lshlrev_b32 v3, 11, v3"); a("v_lshrrev_b32 v4, 5, v0"); a("v_lshl_or_b32 v3, v4, 10, v3")
    a("v_bfe_u32 v4, v0, 4, 1"); a("v_lshl_or_b32 v3, v4, 6, v3"); a("v_and_b32 v4, 3, v0"); a("v_lshl_or_b32 v3, v4, 4, v3")
    a("s_and_b32 s4, s6, 15"); a("s_lshl_b32 s4, s4, 12"); a("s_lshr_b32 s5, s101, 5"); a("s_lshl_b32 s5, s5, 7"); a("s_add_u32 s4, s4, s5")
    T(4)
    def body():
        a("buffer_load_dwordx4 v[4:7], v3, %s, s4 offen %s" % (sWS, hl)); a("s_waitcnt vmcnt(0)")
        a("v_max3_u32 v8, v4, v5, v6"); a("v_max_u32 v8, v8, v7"); a("v_cmp_ne_u32 vcc, -1, v8")
    if not noq: spin(body, "L_qpoll")
    else:
        for i in range(4): a("v_mov_b32 v%d, 0x3c003c00" % (4 + i))
    T(11)
    a("ds_write_b128 v%d, v[4:7] offset:%d" % (vLin, L_Q))
    a("s_waitcnt lgkmcnt(0)"); a("s_barrier")
    T(5)
    a("s_cmp_lt_u32 s8, 16"); a("s_cbranch_scc1 L_noh")
    a("s_cmp_ge_u32 s8, 28"); a("s_cbranch_scc1 L_noh")
    vm = VM(a)
    vG, vU = 16, 40
    a("s_mul_i32 s4, s8, 6144"); a("s_sub_u32 s4, s4, %d" % (16 * 6144 - 64 * 1024))
    def body():
        for y in range(6):
            a("s_add_u32 s5, s4, %d" % (1024 * y)); a("buffer_load_dwordx4 %s, v%d, %s, s5 offen %s" % (vr(vG + 4 * y), vLin, sWS, hl))
            a("s_add_u32 s5, s4, %d" % (1024 * (72 + y))); a("buffer_load_dwordx4 %s, v%d, %s, s5 offen %s" % (vr(vU + 4 * y), vLin, sWS, hl))
        a("s_waitcnt vmcnt(0)")
        a("v_max_u32 v8, v%d, v%d" % (vG, vG + 1))
        for r in range(vG + 2, vG + 48, 2): a("v_max3_u32 v8, v8, v%d, v%d" % (r, r + 1))
        a("v_cmp_ne_u32 vcc, -1, v8")
    if not noq: spin(body, "L_gpoll")
    a("v_and_b32 v3, 7, v0"); a("v_lshlrev_b32 v3, 7, v3"); a("v_lshrrev_b32 v4, 3, v0"); a("v_lshl_or_b32 v3, v4, 4, v3")
    a("s_mov_b32 s4, %s" % f32(0.044715)); a("s_mov_b32 s5, %s" % f32(-2 * (2 / 3.141592653589793) ** 0.5 * L2E))
    g, e = list(range(64, 72)), list(range(72, 80))
    def unpack(dst, src):
        for q in range(4): a("v_lshlrev_b32 v%d, 16, v%d" % (dst[2 * q], src + q)); a("v_and_b32 v%d, 0xffff0000, v%d" % (dst[2 * q + 1], src + q))
    def pack(dst, src):
        for q in range(4): a("v_cvt_pk_bf16_f32 v%d, v%d, v%d" % (dst + q, src[2 * q], src[2 * q + 1]))
    for y in range(6):
        unpack(g, vG + 4 * y)
        for i in range(8): a("v_mul_f32 v%d, v%d, v%d" % (e[i], g[i], g[i]))
        for i in range(8): a("v_fma_f32 v%d, v%d, s4, 1.0" % (e[i], e[i]))
        for i in range(8): a("v_mul_f32 v%d, v%d, v%d" % (e[i], e[i], g[i]))
        for i in range(8): a("v_mul_f32 v%d, s5, v%d" % (e[i], e[i]))
        for i in range(8): a("v_exp_f32 v%d, v%d" % (e[i], e[i]))
        for i in range(8): a("v_add_f32 v%d, 1.0, v%d" % (e[i], e[i]))
        for i in range(8): a("v_rcp_f32 v%d, v%d" % (e[i], e[i]))
        for i in range(8): a("v_mul_f32 v%d, v%d, v%d" % (g[i], g[i], e[i]))
        pack(vG + 4 * y, g); unpack(g, vG + 4 * y); unpack(e, vU + 4 * y)
        for i in range(8): a("v_mul_f32 v%d, v%d, v%d" % (g[i], g[i], e[i]))
        pack(vG + 4 * y, g)
        a("ds_write_b128 v3, %s offset:%d" % (vr(vG + 4 * y), L_H + 1024 * y))
    a("L_noh:")
    a("v_lshlrev_b32 v3, 3, v0")
    T(6)
    a("s_waitcnt vmcnt(0) lgkmcnt(0)"); a("s_barrier")
    for w in range(4): a("ds_read_b128 %s, v%d offset:%d" % (vr(16 + 4 * w), vLin, L_OP + 1024 * w))
    a("s_waitcnt lgkmcnt(2)")
    for i in range(4): a("v_add_f32 v%d, v%d, v%d" % (16 + i, 16 + i, 20 + i))
    a("s_waitcnt lgkmcnt(0)")
    for i in range(4): a("v_add_f32 v%d, v%d, v%d" % (24 + i, 24 + i, 28 + i))
    for i in range(4): a("v_add_f32 v%d, v%d, v%d" % (16 + i, 16 + i, 24 + i))
    a("v_cvt_pk_bf16_f32 v4, v16, v17"); a("v_cvt_pk_bf16_f32 v5, v18, v19"); a("v_min_u32 v4, -2, v4"); a("v_min_u32 v5, -2, v5")
    for r_ in range(orep):
        if r_: a("s_add_u32 s74, s74, 0x20000")
        a("buffer_store_dwordx2 v[4:5], v3, %s, s74 offen %s" % (sWS, hs))
    T(7)
    a("s_barrier")
    a("L_adone:")
    if hold:
        a("L_hold:"); a("s_memrealtime s[78:79]"); a("s_waitcnt lgkmcnt(0)"); a("s_sub_u32 s78, s78, s76"); a("s_cmp_lt_u32 s78, %d" % (hold * 100)); a("s_cbranch_scc1 L_hold")
    T(9); T.flush()
    a("s_endpgm")
    a("L_clear:")
    roles()
    a("v_mov_b32 v4, -1"); a("v_mov_b32 v5, -1"); a("v_mov_b32 v6, -1"); a("v_mov_b32 v7, -1")
    a("s_waitcnt lgkmcnt(0)")
    srd(a, 52, 38, "0x40000000"); srd(a, 64, 36, 256)
    if st:
        a("s_lshl_b32 s4, s6, 21"); a("s_lshl_b32 s5, s7, 18"); a("s_add_u32 s4, s4, s5"); a("s_add_u32 s4, s4, %d" % (6144 * 256))
        a("s_load_dword s40, s[20:21], s4")
        a("s_bfe_u32 s4, s2, 0x20003"); a("s_mul_i32 s4, s4, 1500000"); a("s_and_b32 s4, s4, 0xffffff80")
        a("s_load_dword s41, s[24:25], s4"); a("s_load_dword s42, s[32:33], s4"); a("s_load_dword s43, s[34:35], 0")
        a("s_load_dword s44, s[32:33], 0xffff0"); a("s_mov_b32 s4, 5308400"); a("s_load_dword s45, s[32:33], s4"); a("s_mov_b32 s4, 4718576"); a("s_load_dword s46, s[24:25], s4")
    if noclear & 1: a("s_branch L_clrskip")
    a("v_lshlrev_b32 v3, 3, v0")
    for r_ in range(orep):
        if r_: a("s_add_u32 s74, s74, 0x20000")
        a("buffer_store_dwordx2 v[4:5], v3, %s, s74 offen %s" % (sWS, hs))
    a("s_lshl_b32 s4, s101, 6"); a("s_add_u32 s4, s4, %d" % WS_STAT)
    a("s_mov_b64 exec, 0xf")
    a("buffer_store_dwordx4 v[4:7], v%d, %s, s4 offen %s" % (vLin, sWS, hs))
    a("s_mov_b64 exec, -1")
    a("v_lshrrev_b32 v3, 4, v0"); a("v_mul_u32_u24 v3, %d, v3" % (2 * 7168)); a("v_and_b32 v244, 15, v0"); a("v_lshl_add_u32 v3, v244, 4, v3")
    a("s_mul_i32 s4, s9, %d" % (8 * 7168)); a("s_lshl_b32 s5, s8, 8"); a("s_add_u32 s4, s4, s5"); a("s_add_u32 s4, s4, %d" % WS_P)
    a("s_cmp_lt_u32 s8, 28"); a("s_cselect_b32 s4, s4, %d" % WS_SINK)
    a("buffer_store_dwordx4 v[4:7], v3, %s, s4 offen %s" % (sWS, hs))
    a("s_add_u32 s4, s4, 7168")
    a("buffer_store_dwordx4 v[4:7], v3, %s, s4 offen %s" % (sWS, hs))
    a("s_lshl_b32 s4, s100, 10")
    a("buffer_store_dwordx4 v[4:7], v%d, %s, s4 offen %s" % (vLin, sWS, hs))
    a("L_clrskip:")
    a("s_and_b32 s4, s2, 3"); a("s_lshl_b32 s4, s4, 3"); a("s_getreg_b32 s5, hwreg(HW_REG_XCC_ID, 0, 4)"); a("s_or_b32 s5, s5, 0x80"); a("s_lshl_b32 s4, s5, s4"); a("v_mov_b32 v8, s4"); a("v_mov_b32 v9, 0"); a("s_and_b32 s4, s2, 0xfc")
    a("s_mov_b64 exec, 1")
    if fb:
        a("s_cmp_ge_u32 s2, 32"); a("s_cbranch_scc1 L_noctr")
        a("s_lshl_b32 s5, s2, 8"); a("s_add_u32 s5, s5, %d" % WS_CTR)
        a("buffer_store_dword v9, v9, %s, s5 offen %s" % (sWS, hs))
        a("L_noctr:")
    a("s_waitcnt vmcnt(0)")
    if not noclear & 2: a("buffer_atomic_or v8, v9, %s, s4 offen sc1" % sDBG)
    a("L_clrdone:")
    T(3); T.flush()
    a("L_end:")
    a("s_endpgm")
    a("L_codeend:")
    a.pad()
    head = open("parallel_sum__sliding_block_cached__geglu_ffn__decode.s.ref").read().split("; Override")[0]
    head += "; @launch grid=(256,1,1) block=(384,1,1) lds=%d\n" % LDS_BYTES
    head += '.amdgcn_target "amdgcn-amd-amdhsa--gfx950"\n.text\n.globl %s\n.p2align 8\n.type %s,@function\n' % (KN, KN)
    tail = '.section .rodata,"a"\n.p2align 6\n.amdhsa_kernel %s\n  .amdhsa_next_free_vgpr 256\n  .amdhsa_next_free_sgpr 102\n  .amdhsa_accum_offset 256\n' % KN
    tail += "  .amdhsa_group_segment_fixed_size 0\n  .amdhsa_kernarg_size 96\n  .amdhsa_user_sgpr_count 2\n  .amdhsa_user_sgpr_kernarg_segment_ptr 1\n  .amdhsa_system_sgpr_workgroup_id_x 1\n.end_amdhsa_kernel\n"
    return head + a.text() + tail

if __name__ == "__main__":
    kw = eval("dict(%s)" % (sys.argv[2] if len(sys.argv) > 2 else ""))
    open(sys.argv[1], "w").write(gen(**kw))

RAW = None
def report(t, verbose):
    import numpy as np
    def st(name, x):
        x = x.reshape(x.shape[0], -1)
        print("   %-28s min %6.2f mean %6.2f max %6.2f" % (name, np.median(x.min(axis=1)), np.median(x.mean(axis=1)), np.median(x.max(axis=1))))
    s, x = t[:, :, :4], t[:, :, 4]
    ids = np.arange(256); WO = (ids < 128) | (ids % 8 == 0); DN = ~WO & (((ids >> 3) - 16) * 7 + ids % 8 - 1 < 108)
    for i, n in enumerate(["start", "slot 24", "ring full", "S1", "K done", "softmax done", "V done"]): st("stream " + n, s[..., i])
    st("stream wo perms done", s[:, WO][:, :, :2, 7]); st("stream o seen", s[:, WO][..., 8]); st("stream wo end", s[:, WO][:, :, :2, 9])
    st("stream down mm done", s[:, DN][..., 8]); st("stream down end", s[:, DN][:, :, :2, 9])
    st("stream kernarg(ts2)", s[..., 10]); st("stream firstK(ts2)", s[..., 11])
    st("aux LN done", x[:, :208, 1]); st("aux L1 mm done", x[:, :208, 2])
    st("clear flag sent", t[:, :, 5, 3])
    for i, n in [(10, "flag check start"), (4, "flags seen"), (11, "q seen"), (5, "S1"), (6, "h done"), (7, "o sent")]: st("aux " + n, x[..., i])
    if verbose:
        for name, idx in (("start", 0), ("slot24", 1), ("ring full", 2), ("K done", 4), ("V done", 6)):
            v = s[..., idx]
            wg = v.max(axis=2)
            print("   %s: within-wg spread %.2f; within-xcd std of wg %.2f; std of xcd means %.2f" % (name, (v.max(axis=2) - v.min(axis=2)).mean(),
                  wg.reshape(len(wg), 32, 8).std(axis=1).mean(), wg.reshape(len(wg), 32, 8).mean(axis=1).std(axis=1).mean()))
            for it in range(-4, 0):
                w = wg[it].reshape(32, 8)
                print("      xcd mean", w.mean(axis=0), "max", w.max(axis=0))
            print("      mean over runs by w>>3:", (wg - wg.mean(axis=1, keepdims=True)).mean(axis=0).reshape(32, 8).mean(axis=1))
    base = -t[:, :, :, 0].min(axis=(1, 2))
    if RAW is not None:
        r = RAW[:, WO]
        n1 = r[:, :144, :2, 10] + 1; d1 = (r[:, :144, :2, 8] - r[:, :144, :2, 7]) / 100.0
        n2 = r[:, :144, 2:4, 11] + 1; d2 = (r[:, :144, 2:4, 9] - r[:, :144, 2:4, 7]) / 100.0
        print("   o poll: mean iters %.1f, us/iter %.3f ; a poll: mean iters %.1f, us/iter %.3f" % (n1.mean(), d1.sum() / n1.sum(), n2.mean(), d2.sum() / n2.sum()))
    n = len(s)
    vmax = s[..., 6].reshape(n, -1).max(axis=1); osent = x[..., 7].max(axis=1); oseen = s[:, WO][..., 8].reshape(n, -1).max(axis=1)
    wend = s[:, WO][:, :, :2, 9].reshape(n, -1).max(axis=1); out = s[:, WO][:, :, 2:4, 9].reshape(n, -1).max(axis=1)
    print("   per-run means: Vmean %.2f Vmax %.2f | +osent %.2f +oseen %.2f +wend %.2f +out %.2f | tail %.2f end %.2f" % (s[..., 6].mean(), vmax.mean(), (osent - vmax).mean(), (oseen - osent).mean(), (wend - oseen).mean(), (out - wend).mean(), (out - vmax).mean(), out.mean()))
    lag = lambda i: (lambda v: v - v.mean(axis=1, keepdims=True))(s[..., i].max(axis=2))
    lv = lag(6)
    for nm, i in (("slot24", 1), ("S1", 3), ("Kdone", 4)):
        l = lag(i); al = (l * lv).sum() / (l * l).sum(); res = lv - al * l
        print("   lag %s: std %.2f max %.2f corr %.2f slope %.2f | V lag std %.2f max %.2f -> residual std %.2f max %.2f" % (nm, l.std(), l.max(axis=1).mean(), np.corrcoef(l.ravel(), lv.ravel())[0, 1], al, lv.std(), lv.max(axis=1).mean(), res.std(), res.max(axis=1).mean()))
    u = np.where(ids < 208, (ids & 7) * 26 + (ids >> 3), 999); S3 = (u < 208) & (u % 8 == 3); FR = ids >= 208
    for nm, m in (("slice3", S3), ("free", FR), ("wq", (u < 64) & ~S3), ("gate/up", (u >= 64) & (u < 208) & ~S3), ("wo-unit", WO & ~S3 & ~FR), ("down-unit", DN & ~S3 & ~FR)):
        print("   class %-10s n=%3d lag slot24 %.2f S1 %.2f Kdone %.2f V %.2f | share of worst V %.2f" % (nm, m.sum(), lag(1)[:, m].mean(), lag(3)[:, m].mean(), lag(4)[:, m].mean(), lv[:, m].mean(), m[lv.argmax(axis=1)].mean()))
    print("   class xcd V lag", np.array([lv[:, ids % 8 == k].mean() for k in range(8)]), "start", np.array([lag(0)[:, ids % 8 == k].mean() for k in range(8)]))
    st("out sent", s[:, WO][:, :, 2:4, 9])
```

```python
import sys, struct
from asmlib import Asm, VM
KN = "parallel_sum__sliding_block_cached__geglu_ffn__decode_kernel"

def f32(x): return "0x%08x" % struct.unpack("<I", struct.pack("<f", x))[0]
def vr(b, n=4): return "v[%d:%d]" % (b, b + n - 1) if n > 1 else "v%d" % b
DPP = "row_mask:0xf bank_mask:0xf"
MF = "v_mfma_f32_16x16x32_bf16 %s, %s, %s, %s"

WS_L1, WS_STAT, WS_H, WS_P, WS_O, WS_TS = 0, 0x40000, 0x48000, 0x80000, 0x100000, 0x200000
L_F, L_Q, L_OP, L_LP = 0, 1024, 2048, 6144
LDS_BYTES = 14336
SPIN = 400000
L2E = 1.4426950408889634
NW = 8
sK, sV, sX, sWS, sW1, sW2, sDBG, sOUT = ("s[%d:%d]" % (b, b + 3) for b in (40, 44, 48, 52, 56, 60, 64, 68))

def srd(a, base, ptr, nbytes):
    a("s_mov_b32 s%d, s%d" % (base, ptr)); a("s_mov_b32 s%d, s%d" % (base + 1, ptr + 1))
    a("s_mov_b32 s%d, %s" % (base + 2, nbytes)); a("s_mov_b32 s%d, 0x20000" % (base + 3))

class Stamps:
    def __init__(self, a, on): self.a, self.on = a, on
    def __call__(self, idx):
        if self.on: self.a("s_memrealtime s[%d:%d]" % (76 + 2 * idx, 77 + 2 * idx))
    def flush(self, n=12):
        if not self.on: return
        a = self.a
        a("s_waitcnt lgkmcnt(0)"); srd(a, 52, 38, "0x40000000")
        a("s_mul_i32 s4, s2, %d" % NW); a("s_add_u32 s4, s4, s3"); a("s_lshl_b32 s4, s4, 6"); a("s_add_u32 s4, s4, %d" % WS_TS)
        a("s_mov_b64 exec, 1"); a("v_mov_b32 v0, 0")
        for q in range(n // 4):
            for i in range(4): a("v_mov_b32 v%d, s%d" % (4 + 4 * q + i, 76 + 2 * (4 * q + i)))
            a("buffer_store_dwordx4 %s, v0, %s, s4 offen offset:%d" % (vr(4 + 4 * q), sWS, 16 * q))

def allreduce(a, op, v, t, steps):
    for s in steps:
        if s == 0: a("%s_dpp v%d, v%d, v%d quad_perm:[1,0,3,2] %s" % (op, v, v, v, DPP))
        elif s < 16: a("%s_dpp v%d, v%d, v%d row_ror:%d %s" % (op, v, v, v, s, DPP))
        else:
            a("v_mov_b32 v%d, v%d" % (t, v)); a("v_permlane%d_swap_b32 v%d, v%d" % (s, v, t)); a("%s v%d, v%d, v%d" % (op, v, v, t))

def round_bf16(a, v):
    a("v_cvt_pk_bf16_f32 v%d, v%d, v%d" % (v, v, v)); a("v_and_b32 v%d, 0xffff0000, v%d" % (v, v))

def gen(d=5, d0=3, nd0=24, dend=8, nramp=108, step=2, R=52, ts=0, kcatch=2, stat_at=100, nfree=32, da=11, burst=11,
        flagblk=7, lnstep=28, b0=3, loc=1, nb0=32, nb1=32, sv=128, npo=1, npa=1, thr=16, noclear=0, cf='', pfw=8, x1=0, xlate=0, pf=1, frac=0, sat=1, cm=7, lp=0, sp=0):
    a = Asm(); T = Stamps(a, ts)
    uid = [0]
    def lab(p): uid[0] += 1; return "L_%s%d" % (p, uid[0])

    def spin(body, label):
        a("s_mov_b32 s11, %d" % SPIN)
        a(label + ":"); body()
        a("s_cmp_eq_u64 vcc, exec"); a("s_cbranch_scc1 %s_ok" % label)
        a("s_sub_u32 s11, s11, 1"); a("s_cmp_lg_u32 s11, 0"); a("s_cbranch_scc1 %s" % label)
        a(label + "_ok:")

    def mpoll(label, groups, npipe):
        nl = sum(len(g[1]) for g in groups)
        def issue():
            for m, loads, _ in groups:
                a("s_mov_b64 exec, s[%d:%d]" % (m, m + 1))
                for t in loads: a(t)
        def check():
            for m, _, regs in groups:
                if len(groups) > 1: a("s_mov_b64 exec, s[%d:%d]" % (m, m + 1))
                a("v_max3_u32 v3, v%d, v%d, v%d" % tuple(regs[:3]))
                rest = regs[3:]
                while len(rest) >= 2: a("v_max3_u32 v3, v3, v%d, v%d" % tuple(rest[:2])); rest = rest[2:]
                if rest: a("v_max_u32 v3, v3, v%d" % rest[0])
                a("v_cmp_eq_u32 s[%d:%d], -1, v3" % (m, m + 1))
            m0 = groups[0][0]
            a("s_or_b64 vcc, s[%d:%d], s[%d:%d]" % (m0, m0 + 1, groups[-1][0], groups[-1][0] + 1))
            a("s_cbranch_scc0 %s_ok" % label)
        a("s_mov_b32 s11, %d" % SPIN)
        check()
        a(label + ":"); issue(); a("s_waitcnt vmcnt(0)"); check()
        a("s_sub_u32 s11, s11, 1"); a("s_cmp_lg_u32 s11, 0"); a("s_cbranch_scc1 %s" % label)
        a(label + "_ok:")
        a("s_mov_b64 exec, -1")

    def store2(text, flag):
        f, e = lab("far"), lab("sent")
        a("s_cmp_eq_u32 %s, 0" % flag); a("s_cbranch_scc1 " + f); a(text); a("s_branch " + e); a(f + ":"); a(text + " sc1"); a(e + ":")

    def roles():
        e = lab("role")
        a("s_and_b32 s9, s2, 7"); a("s_lshr_b32 s8, s2, 3")
        a("s_cmp_lt_u32 s8, 16"); a("s_cbranch_scc1 " + e)
        a("s_sub_u32 s8, s8, 16"); a("s_cmp_eq_u32 s9, 0"); a("s_cselect_b32 s9, 8, s9"); a("s_cbranch_scc1 " + e)
        a("s_add_u32 s8, s8, 16"); a("s_cmp_lt_u32 s8, 28"); a("s_cbranch_scc1 " + e)
        a("s_mul_i32 s8, s8, 7"); a("s_add_u32 s8, s8, s9"); a("s_sub_u32 s8, s8, %d" % (28 * 7 + 1 - 16))
        a("s_mov_b32 s9, 0"); a("s_cmp_lt_u32 s8, 28"); a("s_cbranch_scc1 " + e)
        a("s_mov_b32 s9, 8"); a("s_sub_u32 s8, s8, 12")
        a(e + ":")

    def oslot(dst):
        a("s_and_b32 s4, s6, 15"); a("s_lshl_b32 s4, s4, 13"); a("s_lshr_b32 s5, s6, 4"); a("s_lshl_b32 s5, s5, 1"); a("s_add_u32 s5, s5, s7")
        a("s_lshl_b32 s5, s5, 9"); a("s_add_u32 s4, s4, s5"); a("s_add_u32 %s, s4, %d" % (dst, WS_O))

    def l1slot(dst):
        a("s_and_b32 %s, s2, 7" % dst); a("s_lshl_b32 %s, %s, 5" % (dst, dst)); a("s_lshr_b32 s4, s2, 3"); a("s_add_u32 %s, %s, s4" % (dst, dst)); a("s_lshl_b32 %s, %s, 10" % (dst, dst))

    def clears(fl, e, lin, t, cm=cm):
        l1slot("s5")
        if cm & 1:
            k0 = lab("nol")
            a("s_lshr_b32 s4, s2, 3"); a("s_lshl_b32 s4, 1, s4"); a("s_and_b32 s4, s4, 0x%x" % (0xff | (0x1ff << 17))); a("s_cbranch_scc0 " + k0)
            a("buffer_store_dwordx4 %s, v%d, %s, s5 offen %s" % (vr(e), lin, sWS, fl)); a(k0 + ":")
        a("s_lshl_b32 s4, s6, 1"); a("s_add_u32 s4, s4, s7"); a("s_lshl_b32 s4, s4, 6"); a("s_add_u32 s4, s4, %d" % WS_STAT)
        if cm & 2: a("s_mov_b64 exec, 0xf"); a("buffer_store_dwordx4 %s, v%d, %s, s4 offen %s" % (vr(e), lin, sWS, fl)); a("s_mov_b64 exec, -1")
        if not cm & 4: return
        k = lab("nop")
        a("s_cmp_ge_u32 s8, 28"); a("s_cbranch_scc1 " + k)
        a("v_lshrrev_b32 v%d, 4, v0" % t); a("v_mul_u32_u24 v%d, %d, v%d" % (t, 7168, t)); a("v_and_b32 v%d, 15, v0" % (t + 1)); a("v_lshl_add_u32 v%d, v%d, 4, v%d" % (t, t + 1, t))
        a("s_mul_i32 s4, s9, %d" % (8 * 7168)); a("s_lshl_b32 s5, s8, 8"); a("s_add_u32 s4, s4, s5"); a("s_add_u32 s4, s4, %d" % WS_P); a("s_add_u32 s5, s4, %d" % (4 * 7168))
        st = ["buffer_store_dwordx4 %s, v%d, %s, %s offen" % (vr(e), t, sWS, s_) for s_ in ("s4", "s5")]
        if 'sc1' not in fl:
            f = lab("rem")
            a("s_cmp_lt_u32 s2, 224"); a("s_cselect_b32 s10, 0, s8"); a("s_cmp_ge_u32 s10, 16"); a("s_cbranch_scc1 " + f)
            for x_ in st: a(x_ + ' ' + fl)
            a("s_branch " + k); a(f + ":")
        for x_ in st: a(x_ + " sc1")
        a(k + ":")

    def block_mm(base, tp, acc, act, first, hook=None):
        for i in range(8):
            t = tp + 4 * (i % 2)
            for q in range(4): a("v_perm_b32 v%d, v%d, v%d, s%d" % (t + q, base + 4 * (2 * q + 1) + i // 2, base + 4 * (2 * q) + i // 2, 12 + i % 2))
            if i > 0: a(MF % (vr(acc + 4 * (i - 1)), vr(act), vr(tp + 4 * ((i - 1) % 2)), "0" if first else vr(acc + 4 * (i - 1))))
            if hook and i % 4 == 0: hook()
        a(MF % (vr(acc + 28), vr(act), vr(tp + 4), "0" if first else vr(acc + 28)))
    def block_fold(dst, acc):
        for i in range(8): a("v_add_f32_dpp v%d, v%d, v%d row_ror:8 row_mask:0xf bank_mask:0x3" % (dst + i, acc + 4 * i + 1, acc + 4 * i))
        for i in range(8): a("v_add_f32_dpp v%d, v%d, v%d row_ror:8 row_mask:0xf bank_mask:0xc" % (dst + i, acc + 4 * i + 2, acc + 4 * i + 3))
    def actaddr(dst, t, rowbytes):
        a("v_bfe_u32 v%d, v0, 1, 3" % dst); a("v_mul_u32_u24 v%d, %d, v%d" % (dst, rowbytes, dst)); a("v_lshrrev_b32 v%d, 4, v0" % t); a("v_lshl_add_u32 v%d, v%d, 5, v%d" % (dst, t, dst))
        a("v_and_b32 v%d, 1, v0" % t); a("v_lshl_add_u32 v%d, v%d, 4, v%d" % (dst, t, dst))

    a(KN + ":")
    T(0)
    a("s_cmp_ge_u32 s2, 256"); a("s_cbranch_scc1 L_end")
    a("s_load_dwordx16 s[16:31], s[0:1], 0"); a("s_load_dwordx8 s[32:39], s[0:1], 64")
    a("s_getpc_b64 s[4:5]")
    a("L_pc:")
    if pf == 1:
        a("v_lshlrev_b32 v1, 7, v0"); a("v_min_u32 v1, L_codeend-L_pc-4, v1")
        a("global_load_dword v255, v1, s[4:5]")
    a("v_lshrrev_b32 v1, 6, v0"); a("v_and_b32 v0, 63, v0"); a("v_readfirstlane_b32 s3, v1")
    if pf == 2:
        a("s_lshr_b32 s6, s2, 3"); a("s_lshl_b32 s7, s3, 5"); a("s_add_u32 s6, s6, s7"); a("s_lshl_b32 s6, s6, 7"); a("s_min_u32 s6, s6, L_codeend-L_pc-4")
        a("s_mov_b64 s[96:97], s[4:5]"); a("s_mov_b32 s98, s6")
    a("s_and_b32 s6, s2, 7"); a("s_lshl_b32 s6, s6, 1"); a("s_bfe_u32 s7, s2, 0x10003"); a("s_or_b32 s6, s6, s7")
    a("s_and_b32 s7, s2, 0x70"); a("s_or_b32 s6, s6, s7"); a("s_lshr_b32 s7, s2, 7")
    a("s_cmp_ge_u32 s3, 4"); a("s_cbranch_scc1 L_help")

    vm = VM(a); vm.n = 1 if pf == 1 else 0
    vKo, vVo, vM, vL, vF = 1, 2, 5, 6, 7
    vMask, vQ0, vQ1, vAcc = 12, 16, 20, 24
    vD = [28, 32]
    pool = list(range(36, 252, 4))
    assert len(pool) >= R + 2
    a("v_lshrrev_b32 v3, 4, v0"); a("v_lshlrev_b32 v3, 6, v3")
    a("v_and_b32 v4, 3, v0"); a("v_lshl_or_b32 v3, v4, 4, v3")
    a("v_bfe_u32 v4, v0, 2, 2"); a("v_lshl_or_b32 v%d, v4, 8, v3" % vKo)
    a("v_lshlrev_b32 v%d, 4, v0" % vVo)
    a("s_lshl_b32 s14, s6, 21"); a("s_lshl_b32 s15, s7, 18"); a("s_add_u32 s14, s14, s15")
    a("s_lshl_b32 s15, s3, 11"); a("s_add_u32 s14, s14, s15"); a("s_add_u32 s14, s14, %d" % (6144 * 256))
    a("s_mov_b32 s42, 0x10000000"); a("s_mov_b32 s43, 0x20000")
    a("s_waitcnt lgkmcnt(0)")
    a("s_mov_b32 s40, s18"); a("s_mov_b32 s41, s19")
    slot, tok, free, issued = {}, {}, pool[:], [0]
    def issue_next():
        n = issued[0]; issued[0] += 1
        r = free.pop(0); slot[n] = r
        c, t = divmod(n % 64, 2)
        if t == 0: a("s_add_u32 s10, s14, %d" % (c * 8192))
        tok[n] = vm.issue("buffer_load_dwordx4 %s, v%d, %s, s10 offen offset:%d nt" % (vr(r), vKo if n < 64 else vVo, sK if n < 64 else sV, 1024 * t))
        if n + 1 == sp: a("s_barrier")
        if n + 1 == sv: a("s_barrier")
    for _ in range(max(b0, d0)): issue_next()
    srd(a, 44, 20, "0x10000000"); srd(a, 52, 38, "0x40000000")
    a("v_bfe_u32 v3, v0, 3, 1"); a("v_bfe_u32 v4, v0, 1, 1"); a("v_lshl_or_b32 v3, v3, 1, v4")
    a("v_and_b32 v4, 1, v0"); a("v_lshlrev_b32 v4, 4, v4"); a("v_mov_b32 v5, 0xffff"); a("v_lshlrev_b32 v4, v4, v5")
    for r in range(4):
        a("v_cmp_eq_u32 vcc, %d, v3" % r); a("v_cndmask_b32 v%d, 0, v4, vcc" % (vMask + r))
    if x1 & 16:
        srd(a, 48, 16, 9216); a("s_lshl_b32 s4, s2, 5"); vm.issue("buffer_load_ushort v254, v0, %s, s4 offen" % sX)
    if x1 & 32:
        for _ in range(60): a("s_mul_i32 s4, s4, 0x1234567")
    oslot("s26"); a("s_lshl_b32 s5, s3, 7"); a("s_add_u32 s26, s26, s5")
    if nb1 > nb0:
        a("s_lshr_b32 s4, s2, 3"); a("s_and_b32 s5, s2, 7"); a("s_cmp_lt_u32 s4, 8"); a("s_cselect_b32 s5, 0, s5"); a("s_cmp_lt_u32 s4, 17"); a("s_cselect_b32 s27, 0, 7")
        a("s_add_u32 s27, s27, s4"); a("s_add_u32 s27, s27, s5"); a("s_and_b32 s27, s27, 7"); a("s_cmp_lt_u32 s2, 208"); a("s_cselect_b32 s27, s27, 0")
    def D(n):
        if n < nd0: return d0
        if nb0 <= n < nb1: return d + 1
        if n < nramp: return d + (1 if frac > 0 and n % frac == frac - 1 else 0) - (1 if frac < 0 and n % -frac == 0 else 0)
        return min(dend, d + (n - nramp + 1) // step)
    def paced():
        n = issued[0]
        if n < 128:
            if n - D(n) >= 0: vm.wait(tok[n - D(n)])
            if nb0 <= n < nb1 and tok[n - d] > vm.done:
                a("s_cmp_eq_u32 s27, 3"); a("s_cbranch_scc1 L_hi%d" % n); a("s_waitcnt vmcnt(%d)" % (vm.n - tok[n - d])); a("L_hi%d:" % n)
            issue_next()
    def ahead(n):
        while issued[0] < 128 and issued[0] - D(issued[0]) < n: paced()
    while issued[0] < R:
        paced()
        if issued[0] == 24: T(1)
        if issued[0] == nfree:
            a("s_cmp_lt_u32 s2, 208"); a("s_cbranch_scc1 L_nofb"); a("s_barrier"); a("L_nofb:")
    T(2)
    a("s_barrier")
    T(3)
    a("ds_read_b128 %s, v%d offset:%d" % (vr(vQ0), vVo, L_Q))
    a("v_mov_b32 v4, 0"); a("ds_read_b32 v4, v4 offset:%d" % L_F)
    a("v_and_b32 v3, 8, v0"); a("v_cmp_eq_u32 vcc, 0, v3"); a("v_mov_b32 v%d, 0xff800000" % vM)
    a("s_mov_b32 s15, %s" % f32(128 ** -0.5))
    a("s_waitcnt lgkmcnt(0)")
    a("v_readfirstlane_b32 s100, v4")
    for i in range(4): a("v_cndmask_b32 v%d, v%d, 0, vcc" % (vQ1 + i, vQ0 + i))
    for i in range(4): a("v_cndmask_b32 v%d, 0, v%d, vcc" % (vQ0 + i, vQ0 + i))
    vD += [free.pop(), free.pop()]
    S = []
    def qk(c):
        Dr = vD[c % 4]
        vm.wait(tok[2 * c + 1])
        a(MF % (vr(Dr), vr(slot[2 * c]), vr(vQ0), "0")); a(MF % (vr(Dr), vr(slot[2 * c + 1]), vr(vQ1), vr(Dr)))
        free.extend([slot[2 * c], slot[2 * c + 1]])
    def extract(c):
        if c % 4 == 0: S.extend(range(free[-1], free[-1] + 4)); free.pop()
        x, y, DA, DB = S[c], S[c + 1], vD[c % 4], vD[(c + 1) % 4]
        for i in range(4):
            for s_, Dr in ((x, DA), (y, DB)):
                if i == 0: a("v_mov_b32_dpp v%d, v%d quad_perm:[0,0,0,0] %s" % (s_, Dr, DPP))
                else: a("v_add_f32_dpp v%d, v%d, v%d quad_perm:[%d,%d,%d,%d] %s" % (s_, Dr + i, s_, i, i, i, i, DPP))
        for rep in range(2):
            a("v_cvt_pk_bf16_f32 v3, v%d, v%d" % (x, y))
            a("v_lshlrev_b32 v%d, 16, v3" % x); a("v_and_b32 v%d, 0xffff0000, v3" % y)
            if rep == 0: a("v_mul_f32 v%d, s15, v%d" % (x, x)); a("v_mul_f32 v%d, s15, v%d" % (y, y))
        a("v_max3_f32 v%d, v%d, v%d, v%d" % (vM, vM, x, y))
    for c in range(0, 32, 2):
        ahead(2 * c + 3)
        qk(c); qk(c + 1)
        for _ in range(4 // kcatch): paced()
        if c >= 2: extract(c - 2)
    extract(30)
    free.extend(vD[2:])
    T(4)
    paced()
    a("s_barrier")
    allreduce(a, "v_max_f32", vM, 3, [8, 16, 32])
    a("s_mov_b32 s15, %s" % f32(L2E)); a("v_mul_f32 v%d, s15, v%d" % (vM, vM)); a("v_mov_b32 v%d, 0" % vL); a("v_mov_b32 v4, 0")
    for c in range(0, 32, 4):
        for i in range(4): a("v_fma_f32 v%d, v%d, s15, -v%d" % (S[c + i], S[c + i], vM))
        for i in range(4): a("v_exp_f32 v%d, v%d" % (S[c + i], S[c + i]))
        for i in range(4): a("v_add_f32 v%d, v%d, v%d" % ((vL, 4)[i % 2], (vL, 4)[i % 2], S[c + i]))
        for i in range(4): a("v_cvt_pk_bf16_f32 v%d, v%d, v%d" % (S[c + i], S[c + i], S[c + i]))
        if c % 8 == 4: paced()
    a("v_add_f32 v%d, v%d, v4" % (vL, vL))
    allreduce(a, "v_add_f32", vL, 3, [8, 16, 32])
    a("v_min_u32 v10, -2, v%d" % vM); a("v_min_u32 v11, -2, v%d" % vL)
    a("v_lshlrev_b32 v9, 1, v0"); a("v_and_b32 v9, 0x78, v9")
    a("s_lshl_b32 s73, s6, 7"); a("s_add_u32 s73, s73, %d" % WS_STAT)
    a("s_lshl_b32 s4, s7, 2"); a("s_add_u32 s4, s4, s3"); a("s_lshl_b32 s4, s4, 4"); a("s_add_u32 s4, s4, s73")
    a("s_mov_b64 exec, 0x11")
    store2("buffer_store_dwordx2 v[10:11], v9, %s, s4 offen" % sWS, "s100"); vm.n += 1
    a("s_mov_b64 exec, -1")
    vB = vD[:2]
    def prepB(n):
        c, t = divmod(n - 64, 2)
        for r in range(4):
            if (r >> 1) == t: a("v_and_b32 v%d, v%d, v%d" % (vB[n % 2] + r, S[c], vMask + r))
            else: a("v_and_b32_dpp v%d, v%d, v%d row_ror:8 %s" % (vB[n % 2] + r, S[c], vMask + r, DPP))
    def stat_valid(): a("v_max_u32 v3, v10, v11"); a("v_cmp_ne_u32 vcc, -1, v3")
    prepB(64)
    tstat = None
    ldS = "buffer_load_dwordx2 v[10:11], v9, %s, s73 offen sc1" % sWS
    for n in range(64, 128):
        ahead(n)
        if tstat is None and issued[0] >= stat_at: tstat = vm.issue(ldS)
        vm.wait(tok[n])
        a(MF % (vr(vAcc), vr(slot[n]), vr(vB[n % 2]), "0" if n == 64 else vr(vAcc)))
        free.append(slot[n])
        if n % 2 == 1 and issued[0] < 128 and issued[0] - D(issued[0]) > n: paced()
        if n < 127: prepB(n + 1)
        if tstat and tstat > 0 and vm.done >= tstat:
            stat_valid(); a("s_cmp_eq_u64 vcc, exec"); a("s_cbranch_scc1 L_stat_ok")
            def body(): a(ldS); a("s_waitcnt vmcnt(0)"); stat_valid()
            spin(body, "L_stat")
            a("v_mov_b32 v%d, v10" % vF); allreduce(a, "v_max_f32", vF, 3, [8, 16, 32])
            a("v_sub_f32 v10, v10, v%d" % vF); a("v_sub_f32 v%d, v%d, v%d" % (vF, vM, vF))
            a("v_exp_f32 v10, v10"); a("v_exp_f32 v%d, v%d" % (vF, vF)); a("v_mul_f32 v10, v10, v11")
            paced()
            allreduce(a, "v_add_f32", 10, 3, [8, 16, 32])
            a("v_rcp_f32 v10, v10"); a("v_mul_f32 v%d, v%d, v10" % (vF, vF))
            a("v_bfe_u32 v3, v0, 2, 1"); a("v_lshlrev_b32 v3, 9, v3"); a("v_lshrrev_b32 v4, 4, v0"); a("v_lshl_or_b32 v3, v4, 7, v3")
            a("v_bfe_u32 v4, v0, 3, 1"); a("v_lshl_or_b32 v3, v4, 4, v3"); a("v_and_b32 v4, 3, v0"); a("v_lshl_or_b32 v9, v4, 2, v3")
            a("s_lshl_b32 s4, s3, 10"); a("s_add_u32 s4, s4, %d" % L_OP); a("v_add_u32 v9, s4, v9")
            a("s_lshl_b32 s4, s3, 8"); a("v_lshlrev_b32 v11, 2, v0"); a("v_lshl_add_u32 v10, v0, 3, s4")
            tstat = -1
    assert tstat == -1
    T(6)
    for i in range(4): a("v_mul_f32 v%d, v%d, v%d" % (vAcc + i, vAcc + i, vF))
    a("ds_write2_b32 v9, v%d, v%d offset0:0 offset1:8" % (vAcc, vAcc + 1))
    a("ds_write2_b32 v9, v%d, v%d offset0:16 offset1:24" % (vAcc + 2, vAcc + 3))
    a("s_waitcnt lgkmcnt(0)"); a("s_barrier")
    rr = [16, 18, 20, 22]
    a("s_mov_b32 exec_hi, 0")
    for w in range(4): a("ds_read_b64 %s, v10 offset:%d" % (vr(rr[w], 2), L_OP + 1024 * w))
    a("s_waitcnt lgkmcnt(2)"); a("v_pk_add_f32 v[16:17], v[16:17], v[18:19]")
    a("s_waitcnt lgkmcnt(0)"); a("v_pk_add_f32 v[20:21], v[20:21], v[22:23]"); a("v_pk_add_f32 v[16:17], v[16:17], v[20:21]")
    a("v_cvt_pk_bf16_f32 v3, v16, v17"); a("v_min_u32 v3, -2, v3")
    a("buffer_store_dword v3, v11, %s, s26 offen sc1" % sWS)
    T(5); T.flush()
    a("s_endpgm")

    a("L_help:")
    vLin, vWo = 1, 2
    a("v_lshlrev_b32 v%d, 4, v0" % vLin)
    a("s_mov_b32 s12, 0x05040100"); a("s_mov_b32 s13, 0x07060302")
    a("s_cmp_lg_u32 s3, 4"); a("s_cbranch_scc1 L_h567")
    vm = VM(a); vm.n = 1 if pf == 1 else 0
    vXN, vAc, vTp, vRing, w1blk = 8, 44, 244, 116, 4
    a("s_lshr_b32 s101, s2, 3"); a("s_and_b32 s4, s2, 7")
    a("s_cmp_lt_u32 s101, 8"); a("s_movk_i32 s14, 8192"); a("s_cselect_b32 s14, s14, 9216"); a("s_mov_b32 s58, 4718592"); a("s_cselect_b32 s58, s58, 5308416")
    a("s_cselect_b32 s5, 8, 9"); a("s_cselect_b32 s15, 0, 8"); a("s_mul_i32 s4, s4, s5")
    a("s_cmp_lt_u32 s101, 17"); a("s_cselect_b32 s15, s15, 17"); a("s_sub_u32 s15, s101, s15"); a("s_add_u32 s74, s15, s4"); a("s_lshl_b32 s15, s74, 7")
    if x1 & 2:
        a("s_and_b32 s11, s2, 7"); a("s_mul_i32 s11, s11, 26"); a("s_add_u32 s11, s11, s101")
        a("s_cmp_lt_u32 s11, 64"); a("s_movk_i32 s14, 8192"); a("s_cselect_b32 s14, s14, 9216"); a("s_mov_b32 s58, 4718592"); a("s_cselect_b32 s58, s58, 5308416"); a("s_cselect_b32 s15, 0, 64")
        a("s_cmp_lt_u32 s11, 136"); a("s_cselect_b32 s15, s15, 136"); a("s_sub_u32 s15, s11, s15"); a("s_lshl_b32 s15, s15, 7"); a("s_mov_b32 s10, s11")
    a("v_lshrrev_b32 v3, 3, v0"); a("v_lshlrev_b32 v3, 3, v3"); a("v_mul_u32_u24 v3, s14, v3"); a("v_and_b32 v2, 7, v0"); a("v_lshl_add_u32 v%d, v2, 4, v3" % vWo)
    actaddr(3, 4, 1152)
    a("s_mul_i32 s75, s14, 57"); a("s_mov_b32 s59, 0x20000")
    a("s_waitcnt lgkmcnt(0)")
    srd(a, 52, 38, "0x40000000"); srd(a, 64, 36, 256)
    a("s_cmp_ge_u32 s2, 208"); a("s_cbranch_scc1 L_nol1")
    a("s_cmp_lt_u32 s10, 136" if x1 & 2 else "s_cmp_lt_u32 s101, 17"); a("s_cselect_b32 s56, s28, s30"); a("s_cselect_b32 s57, s29, s31")
    a("s_cmp_lt_u32 s10, 64" if x1 & 2 else "s_cmp_lt_u32 s101, 8"); a("s_cselect_b32 s56, s22, s56"); a("s_cselect_b32 s57, s23, s57")
    srd(a, 48, 16, 9216)
    if x1 & 8:
        srd(a, 48, 18, "0x10000000"); a("s_lshl_b32 s4, s2, 14")
    def xloads():
        for i in range(9): t_ = vm.issue("buffer_load_dwordx4 %s, v3, %s, %s offen offset:%d" % (vr(vXN + 4 * i), sX, "s4" if x1 & 8 else "0", 128 * i))
        return t_
    if not xlate: tx = xloads()
    w1 = []
    def issue_w1():
        blk, j = divmod(len(w1), 8)
        w1.append(vm.issue("buffer_load_dwordx4 %s, v%d, %s, s15 offen nt" % (vr(vRing + 32 * (blk % w1blk) + 4 * j), vWo, sW1)))
        a("s_add_u32 s15, s15, %s" % ("s75" if j == 7 else "s14"))
    while len(w1) < burst: issue_w1()
    if xlate:
        if xlate > 1: vm.wait(w1[0])
        tx = xloads()
    def paced1(blk):
        if len(w1) < 72 and len(w1) < 8 * (blk + w1blk):
            if len(w1) >= da: vm.wait(w1[len(w1) - da])
            issue_w1()
    ln = Asm(); xf = 44
    def unpack_all():
        for i in range(36): ln("v_lshlrev_b32 v%d, 16, v%d" % (xf + 2 * i, vXN + i)); ln("v_and_b32 v%d, 0xffff0000, v%d" % (xf + 2 * i + 1, vXN + i))
    def pack_all():
        for i in range(36): ln("v_cvt_pk_bf16_f32 v%d, v%d, v%d" % (vXN + i, xf + 2 * i, xf + 2 * i + 1))
    for i in range(4): ln("v_mov_b32 v%d, 0x3f803f80" % (244 + i))
    for i in range(9): ln(MF % ("v[248:251]", "v[244:247]", vr(vXN + 4 * i), "0" if i == 0 else "v[248:251]"))
    unpack_all()
    allreduce(ln, "v_add_f32", 248, 249, [0])
    ln("v_mul_f32 v248, %s, v248" % f32(1 / 576)); ln("v_mov_b32 v4, v248"); round_bf16(ln, 4)
    ln("v_sub_f32 v248, v248, v4"); ln("v_sub_f32 v4, 0, v4"); ln("v_mov_b32 v5, v4")
    for i in range(36): ln("v_pk_add_f32 %s, %s, v[4:5]" % (vr(xf + 2 * i, 2), vr(xf + 2 * i, 2)))
    for i in range(36):
        acc = vr(244 + 2 * (i % 2), 2); x2 = vr(xf + 2 * i, 2)
        ln("v_pk_mul_f32 %s, %s, %s" % (acc, x2, x2) if i < 2 else "v_pk_fma_f32 %s, %s, %s, %s" % (acc, x2, x2, acc))
    ln("v_pk_add_f32 v[244:245], v[244:245], v[246:247]"); ln("v_add_f32 v4, v244, v245")
    allreduce(ln, "v_add_f32", 4, 5, [0, 16, 32])
    ln("v_mul_f32 v4, %s, v4" % f32(1 / 576)); ln("v_fma_f32 v4, -v248, v248, v4"); ln("v_max_f32 v4, 0, v4"); round_bf16(ln, 4)
    ln("v_add_f32 v4, %s, v4" % f32(1e-5)); round_bf16(ln, 4)
    ln("v_sqrt_f32 v4, v4"); round_bf16(ln, 4); ln("v_rcp_f32 v4, v4")
    pack_all(); ln("v_mov_b32 v5, v4"); unpack_all()
    for i in range(36): ln("v_pk_mul_f32 %s, %s, v[4:5]" % (vr(xf + 2 * i, 2), vr(xf + 2 * i, 2)))
    pack_all()
    while xlate > 1 and w1[len(w1) - da] < tx: paced1(0)
    vm.wait(tx)
    for k, ins in enumerate(ln.ins):
        a(ins.text)
        if k % lnstep == lnstep - 1: paced1(0)
    T(1)
    def flagaddr(): a("v_and_b32 v253, 7, v0"); a("v_and_b32 v254, 24, v0"); a("v_lshl_or_b32 v253, v254, 1, v253"); a("v_lshlrev_b32 v253, 2, v253")
    ldF = "buffer_load_dword v252, v253, %s, 0 offen sc1" % sDBG
    for blk in range(9):
        while len(w1) < min(72, 8 * blk + 7 + da): paced1(blk)
        if blk == flagblk: flagaddr(); tflag = vm.issue(ldF)
        vm.wait(w1[8 * blk + 7])
        block_mm(vRing + 32 * (blk % w1blk), vTp, vAc, vXN + 4 * blk, blk == 0, lambda: paced1(blk))
    T(2)
    block_fold(vTp, vAc)
    for q in range(4): a("v_cvt_pk_bf16_f32 v%d, v%d, v%d" % (12 + q, vTp + 2 * q, vTp + 2 * q + 1))
    for q in range(4): a("v_min_u32 v%d, -2, v%d" % (12 + q, 12 + q))
    vm.wait(tflag)
    a("s_branch L_l1done")
    a("L_nol1:")
    a("s_barrier")
    flagaddr(); a("v_mov_b32 v252, 0")
    a("L_l1done:")
    T(10)
    roles()
    a("s_mov_b32 s5, 0x88888888")
    def fvalid(): a("v_and_b32 v8, s5, v252"); a("v_cmp_eq_u32 vcc, s5, v8")
    if x1 & 64: a("s_branch L_flags_ok")
    fvalid(); a("s_cmp_eq_u64 vcc, exec"); a("s_cbranch_scc1 L_flags_ok")
    def body(): a(ldF); a("s_waitcnt vmcnt(0)"); fvalid()
    spin(body, "L_flags")
    a("v_readfirstlane_b32 s4, v252"); a("v_cmp_eq_u32 vcc, s4, v252"); a("s_cmp_eq_u64 vcc, exec"); a("s_cselect_b32 s100, %d, 0" % loc)
    a("s_cmp_lg_u32 s100, 0"); a("s_cbranch_scc1 L_mode_ok")
    for i in range(4): a("v_mov_b32 v%d, -1" % (16 + i))
    clears("sc1", 16, vLin, 20)
    a("v_mov_b32 v8, 1"); a("v_mov_b32 v9, 36"); a("s_waitcnt vmcnt(0)"); a("s_mov_b64 exec, 1")
    a("buffer_atomic_add v8, v9, %s, 0 offen sc1" % sDBG)
    def body(): a("buffer_load_dword v8, v9, %s, 0 offen sc1" % sDBG); a("s_waitcnt vmcnt(0)"); a("v_cmp_le_u32 vcc, 0x100, v8")
    spin(body, "L_far")
    a("s_mov_b64 exec, -1")
    a("L_mode_ok:")
    T(4)
    l1slot("s72")
    a("s_cmp_ge_u32 s2, 208"); a("s_cbranch_scc1 L_nol1st")
    a("s_sub_u32 s4, s101, 8"); a("s_cmp_lt_u32 s4, 9"); a("s_cbranch_scc1 L_nol1st")
    store2("buffer_store_dwordx4 v[12:15], v%d, %s, s72 offen" % (vLin, sWS), "s100")
    a("L_nol1st:")
    a("v_mov_b32 v8, s100"); a("v_mov_b32 v9, 0"); a("ds_write_b32 v9, v8 offset:%d" % L_F)
    a("v_bfe_u32 v3, v0, 2, 1"); a("v_lshlrev_b32 v3, 11, v3"); a("v_lshrrev_b32 v4, 5, v0"); a("v_lshl_or_b32 v3, v4, 10, v3")
    a("v_bfe_u32 v4, v0, 4, 1"); a("v_lshl_or_b32 v3, v4, 6, v3"); a("v_and_b32 v4, 3, v0"); a("v_lshl_or_b32 v3, v4, 4, v3")
    a("s_and_b32 s4, s2, 7"); a("s_lshl_b32 s4, s4, 15"); a("s_and_b32 s5, s6, 1"); a("s_lshl_b32 s5, s5, 12"); a("s_add_u32 s4, s4, s5")
    a("s_lshr_b32 s5, s6, 4"); a("s_lshl_b32 s5, s5, 7"); a("s_add_u32 s4, s4, s5")
    def poll4(r, va, so, label):
        def body():
            a("buffer_load_dwordx4 %s, v%d, %s, %s offen sc1" % (vr(r), va, sWS, so)); a("s_waitcnt vmcnt(0)")
            a("v_max3_u32 v8, v%d, v%d, v%d" % (r, r + 1, r + 2)); a("v_max_u32 v8, v8, v%d" % (r + 3)); a("v_cmp_ne_u32 vcc, -1, v8")
        spin(body, label)
    poll4(4, 3, "s4", "L_qpoll")
    T(11)
    a("ds_write_b128 v%d, v[4:7] offset:%d" % (vLin, L_Q))
    a("s_waitcnt lgkmcnt(0)"); a("s_barrier")
    T(5)
    a("s_sub_u32 s4, s101, 8"); a("s_cmp_ge_u32 s4, 9"); a("s_cbranch_scc1 L_noh")
    a("s_add_u32 s4, s72, %d" % (9 * 1024))
    poll4(16, vLin, "s4", "L_upoll")
    a("s_mov_b32 s4, %s" % f32(0.044715)); a("s_mov_b32 s5, %s" % f32(-2 * (2 / 3.141592653589793) ** 0.5 * L2E))
    g, e = list(range(24, 32)), list(range(32, 40))
    def unpack(dst, src):
        for q in range(4): a("v_lshlrev_b32 v%d, 16, v%d" % (dst[2 * q], src + q)); a("v_and_b32 v%d, 0xffff0000, v%d" % (dst[2 * q + 1], src + q))
    def pack(dst, src):
        for q in range(4): a("v_cvt_pk_bf16_f32 v%d, v%d, v%d" % (dst + q, src[2 * q], src[2 * q + 1]))
    unpack(g, 12)
    for i in range(8): a("v_mul_f32 v%d, v%d, v%d" % (e[i], g[i], g[i]))
    for i in range(8): a("v_fma_f32 v%d, v%d, s4, 1.0" % (e[i], e[i]))
    for i in range(8): a("v_mul_f32 v%d, v%d, v%d" % (e[i], e[i], g[i]))
    for i in range(8): a("v_mul_f32 v%d, s5, v%d" % (e[i], e[i]))
    for i in range(8): a("v_exp_f32 v%d, v%d" % (e[i], e[i]))
    for i in range(8): a("v_add_f32 v%d, 1.0, v%d" % (e[i], e[i]))
    for i in range(8): a("v_rcp_f32 v%d, v%d" % (e[i], e[i]))
    for i in range(8): a("v_mul_f32 v%d, v%d, v%d" % (g[i], g[i], e[i]))
    pack(12, g); unpack(g, 12); unpack(e, 16)
    for i in range(8): a("v_mul_f32 v%d, v%d, v%d" % (g[i], g[i], e[i]))
    pack(12, g)
    a("s_lshl_b32 s4, s74, 10"); a("s_add_u32 s4, s4, %d" % WS_H)
    a("buffer_store_dwordx4 v[12:15], v%d, %s, s4 offen sc1" % (vLin, sWS))
    a("v_mov_b32 v8, 1"); a("v_mov_b32 v9, 32"); a("s_waitcnt vmcnt(0)"); a("s_mov_b64 exec, 1")
    if not x1 & 4:
        if sat: a("s_mov_b32 s4, 1"); a("s_atomic_add s4, s[36:37], 32"); a("s_waitcnt lgkmcnt(0)")
        else: a("buffer_atomic_add v8, v9, %s, 0 offen sc1" % sDBG)
    a("s_mov_b64 exec, -1")
    a("L_noh:")
    T(6)
    a("s_cmp_ge_u32 s8, 28"); a("s_cbranch_scc1 L_hdone")
    a("s_branch L_l2")

    a("L_h567:")
    if pf == 2:
        a("s_lshr_b32 s8, s2, 3"); a("s_mul_i32 s8, s8, 3"); a("s_add_u32 s8, s8, s3"); a("s_sub_u32 s8, s8, 5"); a("s_lshl_b32 s8, s8, 7")
        a("s_min_u32 s9, s8, L_codeend-L_pc-4"); a("s_load_dword s94, s[96:97], s9")
        a("s_add_u32 s8, s8, %d" % (96 * 128)); a("s_min_u32 s9, s8, L_codeend-L_pc-4"); a("s_load_dword s95, s[96:97], s9")
    roles()
    a("s_waitcnt lgkmcnt(0)")
    srd(a, 52, 38, "0x40000000"); srd(a, 64, 36, 256)
    if xlate:
        a("s_lshr_b32 s4, s2, 3"); a("s_mul_i32 s4, s4, 3"); a("s_add_u32 s4, s4, s3"); a("s_sub_u32 s4, s4, 5"); a("s_min_u32 s4, s4, 71"); a("s_lshl_b32 s4, s4, 7")
        a("s_load_dword s95, s[16:17], s4")
    a("s_cmp_lg_u32 s3, 5"); a("s_cbranch_scc1 L_h67")
    for i in range(4): a("v_mov_b32 v%d, -1" % (4 + i))
    oslot("s74"); a("v_lshlrev_b32 v3, 3, v0")
    if not noclear & 2: a("buffer_store_dwordx2 v[4:5], v3, %s, s74 offen sc1" % sWS)
    if not noclear & 1: clears(cf, 4, vLin, 8)
    a("s_getreg_b32 s5, hwreg(HW_REG_XCC_ID, 0, 3)"); a("s_or_b32 s5, s5, 8"); a("s_and_b32 s4, s2, 7"); a("s_lshl_b32 s4, s4, 2"); a("s_lshl_b32 s5, s5, s4")
    a("v_mov_b32 v8, s5"); a("v_mov_b32 v9, 0"); a("s_bfe_u32 s4, s2, 0x30003"); a("s_lshl_b32 s4, s4, 2"); a("s_and_b32 s10, s2, 192"); a("s_add_u32 s4, s4, s10")
    a("s_waitcnt vmcnt(0)"); a("s_mov_b64 exec, 1")
    if not x1 & 64: a("s_atomic_or s5, s[36:37], s4\ns_waitcnt lgkmcnt(0)" if sat else "buffer_atomic_or v8, v9, %s, s4 offen sc1" % sDBG)
    a("s_mov_b64 exec, -1")
    T(3)
    a("L_h67:")
    a("s_cmp_ge_u32 s8, 28"); a("s_cbranch_scc1 L_hdone")
    a("s_cmp_eq_u32 s3, 7"); a("s_cselect_b32 s4, s8, 0"); a("s_cmp_ge_u32 s4, 16"); a("s_cbranch_scc1 L_hdone")
    a("s_cmp_lt_u32 s2, 208"); a("s_cbranch_scc1 L_nofb2"); a("s_barrier"); a("L_nofb2:")
    a("s_barrier")
    a("v_mov_b32 v4, 0"); a("ds_read_b32 v4, v4 offset:%d" % L_F); a("s_waitcnt lgkmcnt(0)"); a("v_readfirstlane_b32 s100, v4")

    a("L_l2:")
    a("s_sub_u32 s101, s3, 4")
    a("s_mul_i32 s73, s9, %d" % (8 * 7168)); a("s_lshl_b32 s5, s8, 8"); a("s_add_u32 s73, s73, s5"); a("s_add_u32 s73, s73, %d" % WS_P)
    a("s_lshl_b32 s4, s101, 11"); a("v_add_u32 v5, s4, v%d" % vLin)
    a("s_cmp_ge_u32 s8, 16"); a("s_cbranch_scc1 L_down")
    def publish(n, vE):
        for w in range(n): a("ds_read_b128 %s, v6 offset:%d" % (vr(vE[w]), L_LP + 2048 * w))
        a("s_waitcnt lgkmcnt(%d)" % (n - 2))
        for i in (0, 2): a("v_pk_add_f32 %s, %s, %s" % (vr(vE[0] + i, 2), vr(vE[0] + i, 2), vr(vE[1] + i, 2)))
        a("s_waitcnt lgkmcnt(0)")
        if n == 4:
            for i in (0, 2): a("v_pk_add_f32 %s, %s, %s" % (vr(vE[2] + i, 2), vr(vE[2] + i, 2), vr(vE[3] + i, 2)))
        for i in (0, 2): a("v_pk_add_f32 %s, %s, %s" % (vr(vE[0] + i, 2), vr(vE[0] + i, 2), vr(vE[2] + i, 2)))
        for i in range(4): a("v_min_u32 v%d, -2, v%d" % (vE[0] + i, vE[0] + i))
        store2("buffer_store_dwordx4 %s, v7, %s, s73 offen" % (vr(vE[0]), sWS), "s100")
    vm = VM(a)
    vA, vE, vW, vP, A4, Y4 = [16, 20], [24, 28, 32, 36], 40, 72, 104, 108
    srd(a, 60, 24, 4718592); srd(a, 48, 16, 9216); srd(a, 68, 34, 9216)
    a("v_lshrrev_b32 v3, 4, v0"); a("v_mul_u32_u24 v2, %d, v3" % (8 * 1152)); a("v_and_b32 v4, 15, v0"); a("v_lshl_add_u32 v2, v4, 3, v2")
    a("v_mul_u32_u24 v7, %d, v3" % (2 * 7168)); a("v_lshl_add_u32 v7, v4, 4, v7")
    a("v_lshlrev_b32 v9, 9, v4"); a("v_lshl_or_b32 v9, v3, 4, v9")
    a("s_lshl_b32 s72, s8, 2"); a("s_add_u32 s72, s72, s101"); a("s_mul_i32 s72, s72, %d" % (64 * 1152)); a("s_lshl_b32 s4, s9, 7"); a("s_add_u32 s72, s72, s4")
    a("s_lshl_b32 s14, s8, 13"); a("s_lshl_b32 s5, s101, 7"); a("s_add_u32 s14, s14, s5"); a("s_add_u32 s14, s14, %d" % WS_O)
    a("s_and_b32 s15, s101, 1"); a("s_mul_i32 s4, s15, 7168"); a("s_add_u32 s73, s73, s4"); a("s_lshl_b32 s4, s15, 10"); a("v_add_u32 v6, s4, v%d" % vLin)
    a("s_lshr_b32 s4, s8, 1"); a("s_and_b32 s5, s8, 1"); a("s_lshl_b32 s5, s5, 1"); a("s_add_u32 s5, s5, s15")
    a("s_lshl_b32 s74, s9, 3"); a("s_add_u32 s74, s74, s4"); a("s_mul_i32 s74, s74, 7168"); a("s_lshl_b32 s15, s5, 6"); a("s_add_u32 s74, s74, s15"); a("s_add_u32 s74, s74, %d" % WS_P)
    a("s_mul_i32 s75, s4, 1152"); a("s_lshl_b32 s15, s9, 7"); a("s_add_u32 s75, s75, s15"); a("s_lshl_b32 s15, s5, 5"); a("s_add_u32 s75, s75, s15")
    a("s_add_u32 s15, s74, 4096")
    a("v_and_b32 v4, 3, v0"); a("v_lshlrev_b32 v11, 3, v4"); a("v_lshl_or_b32 v11, v3, 1, v11")
    a("v_lshrrev_b32 v3, 2, v0"); a("v_lshlrev_b32 v3, 8, v3"); a("v_lshl_or_b32 v10, v4, 4, v3")
    a("buffer_load_ushort v12, v11, %s, s75 offen" % sX)
    for i in range(4): a("v_mov_b32 v%d, 0" % (Y4 + i))
    a("s_mov_b32 s30, -1"); a("s_mov_b32 s31, 0xffff"); a("s_mov_b64 s[28:29], -1")
    a("s_barrier")
    if lp == 1:
        k_ = lab("nolp"); a("s_cmp_lg_u32 s101, 1"); a("s_cbranch_scc1 " + k_)
        for i in range(4): a("v_mov_b32 v%d, -1" % (200 + i))
        clears("", 200, vLin, 204, 4); a("s_waitcnt vmcnt(0)"); a(k_ + ":")
    if sp: a("s_barrier")
    if lp == 2:
        k_ = lab("nolp"); a("s_cmp_lg_u32 s101, 1"); a("s_cbranch_scc1 " + k_)
        for i in range(4): a("v_mov_b32 v%d, -1" % (200 + i))
        clears("", 200, vLin, 204, 4); a("s_waitcnt vmcnt(0)"); a(k_ + ":")
    a("s_waitcnt vmcnt(0)"); a("v_lshlrev_b32 v12, 16, v12")
    a("s_barrier")
    w2 = []
    for k in range(16):
        kb, j = divmod(k, 8)
        if j % 4 == 0: a("s_add_u32 s5, s72, %d" % ((32 * kb + j) * 1152))
        w2.append(vm.issue("buffer_load_dwordx2 %s, v2, %s, s5 offen offset:%d nt" % (vr(vW + 2 * k, 2), sW2, 1152 * (j % 4))))
    a("s_barrier")
    ldO = ["buffer_load_dwordx4 %s, v9, %s, s14 offen offset:%d sc1" % (vr(vA[kb]), sWS, 64 * kb) for kb in range(2)]
    ldA = "buffer_load_dwordx4 %s, v10, %s, s74 offen sc1" % (vr(A4), sWS)
    ldY = "buffer_load_dwordx4 %s, v10, %s, s15 offen sc1" % (vr(Y4), sWS)
    for kb in range(2):
        vm.wait(w2[8 * kb + 7])
        for i in range(4):
            for q in range(4):
                a("v_perm_b32 v%d, v%d, v%d, s%d" % (vP + 16 * kb + 4 * i + q, vW + 2 * (8 * kb + 2 * q + 1) + i // 2, vW + 2 * (8 * kb + 2 * q) + i // 2, 12 + i % 2))
        if kb == 0:
            for t_ in ldO: vm.issue(t_)
    T(7)
    a("s_waitcnt vmcnt(0)")
    a("s_cmp_lt_u32 s101, 2"); a("s_cbranch_scc1 L_nopre")
    a(ldA); a("s_mov_b64 exec, s[30:31]"); a(ldY); a("s_mov_b64 exec, -1")
    a("L_nopre:")
    mpoll("L_opoll", [(28, ldO, list(range(16, 24)))], npo)
    T(8)
    for kb in range(2):
        for i in range(4): a(MF % (vr(vE[i]), vr(vA[kb]), vr(vP + 16 * kb + 4 * i), "0" if kb == 0 else vr(vE[i])))
    for x in range(2):
        for i in range(4): a("v_add_f32 v%d, v%d, v%d" % (vW + 4 * x + i, vE[i] + 2 * x, vE[i] + 2 * x + 1))
        a("ds_write_b128 v5, %s offset:%d" % (vr(vW + 4 * x), L_LP + 1024 * x))
    a("s_waitcnt lgkmcnt(0)"); a("s_barrier")
    a("s_cmp_ge_u32 s101, 2"); a("s_cbranch_scc1 L_final")
    publish(4, vE)
    a("s_branch L_hdone")
    a("L_final:")
    a("s_mov_b64 s[28:29], -1"); a("s_waitcnt vmcnt(0)")
    mpoll("L_ppoll", [(28, [ldA], list(range(A4, A4 + 4))), (30, [ldY], list(range(Y4, Y4 + 4)))], npa)
    for r in (A4, Y4): a("v_permlane32_swap_b32 v%d, v%d" % (r, r + 2)); a("v_permlane32_swap_b32 v%d, v%d" % (r + 1, r + 3))
    for r in (A4, Y4): a("v_add_f32 v%d, v%d, v%d" % (r, r, r + 2)); a("v_add_f32 v%d, v%d, v%d" % (r + 1, r + 1, r + 3))
    for r in (A4, Y4): a("v_permlane16_swap_b32 v%d, v%d" % (r, r + 1))
    for r in (A4, Y4): a("v_add_f32 v%d, v%d, v%d" % (r, r, r + 1))
    for k in (8, 4):
        for r in (A4, Y4): a("v_add_f32_dpp v%d, v%d, v%d row_ror:%d %s" % (r, r, r, k, DPP))
    a("v_cvt_pk_bf16_f32 v3, v%d, v%d" % (A4, Y4)); a("v_lshlrev_b32 v4, 16, v3"); a("v_and_b32 v3, 0xffff0000, v3")
    a("v_add_f32 v4, v12, v4"); round_bf16(a, 4); a("v_add_f32 v4, v4, v3"); a("v_cvt_pk_bf16_f32 v4, v4, v4")
    a("s_mov_b32 exec_lo, 0x000f000f"); a("s_mov_b32 exec_hi, 0x000f000f")
    a("buffer_store_short v4, v11, %s, s75 offen" % sOUT)
    a("s_branch L_hdone")

    a("L_down:")
    vm = VM(a)
    vH, vAc, vTp, vW = 16, 24, 56, 64
    srd(a, 60, 32, 5308416)
    a("s_cmp_lt_u32 s2, 224"); a("s_cselect_b32 s100, s100, 0")
    a("v_lshrrev_b32 v3, 3, v0"); a("v_mul_u32_u24 v2, %d, v3" % (8 * 1152)); a("v_and_b32 v4, 7, v0"); a("v_lshl_add_u32 v2, v4, 4, v2")
    a("s_sub_u32 s4, s8, 16"); a("s_mul_i32 s4, s4, 3"); a("s_add_u32 s4, s4, s101")
    a("s_mul_i32 s72, s4, %d" % (128 * 1152)); a("s_lshl_b32 s5, s9, 7"); a("s_add_u32 s72, s72, s5")
    a("s_lshl_b32 s14, s4, 11"); a("s_add_u32 s14, s14, %d" % WS_H)
    actaddr(9, 4, 128)
    a("v_lshrrev_b32 v3, 4, v0"); a("v_and_b32 v4, 15, v0"); a("v_mul_u32_u24 v7, 7168, v3"); a("v_lshl_add_u32 v7, v4, 4, v7")
    a("v_lshlrev_b32 v6, 7, v3"); a("v_bfe_u32 v3, v0, 1, 3"); a("v_lshl_or_b32 v6, v3, 4, v6"); a("v_and_b32 v3, 1, v0"); a("v_lshl_or_b32 v6, v3, 10, v6")
    a("s_lshl_b32 s4, s101, 9"); a("v_add_u32 v6, s4, v6"); a("s_mul_i32 s4, s101, %d" % (4 * 7168)); a("s_add_u32 s73, s73, s4")
    a("v_mov_b32 v10, 32")
    a("s_barrier")
    if lp == 1:
        k_ = lab("nolp"); a("s_cmp_lg_u32 s101, 1"); a("s_cbranch_scc1 " + k_)
        for i in range(4): a("v_mov_b32 v%d, -1" % (200 + i))
        clears("", 200, vLin, 204, 4); a("s_waitcnt vmcnt(0)"); a(k_ + ":")
    if sp: a("s_barrier")
    if lp == 2:
        k_ = lab("nolp"); a("s_cmp_lg_u32 s101, 1"); a("s_cbranch_scc1 " + k_)
        for i in range(4): a("v_mov_b32 v%d, -1" % (200 + i))
        clears("", 200, vLin, 204, 4); a("s_waitcnt vmcnt(0)"); a(k_ + ":")
    a("s_mov_b64 exec, 1")
    def body(): a("buffer_load_dword v8, v10, %s, 0 offen sc1" % sDBG); a("s_waitcnt vmcnt(0)"); a("v_cmp_le_u32 vcc, 72, v8")
    if not x1 & 4: spin(body, "L_hcnt")
    a("s_mov_b64 exec, -1")
    for b_ in range(2): vm.issue("buffer_load_dwordx4 %s, v9, %s, s14 offen offset:%d sc1" % (vr(vH + 4 * b_), sWS, 1024 * b_))
    a("s_barrier")
    w2 = []
    for k in range(16):
        b_, j = divmod(k, 8)
        if j % 4 == 0: a("s_add_u32 s5, s72, %d" % ((64 * b_ + j) * 1152))
        w2.append(vm.issue("buffer_load_dwordx4 %s, v2, %s, s5 offen offset:%d nt" % (vr(vW + 4 * k), sW2, 1152 * (j % 4))))
    a("s_barrier")
    for b_ in range(2):
        vm.wait(w2[8 * b_ + 7]); block_mm(vW + 32 * b_, vTp, vAc, vH + 4 * b_, b_ == 0)
    T(8)
    block_fold(vTp, vAc)
    for x in range(2): a("ds_write_b128 v5, %s offset:%d" % (vr(vTp + 4 * x), L_LP + 1024 * x))
    a("s_waitcnt lgkmcnt(0)"); a("s_barrier")
    a("s_cmp_ge_u32 s101, 2"); a("s_cbranch_scc1 L_hdone")
    publish(3, [24, 28, 32])
    a("L_hdone:")
    T(9); T.flush()
    a("L_end:")
    a("s_endpgm")
    a("L_codeend:")
    a.pad()
    head = open("parallel_sum__sliding_block_cached__geglu_ffn__decode.s.ref").read().split("; Override")[0]
    head += "; @launch grid=(256,1,1) block=(%d,1,1) lds=%d\n" % (64 * NW, LDS_BYTES)
    head += '.amdgcn_target "amdgcn-amd-amdhsa--gfx950"\n.text\n.globl %s\n.p2align 8\n.type %s,@function\n' % (KN, KN)
    tail = '.section .rodata,"a"\n.p2align 6\n.amdhsa_kernel %s\n  .amdhsa_next_free_vgpr 256\n  .amdhsa_next_free_sgpr 102\n  .amdhsa_accum_offset 256\n' % KN
    tail += "  .amdhsa_group_segment_fixed_size 0\n  .amdhsa_kernarg_size 96\n  .amdhsa_user_sgpr_count 2\n  .amdhsa_user_sgpr_kernarg_segment_ptr 1\n  .amdhsa_system_sgpr_workgroup_id_x 1\n.end_amdhsa_kernel\n"
    return head + a.text() + tail

RAW = None
def report(t, verbose):
    import numpy as np
    def st(name, x):
        x = x.reshape(x.shape[0], -1)
        print("   %-28s min %6.2f mean %6.2f max %6.2f" % (name, np.median(x.min(axis=1)), np.median(x.mean(axis=1)), np.median(x.max(axis=1))))
    s, x, h = t[:, :, :4], t[:, :, 4], t[:, :, 4:]
    ids = np.arange(256); X, J = ids & 7, ids >> 3
    WO = (ids < 128) | (X == 0); DN = ~WO & ((J - 28) * 7 + X - 1 < 24)
    for i, n in enumerate(["start", "slot 24", "ring full", "S1", "K done", "o sent", "V done"]): st("stream " + n, s[..., i])
    st("wo perms done", h[:, WO][..., 7]); st("wo o seen", h[:, WO][..., 8]); st("wo end", h[:, WO][:, :, :2, 9])
    st("down mm done", h[:, DN][:, :, :3, 8]); st("down end", h[:, DN][:, :, :2, 9])
    st("aux LN done", x[:, :208, 1]); st("aux L1 mm done", x[:, :208, 2]); st("clear flag sent", t[:, :, 5, 3])
    for i, n in [(10, "flag check start"), (4, "flags seen"), (11, "q seen"), (5, "S1"), (6, "h done")]: st("aux " + n, x[..., i])
    n = len(s); mx = lambda v: v.reshape(n, -1).max(axis=1)
    vmax, osent, oseen, wend, out = mx(s[..., 6]), mx(s[..., 5]), mx(h[:, WO][..., 8]), mx(h[:, WO][:, :, :2, 9]), mx(h[:, WO][:, :, 2:4, 9])
    print("   per-run means: Vmean %.2f Vmax %.2f | +osent %.2f +oseen %.2f +wend %.2f +out %.2f | tail %.2f end %.2f (median %.2f)" % (s[..., 6].mean(), vmax.mean(), (osent - vmax).mean(), (oseen - osent).mean(), (wend - oseen).mean(), (out - wend).mean(), (out - vmax).mean(), out.mean(), np.median(out)))
    lag = lambda i: (lambda v: v - v.mean(axis=1, keepdims=True))(s[..., i].max(axis=2))
    lv = lag(6)
    for nm, i in (("slot24", 1), ("S1", 3), ("Kdone", 4)):
        l = lag(i)
        print("   lag %s: std %.2f max %.2f | V lag std %.2f max %.2f" % (nm, l.std(), l.max(axis=1).mean(), lv.std(), lv.max(axis=1).mean()))
    sl = np.where(J < 8, J, np.where(J < 17, 9 * X + J - 8, 9 * X + J - 17)); S3 = (J < 26) & (sl % 8 == 3); FR = J >= 26
    for nm, m in (("slice3", S3), ("free", FR), ("wq", (J < 8) & ~S3), ("gate", (J >= 8) & (J < 17) & ~S3), ("up", (J >= 17) & (J < 26) & ~S3)):
        print("   class %-10s n=%3d lag slot24 %.2f S1 %.2f Kdone %.2f V %.2f | share of worst V %.2f" % (nm, m.sum(), lag(1)[:, m].mean(), lag(3)[:, m].mean(), lag(4)[:, m].mean(), lv[:, m].mean(), m[lv.argmax(axis=1)].mean()))
    XX = ids & 7; GB = (XX >= 2) & (XX <= 5)
    print("   class iod lag (B-A): " + " ".join("%s %.2f(|%.2f|)" % (nm, (lag(i)[:, GB].mean(axis=1) - lag(i)[:, ~GB].mean(axis=1)).mean(), np.abs(lag(i)[:, GB].mean(axis=1) - lag(i)[:, ~GB].mean(axis=1)).mean()) for nm, i in (("start", 0), ("slot24", 1), ("S1", 3), ("Kdone", 4), ("V", 6))))
    for nm, i in (("start", 0), ("slot24", 1), ("ring", 2), ("Kdone", 4), ("V", 6)): print("   class bywave", nm, s[:, :208, :, i].mean(axis=(0, 1)), "free", s[:, 208:, :, i].mean(axis=(0, 1)))
    print("   class helpers start", t[:, :, 4:, 0].mean(axis=(0, 1)), "by j slot24", lag(1).reshape(-1, 32, 8).mean(axis=(0, 2)))
    print("   class xcd V lag", np.array([lv[:, X == k].mean() for k in range(8)]), "start", np.array([lag(0)[:, X == k].mean() for k in range(8)]))

if __name__ == "__main__":
    kw = eval("dict(%s)" % (sys.argv[2] if len(sys.argv) > 2 else ""))
    open(sys.argv[1], "w").write(gen(**kw))
```

```python
import sys, struct
from asmlib import Asm, VM
KN = "parallel_sum__sliding_block_cached__geglu_ffn__decode_kernel"

def f32(x): return "0x%08x" % struct.unpack("<I", struct.pack("<f", x))[0]
def vr(b, n=4): return "v[%d:%d]" % (b, b + n - 1) if n > 1 else "v%d" % b
DPP = "row_mask:0xf bank_mask:0xf"
MF = "v_mfma_f32_16x16x32_bf16 %s, %s, %s, %s"

WS_PRG = 0x44000
WS_HNT = 0x60000
HSTR = 1280
WS_BCN = 0x68000
BSTR = 4352
WS_L1, WS_STAT, WS_H, WS_P, WS_O, WS_TS = 0, 0x40000, 0x48000, 0x80000, 0x100000, 0x200000
L_GO = 8
L_F, L_C, L_G, L_Q, L_OP, L_LP = 0, 4, 16384, 1024, 2048, 8192
LDS_BYTES = 17408
SPIN = 400000
L2E = 1.4426950408889634
NW = 8
TSN = [0, 3, 6, 9, 12, 15, 18, 21, 24, 36, 51]
TSW = [0, 11, 16, 22, 28, 33, 44, 55, 66, 71]
sK, sV, sX, sWS, sW1, sW2, sDBG, sOUT = ("s[%d:%d]" % (b, b + 3) for b in (40, 44, 48, 52, 56, 60, 64, 68))

def srd(a, base, ptr, nbytes):
    a("s_mov_b32 s%d, s%d" % (base, ptr)); a("s_mov_b32 s%d, s%d" % (base + 1, ptr + 1))
    a("s_mov_b32 s%d, %s" % (base + 2, nbytes)); a("s_mov_b32 s%d, 0x20000" % (base + 3))

class Stamps:
    def __init__(self, a, on): self.a, self.on = a, on
    def __call__(self, idx):
        if self.on: self.a("s_memrealtime s[%d:%d]" % (76 + 2 * idx, 77 + 2 * idx))
    def flush(self, n=12):
        if not self.on: return
        a = self.a
        a("s_waitcnt lgkmcnt(0)"); srd(a, 52, 38, "0x40000000")
        a("s_mul_i32 s4, s2, %d" % NW); a("s_add_u32 s4, s4, s3"); a("s_lshl_b32 s4, s4, 6"); a("s_add_u32 s4, s4, %d" % WS_TS)
        a("s_mov_b64 exec, 1"); a("v_mov_b32 v0, 0")
        for q in range(n // 4):
            for i in range(4): a("v_mov_b32 v%d, s%d" % (4 + 4 * q + i, 76 + 2 * (4 * q + i)))
            a("buffer_store_dwordx4 %s, v0, %s, s4 offen offset:%d" % (vr(4 + 4 * q), sWS, 16 * q))

def allreduce(a, op, v, t, steps):
    for s in steps:
        if s == 0: a("%s_dpp v%d, v%d, v%d quad_perm:[1,0,3,2] %s" % (op, v, v, v, DPP))
        elif s < 16: a("%s_dpp v%d, v%d, v%d row_ror:%d %s" % (op, v, v, v, s, DPP))
        else:
            a("v_mov_b32 v%d, v%d" % (t, v)); a("v_permlane%d_swap_b32 v%d, v%d" % (s, v, t)); a("%s v%d, v%d, v%d" % (op, v, v, t))

def round_bf16(a, v):
    a("v_cvt_pk_bf16_f32 v%d, v%d, v%d" % (v, v, v)); a("v_and_b32 v%d, 0xffff0000, v%d" % (v, v))

def gen(d=5, d0=3, nd0=24, dend=8, nramp=108, step=2, R=52, ts=0, kcatch=2, stat_at=100, nfree=32, da=11, burst=11,
        flagblk=7, lnstep=28, b0=3, loc=1, nb0=32, nb1=32, sv=128, npo=1, npa=1, thr=16, noclear=0, cf='', pfw=8, x1=0, xlate=0, pf=1, frac=0, sat=1, cm=7, lp=0, sp=0, nd1=0, fb=0, lv=(4, 5, 6, 7), th=(-1.5, 1.5, 4), pst=1, psm=2, bias=3, lead=3, fbend=116, hat=84, gb=0, gbias=3, fin=126, leadd=0, oearly=0, orep=1, prelate=0, bstr=1280, wx4=0, t1=0, t3=0, hint=0, hk=-1, hn=16, hw=3, lc=0, lcr=None, er=0, bex=0xffff, klin=0, wexp=0, xexp=0, dfree=0, nfr=40, nors=0):
    a = Asm(); T = Stamps(a, ts)
    uid = [0]
    def lab(p): uid[0] += 1; return "L_%s%d" % (p, uid[0])

    def spin(body, label):
        a("s_mov_b32 s11, %d" % SPIN)
        a(label + ":"); body()
        a("s_cmp_eq_u64 vcc, exec"); a("s_cbranch_scc1 %s_ok" % label)
        a("s_sub_u32 s11, s11, 1"); a("s_cmp_lg_u32 s11, 0"); a("s_cbranch_scc1 %s" % label)
        a(label + "_ok:")

    def mpoll(label, groups, npipe):
        nl = sum(len(g[1]) for g in groups)
        def issue():
            for m, loads, _ in groups:
                a("s_mov_b64 exec, s[%d:%d]" % (m, m + 1))
                for t in loads: a(t)
        def check():
            for m, _, regs in groups:
                if len(groups) > 1: a("s_mov_b64 exec, s[%d:%d]" % (m, m + 1))
                a("v_max3_u32 v3, v%d, v%d, v%d" % tuple(regs[:3]))
                rest = regs[3:]
                while len(rest) >= 2: a("v_max3_u32 v3, v3, v%d, v%d" % tuple(rest[:2])); rest = rest[2:]
                if rest: a("v_max_u32 v3, v3, v%d" % rest[0])
                a("v_cmp_eq_u32 s[%d:%d], -1, v3" % (m, m + 1))
            m0 = groups[0][0]
            a("s_or_b64 vcc, s[%d:%d], s[%d:%d]" % (m0, m0 + 1, groups[-1][0], groups[-1][0] + 1))
            a("s_cbranch_scc0 %s_ok" % label)
        a("s_mov_b32 s11, %d" % SPIN)
        check()
        a(label + ":"); issue(); a("s_waitcnt vmcnt(0)"); check()
        a("s_sub_u32 s11, s11, 1"); a("s_cmp_lg_u32 s11, 0"); a("s_cbranch_scc1 %s" % label)
        a(label + "_ok:")
        a("s_mov_b64 exec, -1")

    def store2(text, flag):
        f, e = lab("far"), lab("sent")
        a("s_cmp_eq_u32 %s, 0" % flag); a("s_cbranch_scc1 " + f); a(text); a("s_branch " + e); a(f + ":"); a(text + " sc1"); a(e + ":")

    def roles():
        e = lab("role")
        a("s_and_b32 s9, s2, 7"); a("s_lshr_b32 s8, s2, 3")
        a("s_cmp_lt_u32 s8, 16"); a("s_cbranch_scc1 " + e)
        a("s_sub_u32 s8, s8, 16"); a("s_cmp_eq_u32 s9, 0"); a("s_cselect_b32 s9, 8, s9"); a("s_cbranch_scc1 " + e)
        a("s_add_u32 s8, s8, 16"); a("s_cmp_lt_u32 s8, 28"); a("s_cbranch_scc1 " + e)
        a("s_mul_i32 s8, s8, 7"); a("s_add_u32 s8, s8, s9"); a("s_sub_u32 s8, s8, %d" % (28 * 7 + 1 - 16))
        a("s_mov_b32 s9, 0"); a("s_cmp_lt_u32 s8, 28"); a("s_cbranch_scc1 " + e)
        a("s_mov_b32 s9, 8"); a("s_sub_u32 s8, s8, 12")
        a(e + ":")

    def oslot(dst):
        a("s_and_b32 s4, s6, 15"); a("s_lshl_b32 s4, s4, 13"); a("s_lshr_b32 s5, s6, 4"); a("s_lshl_b32 s5, s5, 1"); a("s_add_u32 s5, s5, s7")
        a("s_lshl_b32 s5, s5, 9"); a("s_add_u32 s4, s4, s5"); a("s_add_u32 %s, s4, %d" % (dst, WS_O))

    def l1slot(dst):
        a("s_and_b32 %s, s2, 7" % dst); a("s_lshl_b32 %s, %s, 5" % (dst, dst)); a("s_lshr_b32 s4, s2, 3"); a("s_add_u32 %s, %s, s4" % (dst, dst)); a("s_lshl_b32 %s, %s, 10" % (dst, dst))

    def clears(fl, e, lin, t, cm=cm, part='all', rd=False):
        op = ("buffer_load_dword v%d" % (t + 2) if rd else "buffer_store_dwordx4 %s" % vr(e)) + ", v%d, %s, %s offen"
        l1slot("s5")
        if cm & 1:
            k0 = lab("nol")
            a("s_lshr_b32 s4, s2, 3"); a("s_lshl_b32 s4, 1, s4"); a("s_and_b32 s4, s4, 0x%x" % (0xff | (0x1ff << 17))); a("s_cbranch_scc0 " + k0)
            a(op % (lin, sWS, "s5") + " " + fl); a(k0 + ":")
        a("s_lshl_b32 s4, s6, 1"); a("s_add_u32 s4, s4, s7"); a("s_lshl_b32 s4, s4, 6"); a("s_add_u32 s4, s4, %d" % WS_STAT)
        if cm & 2: a("s_mov_b64 exec, 0xf"); a(op % (lin, sWS, "s4") + " " + fl); a("s_mov_b64 exec, -1")
        if not cm & 4: return
        k = lab("nop")
        a("s_cmp_ge_u32 s8, 28"); a("s_cbranch_scc1 " + k)
        a("v_lshrrev_b32 v%d, 4, v0" % t); a("v_mul_u32_u24 v%d, %d, v%d" % (t, 7168, t)); a("v_and_b32 v%d, 15, v0" % (t + 1)); a("v_lshl_add_u32 v%d, v%d, 4, v%d" % (t, t + 1, t))
        a("s_mul_i32 s4, s9, %d" % (8 * 7168)); a("s_lshl_b32 s5, s8, 8"); a("s_add_u32 s4, s4, s5"); a("s_add_u32 s4, s4, %d" % WS_P); a("s_add_u32 s5, s4, %d" % (4 * 7168))
        st = [op % (t, sWS, s_) for s_ in ("s4", "s5")]
        if 'sc1' not in fl:
            f = lab("rem")
            a("s_cmp_lt_u32 s2, 224"); a("s_cselect_b32 s10, 0, s8"); a("s_cmp_ge_u32 s10, 16"); a("s_cbranch_scc1 " + f)
            if part == 'local' and lcr is not None:
                for i_, s_ in enumerate(("s4", "s5")): a("buffer_load_dword v%d, v%d, %s, %s offen %s" % (208 + i_, t, sWS, s_, lcr))
                a("s_waitcnt vmcnt(0)")
            if part != 'remote':
                for x_ in st: a(x_ + ' ' + fl)
            a("s_branch " + k); a(f + ":")
        if not part.startswith('local'):
            for x_ in st: a(x_ + " sc1")
        a(k + ":")

    def block_mm(base, tp, acc, act, first, hook=None):
        for i in range(8):
            t = tp + 4 * (i % 2)
            for q in range(4): a("v_perm_b32 v%d, v%d, v%d, s%d" % (t + q, base + 4 * (2 * q + 1) + i // 2, base + 4 * (2 * q) + i // 2, 12 + i % 2))
            if i > 0: a(MF % (vr(acc + 4 * (i - 1)), vr(act), vr(tp + 4 * ((i - 1) % 2)), "0" if first else vr(acc + 4 * (i - 1))))
            if hook and i % 4 == 0: hook()
        a(MF % (vr(acc + 28), vr(act), vr(tp + 4), "0" if first else vr(acc + 28)))
    def block_fold(dst, acc):
        for i in range(8): a("v_add_f32_dpp v%d, v%d, v%d row_ror:8 row_mask:0xf bank_mask:0x3" % (dst + i, acc + 4 * i + 1, acc + 4 * i))
        for i in range(8): a("v_add_f32_dpp v%d, v%d, v%d row_ror:8 row_mask:0xf bank_mask:0xc" % (dst + i, acc + 4 * i + 2, acc + 4 * i + 3))
    def actaddr(dst, t, rowbytes):
        a("v_bfe_u32 v%d, v0, 1, 3" % dst); a("v_mul_u32_u24 v%d, %d, v%d" % (dst, rowbytes, dst)); a("v_lshrrev_b32 v%d, 4, v0" % t); a("v_lshl_add_u32 v%d, v%d, 5, v%d" % (dst, t, dst))
        a("v_and_b32 v%d, 1, v0" % t); a("v_lshl_add_u32 v%d, v%d, 4, v%d" % (dst, t, dst))

    def hint_addr(): a("s_and_b32 s23, s6, 15"); a("s_mul_i32 s23, s23, %d" % HSTR); a("s_add_u32 s23, s23, %d" % WS_HNT); a("s_mov_b32 s22, 1")
    def s2_helper():
        k_, p_ = lab("nohs"), lab("hsp")
        if hint and hk >= 0:
            a("s_cmp_lg_u32 s101, 1"); a("s_cbranch_scc1 " + k_); hint_addr(); a("v_mov_b32 v13, 0")
            def body(): a("ds_read_b128 v[200:203], v13 offset:%d" % L_G); a("s_waitcnt lgkmcnt(0)"); a("v_min3_u32 v200, v200, v201, v202"); a("v_min_u32 v200, v200, v203"); a("v_cmp_le_u32 vcc, 200, v200")
            spin(body, p_)
            a("s_atomic_add s22, s[38:39], s23"); a(k_ + ":")
        if hint and hk == -2: hint_addr()
        a("s_barrier")
        if hint and hk == -2:
            a("s_cmp_lg_u32 s101, 1"); a("s_cbranch_scc1 " + k_); a("s_atomic_add s22, s[38:39], s23"); a(k_ + ":")

    def late_clear():
        if not lc: return
        k_ = lab("nolc")
        a("s_cmp_lg_u32 s101, 2"); a("s_cbranch_scc1 " + k_); a("s_cmp_eq_u32 s100, 0"); a("s_cbranch_scc1 " + k_)
        a("v_mov_b32 v206, 0")
        for i in range(4): a("v_mov_b32 v%d, -1" % (200 + i))
        def body(): a("ds_read_b32 v207, v206 offset:%d" % L_G); a("s_waitcnt lgkmcnt(0)"); a("v_cmp_le_u32 vcc, %d, v207" % lc)
        spin(body, lab("lcw"))
        clears("", 200, 1, 204, 4, 'local')
        a("s_and_b32 s4, s2, 7"); a("s_lshl_b32 s4, s4, 8"); a("s_lshr_b32 s5, s2, 3"); a("s_lshl_b32 s5, s5, 2"); a("s_add_u32 s4, s4, s5"); a("s_add_u32 s4, s4, %d" % (WS_PRG + 128))
        a("s_waitcnt vmcnt(0)"); a("s_mov_b64 exec, 1"); a("buffer_store_dword v200, v206, %s, s4 offen" % sWS); a("s_mov_b64 exec, -1")
        a(k_ + ":")

    a(KN + ":")
    T(0)
    a("s_cmp_ge_u32 s2, 256"); a("s_cbranch_scc1 L_end")
    a("s_load_dwordx16 s[16:31], s[0:1], 0"); a("s_load_dwordx8 s[32:39], s[0:1], 64")
    a("s_getpc_b64 s[4:5]")
    a("L_pc:")
    if pf == 1:
        a("v_lshlrev_b32 v1, 7, v0"); a("v_min_u32 v1, L_codeend-L_pc-4, v1")
        a("global_load_dword v255, v1, s[4:5]")
    if pf >= 3:
        npl = -(-200 // pf)
        a("s_lshr_b32 s6, s2, 3"); a("s_and_b32 s6, s6, %d" % (pf - 1)); a("s_mul_i32 s6, s6, %d" % npl); a("s_sub_u32 s6, s6, 448")
        a("v_add_u32 v1, s6, v0"); a("v_lshlrev_b32 v1, 7, v1"); a("v_min_u32 v1, L_codeend-L_pc-4, v1")
        a("v_subrev_u32 v2, 448, v0"); a("v_cmp_gt_u32 vcc, %d, v2" % npl); a("s_and_saveexec_b64 s[8:9], vcc"); a("s_cbranch_execz L_nopf")
        a("global_load_dword v255, v1, s[4:5]")
        a("L_nopf:"); a("s_mov_b64 exec, -1")
    a("v_lshrrev_b32 v1, 6, v0"); a("v_and_b32 v0, 63, v0"); a("v_readfirstlane_b32 s3, v1")
    if pf == 2:
        a("s_lshr_b32 s6, s2, 3"); a("s_lshl_b32 s7, s3, 5"); a("s_add_u32 s6, s6, s7"); a("s_lshl_b32 s6, s6, 7"); a("s_min_u32 s6, s6, L_codeend-L_pc-4")
        a("s_mov_b64 s[96:97], s[4:5]"); a("s_mov_b32 s98, s6")
    a("s_and_b32 s6, s2, 7"); a("s_lshl_b32 s6, s6, 1"); a("s_bfe_u32 s7, s2, 0x10003"); a("s_or_b32 s6, s6, s7")
    a("s_and_b32 s7, s2, 0x70"); a("s_or_b32 s6, s6, s7"); a("s_lshr_b32 s7, s2, 7")
    a("s_cmp_ge_u32 s3, 4"); a("s_cbranch_scc1 L_help")

    vm = VM(a); vm.n = 1 if pf == 1 else 0
    vKo, vVo, vM, vL, vF = 1, 2, 5, 6, 7
    vMask, vQ0, vQ1, vAcc = 12, 16, 20, 24
    vD = [28, 32]
    pool = list(range(36, 252, 4))
    assert len(pool) >= R + 2
    a("v_lshrrev_b32 v3, 4, v0"); a("v_lshlrev_b32 v3, 6, v3")
    a("v_and_b32 v4, 3, v0"); a("v_lshl_or_b32 v3, v4, 4, v3")
    a("v_bfe_u32 v4, v0, 2, 2"); a("v_lshl_or_b32 v%d, v4, 8, v3" % vKo)
    a("v_lshlrev_b32 v%d, 4, v0" % vVo)
    a("s_lshl_b32 s14, s6, 21"); a("s_lshl_b32 s15, s7, 18"); a("s_add_u32 s14, s14, s15")
    a("s_lshl_b32 s15, s3, 11"); a("s_add_u32 s14, s14, s15"); a("s_add_u32 s14, s14, %d" % (6144 * 256))
    a("s_mov_b32 s42, 0x10000000"); a("s_mov_b32 s43, 0x20000")
    a("s_waitcnt lgkmcnt(0)")
    if ts == 1: T(10)
    a("s_mov_b32 s40, s18"); a("s_mov_b32 s41, s19")
    if ts == 3: T.on = 0
    slot, tok, free, issued = {}, {}, pool[:], [0]
    def issue_next():
        n = issued[0]; issued[0] += 1
        r = free.pop(0); slot[n] = r
        c, t = divmod(n % 64, 2)
        if t == 0: a("s_add_u32 s10, s14, %d" % (c * 8192))
        tok[n] = vm.issue("buffer_load_dwordx4 %s, v%d, %s, s10 offen offset:%d nt" % (vr(r), vKo if n < 64 and not klin else vVo, sK if n < 64 else sV, 1024 * t))
        if ts == 3 and n in TSN: T.on = 1; T(1 + TSN.index(n)); T.on = 0
        if n + 1 == sp: a("s_barrier")
        if n + 1 == sv: a("s_barrier")
    for _ in range(max(b0, d0)): issue_next()
    srd(a, 44, 20, "0x10000000"); srd(a, 52, 38, "0x40000000")
    a("v_bfe_u32 v3, v0, 3, 1"); a("v_bfe_u32 v4, v0, 1, 1"); a("v_lshl_or_b32 v3, v3, 1, v4")
    a("v_and_b32 v4, 1, v0"); a("v_lshlrev_b32 v4, 4, v4"); a("v_mov_b32 v5, 0xffff"); a("v_lshlrev_b32 v4, v4, v5")
    for r in range(4):
        a("v_cmp_eq_u32 vcc, %d, v3" % r); a("v_cndmask_b32 v%d, 0, v4, vcc" % (vMask + r))
    if x1 & 16:
        srd(a, 48, 16, 9216); a("s_lshl_b32 s4, s2, 5"); vm.issue("buffer_load_ushort v254, v0, %s, s4 offen" % sX)
    if x1 & 32:
        for _ in range(60): a("s_mul_i32 s4, s4, 0x1234567")
    oslot("s26"); a("s_lshl_b32 s5, s3, 7"); a("s_add_u32 s26, s26, s5")
    a("s_lshl_b32 s4, s3, 2"); a("v_add_u32 v8, s4, v%d" % vVo); a("v_mov_b32 v253, 0"); a("s_mov_b32 s27, 0")
    if dfree: a("s_cmp_ge_u32 s2, 208"); a("s_cselect_b64 vcc, -1, 0")
    ctl = {"on": False, "tok": None, "n": 0}
    def D0(n):
        if n < nd0: return d0
        if n < nd1: return d0 + 1
        if n < nramp: return d
        return min(dend, d + (n - nramp + 1) // step)
    def D(n): return D0(n) + (lv[-1] - d if fb and n >= R else 0)
    def paced():
        n = issued[0]
        if n < 128:
            if dfree > D(n) and n < nfr:
                if n - dfree >= 0: vm.wait(tok[n - dfree])
                a("s_cbranch_vccnz L_fr%d" % n); a("s_waitcnt vmcnt(%d)" % (vm.n - tok[n - D(n)])); a("L_fr%d:" % n)
            elif n - D(n) >= 0: vm.wait(tok[n - D(n)])
            if ctl["on"]:
                if fb and n % psm == 1: a("s_waitcnt lgkmcnt(0)"); a("v_readfirstlane_b32 s27, v252")
                used = False
                for l_, t_ in reversed(list(zip(lv[:-1], th))) if fb else []:
                    m = n - (D0(n) - d + l_)
                    if tok[m] > vm.done:
                        a("s_cmp_ge_i32 s27, %d" % int(32 * t_)); a("s_cbranch_scc1 L_hi%d" % n); a("s_waitcnt vmcnt(%d)" % (vm.n - tok[m])); used = True
                if used: a("L_hi%d:" % n)
            issue_next()
            if ctl["on"] and ((fb and n % pst == 0) or n == hat):
                a("v_mov_b32 v254, %d" % n); a("ds_write_b32 v8, v254 offset:%d" % L_G)
            if ctl["on"] and fb and n % psm == 0: a("ds_read_b32 v252, v253 offset:%d" % L_C)
    def ahead(n):
        while issued[0] < 128 and issued[0] - D(issued[0]) < n: paced()
    while issued[0] < R:
        paced()
        if issued[0] == max(b0, d0) + 1: T(11)
        if issued[0] == 24: T(1)
        if issued[0] == nfree:
            a("s_cmp_lt_u32 s2, 208"); a("s_cbranch_scc1 L_nofb"); a("s_barrier"); a("L_nofb:")
    T(2)
    a("s_barrier")
    T(3)
    a("ds_read_b128 %s, v%d offset:%d" % (vr(vQ0), vVo, L_Q))
    a("v_mov_b32 v4, 0"); a("ds_read_b32 v4, v4 offset:%d" % L_F)
    a("v_and_b32 v3, 8, v0"); a("v_cmp_eq_u32 vcc, 0, v3"); a("v_mov_b32 v%d, 0xff800000" % vM)
    a("s_mov_b32 s15, %s" % f32(128 ** -0.5))
    a("s_waitcnt lgkmcnt(0)")
    a("v_readfirstlane_b32 s100, v4")
    for i in range(4): a("v_cndmask_b32 v%d, v%d, 0, vcc" % (vQ1 + i, vQ0 + i))
    for i in range(4): a("v_cndmask_b32 v%d, 0, v%d, vcc" % (vQ0 + i, vQ0 + i))
    ctl["on"] = True
    vD += [free.pop(), free.pop()]
    S = []
    def qk(c):
        Dr = vD[c % 4]
        vm.wait(tok[2 * c + 1])
        a(MF % (vr(Dr), vr(slot[2 * c]), vr(vQ0), "0")); a(MF % (vr(Dr), vr(slot[2 * c + 1]), vr(vQ1), vr(Dr)))
        free.extend([slot[2 * c], slot[2 * c + 1]])
    def extract(c):
        if c % 4 == 0: S.extend(range(free[-1], free[-1] + 4)); free.pop()
        x, y, DA, DB = S[c], S[c + 1], vD[c % 4], vD[(c + 1) % 4]
        for i in range(4):
            for s_, Dr in ((x, DA), (y, DB)):
                if i == 0: a("v_mov_b32_dpp v%d, v%d quad_perm:[0,0,0,0] %s" % (s_, Dr, DPP))
                else: a("v_add_f32_dpp v%d, v%d, v%d quad_perm:[%d,%d,%d,%d] %s" % (s_, Dr + i, s_, i, i, i, i, DPP))
        for rep in range(2):
            if not nors & (1 << rep):
                a("v_cvt_pk_bf16_f32 v3, v%d, v%d" % (x, y))
                a("v_lshlrev_b32 v%d, 16, v3" % x); a("v_and_b32 v%d, 0xffff0000, v3" % y)
            if rep == 0: a("v_mul_f32 v%d, s15, v%d" % (x, x)); a("v_mul_f32 v%d, s15, v%d" % (y, y))
        a("v_max3_f32 v%d, v%d, v%d, v%d" % (vM, vM, x, y))
    for c in range(0, 32, 2):
        ahead(2 * c + 3)
        qk(c); qk(c + 1)
        for _ in range(4 // kcatch): paced()
        if c >= 2: extract(c - 2)
    extract(30)
    free.extend(vD[2:])
    T(4)
    paced()
    allreduce(a, "v_max_f32", vM, 3, [8, 16, 32])
    a("s_mov_b32 s15, %s" % f32(L2E)); a("v_mul_f32 v%d, s15, v%d" % (vM, vM)); a("v_mov_b32 v%d, 0" % vL); a("v_mov_b32 v4, 0")
    for c in range(0, 32, 4):
        for i in range(4): a("v_fma_f32 v%d, v%d, s15, -v%d" % (S[c + i], S[c + i], vM))
        for i in range(4): a("v_exp_f32 v%d, v%d" % (S[c + i], S[c + i]))
        for i in range(4): a("v_add_f32 v%d, v%d, v%d" % ((vL, 4)[i % 2], (vL, 4)[i % 2], S[c + i]))
        for i in range(4): a("v_cvt_pk_bf16_f32 v%d, v%d, v%d" % (S[c + i], S[c + i], S[c + i]))
        if c % 8 == 4: paced()
    a("v_add_f32 v%d, v%d, v4" % (vL, vL))
    allreduce(a, "v_add_f32", vL, 3, [8, 16, 32])
    a("v_min_u32 v10, -2, v%d" % vM); a("v_min_u32 v11, -2, v%d" % vL)
    a("v_lshlrev_b32 v9, 1, v0"); a("v_and_b32 v9, 0x78, v9")
    a("s_lshl_b32 s73, s6, 7"); a("s_add_u32 s73, s73, %d" % WS_STAT)
    a("s_lshl_b32 s4, s7, 2"); a("s_add_u32 s4, s4, s3"); a("s_lshl_b32 s4, s4, 4"); a("s_add_u32 s4, s4, s73")
    a("s_mov_b64 exec, 0x11")
    store2("buffer_store_dwordx2 v[10:11], v9, %s, s4 offen" % sWS, "s100"); vm.n += 1
    a("s_mov_b64 exec, -1")
    vB = vD[:2]
    def prepB(n):
        c, t = divmod(n - 64, 2)
        for r in range(4):
            if (r >> 1) == t: a("v_and_b32 v%d, v%d, v%d" % (vB[n % 2] + r, S[c], vMask + r))
            else: a("v_and_b32_dpp v%d, v%d, v%d row_ror:8 %s" % (vB[n % 2] + r, S[c], vMask + r, DPP))
    def stat_valid(): a("v_max_u32 v3, v10, v11"); a("v_cmp_ne_u32 vcc, -1, v3")
    def send_hint():
        k_ = lab("nohint")
        a("s_cmp_lg_u32 s3, %d" % hw); a("s_cbranch_scc1 " + k_); a("s_atomic_add s24, s[38:39], s25"); a(k_ + ":")
    if hint: a("s_and_b32 s25, s6, 15"); a("s_mul_i32 s25, s25, %d" % HSTR); a("s_add_u32 s25, s25, %d" % WS_HNT); a("s_mov_b32 s24, 1")
    prepB(64)
    tstat = None
    ldS = "buffer_load_dwordx2 v[10:11], v9, %s, s73 offen sc1" % sWS
    for n in range(64, 128):
        ahead(n)
        if tstat is None and issued[0] >= stat_at: tstat = vm.issue(ldS)
        vm.wait(tok[n])
        if hint and n == 127 - hk: a("v_mov_b32 v254, 200"); a("ds_write_b32 v8, v254 offset:%d" % L_G)
        a(MF % (vr(vAcc), vr(slot[n]), vr(vB[n % 2]), "0" if n == 64 else vr(vAcc)))
        free.append(slot[n])
        if n % 2 == 1 and issued[0] < 128 and issued[0] - D(issued[0]) > n: paced()
        if n < 127: prepB(n + 1)
        if tstat and tstat > 0 and vm.done >= tstat:
            stat_valid(); a("s_cmp_eq_u64 vcc, exec"); a("s_cbranch_scc1 L_stat_ok")
            def body(): a(ldS); a("s_waitcnt vmcnt(0)"); stat_valid()
            spin(body, "L_stat")
            a("v_mov_b32 v%d, v10" % vF); allreduce(a, "v_max_f32", vF, 3, [8, 16, 32])
            a("v_sub_f32 v10, v10, v%d" % vF); a("v_sub_f32 v%d, v%d, v%d" % (vF, vM, vF))
            a("v_exp_f32 v10, v10"); a("v_exp_f32 v%d, v%d" % (vF, vF)); a("v_mul_f32 v10, v10, v11")
            paced()
            allreduce(a, "v_add_f32", 10, 3, [8, 16, 32])
            a("v_rcp_f32 v10, v10"); a("v_mul_f32 v%d, v%d, v10" % (vF, vF))
            a("v_bfe_u32 v3, v0, 2, 1"); a("v_lshlrev_b32 v3, 9, v3"); a("v_lshrrev_b32 v4, 4, v0"); a("v_lshl_or_b32 v3, v4, 7, v3")
            a("v_bfe_u32 v4, v0, 3, 1"); a("v_lshl_or_b32 v3, v4, 4, v3"); a("v_and_b32 v4, 3, v0"); a("v_lshl_or_b32 v9, v4, 2, v3")
            a("s_lshl_b32 s4, s3, 10"); a("s_add_u32 s4, s4, %d" % L_OP); a("v_add_u32 v9, s4, v9")
            a("s_lshl_b32 s4, s3, 8"); a("v_lshlrev_b32 v11, 2, v0"); a("v_lshl_add_u32 v10, v0, 3, s4")
            if t1:
                a("v_bfe_u32 v3, v0, 2, 1"); a("v_mul_u32_u24 v9, 704, v3"); a("v_lshrrev_b32 v4, 4, v0"); a("v_mul_u32_u24 v4, 160, v4"); a("v_add_u32 v9, v9, v4")
                a("v_bfe_u32 v3, v0, 3, 1"); a("v_lshl_add_u32 v9, v3, 4, v9"); a("v_and_b32 v3, 3, v0"); a("v_lshl_add_u32 v9, v3, 2, v9")
                a("s_mul_i32 s4, s3, 1536"); a("s_add_u32 s4, s4, %d" % L_OP); a("v_add_u32 v9, s4, v9")
                a("s_lshr_b32 s4, s3, 1"); a("s_mul_i32 s4, s4, 704"); a("s_and_b32 s5, s3, 1"); a("s_mul_i32 s5, s5, 320"); a("s_add_u32 s4, s4, s5")
                a("v_and_b32 v3, 15, v0"); a("v_lshl_add_u32 v10, v3, 3, v4"); a("v_add_u32 v10, s4, v10"); a("v_mov_b32 v%d, v%d" % (vL, vF))
            tstat = -1
    assert tstat == -1
    T(6)
    if t1:
        for i in (0, 2): a("v_pk_mul_f32 %s, %s, v[6:7]" % (vr(vAcc + i, 2), vr(vAcc + i, 2)))
    else:
        for i in range(4): a("v_mul_f32 v%d, v%d, v%d" % (vAcc + i, vAcc + i, vF))
    a("ds_write2_b32 v9, v%d, v%d offset0:0 offset1:8" % (vAcc, vAcc + 1))
    a("ds_write2_b32 v9, v%d, v%d offset0:16 offset1:24" % (vAcc + 2, vAcc + 3))
    a("s_waitcnt lgkmcnt(0)"); a("s_barrier")
    rr = [16, 18, 20, 22]
    a("s_mov_b32 exec_hi, 0")
    for w in range(4): a("ds_read_b64 %s, v10 offset:%d" % (vr(rr[w], 2), L_OP + (1536 if t1 else 1024) * w))
    a("s_waitcnt lgkmcnt(2)"); a("v_pk_add_f32 v[16:17], v[16:17], v[18:19]")
    a("s_waitcnt lgkmcnt(0)"); a("v_pk_add_f32 v[20:21], v[20:21], v[22:23]"); a("v_pk_add_f32 v[16:17], v[16:17], v[20:21]")
    a("v_cvt_pk_bf16_f32 v3, v16, v17"); a("v_min_u32 v3, -2, v3")
    for r_ in range(orep):
        if r_: a("s_add_u32 s26, s26, 0x20000")
        a("buffer_store_dword v3, v11, %s, s26 offen sc1" % sWS)
    if hint and hk == -1: send_hint()
    T(5); T.on = ts; T.flush()
    a("s_endpgm")

    a("L_help:")
    if ts == 3: T.on = 0
    vLin, vWo = 1, 2
    a("v_lshlrev_b32 v%d, 4, v0" % vLin)
    a("s_mov_b32 s12, 0x05040100"); a("s_mov_b32 s13, 0x07060302")
    a("s_cmp_lg_u32 s3, 4"); a("s_cbranch_scc1 L_h567")
    vm = VM(a); vm.n = 1 if pf == 1 else 0
    vXN, vAc, vTp, vRing, w1blk = 8, 44, 244, 116, 4
    a("s_lshr_b32 s101, s2, 3"); a("s_and_b32 s4, s2, 7")
    a("s_cmp_lt_u32 s101, 8"); a("s_movk_i32 s14, 8192"); a("s_cselect_b32 s14, s14, 9216"); a("s_mov_b32 s58, 4718592"); a("s_cselect_b32 s58, s58, 5308416")
    a("s_cselect_b32 s5, 8, 9"); a("s_cselect_b32 s15, 0, 8"); a("s_mul_i32 s4, s4, s5")
    a("s_cmp_lt_u32 s101, 17"); a("s_cselect_b32 s15, s15, 17"); a("s_sub_u32 s15, s101, s15"); a("s_add_u32 s74, s15, s4"); a("s_lshl_b32 s15, s74, 7")
    if x1 & 2:
        a("s_and_b32 s11, s2, 7"); a("s_mul_i32 s11, s11, 26"); a("s_add_u32 s11, s11, s101")
        a("s_cmp_lt_u32 s11, 64"); a("s_movk_i32 s14, 8192"); a("s_cselect_b32 s14, s14, 9216"); a("s_mov_b32 s58, 4718592"); a("s_cselect_b32 s58, s58, 5308416"); a("s_cselect_b32 s15, 0, 64")
        a("s_cmp_lt_u32 s11, 136"); a("s_cselect_b32 s15, s15, 136"); a("s_sub_u32 s15, s11, s15"); a("s_lshl_b32 s15, s15, 7"); a("s_mov_b32 s10, s11")
    a("v_lshrrev_b32 v3, 3, v0"); a("v_lshlrev_b32 v3, 3, v3"); a("v_mul_u32_u24 v3, s14, v3"); a("v_and_b32 v2, 7, v0"); a("v_lshl_add_u32 v%d, v2, 4, v3" % vWo)
    actaddr(3, 4, 1152)
    if xexp == 1: a("v_mov_b32 v3, v%d" % vLin)
    if wexp == 1:
        a("v_mov_b32 v%d, v%d" % (vWo, vLin)); a("s_mul_i32 s15, s74, 73728"); a("s_mov_b32 s14, 1024")
    if wexp == 2:
        a("v_lshrrev_b32 v5, 4, v0"); a("v_lshlrev_b32 v5, 3, v5"); a("v_mul_u32_u24 v5, s14, v5"); a("v_and_b32 v2, 15, v0"); a("v_lshl_add_u32 v%d, v2, 4, v5" % vWo)
        a("s_and_b32 s4, s74, 1"); a("s_mul_i32 s4, s4, 288"); a("s_mul_i32 s4, s4, s14"); a("s_and_b32 s15, s15, 0xffffff00"); a("s_add_u32 s15, s15, s4")
    if wexp == 3:
        a("v_lshrrev_b32 v5, 3, v0"); a("v_mul_u32_u24 v5, s14, v5"); a("v_and_b32 v2, 7, v0"); a("v_lshl_add_u32 v%d, v2, 4, v5" % vWo); a("s_lshl_b32 s14, s14, 3")
    a("s_mul_i32 s75, s14, %d" % {0: 57, 1: 1, 2: 25, 3: 1}[wexp]); a("s_mov_b32 s59, 0x20000")
    a("s_waitcnt lgkmcnt(0)")
    srd(a, 52, 38, "0x40000000"); srd(a, 64, 36, 256)
    a("s_cmp_ge_u32 s2, 208"); a("s_cbranch_scc1 L_nol1")
    a("s_cmp_lt_u32 s10, 136" if x1 & 2 else "s_cmp_lt_u32 s101, 17"); a("s_cselect_b32 s56, s28, s30"); a("s_cselect_b32 s57, s29, s31")
    a("s_cmp_lt_u32 s10, 64" if x1 & 2 else "s_cmp_lt_u32 s101, 8"); a("s_cselect_b32 s56, s22, s56"); a("s_cselect_b32 s57, s23, s57")
    srd(a, 48, 16, 9216)
    if x1 & 8:
        srd(a, 48, 18, "0x10000000"); a("s_lshl_b32 s4, s2, 14")
    def xloads():
        if xexp == 1: a("s_mov_b32 s90, 0"); a("s_mov_b32 s91, 4096"); a("s_mov_b32 s92, 8192")
        for i in range(1 if xexp == 2 else 9): t_ = vm.issue("buffer_load_dwordx4 %s, v3, %s, %s offen offset:%d" % (vr(vXN + 4 * i), sX, "s4" if x1 & 8 else ("s%d" % (90 + i // 4) if xexp == 1 else "0"), 1024 * (i % 4) if xexp == 1 else 128 * i))
        return t_
    if not xlate: tx = xloads()
    w1 = []
    def issue_w1():
        blk, j = divmod(len(w1), 8)
        w1.append(vm.issue("buffer_load_dwordx4 %s, v%d, %s, s15 offen nt" % (vr(vRing + 32 * (blk % w1blk) + 4 * j), vWo, sW1)))
        a("s_add_u32 s15, s15, %s" % ("s75" if j == 7 else "s14"))
        if ts == 3 and len(w1) - 1 in TSW: T.on = 1; T(1 + TSW.index(len(w1) - 1)); T.on = 0
    while len(w1) < burst: issue_w1()
    if xlate:
        if xlate > 1: vm.wait(w1[0])
        tx = xloads()
    def paced1(blk):
        if len(w1) < 72 and len(w1) < 8 * (blk + w1blk):
            if len(w1) >= da: vm.wait(w1[len(w1) - da])
            issue_w1()
    ln = Asm(); xf = 44
    def unpack_all():
        for i in range(36): ln("v_lshlrev_b32 v%d, 16, v%d" % (xf + 2 * i, vXN + i)); ln("v_and_b32 v%d, 0xffff0000, v%d" % (xf + 2 * i + 1, vXN + i))
    def pack_all():
        for i in range(36): ln("v_cvt_pk_bf16_f32 v%d, v%d, v%d" % (vXN + i, xf + 2 * i, xf + 2 * i + 1))
    for i in range(4): ln("v_mov_b32 v%d, 0x3f803f80" % (244 + i))
    for i in range(9): ln(MF % ("v[248:251]", "v[244:247]", vr(vXN + 4 * i), "0" if i == 0 else "v[248:251]"))
    unpack_all()
    allreduce(ln, "v_add_f32", 248, 249, [0])
    ln("v_mul_f32 v248, %s, v248" % f32(1 / 576)); ln("v_mov_b32 v4, v248"); round_bf16(ln, 4)
    ln("v_sub_f32 v248, v248, v4"); ln("v_sub_f32 v4, 0, v4"); ln("v_mov_b32 v5, v4")
    for i in range(36): ln("v_pk_add_f32 %s, %s, v[4:5]" % (vr(xf + 2 * i, 2), vr(xf + 2 * i, 2)))
    for i in range(36):
        acc = vr(244 + 2 * (i % 2), 2); x2 = vr(xf + 2 * i, 2)
        ln("v_pk_mul_f32 %s, %s, %s" % (acc, x2, x2) if i < 2 else "v_pk_fma_f32 %s, %s, %s, %s" % (acc, x2, x2, acc))
    ln("v_pk_add_f32 v[244:245], v[244:245], v[246:247]"); ln("v_add_f32 v4, v244, v245")
    allreduce(ln, "v_add_f32", 4, 5, [0, 16, 32])
    ln("v_mul_f32 v4, %s, v4" % f32(1 / 576)); ln("v_fma_f32 v4, -v248, v248, v4"); ln("v_max_f32 v4, 0, v4"); round_bf16(ln, 4)
    ln("v_add_f32 v4, %s, v4" % f32(1e-5)); round_bf16(ln, 4)
    ln("v_sqrt_f32 v4, v4"); round_bf16(ln, 4); ln("v_rcp_f32 v4, v4")
    pack_all(); ln("v_mov_b32 v5, v4"); unpack_all()
    for i in range(36): ln("v_pk_mul_f32 %s, %s, v[4:5]" % (vr(xf + 2 * i, 2), vr(xf + 2 * i, 2)))
    pack_all()
    while xlate > 1 and w1[len(w1) - da] < tx: paced1(0)
    vm.wait(tx)
    if ts == 3: T.on = 1; T(11); T.on = 0
    for k, ins in enumerate(ln.ins):
        a(ins.text)
        if k % lnstep == lnstep - 1: paced1(0)
    T(1)
    def flagaddr(): a("v_and_b32 v253, 7, v0"); a("v_and_b32 v254, 24, v0"); a("v_lshl_or_b32 v253, v254, 1, v253"); a("v_lshlrev_b32 v253, 2, v253")
    ldF = "buffer_load_dword v252, v253, %s, 0 offen sc1" % sDBG
    for blk in range(9):
        while len(w1) < min(72, 8 * blk + 7 + da): paced1(blk)
        if blk == flagblk: flagaddr(); tflag = vm.issue(ldF)
        vm.wait(w1[8 * blk + 7])
        block_mm(vRing + 32 * (blk % w1blk), vTp, vAc, vXN + 4 * blk, blk == 0, lambda: paced1(blk))
    T(2)
    block_fold(vTp, vAc)
    for q in range(4): a("v_cvt_pk_bf16_f32 v%d, v%d, v%d" % (12 + q, vTp + 2 * q, vTp + 2 * q + 1))
    for q in range(4): a("v_min_u32 v%d, -2, v%d" % (12 + q, 12 + q))
    vm.wait(tflag)
    a("s_branch L_l1done")
    a("L_nol1:")
    a("s_barrier")
    flagaddr(); a("v_mov_b32 v252, 0")
    a("L_l1done:")
    T(10)
    roles()
    a("s_mov_b32 s5, 0x88888888")
    def fvalid(): a("v_and_b32 v8, s5, v252"); a("v_cmp_eq_u32 vcc, s5, v8")
    if x1 & 64: a("s_branch L_flags_ok")
    fvalid(); a("s_cmp_eq_u64 vcc, exec"); a("s_cbranch_scc1 L_flags_ok")
    def body(): a(ldF); a("s_waitcnt vmcnt(0)"); fvalid()
    spin(body, "L_flags")
    a("v_readfirstlane_b32 s4, v252"); a("v_cmp_eq_u32 vcc, s4, v252"); a("s_cmp_eq_u64 vcc, exec"); a("s_cselect_b32 s100, %d, 0" % loc)
    a("s_cmp_lg_u32 s100, 0"); a("s_cbranch_scc1 L_mode_ok")
    for i in range(4): a("v_mov_b32 v%d, -1" % (16 + i))
    clears("sc1", 16, vLin, 20)
    a("v_mov_b32 v8, 1"); a("v_mov_b32 v9, 36"); a("s_waitcnt vmcnt(0)"); a("s_mov_b64 exec, 1")
    a("buffer_atomic_add v8, v9, %s, 0 offen sc1" % sDBG)
    def body(): a("buffer_load_dword v8, v9, %s, 0 offen sc1" % sDBG); a("s_waitcnt vmcnt(0)"); a("v_cmp_le_u32 vcc, 0x100, v8")
    spin(body, "L_far")
    a("s_mov_b64 exec, -1")
    a("L_mode_ok:")
    T(4)
    l1slot("s72")
    a("s_cmp_ge_u32 s2, 208"); a("s_cbranch_scc1 L_nol1st")
    a("s_sub_u32 s4, s101, 8"); a("s_cmp_lt_u32 s4, 9"); a("s_cbranch_scc1 L_nol1st")
    store2("buffer_store_dwordx4 v[12:15], v%d, %s, s72 offen" % (vLin, sWS), "s100")
    a("L_nol1st:")
    a("v_mov_b32 v8, s100"); a("v_mov_b32 v9, 0"); a("ds_write_b32 v9, v8 offset:%d" % L_F); a("ds_write_b32 v9, v9 offset:%d" % L_C); a("ds_write_b32 v9, v9 offset:%d" % L_GO)
    for i in range(4): a("v_mov_b32 v%d, %d" % (16 + i, R - 1))
    a("ds_write_b128 v9, v[16:19] offset:%d" % L_G)
    a("v_bfe_u32 v3, v0, 2, 1"); a("v_lshlrev_b32 v3, 11, v3"); a("v_lshrrev_b32 v4, 5, v0"); a("v_lshl_or_b32 v3, v4, 10, v3")
    a("v_bfe_u32 v4, v0, 4, 1"); a("v_lshl_or_b32 v3, v4, 6, v3"); a("v_and_b32 v4, 3, v0"); a("v_lshl_or_b32 v3, v4, 4, v3")
    a("s_and_b32 s4, s2, 7"); a("s_lshl_b32 s4, s4, 15"); a("s_and_b32 s5, s6, 1"); a("s_lshl_b32 s5, s5, 12"); a("s_add_u32 s4, s4, s5")
    a("s_lshr_b32 s5, s6, 4"); a("s_lshl_b32 s5, s5, 7"); a("s_add_u32 s4, s4, s5")
    def poll4(r, va, so, label):
        def body():
            a("buffer_load_dwordx4 %s, v%d, %s, %s offen sc1" % (vr(r), va, sWS, so)); a("s_waitcnt vmcnt(0)")
            a("v_max3_u32 v8, v%d, v%d, v%d" % (r, r + 1, r + 2)); a("v_max_u32 v8, v8, v%d" % (r + 3)); a("v_cmp_ne_u32 vcc, -1, v8")
        spin(body, label)
    poll4(4, 3, "s4", "L_qpoll")
    T(11)
    a("ds_write_b128 v%d, v[4:7] offset:%d" % (vLin, L_Q))
    a("s_waitcnt lgkmcnt(0)"); a("s_barrier")
    T(5)
    a("s_sub_u32 s4, s101, 8"); a("s_cmp_ge_u32 s4, 9"); a("s_cbranch_scc1 L_noh")
    a("s_add_u32 s4, s72, %d" % (9 * 1024))
    poll4(16, vLin, "s4", "L_upoll")
    a("s_mov_b32 s4, %s" % f32(0.044715)); a("s_mov_b32 s5, %s" % f32(-2 * (2 / 3.141592653589793) ** 0.5 * L2E))
    g, e = list(range(24, 32)), list(range(32, 40))
    def unpack(dst, src):
        for q in range(4): a("v_lshlrev_b32 v%d, 16, v%d" % (dst[2 * q], src + q)); a("v_and_b32 v%d, 0xffff0000, v%d" % (dst[2 * q + 1], src + q))
    def pack(dst, src):
        for q in range(4): a("v_cvt_pk_bf16_f32 v%d, v%d, v%d" % (dst + q, src[2 * q], src[2 * q + 1]))
    unpack(g, 12)
    for i in range(8): a("v_mul_f32 v%d, v%d, v%d" % (e[i], g[i], g[i]))
    for i in range(8): a("v_fma_f32 v%d, v%d, s4, 1.0" % (e[i], e[i]))
    for i in range(8): a("v_mul_f32 v%d, v%d, v%d" % (e[i], e[i], g[i]))
    for i in range(8): a("v_mul_f32 v%d, s5, v%d" % (e[i], e[i]))
    for i in range(8): a("v_exp_f32 v%d, v%d" % (e[i], e[i]))
    for i in range(8): a("v_add_f32 v%d, 1.0, v%d" % (e[i], e[i]))
    for i in range(8): a("v_rcp_f32 v%d, v%d" % (e[i], e[i]))
    for i in range(8): a("v_mul_f32 v%d, v%d, v%d" % (g[i], g[i], e[i]))
    pack(12, g); unpack(g, 12); unpack(e, 16)
    for i in range(8): a("v_mul_f32 v%d, v%d, v%d" % (g[i], g[i], e[i]))
    pack(12, g)
    a("s_lshl_b32 s4, s74, 10"); a("s_add_u32 s4, s4, %d" % WS_H)
    a("buffer_store_dwordx4 v[12:15], v%d, %s, s4 offen sc1" % (vLin, sWS))
    a("v_mov_b32 v8, 1"); a("v_mov_b32 v9, 32"); a("s_waitcnt vmcnt(0)"); a("s_mov_b64 exec, 1")
    if not x1 & 4:
        if sat: a("s_mov_b32 s4, 1"); a("s_atomic_add s4, s[36:37], 32"); a("s_waitcnt lgkmcnt(0)")
        else: a("buffer_atomic_add v8, v9, %s, 0 offen sc1" % sDBG)
    a("s_mov_b64 exec, -1")
    a("L_noh:")
    T(6)
    a("s_cmp_lt_u32 s8, 28"); a("s_cbranch_scc1 L_l2")
    if hint and hk != -1: hint_addr(); a("s_atomic_add s22, s[38:39], s23"); a("s_waitcnt lgkmcnt(0)")
    a("s_branch L_hdone")

    a("L_h567:")
    if pf == 2:
        a("s_lshr_b32 s8, s2, 3"); a("s_mul_i32 s8, s8, 3"); a("s_add_u32 s8, s8, s3"); a("s_sub_u32 s8, s8, 5"); a("s_lshl_b32 s8, s8, 7")
        a("s_min_u32 s9, s8, L_codeend-L_pc-4"); a("s_load_dword s94, s[96:97], s9")
        a("s_add_u32 s8, s8, %d" % (96 * 128)); a("s_min_u32 s9, s8, L_codeend-L_pc-4"); a("s_load_dword s95, s[96:97], s9")
    roles()
    a("s_waitcnt lgkmcnt(0)")
    srd(a, 52, 38, "0x40000000"); srd(a, 64, 36, 256)
    if xlate:
        a("s_lshr_b32 s4, s2, 3"); a("s_mul_i32 s4, s4, 3"); a("s_add_u32 s4, s4, s3"); a("s_sub_u32 s4, s4, 5"); a("s_min_u32 s4, s4, 71"); a("s_lshl_b32 s4, s4, 7")
        a("s_load_dword s95, s[16:17], s4")
    a("s_cmp_lg_u32 s3, 5"); a("s_cbranch_scc1 L_h67")
    for i in range(4): a("v_mov_b32 v%d, -1" % (4 + i))
    oslot("s74"); a("v_lshlrev_b32 v3, 3, v0")
    for r_ in range(orep):
        if r_: a("s_add_u32 s74, s74, 0x20000")
        a("buffer_store_dwordx2 v[4:5], v3, %s, s74 offen sc1" % sWS)
    if er:
        clears("", 4, vLin, 8, er & 7, 'local2', True)
        if er & 8:
            a("s_and_b32 s4, s2, 7"); a("s_lshl_b32 s4, s4, 8"); a("s_add_u32 s4, s4, %d" % WS_PRG); a("s_mov_b64 exec, 0x101"); a("buffer_load_dword v10, v%d, %s, s4 offen" % (vLin, sWS)); a("s_mov_b64 exec, -1")
        a("s_waitcnt vmcnt(0)")
    if not noclear & 1: clears(cf, 4, vLin, 8, part='remote' if lc else 'all')
    if fb:
        a("s_and_b32 s4, s2, 7"); a("s_lshl_b32 s4, s4, 8"); a("s_lshr_b32 s5, s2, 3"); a("s_lshl_b32 s5, s5, 2"); a("s_add_u32 s4, s4, s5"); a("s_add_u32 s4, s4, %d" % WS_PRG)
        a("v_mov_b32 v8, %d" % (4 * (R - 4))); a("s_mov_b64 exec, 1"); a("buffer_store_dword v8, v%d, %s, s4 offen" % (vLin, sWS))
        if lc: a("buffer_store_dword v%d, v%d, %s, s4 offen offset:128" % (vLin, vLin, sWS))
        a("s_mov_b64 exec, -1")
    if gb:
        a("s_cmp_ge_u32 s2, 8"); a("s_cbranch_scc1 L_nobcn0")
        a("s_mul_i32 s4, s2, %d" % BSTR); a("s_add_u32 s4, s4, %d" % WS_BCN)
        a("v_mov_b32 v10, %d" % (128 * (R - 4))); a("v_mov_b32 v11, %d" % (-128 * gbias)); a("s_mov_b64 exec, 1"); a("buffer_store_dwordx2 v[10:11], v%d, %s, s4 offen sc1" % (vLin, sWS))
        a("s_lshl_b32 s4, s2, 8"); a("s_add_u32 s4, s4, %d" % WS_PRG); a("buffer_store_dword v%d, v%d, %s, s4 offen offset:128" % (vLin, vLin, sWS)); a("s_mov_b64 exec, -1")
        a("L_nobcn0:")
    if hint:
        a("s_cmp_ge_u32 s2, 16"); a("s_cbranch_scc1 L_nohc")
        a("s_mul_i32 s4, s2, %d" % HSTR); a("s_add_u32 s4, s4, %d" % WS_HNT)
        a("v_mov_b32 v9, 0"); a("s_mov_b64 exec, 1"); a("buffer_store_dword v9, v%d, %s, s4 offen sc1" % (vLin, sWS)); a("s_mov_b64 exec, -1")
        a("L_nohc:")
    a("s_getreg_b32 s5, hwreg(HW_REG_XCC_ID, 0, 3)"); a("s_or_b32 s5, s5, 8"); a("s_and_b32 s4, s2, 7"); a("s_lshl_b32 s4, s4, 2"); a("s_lshl_b32 s5, s5, s4")
    a("v_mov_b32 v8, s5"); a("v_mov_b32 v9, 0"); a("s_bfe_u32 s4, s2, 0x30003"); a("s_lshl_b32 s4, s4, 2"); a("s_and_b32 s10, s2, 192"); a("s_add_u32 s4, s4, s10")
    a("s_waitcnt vmcnt(0)"); a("s_mov_b64 exec, 1")
    if not x1 & 64: a("s_atomic_or s5, s[36:37], s4\ns_waitcnt lgkmcnt(0)" if sat else "buffer_atomic_or v8, v9, %s, s4 offen sc1" % sDBG)
    a("s_mov_b64 exec, -1")
    T(3)
    a("L_h67:")
    if fb: a("s_cmp_eq_u32 s3, 7"); a("s_cselect_b32 s4, 0, s8"); a("s_cmp_ge_u32 s4, 28"); a("s_cbranch_scc1 L_hdone")
    else:
        a("s_cmp_ge_u32 s8, 28"); a("s_cbranch_scc1 L_hdone")
        a("s_cmp_eq_u32 s3, 7"); a("s_cselect_b32 s4, s8, 0"); a("s_cmp_ge_u32 s4, 16"); a("s_cbranch_scc1 L_hdone")
    a("s_cmp_lt_u32 s2, 208"); a("s_cbranch_scc1 L_nofb2"); a("s_barrier"); a("L_nofb2:")
    a("s_barrier")
    a("v_mov_b32 v4, 0"); a("ds_read_b32 v4, v4 offset:%d" % L_F); a("s_waitcnt lgkmcnt(0)"); a("v_readfirstlane_b32 s100, v4")
    if fb:
        a("s_cmp_lg_u32 s3, 7"); a("s_cbranch_scc1 L_l2")
        a("s_cmp_eq_u32 s100, 0"); a("s_cbranch_scc1 L_ctl_done")
        a("s_and_b32 s74, s2, 7"); a("s_lshl_b32 s74, s74, 8"); a("s_add_u32 s74, s74, %d" % WS_PRG); a("s_lshr_b32 s4, s2, 3"); a("s_lshl_b32 s4, s4, 2"); a("s_add_u32 s72, s74, s4")
        a("v_and_b32 v8, 31, v0"); a("v_lshlrev_b32 v8, 2, v8"); a("v_mov_b32 v9, 0")
        a("s_and_b32 s4, s2, 7"); a("s_cselect_b32 s4, s2, 0"); a("s_cmp_ge_u32 s4, 224"); a("s_cselect_b32 s75, %d, 0" % (32 * lead)); a("s_add_u32 s75, s75, %d" % int(32 * bias))
        if leadd:
            a("s_cmp_ge_u32 s8, 16"); a("s_cselect_b32 s4, %d, %d" % (1, -1)); a("s_mul_i32 s4, s4, %d" % int(16 * leadd)); a("s_and_b32 s5, s2, 7"); a("s_cselect_b32 s4, s4, 0"); a("s_add_u32 s75, s75, s4")
        if gb:
            a("v_cmp_gt_u32 vcc, 32, v0"); a("v_mov_b32 v10, 128"); a("v_cndmask_b32 v8, v10, v8, vcc")
            a("s_and_b32 s73, s2, 7"); a("s_mul_i32 s73, s73, %d" % BSTR); a("s_add_u32 s73, s73, %d" % WS_BCN); a("v_lshlrev_b32 v11, 3, v0")
        a("s_mov_b32 s11, %d" % SPIN)
        a("L_ctl:")
        a("ds_read_b128 v[12:15], v9 offset:%d" % L_G); a("s_waitcnt lgkmcnt(0)")
        a("v_add3_u32 v12, v12, v13, v14"); a("v_add_u32 v12, v12, v15"); a("s_mov_b64 exec, 1")
        a("buffer_store_dword v12, v9, %s, s72 offen" % sWS); a("s_mov_b64 exec, -1")
        a("v_readfirstlane_b32 s14, v12"); a("s_cmp_ge_u32 s14, %d" % (4 * fbend)); a("s_cbranch_scc1 L_ctl_end")
        a("buffer_load_dword v16, v8, %s, s74 offen sc1" % sWS)
        if gb:
            a("s_cmp_ge_u32 s2, 8"); a("s_cbranch_scc1 L_nobl");
            for r_ in range(8): a("s_load_dwordx2 s[%d:%d], s[38:39], %d glc" % (80 + 2 * r_, 81 + 2 * r_, WS_BCN + BSTR * r_))
            a("L_nobl:")
        a("s_waitcnt vmcnt(0) lgkmcnt(0)")
        if gb: a("v_readlane_b32 s5, v16, 32")
        allreduce(a, "v_add_u32", 16, 17, [8, 4, 2, 1, 16])
        if gb:
            a("s_cmp_ge_u32 s2, 8"); a("s_cbranch_scc1 L_nobcn")
            a("v_readfirstlane_b32 s4, v16")
            for r_ in range(82, 96, 2): a("s_add_u32 s80, s80, s%d" % r_); a("s_add_u32 s81, s81, s%d" % (r_ + 1))
            a("s_lshr_b32 s80, s80, 3"); a("s_ashr_i32 s81, s81, 3"); a("s_sub_u32 s80, s80, s4")
            a("v_mov_b32 v17, s80"); a("s_sub_u32 s5, s80, s81"); a("s_mul_i32 s5, s5, %d" % gb); a("s_ashr_i32 s5, s5, 4"); a("v_mov_b32 v18, s5")
            a("s_mov_b64 exec, %d" % bex); a("buffer_store_dwordx2 v[16:17], v11, %s, s73 offen sc1" % sWS); a("s_mov_b64 exec, 1"); a("buffer_store_dword v18, v9, %s, s74 offen offset:128" % sWS); a("s_mov_b64 exec, -1")
            a("L_nobcn:")
            a("s_add_u32 s5, s5, s75")
        a("v_lshrrev_b32 v16, 2, v16"); a("v_lshlrev_b32 v12, 3, v12"); a("v_sub_u32 v16, v16, v12"); a("v_add_u32 v16, %s, v16" % ("s5" if gb else "s75"))
        a("s_mov_b64 exec, 1"); a("ds_write_b32 v9, v16 offset:%d" % L_C); a("s_mov_b64 exec, -1")
        a("s_sub_u32 s11, s11, 1"); a("s_cmp_lg_u32 s11, 0"); a("s_cbranch_scc1 L_ctl")
        a("L_ctl_end:")
        a("v_mov_b32 v12, %d" % (4 * fin)); a("s_mov_b64 exec, 1"); a("buffer_store_dword v12, v9, %s, s72 offen" % sWS); a("s_mov_b64 exec, -1")
        a("L_ctl_done:")
        a("s_cmp_ge_u32 s8, 16"); a("s_cbranch_scc1 L_hdone")

    a("L_l2:")
    a("s_sub_u32 s101, s3, 4")
    a("s_mul_i32 s73, s9, %d" % (8 * 7168)); a("s_lshl_b32 s5, s8, 8"); a("s_add_u32 s73, s73, s5"); a("s_add_u32 s73, s73, %d" % WS_P)
    a("s_lshl_b32 s4, s101, 11"); a("v_add_u32 v5, s4, v%d" % vLin)
    a("s_cmp_ge_u32 s8, 16"); a("s_cbranch_scc1 L_down")
    def publish(n, vE):
        for w in range(n): a("ds_read_b128 %s, v6 offset:%d" % (vr(vE[w]), L_LP + 2048 * w))
        a("s_waitcnt lgkmcnt(%d)" % (n - 2))
        for i in (0, 2): a("v_pk_add_f32 %s, %s, %s" % (vr(vE[0] + i, 2), vr(vE[0] + i, 2), vr(vE[1] + i, 2)))
        a("s_waitcnt lgkmcnt(0)")
        if n == 4:
            for i in (0, 2): a("v_pk_add_f32 %s, %s, %s" % (vr(vE[2] + i, 2), vr(vE[2] + i, 2), vr(vE[3] + i, 2)))
        for i in (0, 2): a("v_pk_add_f32 %s, %s, %s" % (vr(vE[0] + i, 2), vr(vE[0] + i, 2), vr(vE[2] + i, 2)))
        for i in range(4): a("v_min_u32 v%d, -2, v%d" % (vE[0] + i, vE[0] + i))
        store2("buffer_store_dwordx4 %s, v7, %s, s73 offen" % (vr(vE[0]), sWS), "s100")
    vm = VM(a)
    vA, vE, vW, vP, A4, Y4 = [16, 20], [24, 28, 32, 36], 40, 72, 104, 108
    srd(a, 60, 24, 4718592); srd(a, 48, 16, 9216); srd(a, 68, 34, 9216)
    a("v_lshrrev_b32 v3, 4, v0"); a("v_mul_u32_u24 v2, %d, v3" % (8 * 1152)); a("v_and_b32 v4, 15, v0"); a("v_lshl_add_u32 v2, v4, 3, v2")
    a("v_mul_u32_u24 v7, %d, v3" % (2 * 7168)); a("v_lshl_add_u32 v7, v4, 4, v7")
    a("v_lshlrev_b32 v9, 9, v4"); a("v_lshl_or_b32 v9, v3, 4, v9")
    if wx4:
        a("v_bfe_u32 v8, v0, 3, 1"); a("v_and_b32 v4, 7, v0")
        a("v_mul_u32_u24 v2, %d, v3" % (8 * 1152)); a("v_mul_u32_u24 v6, %d, v8" % (32 * 1152)); a("v_add_u32 v2, v2, v6"); a("v_lshl_add_u32 v2, v4, 4, v2")
        a("v_mul_u32_u24 v7, %d, v3" % (2 * 7168)); a("v_lshl_add_u32 v7, v4, 5, v7"); a("v_lshl_add_u32 v7, v8, 4, v7")
    a("s_lshl_b32 s72, s8, 2"); a("s_add_u32 s72, s72, s101"); a("s_mul_i32 s72, s72, %d" % (64 * 1152)); a("s_lshl_b32 s4, s9, 7"); a("s_add_u32 s72, s72, s4")
    a("s_lshl_b32 s14, s8, 13"); a("s_lshl_b32 s5, s101, 7"); a("s_add_u32 s14, s14, s5"); a("s_add_u32 s14, s14, %d" % WS_O)
    if orep > 1: a("s_and_b32 s5, s9, %d" % (orep - 1)); a("s_lshl_b32 s5, s5, 17"); a("s_add_u32 s14, s14, s5")
    a("s_and_b32 s15, s101, 1"); a("s_mul_i32 s4, s15, 7168"); a("s_add_u32 s73, s73, s4"); a("s_lshl_b32 s4, s15, 10"); a("v_add_u32 v6, s4, v%d" % vLin)
    a("s_lshr_b32 s4, s8, 1"); a("s_and_b32 s5, s8, 1"); a("s_lshl_b32 s5, s5, 1"); a("s_add_u32 s5, s5, s15")
    a("s_lshl_b32 s74, s9, 3"); a("s_add_u32 s74, s74, s4"); a("s_mul_i32 s74, s74, 7168"); a("s_lshl_b32 s15, s5, 6"); a("s_add_u32 s74, s74, s15"); a("s_add_u32 s74, s74, %d" % WS_P)
    a("s_mul_i32 s75, s4, 1152"); a("s_lshl_b32 s15, s9, 7"); a("s_add_u32 s75, s75, s15"); a("s_lshl_b32 s15, s5, 5"); a("s_add_u32 s75, s75, s15")
    a("s_add_u32 s15, s74, 4096")
    a("v_and_b32 v4, 3, v0"); a("v_lshlrev_b32 v11, 3, v4"); a("v_lshl_or_b32 v11, v3, 1, v11")
    a("v_lshrrev_b32 v3, 2, v0"); a("v_lshlrev_b32 v3, 8, v3"); a("v_lshl_or_b32 v10, v4, 4, v3")
    a("buffer_load_ushort v12, v11, %s, s75 offen" % sX)
    for i in range(4): a("v_mov_b32 v%d, 0" % (Y4 + i))
    a("s_mov_b32 s30, -1"); a("s_mov_b32 s31, 0xffff"); a("s_mov_b64 s[28:29], -1")
    late_clear()
    a("s_barrier")
    ldO = ["buffer_load_dwordx4 %s, v9, %s, s14 offen offset:%d sc1" % (vr(vA[kb]), sWS, 64 * kb) for kb in range(2)]
    ldA = "buffer_load_dwordx4 %s, v10, %s, s74 offen sc1" % (vr(A4), sWS)
    ldY = "buffer_load_dwordx4 %s, v10, %s, s15 offen sc1" % (vr(Y4), sWS)
    def prel():
        a("s_cmp_lt_u32 s101, 2"); a("s_cbranch_scc1 L_nopre")
        if lc:
            a("s_cmp_eq_u32 s100, 0"); a("s_cbranch_scc1 L_clr_ok"); a("s_mov_b64 exec, s[26:27]")
            a("v_cmp_ne_u32 vcc, 0, v14"); a("s_cmp_eq_u64 vcc, exec"); a("s_cbranch_scc1 L_clr_ok")
            def body(): a(ldC); a("s_waitcnt vmcnt(0)"); a("v_cmp_ne_u32 vcc, 0, v14")
            spin(body, "L_clr"); a("s_mov_b64 exec, -1")
        a(ldA); a("s_mov_b64 exec, s[30:31]"); a(ldY); a("s_mov_b64 exec, -1")
        a("L_nopre:")
    if prelate == 3: prel()
    if lc:
        a("s_and_b32 s22, s2, 7"); a("s_lshl_b32 s22, s22, 8"); a("s_add_u32 s22, s22, %d" % (WS_PRG + 128)); a("v_lshlrev_b32 v13, 2, v0")
        a("s_mov_b32 s26, 0x0fffffff"); a("s_cmp_eq_u32 s9, 0"); a("s_cselect_b32 s26, 0xffff, s26"); a("s_cmp_eq_u32 s9, 8"); a("s_cselect_b32 s26, 0xffff0000, s26"); a("s_mov_b32 s27, 0")
        ldC = "buffer_load_dword v14, v13, %s, s22 offen sc1" % sWS
    w2 = []
    if wx4:
        for j in range(8):
            if j % 4 == 0: a("s_add_u32 s5, s72, %d" % (j * 1152))
            w2.append(vm.issue("buffer_load_dwordx4 %s, v2, %s, s5 offen offset:%d nt" % (vr(vW + 4 * j), sW2, 1152 * (j % 4))))
    if lc: a("s_mov_b64 exec, s[26:27]"); w2[7] = vm.issue(ldC); a("s_mov_b64 exec, -1")
    for k in range(0 if wx4 else 16):
        kb, j = divmod(k, 8)
        if j % 4 == 0: a("s_add_u32 s5, s72, %d" % ((32 * kb + j) * 1152))
        w2.append(vm.issue("buffer_load_dwordx2 %s, v2, %s, s5 offen offset:%d nt" % (vr(vW + 2 * k, 2), sW2, 1152 * (j % 4))))
    s2_helper()
    if wx4:
        if hint:
            a("v_mov_b32 v13, 0"); a("s_mov_b32 s11, %d" % SPIN)
            a("s_cmp_lg_u32 s101, 0"); a("s_cbranch_scc1 L_gow")
            a("s_mul_i32 s4, s8, %d" % HSTR); a("s_add_u32 s4, s4, %d" % WS_HNT)
            a("L_gop:"); a("s_load_dword s5, s[38:39], s4 glc"); a("s_sub_u32 s11, s11, 1"); a("s_waitcnt lgkmcnt(0)")
            a("s_cmp_ge_u32 s5, %d" % hn); a("s_cselect_b32 s11, 0, s11"); a("s_cmp_lg_u32 s11, 0"); a("s_cbranch_scc1 L_gop")
            a("v_mov_b32 v14, 1"); a("ds_write_b32 v13, v14 offset:%d" % L_GO); a("s_branch L_go")
            a("L_gow:"); a("ds_read_b32 v14, v13 offset:%d" % L_GO); a("s_sub_u32 s11, s11, 1"); a("s_waitcnt lgkmcnt(0)"); a("v_readfirstlane_b32 s5, v14")
            a("s_cmp_lg_u32 s5, 0"); a("s_cselect_b32 s11, 0, s11"); a("s_cmp_lg_u32 s11, 0"); a("s_cbranch_scc1 L_gow")
            a("L_go:")
            T(3)
        else: vm.wait(w2[min(wx4, 8) - 1])
        if prelate == 2: assert wx4 == 8 and not hint; prel()
        if wx4 <= 8:
            for t_ in ldO: vm.issue(t_)
        vm.wait(w2[7])
        for j in range(8):
            for r in range(2): a("v_mov_b32 v%d, v%d" % (112 + 2 * j + r, vW + 4 * j + r))
        for j in range(8):
            for r in range(2): a("v_mov_b32_dpp v%d, v%d row_ror:8 row_mask:0xf bank_mask:0xc" % (vW + 4 * j + r, vW + 4 * j + 2 + r))
        for j in range(8):
            for r in range(2): a("v_mov_b32_dpp v%d, v%d row_ror:8 row_mask:0xf bank_mask:0x3" % (vW + 4 * j + 2 + r, 112 + 2 * j + r))
        for kb in range(2):
            for i in range(4):
                for q in range(4):
                    a("v_perm_b32 v%d, v%d, v%d, s%d" % (vP + 16 * kb + 4 * i + q, vW + 4 * (2 * q + 1) + 2 * kb + i // 2, vW + 4 * (2 * q) + 2 * kb + i // 2, 12 + i % 2))
        if wx4 > 8:
            for t_ in ldO: vm.issue(t_)
    else:
        if oearly:
            vm.wait(w2[oearly - 1])
            for t_ in ldO: vm.issue(t_)
        for kb in range(2):
            vm.wait(w2[8 * kb + 7])
            for i in range(4):
                for q in range(4):
                    a("v_perm_b32 v%d, v%d, v%d, s%d" % (vP + 16 * kb + 4 * i + q, vW + 2 * (8 * kb + 2 * q + 1) + i // 2, vW + 2 * (8 * kb + 2 * q) + i // 2, 12 + i % 2))
            if kb == 0 and not oearly:
                for t_ in ldO: vm.issue(t_)
    T(7)
    a("s_waitcnt vmcnt(0)")
    if not prelate: prel()
    mpoll("L_opoll", [(28, ldO, list(range(16, 24)))], npo)
    T(8)
    if prelate == 1: prel()
    for kb in range(2):
        for i in range(4): a(MF % (vr(vE[i]), vr(vA[kb]), vr(vP + 16 * kb + 4 * i), "0" if kb == 0 else vr(vE[i])))
    for x in range(2):
        for i in range(4): a("v_add_f32 v%d, v%d, v%d" % (vW + 4 * x + i, vE[i] + 2 * x, vE[i] + 2 * x + 1))
        a("ds_write_b128 v5, %s offset:%d" % (vr(vW + 4 * x), L_LP + 1024 * x))
    a("s_waitcnt lgkmcnt(0)"); a("s_barrier")
    a("s_cmp_ge_u32 s101, 2"); a("s_cbranch_scc1 L_final")
    publish(4, vE)
    a("s_branch L_hdone")
    a("L_final:")
    a("v_lshlrev_b32 v12, 16, v12")
    if prelate == 4: prel()
    a("s_mov_b64 s[28:29], -1"); a("s_waitcnt vmcnt(0)")
    if t3:
        def fold(r):
            a("v_permlane32_swap_b32 v%d, v%d" % (r, r + 2)); a("v_permlane32_swap_b32 v%d, v%d" % (r + 1, r + 3))
            a("v_pk_add_f32 %s, %s, %s" % (vr(r, 2), vr(r, 2), vr(r + 2, 2)))
            a("v_permlane16_swap_b32 v%d, v%d" % (r, r + 1)); a("v_add_f32 v%d, v%d, v%d" % (r, r, r + 1))
            for k in (8, 4): a("v_add_f32_dpp v%d, v%d, v%d row_ror:%d %s" % (r, r, r, k, DPP))
            round_bf16(a, r)
        a("s_mov_b64 exec, s[30:31]")
        mpoll("L_ypoll", [(30, [ldY], list(range(Y4, Y4 + 4)))], 1)
        a(ldA); fold(Y4); a("s_waitcnt vmcnt(0)")
        mpoll("L_ppoll", [(28, [ldA], list(range(A4, A4 + 4)))], 1)
        fold(A4)
        a("v_add_f32 v4, v12, v%d" % A4); round_bf16(a, 4); a("v_add_f32 v4, v4, v%d" % Y4); a("v_cvt_pk_bf16_f32 v4, v4, v4")
    else:
        mpoll("L_ppoll", [(28, [ldA], list(range(A4, A4 + 4))), (30, [ldY], list(range(Y4, Y4 + 4)))], npa)
        for r in (A4, Y4): a("v_permlane32_swap_b32 v%d, v%d" % (r, r + 2)); a("v_permlane32_swap_b32 v%d, v%d" % (r + 1, r + 3))
        for r in (A4, Y4): a("v_add_f32 v%d, v%d, v%d" % (r, r, r + 2)); a("v_add_f32 v%d, v%d, v%d" % (r + 1, r + 1, r + 3))
        for r in (A4, Y4): a("v_permlane16_swap_b32 v%d, v%d" % (r, r + 1))
        for r in (A4, Y4): a("v_add_f32 v%d, v%d, v%d" % (r, r, r + 1))
        for k in (8, 4):
            for r in (A4, Y4): a("v_add_f32_dpp v%d, v%d, v%d row_ror:%d %s" % (r, r, r, k, DPP))
        a("v_cvt_pk_bf16_f32 v3, v%d, v%d" % (A4, Y4)); a("v_lshlrev_b32 v4, 16, v3"); a("v_and_b32 v3, 0xffff0000, v3")
        a("v_add_f32 v4, v12, v4"); round_bf16(a, 4); a("v_add_f32 v4, v4, v3"); a("v_cvt_pk_bf16_f32 v4, v4, v4")
    a("s_mov_b32 exec_lo, 0x000f000f"); a("s_mov_b32 exec_hi, 0x000f000f")
    a("buffer_store_short v4, v11, %s, s75 offen" % sOUT)
    a("s_branch L_hdone")

    a("L_down:")
    vm = VM(a)
    vH, vAc, vTp, vW = 16, 24, 56, 64
    srd(a, 60, 32, 5308416)
    a("s_cmp_lt_u32 s2, 224"); a("s_cselect_b32 s100, s100, 0")
    a("v_lshrrev_b32 v3, 3, v0"); a("v_mul_u32_u24 v2, %d, v3" % (8 * 1152)); a("v_and_b32 v4, 7, v0"); a("v_lshl_add_u32 v2, v4, 4, v2")
    a("s_sub_u32 s4, s8, 16"); a("s_mul_i32 s4, s4, 3"); a("s_add_u32 s4, s4, s101")
    a("s_mul_i32 s72, s4, %d" % (128 * 1152)); a("s_lshl_b32 s5, s9, 7"); a("s_add_u32 s72, s72, s5")
    a("s_lshl_b32 s14, s4, 11"); a("s_add_u32 s14, s14, %d" % WS_H)
    actaddr(9, 4, 128)
    a("v_lshrrev_b32 v3, 4, v0"); a("v_and_b32 v4, 15, v0"); a("v_mul_u32_u24 v7, 7168, v3"); a("v_lshl_add_u32 v7, v4, 4, v7")
    a("v_lshlrev_b32 v6, 7, v3"); a("v_bfe_u32 v3, v0, 1, 3"); a("v_lshl_or_b32 v6, v3, 4, v6"); a("v_and_b32 v3, 1, v0"); a("v_lshl_or_b32 v6, v3, 10, v6")
    a("s_lshl_b32 s4, s101, 9"); a("v_add_u32 v6, s4, v6"); a("s_mul_i32 s4, s101, %d" % (4 * 7168)); a("s_add_u32 s73, s73, s4")
    a("v_mov_b32 v10, 32")
    a("v_mov_b32 v11, 0")
    def body(): a("ds_read_b32 v8, v11 offset:%d" % L_G); a("s_waitcnt lgkmcnt(0)"); a("v_cmp_le_u32 vcc, %d, v8" % hat)
    spin(body, "L_hwait")
    a("s_mov_b64 exec, 1")
    def body(): a("buffer_load_dword v8, v10, %s, 0 offen sc1" % sDBG); a("s_waitcnt vmcnt(0)"); a("v_cmp_le_u32 vcc, 72, v8")
    if not x1 & 4: spin(body, "L_hcnt")
    a("s_mov_b64 exec, -1")
    for b_ in range(2): vm.issue("buffer_load_dwordx4 %s, v9, %s, s14 offen offset:%d sc1" % (vr(vH + 4 * b_), sWS, 1024 * b_))
    late_clear()
    a("s_barrier")
    w2 = []
    for k in range(16):
        b_, j = divmod(k, 8)
        if j % 4 == 0: a("s_add_u32 s5, s72, %d" % ((64 * b_ + j) * 1152))
        w2.append(vm.issue("buffer_load_dwordx4 %s, v2, %s, s5 offen offset:%d nt" % (vr(vW + 4 * k), sW2, 1152 * (j % 4))))
    s2_helper()
    for b_ in range(2):
        vm.wait(w2[8 * b_ + 7]); block_mm(vW + 32 * b_, vTp, vAc, vH + 4 * b_, b_ == 0)
    T(8)
    block_fold(vTp, vAc)
    for x in range(2): a("ds_write_b128 v5, %s offset:%d" % (vr(vTp + 4 * x), L_LP + 1024 * x))
    a("s_waitcnt lgkmcnt(0)"); a("s_barrier")
    a("s_cmp_ge_u32 s101, 2"); a("s_cbranch_scc1 L_hdone")
    publish(3, [24, 28, 32])
    a("L_hdone:")
    T(9); T.on = ts; T.flush()
    a("L_end:")
    a("s_endpgm")
    a("L_codeend:")
    a.pad()
    head = open("parallel_sum__sliding_block_cached__geglu_ffn__decode.s.ref").read().split("; Override")[0]
    head += "; @launch grid=(256,1,1) block=(%d,1,1) lds=%d\n" % (64 * NW, LDS_BYTES)
    head += '.amdgcn_target "amdgcn-amd-amdhsa--gfx950"\n.text\n.globl %s\n.p2align 8\n.type %s,@function\n' % (KN, KN)
    tail = '.section .rodata,"a"\n.p2align 6\n.amdhsa_kernel %s\n  .amdhsa_next_free_vgpr 256\n  .amdhsa_next_free_sgpr 102\n  .amdhsa_accum_offset 256\n' % KN
    tail += "  .amdhsa_group_segment_fixed_size 0\n  .amdhsa_kernarg_size 96\n  .amdhsa_user_sgpr_count 2\n  .amdhsa_user_sgpr_kernarg_segment_ptr 1\n  .amdhsa_system_sgpr_workgroup_id_x 1\n.end_amdhsa_kernel\n"
    return head + a.text() + tail

RAW = None
def report(t, verbose):
    import numpy as np
    def st(name, x):
        x = x.reshape(x.shape[0], -1)
        print("   %-28s min %6.2f mean %6.2f max %6.2f" % (name, np.median(x.min(axis=1)), np.median(x.mean(axis=1)), np.median(x.max(axis=1))))
    s, x, h = t[:, :, :4], t[:, :, 4], t[:, :, 4:]
    m_ = s[..., 1:12].mean(axis=(0, 1, 2))
    if all(np.diff(m_) > 0):
        print("   rates: t", m_, "start", s[..., 0].mean()); print("   rates: w1", x[:, :208, 1:12].mean(axis=(0, 1))); return
    ids = np.arange(256); X, J = ids & 7, ids >> 3
    WO = (ids < 128) | (X == 0); DN = ~WO & ((J - 28) * 7 + X - 1 < 24)
    for i, n in enumerate(["start", "slot 24", "ring full", "S1", "K done", "o sent", "V done"]): st("stream " + n, s[..., i])
    st("stream kernarg", s[..., 10]); st("stream firstK", s[..., 11])
    st("wo perms done", h[:, WO][..., 7]); st("wo o seen", h[:, WO][..., 8]); st("wo end", h[:, WO][:, :, :2, 9])
    st("down mm done", h[:, DN][:, :, :3, 8]); st("down end", h[:, DN][:, :, :2, 9])
    st("aux LN done", x[:, :208, 1]); st("aux L1 mm done", x[:, :208, 2]); st("clear flag sent", t[:, :, 5, 3])
    for i, n in [(10, "flag check start"), (4, "flags seen"), (11, "q seen"), (5, "S1"), (6, "h done")]: st("aux " + n, x[..., i])
    n = len(s); mx = lambda v: v.reshape(n, -1).max(axis=1)
    vmax, osent, oseen, wend, out = mx(s[..., 6]), mx(s[..., 5]), mx(h[:, WO][..., 8]), mx(h[:, WO][:, :, :2, 9]), mx(h[:, WO][:, :, 2:4, 9])
    print("   per-run means: Vmean %.2f Vmax %.2f | +osent %.2f +oseen %.2f +wend %.2f +out %.2f | tail %.2f end %.2f (median %.2f)" % (s[..., 6].mean(), vmax.mean(), (osent - vmax).mean(), (oseen - osent).mean(), (wend - oseen).mean(), (out - wend).mean(), (out - vmax).mean(), out.mean(), np.median(out)))
    print("   per-run rel Vmax: go %.2f perms %.2f downend %.2f" % ((mx(h[:, WO][:, :, 2:, 3]) - vmax).mean(), (mx(h[:, WO][..., 7]) - vmax).mean(), (mx(h[:, DN][:, :, :2, 9]) - vmax).mean()))
    lag = lambda i: (lambda v: v - v.mean(axis=1, keepdims=True))(s[..., i].max(axis=2))
    lv = lag(6)
    for nm, i in (("slot24", 1), ("S1", 3), ("Kdone", 4)):
        l = lag(i)
        print("   lag %s: std %.2f max %.2f | V lag std %.2f max %.2f" % (nm, l.std(), l.max(axis=1).mean(), lv.std(), lv.max(axis=1).mean()))
    sl = np.where(J < 8, J, np.where(J < 17, 9 * X + J - 8, 9 * X + J - 17)); S3 = (J < 26) & (sl % 8 == 3); FR = J >= 26
    for nm, m in (("slice3", S3), ("free", FR), ("wq", (J < 8) & ~S3), ("gate", (J >= 8) & (J < 17) & ~S3), ("up", (J >= 17) & (J < 26) & ~S3)):
        print("   class %-10s n=%3d lag slot24 %.2f S1 %.2f Kdone %.2f V %.2f | share of worst V %.2f" % (nm, m.sum(), lag(1)[:, m].mean(), lag(3)[:, m].mean(), lag(4)[:, m].mean(), lv[:, m].mean(), m[lv.argmax(axis=1)].mean()))
    for nm, i in (("S1", 3), ("Kdone", 4), ("V", 6)):
        l = lag(i)[:, :128].reshape(-1, 16, 8); xm = l.mean(axis=1)
        print("   decomp %s (projection owners): mean %.2f | die means std %.2f max %.2f | within-die std %.2f max %.2f" % (nm, l.mean(), xm.std(axis=1).mean(), (xm.max(axis=1) - xm.mean(axis=1)).mean(), (l - xm[:, None]).std(), (l - xm[:, None]).max(axis=1).mean()))
    XX = ids & 7; GB = (XX >= 2) & (XX <= 5)
    print("   class iod lag (B-A): " + " ".join("%s %.2f(|%.2f|)" % (nm, (lag(i)[:, GB].mean(axis=1) - lag(i)[:, ~GB].mean(axis=1)).mean(), np.abs(lag(i)[:, GB].mean(axis=1) - lag(i)[:, ~GB].mean(axis=1)).mean()) for nm, i in (("start", 0), ("slot24", 1), ("S1", 3), ("Kdone", 4), ("V", 6))))
    for nm, i in (("start", 0), ("slot24", 1), ("ring", 2), ("Kdone", 4), ("V", 6)): print("   class bywave", nm, s[:, :208, :, i].mean(axis=(0, 1)), "free", s[:, 208:, :, i].mean(axis=(0, 1)))
    print("   class helpers start", t[:, :, 4:, 0].mean(axis=(0, 1)), "by j slot24", lag(1).reshape(-1, 32, 8).mean(axis=(0, 2)))
    if verbose:
        np.set_printoptions(linewidth=250, precision=1, suppress=True)
        for nm, i in (("slot24", 1), ("Kdone", 4), ("V", 6)):
            print("   mean lag", nm); print(lag(i).mean(axis=0).reshape(32, 8).T)
        print("   std lag V"); print(lv.std(axis=0).reshape(32, 8).T)
        w = lv.argmax(axis=1); print("   worst wg (x, j):", [(int(k & 7), int(k >> 3)) for k in w[:40]])
        np.set_printoptions(linewidth=250, precision=2, suppress=True)
    print("   class xcd V lag", np.array([lv[:, X == k].mean() for k in range(8)]), "start", np.array([lag(0)[:, X == k].mean() for k in range(8)]))

if __name__ == "__main__":
    kw = eval("dict(%s)" % (sys.argv[2] if len(sys.argv) > 2 else ""))
    open(sys.argv[1], "w").write(gen(**kw))
```

```python
import sys, struct
from asmlib import Asm, VM
KN = "parallel_sum__sliding_block_cached__geglu_ffn__decode_kernel"

def f32(x): return "0x%08x" % struct.unpack("<I", struct.pack("<f", x))[0]
def vr(b, n=4): return "v[%d:%d]" % (b, b + n - 1) if n > 1 else "v%d" % b
DPP = "row_mask:0xf bank_mask:0xf"
MF = "v_mfma_f32_16x16x32_bf16 %s, %s, %s, %s"

WS_PRG = 0x44000
WS_HNT = 0x60000
HSTR = 1280
WS_BCN = 0x68000
BSTR = 4352
WS_L1, WS_STAT, WS_H, WS_P, WS_O, WS_TS = 0, 0x40000, 0x48000, 0x80000, 0x100000, 0x200000
L_GO = 8
L_N = 12
L_F, L_C, L_G, L_Q, L_OP, L_LP = 0, 4, 16384, 1024, 2048, 8192
LDS_BYTES = 17408
SPIN = 400000
L2E = 1.4426950408889634
NW = 8
TSN = [0, 5, 10, 15, 20, 25, 30, 35, 40, 45, 50]
TSW = [0, 11, 16, 22, 28, 33, 44, 55, 66, 71]
sK, sV, sX, sWS, sW1, sW2, sDBG, sOUT = ("s[%d:%d]" % (b, b + 3) for b in (40, 44, 48, 52, 56, 60, 64, 68))

def srd(a, base, ptr, nbytes):
    a("s_mov_b32 s%d, s%d" % (base, ptr)); a("s_mov_b32 s%d, s%d" % (base + 1, ptr + 1))
    a("s_mov_b32 s%d, %s" % (base + 2, nbytes)); a("s_mov_b32 s%d, 0x20000" % (base + 3))

class Stamps:
    def __init__(self, a, on): self.a, self.on = a, on
    def __call__(self, idx):
        if self.on: self.a("s_memrealtime s[%d:%d]" % (76 + 2 * idx, 77 + 2 * idx))
    def flush(self, n=12):
        if not self.on: return
        a = self.a
        a("s_waitcnt lgkmcnt(0)"); srd(a, 52, 38, "0x40000000")
        a("s_mul_i32 s4, s2, %d" % NW); a("s_add_u32 s4, s4, s3"); a("s_lshl_b32 s4, s4, 6"); a("s_add_u32 s4, s4, %d" % WS_TS)
        a("s_mov_b64 exec, 1"); a("v_mov_b32 v0, 0")
        for q in range(n // 4):
            for i in range(4): a("v_mov_b32 v%d, s%d" % (4 + 4 * q + i, 76 + 2 * (4 * q + i)))
            a("buffer_store_dwordx4 %s, v0, %s, s4 offen offset:%d" % (vr(4 + 4 * q), sWS, 16 * q))

def allreduce(a, op, v, t, steps):
    for s in steps:
        if s == 0: a("%s_dpp v%d, v%d, v%d quad_perm:[1,0,3,2] %s" % (op, v, v, v, DPP))
        elif s < 16: a("%s_dpp v%d, v%d, v%d row_ror:%d %s" % (op, v, v, v, s, DPP))
        else:
            a("v_mov_b32 v%d, v%d" % (t, v)); a("v_permlane%d_swap_b32 v%d, v%d" % (s, v, t)); a("%s v%d, v%d, v%d" % (op, v, v, t))

def round_bf16(a, v):
    a("v_cvt_pk_bf16_f32 v%d, v%d, v%d" % (v, v, v)); a("v_and_b32 v%d, 0xffff0000, v%d" % (v, v))

def gen(d=5, d0=3, nd0=24, dend=8, nramp=108, step=2, R=52, ts=0, kcatch=2, stat_at=100, nfree=32, da=11, burst=11,
        flagblk=7, lnstep=28, b0=3, loc=1, nb0=32, nb1=32, sv=128, npo=1, npa=1, thr=16, noclear=0, cf='', pfw=8, x1=0, xlate=0, pf=1, frac=0, sat=1, cm=7, lp=0, sp=0, nd1=0, fb=0, lv=(4, 5, 6, 7), th=(-1.5, 1.5, 4), pst=1, psm=2, bias=3, lead=3, fbend=116, hat=84, gb=0, gbias=3, fin=126, leadd=0, oearly=0, orep=1, prelate=0, bstr=1280, wx4=0, t1=0, t3=0, hint=0, hk=-1, hn=16, hw=3, lc=0, lcr=None, er=0, bex=0xffff, klin=0, wexp=0, xexp=0, dfree=0, nfr=40, nors=0, hold=0, osf='', svk=None, wsplit=None, dsplit=None, lay=0, nol1=0, nb=0, pp=0, gz=0, gdiv=1, gclip=0, hf='sc1', he=0, hst=0, pl=0, pf3=0, gran=2, kvf='nt', pint=0, amap=None, rot=None):
    a = Asm(); T = Stamps(a, ts)
    uid = [0]
    def lab(p): uid[0] += 1; return "L_%s%d" % (p, uid[0])

    def spin(body, label):
        a("s_mov_b32 s11, %d" % SPIN)
        a(label + ":"); body()
        a("s_cmp_eq_u64 vcc, exec"); a("s_cbranch_scc1 %s_ok" % label)
        a("s_sub_u32 s11, s11, 1"); a("s_cmp_lg_u32 s11, 0"); a("s_cbranch_scc1 %s" % label)
        a(label + "_ok:")

    def mpoll(label, groups, npipe):
        nl = sum(len(g[1]) for g in groups)
        def issue():
            for m, loads, _ in groups:
                a("s_mov_b64 exec, s[%d:%d]" % (m, m + 1))
                for t in loads: a(t)
        def check():
            for m, _, regs in groups:
                if len(groups) > 1: a("s_mov_b64 exec, s[%d:%d]" % (m, m + 1))
                a("v_max3_u32 v3, v%d, v%d, v%d" % tuple(regs[:3]))
                rest = regs[3:]
                while len(rest) >= 2: a("v_max3_u32 v3, v3, v%d, v%d" % tuple(rest[:2])); rest = rest[2:]
                if rest: a("v_max_u32 v3, v3, v%d" % rest[0])
                a("v_cmp_eq_u32 s[%d:%d], -1, v3" % (m, m + 1))
            m0 = groups[0][0]
            a("s_or_b64 vcc, s[%d:%d], s[%d:%d]" % (m0, m0 + 1, groups[-1][0], groups[-1][0] + 1))
            a("s_cbranch_scc0 %s_ok" % label)
        a("s_mov_b32 s11, %d" % SPIN)
        check()
        a(label + ":"); issue(); a("s_waitcnt vmcnt(0)"); check()
        a("s_sub_u32 s11, s11, 1"); a("s_cmp_lg_u32 s11, 0"); a("s_cbranch_scc1 %s" % label)
        a(label + "_ok:")
        a("s_mov_b64 exec, -1")

    def store2(text, flag):
        f, e = lab("far"), lab("sent")
        a("s_cmp_eq_u32 %s, 0" % flag); a("s_cbranch_scc1 " + f); a(text); a("s_branch " + e); a(f + ":"); a(text + " sc1"); a(e + ":")

    def roles():
        e = lab("role")
        a("s_and_b32 s9, s2, 7"); a("s_lshr_b32 s8, s2, 3")
        a("s_cmp_lt_u32 s8, 16"); a("s_cbranch_scc1 " + e)
        a("s_sub_u32 s8, s8, 16"); a("s_cmp_eq_u32 s9, 0"); a("s_cselect_b32 s9, 8, s9"); a("s_cbranch_scc1 " + e)
        a("s_add_u32 s8, s8, 16"); a("s_cmp_lt_u32 s8, 28"); a("s_cbranch_scc1 " + e)
        a("s_mul_i32 s8, s8, 7"); a("s_add_u32 s8, s8, s9"); a("s_sub_u32 s8, s8, %d" % (28 * 7 + 1 - 16))
        a("s_mov_b32 s9, 0"); a("s_cmp_lt_u32 s8, 28"); a("s_cbranch_scc1 " + e)
        a("s_mov_b32 s9, 8"); a("s_sub_u32 s8, s8, 12")
        a(e + ":")

    def oslot(dst):
        a("s_and_b32 s4, s6, 15"); a("s_lshl_b32 s4, s4, 13"); a("s_lshr_b32 s5, s6, 4"); a("s_lshl_b32 s5, s5, 1"); a("s_add_u32 s5, s5, s7")
        a("s_lshl_b32 s5, s5, 9"); a("s_add_u32 s4, s4, s5"); a("s_add_u32 %s, s4, %d" % (dst, WS_O))

    def l1slot(dst):
        a("s_and_b32 %s, s2, 7" % dst); a("s_lshl_b32 %s, %s, 5" % (dst, dst)); a("s_lshr_b32 s4, s2, 3"); a("s_add_u32 %s, %s, s4" % (dst, dst)); a("s_lshl_b32 %s, %s, 10" % (dst, dst))

    def clears(fl, e, lin, t, cm=cm, part='all', rd=False):
        op = ("buffer_load_dword v%d" % (t + 2) if rd else "buffer_store_dwordx4 %s" % vr(e)) + ", v%d, %s, %s offen"
        l1slot("s5")
        if cm & 1:
            k0 = lab("nol")
            a("s_lshr_b32 s4, s2, 3"); a("s_lshl_b32 s4, 1, s4"); a("s_and_b32 s4, s4, 0x%x" % (0xff | (0x1ff << 17))); a("s_cbranch_scc0 " + k0)
            a(op % (lin, sWS, "s5") + " " + fl); a(k0 + ":")
        a("s_lshl_b32 s4, s6, 1"); a("s_add_u32 s4, s4, s7"); a("s_lshl_b32 s4, s4, 6"); a("s_add_u32 s4, s4, %d" % WS_STAT)
        if cm & 2: a("s_mov_b64 exec, 0xf"); a(op % (lin, sWS, "s4") + " " + fl); a("s_mov_b64 exec, -1")
        if not cm & 4: return
        k = lab("nop")
        a("s_cmp_ge_u32 s8, 28"); a("s_cbranch_scc1 " + k)
        a("v_lshrrev_b32 v%d, 4, v0" % t); a("v_mul_u32_u24 v%d, %d, v%d" % (t, 7168, t)); a("v_and_b32 v%d, 15, v0" % (t + 1)); a("v_lshl_add_u32 v%d, v%d, 4, v%d" % (t, t + 1, t))
        a("s_mul_i32 s4, s9, %d" % (8 * 7168)); a("s_lshl_b32 s5, s8, 8"); a("s_add_u32 s4, s4, s5"); a("s_add_u32 s4, s4, %d" % WS_P); a("s_add_u32 s5, s4, %d" % (4 * 7168))
        st = [op % (t, sWS, s_) for s_ in ("s4", "s5")]
        if 'sc1' not in fl:
            f = lab("rem")
            a("s_cmp_lt_u32 s2, 224"); a("s_cselect_b32 s10, 0, s8"); a("s_cmp_ge_u32 s10, 16"); a("s_cbranch_scc1 " + f)
            if part == 'local' and lcr is not None:
                for i_, s_ in enumerate(("s4", "s5")): a("buffer_load_dword v%d, v%d, %s, %s offen %s" % (208 + i_, t, sWS, s_, lcr))
                a("s_waitcnt vmcnt(0)")
            if part != 'remote':
                for x_ in st: a(x_ + ' ' + fl)
            a("s_branch " + k); a(f + ":")
        if not part.startswith('local'):
            for x_ in st: a(x_ + " sc1")
        a(k + ":")

    def block_mm(base, tp, acc, act, first, hook=None):
        for i in range(8):
            t = tp + 4 * (i % 2)
            for q in range(4): a("v_perm_b32 v%d, v%d, v%d, s%d" % (t + q, base + 4 * (2 * q + 1) + i // 2, base + 4 * (2 * q) + i // 2, 12 + i % 2))
            if i > 0: a(MF % (vr(acc + 4 * (i - 1)), vr(act), vr(tp + 4 * ((i - 1) % 2)), "0" if first else vr(acc + 4 * (i - 1))))
            if hook and i % 4 == 0: hook()
        a(MF % (vr(acc + 28), vr(act), vr(tp + 4), "0" if first else vr(acc + 28)))
    def block_fold(dst, acc):
        for i in range(8): a("v_add_f32_dpp v%d, v%d, v%d row_ror:8 row_mask:0xf bank_mask:0x3" % (dst + i, acc + 4 * i + 1, acc + 4 * i))
        for i in range(8): a("v_add_f32_dpp v%d, v%d, v%d row_ror:8 row_mask:0xf bank_mask:0xc" % (dst + i, acc + 4 * i + 2, acc + 4 * i + 3))
    def actaddr(dst, t, rowbytes):
        a("v_bfe_u32 v%d, v0, 1, 3" % dst); a("v_mul_u32_u24 v%d, %d, v%d" % (dst, rowbytes, dst)); a("v_lshrrev_b32 v%d, 4, v0" % t); a("v_lshl_add_u32 v%d, v%d, 5, v%d" % (dst, t, dst))
        a("v_and_b32 v%d, 1, v0" % t); a("v_lshl_add_u32 v%d, v%d, 4, v%d" % (dst, t, dst))

    def hint_addr(): a("s_and_b32 s23, s6, 15"); a("s_mul_i32 s23, s23, %d" % HSTR); a("s_add_u32 s23, s23, %d" % WS_HNT); a("s_mov_b32 s22, 1")
    def s2_helper():
        k_, p_ = lab("nohs"), lab("hsp")
        if hint and hk >= 0:
            a("s_cmp_lg_u32 s101, 1"); a("s_cbranch_scc1 " + k_); hint_addr(); a("v_mov_b32 v13, 0")
            def body(): a("ds_read_b128 v[200:203], v13 offset:%d" % L_G); a("s_waitcnt lgkmcnt(0)"); a("v_min3_u32 v200, v200, v201, v202"); a("v_min_u32 v200, v200, v203"); a("v_cmp_le_u32 vcc, 200, v200")
            spin(body, p_)
            a("s_atomic_add s22, s[38:39], s23"); a(k_ + ":")
        if hint and hk == -2: hint_addr()
        if not nb: a("s_barrier")
        if hint and hk == -2:
            a("s_cmp_lg_u32 s101, 1"); a("s_cbranch_scc1 " + k_); a("s_atomic_add s22, s[38:39], s23"); a(k_ + ":")

    def late_clear():
        if not lc: return
        k_ = lab("nolc")
        a("s_cmp_lg_u32 s101, 2"); a("s_cbranch_scc1 " + k_); a("s_cmp_eq_u32 s100, 0"); a("s_cbranch_scc1 " + k_)
        a("v_mov_b32 v206, 0")
        for i in range(4): a("v_mov_b32 v%d, -1" % (200 + i))
        def body(): a("ds_read_b32 v207, v206 offset:%d" % L_G); a("s_waitcnt lgkmcnt(0)"); a("v_cmp_le_u32 vcc, %d, v207" % lc)
        spin(body, lab("lcw"))
        clears("", 200, 1, 204, 4, 'local')
        a("s_and_b32 s4, s2, 7"); a("s_lshl_b32 s4, s4, 8"); a("s_lshr_b32 s5, s2, 3"); a("s_lshl_b32 s5, s5, 2"); a("s_add_u32 s4, s4, s5"); a("s_add_u32 s4, s4, %d" % (WS_PRG + 128))
        a("s_waitcnt vmcnt(0)"); a("s_mov_b64 exec, 1"); a("buffer_store_dword v200, v206, %s, s4 offen" % sWS); a("s_mov_b64 exec, -1")
        a(k_ + ":")

    a(KN + ":")
    T(0)
    if hold: a("s_memrealtime s[76:77]")
    a("s_cmp_ge_u32 s2, 256"); a("s_cbranch_scc1 L_end")
    a("s_load_dwordx16 s[16:31], s[0:1], 0"); a("s_load_dwordx8 s[32:39], s[0:1], 64")
    a("s_getpc_b64 s[4:5]")
    a("L_pc:")
    if pf == 1:
        a("v_lshlrev_b32 v1, 7, v0"); a("v_min_u32 v1, L_codeend-L_pc-4, v1")
        a("global_load_dword v255, v1, s[4:5]")
    if pf >= 3:
        npl = -(-200 // pf)
        a("s_lshr_b32 s6, s2, 3"); a("s_and_b32 s6, s6, %d" % (pf - 1)); a("s_mul_i32 s6, s6, %d" % npl); a("s_sub_u32 s6, s6, 448")
        a("v_add_u32 v1, s6, v0"); a("v_lshlrev_b32 v1, 7, v1"); a("v_min_u32 v1, L_codeend-L_pc-4, v1")
        a("v_subrev_u32 v2, 448, v0"); a("v_cmp_gt_u32 vcc, %d, v2" % npl); a("s_and_saveexec_b64 s[8:9], vcc"); a("s_cbranch_execz L_nopf")
        a("global_load_dword v255, v1, s[4:5]")
        a("L_nopf:"); a("s_mov_b64 exec, -1")
    a("v_lshrrev_b32 v1, 6, v0"); a("v_and_b32 v0, 63, v0"); a("v_readfirstlane_b32 s3, v1")
    if pf == 2:
        a("s_lshr_b32 s6, s2, 3"); a("s_lshl_b32 s7, s3, 5"); a("s_add_u32 s6, s6, s7"); a("s_lshl_b32 s6, s6, 7"); a("s_min_u32 s6, s6, L_codeend-L_pc-4")
        a("s_mov_b64 s[96:97], s[4:5]"); a("s_mov_b32 s98, s6")
    a("s_and_b32 s6, s2, 7"); a("s_lshl_b32 s6, s6, 1"); a("s_bfe_u32 s7, s2, 0x10003"); a("s_or_b32 s6, s6, s7")
    a("s_and_b32 s7, s2, 0x70"); a("s_or_b32 s6, s6, s7"); a("s_lshr_b32 s7, s2, 7")
    a("s_cmp_ge_u32 s3, 4"); a("s_cbranch_scc1 L_help")

    vm = VM(a); vm.n = 1 if pf == 1 else 0
    vKo, vVo, vM, vL, vF = 1, 2, 5, 6, 7
    vMask, vQ0, vQ1, vAcc = 12, 16, 20, 24
    vD = [28, 32]
    pool = list(range(36, 252, 4))
    assert len(pool) >= R + 2
    a("v_lshrrev_b32 v3, 4, v0"); a("v_lshlrev_b32 v3, 6, v3")
    a("v_and_b32 v4, 3, v0"); a("v_lshl_or_b32 v3, v4, 4, v3")
    a("v_bfe_u32 v4, v0, 2, 2"); a("v_lshl_or_b32 v%d, v4, 8, v3" % vKo)
    a("v_lshlrev_b32 v%d, 4, v0" % vVo)
    a("s_lshl_b32 s14, s6, 21"); a("s_mul_i32 s15, s7, %d" % (4096 * gran if pint else 1 << 18)); a("s_add_u32 s14, s14, s15")
    a("s_mul_i32 s15, s3, %d" % (1024 * gran)); a("s_add_u32 s14, s14, s15"); a("s_add_u32 s14, s14, %d" % (6144 * 256))
    if amap:
        assert sorted(amap) == list(range(10, 19))
        a("s_lshl_b32 s14, s6, 21"); a("s_add_u32 s14, s14, %d" % (6144 * 256)); a("s_lshl_b32 s15, s7, %d" % amap[8]); a("s_or_b32 s14, s14, s15")
        for i in range(2): a("s_bfe_u32 s15, s3, 0x%x" % (0x10000 + i)); a("s_lshl_b32 s15, s15, %d" % amap[i]); a("s_or_b32 s14, s14, s15")
        for sb, mi in (rot or []): a("s_bfe_u32 s15, s2, 0x%x" % (0x10000 + sb)); a("s_lshl_b32 s15, s15, %d" % amap[2 + mi]); a("s_xor_b32 s14, s14, s15")
    a("s_mov_b32 s42, 0x10000000"); a("s_mov_b32 s43, 0x20000")
    a("s_waitcnt lgkmcnt(0)")
    if ts == 1: T(10)
    a("s_mov_b32 s40, s18"); a("s_mov_b32 s41, s19")
    if ts == 3: T.on = 0
    slot, tok, free, issued = {}, {}, pool[:], [0]
    def issue_next():
        n = issued[0]; issued[0] += 1
        r = free.pop(0); slot[n] = r
        c, t = divmod(n % 64, gran)
        if amap:
            t = 0; a("s_xor_b32 s10, s14, %d" % sum(((n >> i) & 1) << amap[2 + i] for i in range(6)))
        elif t % 4 == 0: a("s_add_u32 s10, s14, %d" % (c * 4096 * gran * (2 if pint else 1) + 1024 * t))
        t %= 4
        tok[n] = vm.issue("buffer_load_dwordx4 %s, v%d, %s, s10 offen offset:%d %s" % (vr(r), vKo if n < 64 and not klin else vVo, sK if n < 64 else sV, 1024 * t, kvf))
        if ts == 3 and n in TSN: T.on = 1; T(1 + TSN.index(n)); T.on = 0
        if n + 1 == sp: a("s_barrier")
        if n + 1 == sv and svk is None: a("s_barrier")
    for _ in range(max(b0, d0)): issue_next()
    if lay: a("s_branch L_smain"); a("; HOIST"); a("L_smain:")
    srd(a, 44, 20, "0x10000000"); srd(a, 52, 38, "0x40000000")
    a("v_bfe_u32 v3, v0, 3, 1"); a("v_bfe_u32 v4, v0, 1, 1"); a("v_lshl_or_b32 v3, v3, 1, v4")
    a("v_and_b32 v4, 1, v0"); a("v_lshlrev_b32 v4, 4, v4"); a("v_mov_b32 v5, 0xffff"); a("v_lshlrev_b32 v4, v4, v5")
    for r in range(4):
        a("v_cmp_eq_u32 vcc, %d, v3" % r); a("v_cndmask_b32 v%d, 0, v4, vcc" % (vMask + r))
    if x1 & 16:
        srd(a, 48, 16, 9216); a("s_lshl_b32 s4, s2, 5"); vm.issue("buffer_load_ushort v254, v0, %s, s4 offen" % sX)
    if x1 & 32:
        for _ in range(60): a("s_mul_i32 s4, s4, 0x1234567")
    oslot("s26"); a("s_lshl_b32 s5, s3, 7"); a("s_add_u32 s26, s26, s5")
    a("s_lshl_b32 s4, s3, 2"); a("v_add_u32 v8, s4, v%d" % vVo); a("v_mov_b32 v253, 0"); a("s_mov_b32 s27, 0")
    if dfree: a("s_cmp_ge_u32 s2, 208"); a("s_cselect_b64 vcc, -1, 0")
    ctl = {"on": False, "tok": None, "n": 0}
    def D0(n):
        if n < nd0: return d0
        if n < nd1: return d0 + 1
        if n < nramp: return d
        return min(dend, d + (n - nramp + 1) // step)
    def D(n): return D0(n) + (lv[-1] - d if fb and n >= R else 0)
    def paced():
        n = issued[0]
        if n < 128:
            if dfree > D(n) and n < nfr:
                if n - dfree >= 0: vm.wait(tok[n - dfree])
                a("s_cbranch_vccnz L_fr%d" % n); a("s_waitcnt vmcnt(%d)" % (vm.n - tok[n - D(n)])); a("L_fr%d:" % n)
            elif n - D(n) >= 0: vm.wait(tok[n - D(n)])
            if ctl["on"]:
                if fb and n % psm == 1: a("s_waitcnt lgkmcnt(0)"); a("v_readfirstlane_b32 s27, v252")
                used = False
                for l_, t_ in reversed(list(zip(lv[:-1], th))) if fb else []:
                    m = n - (D0(n) - d + l_)
                    if tok[m] > vm.done:
                        a("s_cmp_ge_i32 s27, %d" % int(32 * t_)); a("s_cbranch_scc1 L_hi%d" % n); a("s_waitcnt vmcnt(%d)" % (vm.n - tok[m])); used = True
                if used: a("L_hi%d:" % n)
            issue_next()
            if ctl["on"] and ((fb and n % pst == 0) or n == hat):
                a("v_mov_b32 v254, %d" % n); a("ds_write_b32 v8, v254 offset:%d" % L_G)
            if ctl["on"] and fb and n % psm == 0: a("ds_read_b32 v252, v253 offset:%d" % L_C)
    def ahead(n):
        while issued[0] < 128 and issued[0] - D(issued[0]) < n: paced()
    while issued[0] < R:
        paced()
        if issued[0] == max(b0, d0) + 1: T(11)
        if issued[0] == 24: T(1)
        if issued[0] == nfree:
            a("s_cmp_lt_u32 s2, 208"); a("s_cbranch_scc1 L_nofb"); a("s_barrier"); a("L_nofb:")
    T(2)
    a("s_barrier")
    T(3)
    a("ds_read_b128 %s, v%d offset:%d" % (vr(vQ0), vVo, L_Q))
    a("v_mov_b32 v4, 0"); a("ds_read_b32 v4, v4 offset:%d" % L_F)
    a("v_and_b32 v3, 8, v0"); a("v_cmp_eq_u32 vcc, 0, v3"); a("v_mov_b32 v%d, 0xff800000" % vM)
    a("s_mov_b32 s15, %s" % f32(128 ** -0.5))
    a("s_waitcnt lgkmcnt(0)")
    a("v_readfirstlane_b32 s100, v4")
    for i in range(4): a("v_cndmask_b32 v%d, v%d, 0, vcc" % (vQ1 + i, vQ0 + i))
    for i in range(4): a("v_cndmask_b32 v%d, 0, v%d, vcc" % (vQ0 + i, vQ0 + i))
    ctl["on"] = True
    vD += [free.pop(), free.pop()]
    S = []
    def qk(c):
        Dr = vD[c % 4]
        vm.wait(tok[2 * c + 1])
        a(MF % (vr(Dr), vr(slot[2 * c]), vr(vQ0), "0")); a(MF % (vr(Dr), vr(slot[2 * c + 1]), vr(vQ1), vr(Dr)))
        free.extend([slot[2 * c], slot[2 * c + 1]])
    def extract(c):
        if c % 4 == 0: S.extend(range(free[-1], free[-1] + 4)); free.pop()
        x, y, DA, DB = S[c], S[c + 1], vD[c % 4], vD[(c + 1) % 4]
        for i in range(4):
            for s_, Dr in ((x, DA), (y, DB)):
                if i == 0: a("v_mov_b32_dpp v%d, v%d quad_perm:[0,0,0,0] %s" % (s_, Dr, DPP))
                else: a("v_add_f32_dpp v%d, v%d, v%d quad_perm:[%d,%d,%d,%d] %s" % (s_, Dr + i, s_, i, i, i, i, DPP))
        for rep in range(2):
            if not nors & (1 << rep):
                a("v_cvt_pk_bf16_f32 v3, v%d, v%d" % (x, y))
                a("v_lshlrev_b32 v%d, 16, v3" % x); a("v_and_b32 v%d, 0xffff0000, v3" % y)
            if rep == 0: a("v_mul_f32 v%d, s15, v%d" % (x, x)); a("v_mul_f32 v%d, s15, v%d" % (y, y))
        a("v_max3_f32 v%d, v%d, v%d, v%d" % (vM, vM, x, y))
    for c in range(0, 32, 2):
        ahead(2 * c + 3)
        qk(c); qk(c + 1)
        for _ in range(4 // kcatch): paced()
        if c >= 2: extract(c - 2)
    extract(30)
    free.extend(vD[2:])
    T(4)
    paced()
    allreduce(a, "v_max_f32", vM, 3, [8, 16, 32])
    a("s_mov_b32 s15, %s" % f32(L2E)); a("v_mul_f32 v%d, s15, v%d" % (vM, vM)); a("v_mov_b32 v%d, 0" % vL); a("v_mov_b32 v4, 0")
    for c in range(0, 32, 4):
        for i in range(4): a("v_fma_f32 v%d, v%d, s15, -v%d" % (S[c + i], S[c + i], vM))
        for i in range(4): a("v_exp_f32 v%d, v%d" % (S[c + i], S[c + i]))
        for i in range(4): a("v_add_f32 v%d, v%d, v%d" % ((vL, 4)[i % 2], (vL, 4)[i % 2], S[c + i]))
        for i in range(4): a("v_cvt_pk_bf16_f32 v%d, v%d, v%d" % (S[c + i], S[c + i], S[c + i]))
        if c % 8 == 4: paced()
    a("v_add_f32 v%d, v%d, v4" % (vL, vL))
    allreduce(a, "v_add_f32", vL, 3, [8, 16, 32])
    a("v_min_u32 v10, -2, v%d" % vM); a("v_min_u32 v11, -2, v%d" % vL)
    a("v_lshlrev_b32 v9, 1, v0"); a("v_and_b32 v9, 0x78, v9")
    a("s_lshl_b32 s73, s6, 7"); a("s_add_u32 s73, s73, %d" % WS_STAT)
    a("s_lshl_b32 s4, s7, 2"); a("s_add_u32 s4, s4, s3"); a("s_lshl_b32 s4, s4, 4"); a("s_add_u32 s4, s4, s73")
    a("s_mov_b64 exec, 0x11")
    store2("buffer_store_dwordx2 v[10:11], v9, %s, s4 offen" % sWS, "s100"); vm.n += 1
    a("s_mov_b64 exec, -1")
    vB = vD[:2]
    def prepB(n):
        c, t = divmod(n - 64, 2)
        for r in range(4):
            if (r >> 1) == t: a("v_and_b32 v%d, v%d, v%d" % (vB[n % 2] + r, S[c], vMask + r))
            else: a("v_and_b32_dpp v%d, v%d, v%d row_ror:8 %s" % (vB[n % 2] + r, S[c], vMask + r, DPP))
    def stat_valid(): a("v_max_u32 v3, v10, v11"); a("v_cmp_ne_u32 vcc, -1, v3")
    def send_hint():
        k_ = lab("nohint")
        a("s_cmp_lg_u32 s3, %d" % hw); a("s_cbranch_scc1 " + k_); a("s_atomic_add s24, s[38:39], s25"); a(k_ + ":")
    if hint: a("s_and_b32 s25, s6, 15"); a("s_mul_i32 s25, s25, %d" % HSTR); a("s_add_u32 s25, s25, %d" % WS_HNT); a("s_mov_b32 s24, 1")
    prepB(64)
    tstat = None
    ldS = "buffer_load_dwordx2 v[10:11], v9, %s, s73 offen sc1" % sWS
    for n in range(64, 128):
        ahead(n)
        if tstat is None and issued[0] >= stat_at: tstat = vm.issue(ldS)
        vm.wait(tok[n])
        if svk is not None and n == 127 - svk: assert issued[0] == 128; a("s_barrier")
        if hint and n == 127 - hk: a("v_mov_b32 v254, 200"); a("ds_write_b32 v8, v254 offset:%d" % L_G)
        a(MF % (vr(vAcc), vr(slot[n]), vr(vB[n % 2]), "0" if n == 64 else vr(vAcc)))
        free.append(slot[n])
        if n % 2 == 1 and issued[0] < 128 and issued[0] - D(issued[0]) > n: paced()
        if n < 127: prepB(n + 1)
        if tstat and tstat > 0 and vm.done >= tstat:
            stat_valid(); a("s_cmp_eq_u64 vcc, exec"); a("s_cbranch_scc1 L_stat_ok")
            def body(): a(ldS); a("s_waitcnt vmcnt(0)"); stat_valid()
            spin(body, "L_stat")
            a("v_mov_b32 v%d, v10" % vF); allreduce(a, "v_max_f32", vF, 3, [8, 16, 32])
            a("v_sub_f32 v10, v10, v%d" % vF); a("v_sub_f32 v%d, v%d, v%d" % (vF, vM, vF))
            a("v_exp_f32 v10, v10"); a("v_exp_f32 v%d, v%d" % (vF, vF)); a("v_mul_f32 v10, v10, v11")
            paced()
            allreduce(a, "v_add_f32", 10, 3, [8, 16, 32])
            a("v_rcp_f32 v10, v10"); a("v_mul_f32 v%d, v%d, v10" % (vF, vF))
            a("v_bfe_u32 v3, v0, 2, 1"); a("v_lshlrev_b32 v3, 9, v3"); a("v_lshrrev_b32 v4, 4, v0"); a("v_lshl_or_b32 v3, v4, 7, v3")
            a("v_bfe_u32 v4, v0, 3, 1"); a("v_lshl_or_b32 v3, v4, 4, v3"); a("v_and_b32 v4, 3, v0"); a("v_lshl_or_b32 v9, v4, 2, v3")
            a("s_lshl_b32 s4, s3, 10"); a("s_add_u32 s4, s4, %d" % L_OP); a("v_add_u32 v9, s4, v9")
            a("s_lshl_b32 s4, s3, 8"); a("v_lshlrev_b32 v11, 2, v0"); a("v_lshl_add_u32 v10, v0, 3, s4")
            if t1:
                a("v_bfe_u32 v3, v0, 2, 1"); a("v_mul_u32_u24 v9, 704, v3"); a("v_lshrrev_b32 v4, 4, v0"); a("v_mul_u32_u24 v4, 160, v4"); a("v_add_u32 v9, v9, v4")
                a("v_bfe_u32 v3, v0, 3, 1"); a("v_lshl_add_u32 v9, v3, 4, v9"); a("v_and_b32 v3, 3, v0"); a("v_lshl_add_u32 v9, v3, 2, v9")
                a("s_mul_i32 s4, s3, 1536"); a("s_add_u32 s4, s4, %d" % L_OP); a("v_add_u32 v9, s4, v9")
                a("s_lshr_b32 s4, s3, 1"); a("s_mul_i32 s4, s4, 704"); a("s_and_b32 s5, s3, 1"); a("s_mul_i32 s5, s5, 320"); a("s_add_u32 s4, s4, s5")
                a("v_and_b32 v3, 15, v0"); a("v_lshl_add_u32 v10, v3, 3, v4"); a("v_add_u32 v10, s4, v10"); a("v_mov_b32 v%d, v%d" % (vL, vF))
            tstat = -1
    assert tstat == -1
    if nb: a("v_mov_b32 v254, 1")
    if nb and ts: a("s_memrealtime s[88:89]"); a("s_waitcnt lgkmcnt(0)")
    else: T(6)
    if t1:
        for i in (0, 2): a("v_pk_mul_f32 %s, %s, v[6:7]" % (vr(vAcc + i, 2), vr(vAcc + i, 2)))
    else:
        for i in range(4): a("v_mul_f32 v%d, v%d, v%d" % (vAcc + i, vAcc + i, vF))
    a("ds_write2_b32 v9, v%d, v%d offset0:0 offset1:8" % (vAcc, vAcc + 1))
    a("ds_write2_b32 v9, v%d, v%d offset0:16 offset1:24" % (vAcc + 2, vAcc + 3))
    if nb:
        a("s_mov_b64 exec, 1"); a("ds_add_u32 v253, v254 offset:%d" % L_N); a("s_mov_b32 exec_lo, -1")
        a("L_comb:")
        a("ds_read_b32 v4, v253 offset:%d" % L_N)
        for w in range(4): a("ds_read_b64 %s, v10 offset:%d" % (vr(16 + 2 * w, 2), L_OP + 1536 * w))
        a("s_waitcnt lgkmcnt(4)"); a("v_cmp_gt_u32 vcc, 4, v4"); a("s_cbranch_vccnz L_comb")
        a("s_waitcnt lgkmcnt(2)"); a("v_pk_add_f32 v[16:17], v[16:17], v[18:19]")
        a("s_waitcnt lgkmcnt(0)"); a("v_pk_add_f32 v[20:21], v[20:21], v[22:23]"); a("v_pk_add_f32 v[16:17], v[16:17], v[20:21]")
    else:
        a("s_waitcnt lgkmcnt(0)"); a("s_barrier")
        rr = [16, 18, 20, 22]
        a("s_mov_b32 exec_hi, 0")
        for w in range(4): a("ds_read_b64 %s, v10 offset:%d" % (vr(rr[w], 2), L_OP + (1536 if t1 else 1024) * w))
        a("s_waitcnt lgkmcnt(2)"); a("v_pk_add_f32 v[16:17], v[16:17], v[18:19]")
        a("s_waitcnt lgkmcnt(0)"); a("v_pk_add_f32 v[20:21], v[20:21], v[22:23]"); a("v_pk_add_f32 v[16:17], v[16:17], v[20:21]")
    a("v_cvt_pk_bf16_f32 v3, v16, v17"); a("v_min_u32 v3, -2, v3")
    for r_ in range(orep):
        if r_: a("s_add_u32 s26, s26, 0x20000")
        a("buffer_store_dword v3, v11, %s, s26 offen sc1" % sWS)
    if nb: a("s_mov_b64 exec, 1"); a("ds_add_u32 v253, v254 offset:%d" % L_N)
    if wsplit is not None: a("s_barrier")
    if hint and hk == -1: send_hint()
    T(5); T.on = ts; T.flush()
    a("s_endpgm")

    a("; HBEG")
    a("L_help:")
    if ts == 3: T.on = 0
    vLin, vWo = 1, 2
    a("v_lshlrev_b32 v%d, 4, v0" % vLin)
    a("s_mov_b32 s12, 0x05040100"); a("s_mov_b32 s13, 0x07060302")
    a("s_cmp_lg_u32 s3, 4"); a("s_cbranch_scc1 L_h567")
    vm = VM(a); vm.n = 1 if pf == 1 else 0
    vXN, vAc, vTp, vRing, w1blk = 8, 44, 244, 116, 4
    a("s_lshr_b32 s101, s2, 3"); a("s_and_b32 s4, s2, 7")
    a("s_cmp_lt_u32 s101, 8"); a("s_movk_i32 s14, 8192"); a("s_cselect_b32 s14, s14, 9216"); a("s_mov_b32 s58, 4718592"); a("s_cselect_b32 s58, s58, 5308416")
    a("s_cselect_b32 s5, 8, 9"); a("s_cselect_b32 s15, 0, 8"); a("s_mul_i32 s4, s4, s5")
    a("s_cmp_lt_u32 s101, 17"); a("s_cselect_b32 s15, s15, 17"); a("s_sub_u32 s15, s101, s15"); a("s_add_u32 s74, s15, s4"); a("s_lshl_b32 s15, s74, 7")
    if x1 & 2:
        a("s_and_b32 s11, s2, 7"); a("s_mul_i32 s11, s11, 26"); a("s_add_u32 s11, s11, s101")
        a("s_cmp_lt_u32 s11, 64"); a("s_movk_i32 s14, 8192"); a("s_cselect_b32 s14, s14, 9216"); a("s_mov_b32 s58, 4718592"); a("s_cselect_b32 s58, s58, 5308416"); a("s_cselect_b32 s15, 0, 64")
        a("s_cmp_lt_u32 s11, 136"); a("s_cselect_b32 s15, s15, 136"); a("s_sub_u32 s15, s11, s15"); a("s_lshl_b32 s15, s15, 7"); a("s_mov_b32 s10, s11")
    a("v_lshrrev_b32 v3, 3, v0"); a("v_lshlrev_b32 v3, 3, v3"); a("v_mul_u32_u24 v3, s14, v3"); a("v_and_b32 v2, 7, v0"); a("v_lshl_add_u32 v%d, v2, 4, v3" % vWo)
    actaddr(3, 4, 1152)
    if xexp == 1: a("v_mov_b32 v3, v%d" % vLin)
    if wexp == 1:
        a("v_mov_b32 v%d, v%d" % (vWo, vLin)); a("s_mul_i32 s15, s74, 73728"); a("s_mov_b32 s14, 1024")
    if wexp == 2:
        a("v_lshrrev_b32 v5, 4, v0"); a("v_lshlrev_b32 v5, 3, v5"); a("v_mul_u32_u24 v5, s14, v5"); a("v_and_b32 v2, 15, v0"); a("v_lshl_add_u32 v%d, v2, 4, v5" % vWo)
        a("s_and_b32 s4, s74, 1"); a("s_mul_i32 s4, s4, 288"); a("s_mul_i32 s4, s4, s14"); a("s_and_b32 s15, s15, 0xffffff00"); a("s_add_u32 s15, s15, s4")
    if wexp == 3:
        a("v_lshrrev_b32 v5, 3, v0"); a("v_mul_u32_u24 v5, s14, v5"); a("v_and_b32 v2, 7, v0"); a("v_lshl_add_u32 v%d, v2, 4, v5" % vWo); a("s_lshl_b32 s14, s14, 3")
    a("s_mul_i32 s75, s14, %d" % {0: 57, 1: 1, 2: 25, 3: 1, 4: 57}[wexp]); a("s_mov_b32 s59, 0x20000")
    a("s_waitcnt lgkmcnt(0)")
    srd(a, 52, 38, "0x40000000"); srd(a, 64, 36, 256)
    a("s_cmp_ge_u32 s2, 208"); a("s_cbranch_scc1 L_nol1")
    a("s_cmp_lt_u32 s10, 136" if x1 & 2 else "s_cmp_lt_u32 s101, 17"); a("s_cselect_b32 s56, s28, s30"); a("s_cselect_b32 s57, s29, s31")
    a("s_cmp_lt_u32 s10, 64" if x1 & 2 else "s_cmp_lt_u32 s101, 8"); a("s_cselect_b32 s56, s22, s56"); a("s_cselect_b32 s57, s23, s57")
    srd(a, 48, 16, 9216)
    if nol1: a("s_mov_b32 s58, 0")
    if x1 & 8:
        srd(a, 48, 18, "0x10000000"); a("s_lshl_b32 s4, s2, 14")
    def xloads():
        if xexp == 1: a("s_mov_b32 s90, 0"); a("s_mov_b32 s91, 4096"); a("s_mov_b32 s92, 8192")
        for i in range(1 if xexp == 2 else 9): t_ = vm.issue("buffer_load_dwordx4 %s, v3, %s, %s offen offset:%d" % (vr(vXN + 4 * i), sX, "s4" if x1 & 8 else ("s%d" % (90 + i // 4) if xexp == 1 else "0"), 1024 * (i % 4) if xexp == 1 else 128 * i))
        return t_
    if not xlate: tx = xloads()
    w1 = []
    def issue_w1():
        blk, j = divmod(len(w1), 8)
        w1.append(vm.issue("buffer_load_dwordx4 %s, v%d, %s, s15 offen nt" % (vr(vRing + 32 * (blk % w1blk) + 4 * j), vWo, sW1)))
        a("s_add_u32 s15, s15, %s" % ("s75" if j == 7 else "s14"))
        if ts == 3 and len(w1) - 1 in TSW: T.on = 1; T(1 + TSW.index(len(w1) - 1)); T.on = 0
    while len(w1) < burst: issue_w1()
    if lay: a("s_branch L_amain")
    a("; HEND"); a("L_amain:")
    while wexp == 4 and len(w1) < 72: vm.wait(w1[len(w1) - da]); issue_w1()
    if xlate:
        if xlate > 1: vm.wait(w1[0])
        tx = xloads()
    def paced1(blk):
        if len(w1) < 72 and len(w1) < 8 * (blk + w1blk):
            if len(w1) >= da: vm.wait(w1[len(w1) - da])
            issue_w1()
    ln = Asm(); xf = 44
    def unpack_all():
        for i in range(36): ln("v_lshlrev_b32 v%d, 16, v%d" % (xf + 2 * i, vXN + i)); ln("v_and_b32 v%d, 0xffff0000, v%d" % (xf + 2 * i + 1, vXN + i))
    def pack_all():
        for i in range(36): ln("v_cvt_pk_bf16_f32 v%d, v%d, v%d" % (vXN + i, xf + 2 * i, xf + 2 * i + 1))
    for i in range(4): ln("v_mov_b32 v%d, 0x3f803f80" % (244 + i))
    for i in range(9): ln(MF % ("v[248:251]", "v[244:247]", vr(vXN + 4 * i), "0" if i == 0 else "v[248:251]"))
    unpack_all()
    allreduce(ln, "v_add_f32", 248, 249, [0])
    ln("v_mul_f32 v248, %s, v248" % f32(1 / 576)); ln("v_mov_b32 v4, v248"); round_bf16(ln, 4)
    ln("v_sub_f32 v248, v248, v4"); ln("v_sub_f32 v4, 0, v4"); ln("v_mov_b32 v5, v4")
    for i in range(36): ln("v_pk_add_f32 %s, %s, v[4:5]" % (vr(xf + 2 * i, 2), vr(xf + 2 * i, 2)))
    for i in range(36):
        acc = vr(244 + 2 * (i % 2), 2); x2 = vr(xf + 2 * i, 2)
        ln("v_pk_mul_f32 %s, %s, %s" % (acc, x2, x2) if i < 2 else "v_pk_fma_f32 %s, %s, %s, %s" % (acc, x2, x2, acc))
    ln("v_pk_add_f32 v[244:245], v[244:245], v[246:247]"); ln("v_add_f32 v4, v244, v245")
    allreduce(ln, "v_add_f32", 4, 5, [0, 16, 32])
    ln("v_mul_f32 v4, %s, v4" % f32(1 / 576)); ln("v_fma_f32 v4, -v248, v248, v4"); ln("v_max_f32 v4, 0, v4"); round_bf16(ln, 4)
    ln("v_add_f32 v4, %s, v4" % f32(1e-5)); round_bf16(ln, 4)
    ln("v_sqrt_f32 v4, v4"); round_bf16(ln, 4); ln("v_rcp_f32 v4, v4")
    pack_all(); ln("v_mov_b32 v5, v4"); unpack_all()
    for i in range(36): ln("v_pk_mul_f32 %s, %s, v[4:5]" % (vr(xf + 2 * i, 2), vr(xf + 2 * i, 2)))
    pack_all()
    while xlate > 1 and w1[len(w1) - da] < tx: paced1(0)
    vm.wait(tx)
    if ts == 3: T.on = 1; T(11); T.on = 0
    for k, ins in enumerate(ln.ins):
        a(ins.text)
        if k % lnstep == lnstep - 1: paced1(0)
    T(1)
    def flagaddr(): a("v_and_b32 v253, 7, v0"); a("v_and_b32 v254, 24, v0"); a("v_lshl_or_b32 v253, v254, 1, v253"); a("v_lshlrev_b32 v253, 2, v253")
    ldF = "buffer_load_dword v252, v253, %s, 0 offen sc1" % sDBG
    for blk in range(9):
        while len(w1) < min(72, 8 * blk + 7 + da): paced1(blk)
        if blk == flagblk: flagaddr(); tflag = vm.issue(ldF)
        vm.wait(w1[8 * blk + 7])
        block_mm(vRing + 32 * (blk % w1blk), vTp, vAc, vXN + 4 * blk, blk == 0, lambda: paced1(blk))
    T(2)
    block_fold(vTp, vAc)
    for q in range(4): a("v_cvt_pk_bf16_f32 v%d, v%d, v%d" % (12 + q, vTp + 2 * q, vTp + 2 * q + 1))
    for q in range(4): a("v_min_u32 v%d, -2, v%d" % (12 + q, 12 + q))
    vm.wait(tflag)
    a("s_branch L_l1done")
    a("L_nol1:")
    a("s_barrier")
    flagaddr(); a("v_mov_b32 v252, 0")
    a("L_l1done:")
    T(10)
    roles()
    a("s_mov_b32 s5, 0x88888888")
    def fvalid(): a("v_and_b32 v8, s5, v252"); a("v_cmp_eq_u32 vcc, s5, v8")
    if x1 & 64: a("s_branch L_flags_ok")
    fvalid(); a("s_cmp_eq_u64 vcc, exec"); a("s_cbranch_scc1 L_flags_ok")
    def body(): a(ldF); a("s_waitcnt vmcnt(0)"); fvalid()
    spin(body, "L_flags")
    a("v_readfirstlane_b32 s4, v252"); a("v_cmp_eq_u32 vcc, s4, v252"); a("s_cmp_eq_u64 vcc, exec"); a("s_cselect_b32 s100, %d, 0" % loc)
    a("s_cmp_lg_u32 s100, 0"); a("s_cbranch_scc1 L_mode_ok")
    for i in range(4): a("v_mov_b32 v%d, -1" % (16 + i))
    clears("sc1", 16, vLin, 20)
    a("v_mov_b32 v8, 1"); a("v_mov_b32 v9, 36"); a("s_waitcnt vmcnt(0)"); a("s_mov_b64 exec, 1")
    a("buffer_atomic_add v8, v9, %s, 0 offen sc1" % sDBG)
    def body(): a("buffer_load_dword v8, v9, %s, 0 offen sc1" % sDBG); a("s_waitcnt vmcnt(0)"); a("v_cmp_le_u32 vcc, 0x100, v8")
    spin(body, "L_far")
    a("s_mov_b64 exec, -1")
    a("L_mode_ok:")
    T(4)
    l1slot("s72")
    a("s_cmp_ge_u32 s2, 208"); a("s_cbranch_scc1 L_nol1st")
    a("s_sub_u32 s4, s101, 8"); a("s_cmp_lt_u32 s4, 9"); a("s_cbranch_scc1 L_nol1st")
    store2("buffer_store_dwordx4 v[12:15], v%d, %s, s72 offen" % (vLin, sWS), "s100")
    a("L_nol1st:")
    a("v_mov_b32 v8, s100"); a("v_mov_b32 v9, 0"); a("ds_write_b32 v9, v8 offset:%d" % L_F); a("ds_write_b32 v9, v9 offset:%d" % L_C); a("ds_write_b32 v9, v9 offset:%d" % L_GO); a("ds_write_b32 v9, v9 offset:%d" % L_N)
    for i in range(4): a("v_mov_b32 v%d, %d" % (16 + i, R - 1))
    a("ds_write_b128 v9, v[16:19] offset:%d" % L_G)
    a("v_bfe_u32 v3, v0, 2, 1"); a("v_lshlrev_b32 v3, 11, v3"); a("v_lshrrev_b32 v4, 5, v0"); a("v_lshl_or_b32 v3, v4, 10, v3")
    a("v_bfe_u32 v4, v0, 4, 1"); a("v_lshl_or_b32 v3, v4, 6, v3"); a("v_and_b32 v4, 3, v0"); a("v_lshl_or_b32 v3, v4, 4, v3")
    a("s_and_b32 s4, s2, 7"); a("s_lshl_b32 s4, s4, 15"); a("s_and_b32 s5, s6, 1"); a("s_lshl_b32 s5, s5, 12"); a("s_add_u32 s4, s4, s5")
    a("s_lshr_b32 s5, s6, 4"); a("s_lshl_b32 s5, s5, 7"); a("s_add_u32 s4, s4, s5")
    def poll4(r, va, so, label):
        def body():
            a("buffer_load_dwordx4 %s, v%d, %s, %s offen sc1" % (vr(r), va, sWS, so)); a("s_waitcnt vmcnt(0)")
            a("v_max3_u32 v8, v%d, v%d, v%d" % (r, r + 1, r + 2)); a("v_max_u32 v8, v8, v%d" % (r + 3)); a("v_cmp_ne_u32 vcc, -1, v8")
        spin(body, label)
    poll4(4, 3, "s4", "L_qpoll")
    T(11)
    a("ds_write_b128 v%d, v[4:7] offset:%d" % (vLin, L_Q))
    a("s_waitcnt lgkmcnt(0)"); a("s_barrier")
    T(5)
    a("s_sub_u32 s4, s101, 8"); a("s_cmp_ge_u32 s4, 9"); a("s_cbranch_scc1 L_noh")
    a("s_add_u32 s4, s72, %d" % (9 * 1024))
    poll4(16, vLin, "s4", "L_upoll")
    a("s_mov_b32 s4, %s" % f32(0.044715)); a("s_mov_b32 s5, %s" % f32(-2 * (2 / 3.141592653589793) ** 0.5 * L2E))
    g, e = list(range(24, 32)), list(range(32, 40))
    def unpack(dst, src):
        for q in range(4): a("v_lshlrev_b32 v%d, 16, v%d" % (dst[2 * q], src + q)); a("v_and_b32 v%d, 0xffff0000, v%d" % (dst[2 * q + 1], src + q))
    def pack(dst, src):
        for q in range(4): a("v_cvt_pk_bf16_f32 v%d, v%d, v%d" % (dst + q, src[2 * q], src[2 * q + 1]))
    unpack(g, 12)
    for i in range(8): a("v_mul_f32 v%d, v%d, v%d" % (e[i], g[i], g[i]))
    for i in range(8): a("v_fma_f32 v%d, v%d, s4, 1.0" % (e[i], e[i]))
    for i in range(8): a("v_mul_f32 v%d, v%d, v%d" % (e[i], e[i], g[i]))
    for i in range(8): a("v_mul_f32 v%d, s5, v%d" % (e[i], e[i]))
    for i in range(8): a("v_exp_f32 v%d, v%d" % (e[i], e[i]))
    for i in range(8): a("v_add_f32 v%d, 1.0, v%d" % (e[i], e[i]))
    for i in range(8): a("v_rcp_f32 v%d, v%d" % (e[i], e[i]))
    for i in range(8): a("v_mul_f32 v%d, v%d, v%d" % (g[i], g[i], e[i]))
    pack(12, g); unpack(g, 12); unpack(e, 16)
    for i in range(8): a("v_mul_f32 v%d, v%d, v%d" % (g[i], g[i], e[i]))
    pack(12, g)
    a("s_lshl_b32 s4, s74, 10"); a("s_add_u32 s4, s4, %d" % WS_H)
    if he:
        for q in range(4): a("v_min_u32 v%d, -2, v%d" % (12 + q, 12 + q))
    if not x1 & 128: a("buffer_store_dwordx4 v[12:15], v%d, %s, s4 offen sc1" % (vLin, sWS))
    a("v_mov_b32 v8, 1"); a("v_mov_b32 v9, 32"); a("s_waitcnt vmcnt(0)"); a("s_mov_b64 exec, 1")
    if not x1 & 4 and not he:
        if sat: a("s_mov_b32 s4, 1"); a("s_atomic_add s4, s[36:37], 32"); a("s_waitcnt lgkmcnt(0)")
        else: a("buffer_atomic_add v8, v9, %s, 0 offen sc1" % sDBG)
    a("s_mov_b64 exec, -1")
    a("L_noh:")
    T(6)
    a("s_cmp_lt_u32 s8, 28"); a("s_cbranch_scc1 L_l2")
    if hint and hk != -1: hint_addr(); a("s_atomic_add s22, s[38:39], s23"); a("s_waitcnt lgkmcnt(0)")
    a("s_branch L_hdone")

    a("L_h567:")
    if pf == 2:
        a("s_lshr_b32 s8, s2, 3"); a("s_mul_i32 s8, s8, 3"); a("s_add_u32 s8, s8, s3"); a("s_sub_u32 s8, s8, 5"); a("s_lshl_b32 s8, s8, 7")
        a("s_min_u32 s9, s8, L_codeend-L_pc-4"); a("s_load_dword s94, s[96:97], s9")
        a("s_add_u32 s8, s8, %d" % (96 * 128)); a("s_min_u32 s9, s8, L_codeend-L_pc-4"); a("s_load_dword s95, s[96:97], s9")
    roles()
    a("s_waitcnt lgkmcnt(0)")
    srd(a, 52, 38, "0x40000000"); srd(a, 64, 36, 256)
    if xlate:
        a("s_lshr_b32 s4, s2, 3"); a("s_mul_i32 s4, s4, 3"); a("s_add_u32 s4, s4, s3"); a("s_sub_u32 s4, s4, 5"); a("s_min_u32 s4, s4, 71"); a("s_lshl_b32 s4, s4, 7")
        a("s_load_dword s95, s[16:17], s4")
    a("s_cmp_lg_u32 s3, 5"); a("s_cbranch_scc1 L_h67")
    for i in range(4): a("v_mov_b32 v%d, -1" % (4 + i))
    oslot("s74"); a("v_lshlrev_b32 v3, 3, v0")
    for r_ in range(0 if noclear & 2 else orep):
        if r_: a("s_add_u32 s74, s74, 0x20000")
        a("buffer_store_dwordx2 v[4:5], v3, %s, s74 offen sc1" % sWS)
    if he:
        a("s_lshr_b32 s4, s2, 3"); a("s_sub_u32 s4, s4, 8"); a("s_cmp_ge_u32 s4, 9"); a("s_cbranch_scc1 L_nohcl")
        a("s_and_b32 s5, s2, 7"); a("s_mul_i32 s5, s5, 9"); a("s_add_u32 s4, s4, s5"); a("s_lshl_b32 s4, s4, 10"); a("s_add_u32 s4, s4, %d" % WS_H)
        a("buffer_store_dwordx4 v[4:7], v%d, %s, s4 offen sc1" % (vLin, sWS))
        a("L_nohcl:")
    if er:
        clears("", 4, vLin, 8, er & 7, 'local2', True)
        if er & 8:
            a("s_and_b32 s4, s2, 7"); a("s_lshl_b32 s4, s4, 8"); a("s_add_u32 s4, s4, %d" % WS_PRG); a("s_mov_b64 exec, 0x101"); a("buffer_load_dword v10, v%d, %s, s4 offen" % (vLin, sWS)); a("s_mov_b64 exec, -1")
        a("s_waitcnt vmcnt(0)")
    if not noclear & 1: clears(cf, 4, vLin, 8, part='remote' if lc else 'all')
    if fb:
        a("s_and_b32 s4, s2, 7"); a("s_lshl_b32 s4, s4, 8"); a("s_lshr_b32 s5, s2, 3"); a("s_lshl_b32 s5, s5, 2"); a("s_add_u32 s4, s4, s5"); a("s_add_u32 s4, s4, %d" % WS_PRG)
        a("v_mov_b32 v8, %d" % (4 * (R - 4))); a("s_mov_b64 exec, 1"); a("buffer_store_dword v8, v%d, %s, s4 offen" % (vLin, sWS))
        if lc: a("buffer_store_dword v%d, v%d, %s, s4 offen offset:128" % (vLin, vLin, sWS))
        a("s_mov_b64 exec, -1")
    if gb:
        a("s_cmp_ge_u32 s2, 8"); a("s_cbranch_scc1 L_nobcn0")
        a("s_mul_i32 s4, s2, %d" % BSTR); a("s_add_u32 s4, s4, %d" % WS_BCN)
        a("v_mov_b32 v10, %d" % (128 * (R - 4))); a("v_mov_b32 v11, %d" % (-128 * gbias)); a("s_mov_b64 exec, 1"); a("buffer_store_dwordx2 v[10:11], v%d, %s, s4 offen sc1" % (vLin, sWS))
        a("s_lshl_b32 s4, s2, 8"); a("s_add_u32 s4, s4, %d" % WS_PRG); a("buffer_store_dword v%d, v%d, %s, s4 offen offset:128" % (vLin, vLin, sWS)); a("s_mov_b64 exec, -1")
        a("L_nobcn0:")
    if hint:
        a("s_cmp_ge_u32 s2, 16"); a("s_cbranch_scc1 L_nohc")
        a("s_mul_i32 s4, s2, %d" % HSTR); a("s_add_u32 s4, s4, %d" % WS_HNT)
        a("v_mov_b32 v9, 0"); a("s_mov_b64 exec, 1"); a("buffer_store_dword v9, v%d, %s, s4 offen sc1" % (vLin, sWS)); a("s_mov_b64 exec, -1")
        a("L_nohc:")
    a("s_getreg_b32 s5, hwreg(HW_REG_XCC_ID, 0, 3)"); a("s_or_b32 s5, s5, 8"); a("s_and_b32 s4, s2, 7"); a("s_lshl_b32 s4, s4, 2"); a("s_lshl_b32 s5, s5, s4")
    a("v_mov_b32 v8, s5"); a("v_mov_b32 v9, 0"); a("s_bfe_u32 s4, s2, 0x30003"); a("s_lshl_b32 s4, s4, 2"); a("s_and_b32 s10, s2, 192"); a("s_add_u32 s4, s4, s10")
    a("s_waitcnt vmcnt(0)"); a("s_mov_b64 exec, 1")
    if not x1 & 64: a("s_atomic_or s5, s[36:37], s4\ns_waitcnt lgkmcnt(0)" if sat else "buffer_atomic_or v8, v9, %s, s4 offen sc1" % sDBG)
    a("s_mov_b64 exec, -1")
    T(3)
    a("L_h67:")
    if fb: a("s_cmp_eq_u32 s3, 7"); a("s_cselect_b32 s4, 0, s8"); a("s_cmp_ge_u32 s4, 28"); a("s_cbranch_scc1 L_hdone")
    else:
        a("s_cmp_ge_u32 s8, 28"); a("s_cbranch_scc1 L_hdone")
        a("s_cmp_eq_u32 s3, 7"); a("s_cselect_b32 s4, s8, 0"); a("s_cmp_ge_u32 s4, 16"); a("s_cbranch_scc1 L_hdone")
    a("s_cmp_lt_u32 s2, 208"); a("s_cbranch_scc1 L_nofb2"); a("s_barrier"); a("L_nofb2:")
    a("s_barrier")
    a("v_mov_b32 v4, 0"); a("ds_read_b32 v4, v4 offset:%d" % L_F); a("s_waitcnt lgkmcnt(0)"); a("v_readfirstlane_b32 s100, v4")
    if fb:
        a("s_cmp_lg_u32 s3, 7"); a("s_cbranch_scc1 L_l2")
        a("s_cmp_eq_u32 s100, 0"); a("s_cbranch_scc1 L_ctl_done")
        a("s_and_b32 s74, s2, 7"); a("s_lshl_b32 s74, s74, 8"); a("s_add_u32 s74, s74, %d" % WS_PRG); a("s_lshr_b32 s4, s2, 3"); a("s_lshl_b32 s4, s4, 2"); a("s_add_u32 s72, s74, s4")
        a("v_and_b32 v8, 31, v0"); a("v_lshlrev_b32 v8, 2, v8"); a("v_mov_b32 v9, 0")
        a("s_and_b32 s4, s2, 7"); a("s_cselect_b32 s4, s2, 0"); a("s_cmp_ge_u32 s4, 224"); a("s_cselect_b32 s75, %d, 0" % (32 * lead)); a("s_add_u32 s75, s75, %d" % int(32 * bias))
        if leadd:
            a("s_cmp_ge_u32 s8, 16"); a("s_cselect_b32 s4, %d, %d" % (1, -1)); a("s_mul_i32 s4, s4, %d" % int(16 * leadd)); a("s_and_b32 s5, s2, 7"); a("s_cselect_b32 s4, s4, 0"); a("s_add_u32 s75, s75, s4")
        if gb:
            a("v_cmp_gt_u32 vcc, 32, v0"); a("v_mov_b32 v10, 128"); a("v_cndmask_b32 v8, v10, v8, vcc")
            a("s_and_b32 s73, s2, 7"); a("s_mul_i32 s73, s73, %d" % BSTR); a("s_add_u32 s73, s73, %d" % WS_BCN); a("v_lshlrev_b32 v11, 3, v0")
        a("s_mov_b32 s11, %d" % SPIN)
        a("L_ctl:")
        a("ds_read_b128 v[12:15], v9 offset:%d" % L_G); a("s_waitcnt lgkmcnt(0)")
        a("v_add3_u32 v12, v12, v13, v14"); a("v_add_u32 v12, v12, v15"); a("s_mov_b64 exec, 1")
        a("buffer_store_dword v12, v9, %s, s72 offen" % sWS); a("s_mov_b64 exec, -1")
        a("v_readfirstlane_b32 s14, v12"); a("s_cmp_ge_u32 s14, %d" % (4 * fbend)); a("s_cbranch_scc1 L_ctl_end")
        a("buffer_load_dword v16, v8, %s, s74 offen sc1" % sWS)
        if gb:
            a("s_and_b32 s26, s11, %d" % (gdiv - 1)); a("s_lshl_b32 s26, s26, 8"); a("s_add_u32 s26, s26, s2")
            a("s_cmp_ge_u32 s26, 8"); a("s_cbranch_scc1 L_nobl");
            for r_ in range(8): a("s_load_dwordx2 s[%d:%d], s[38:39], %d glc" % (80 + 2 * r_, 81 + 2 * r_, WS_BCN + BSTR * r_))
            a("L_nobl:")
        a("s_waitcnt vmcnt(0) lgkmcnt(0)")
        if gb: a("v_readlane_b32 s5, v16, 32")
        allreduce(a, "v_add_u32", 16, 17, [8, 4, 2, 1, 16])
        if gb:
            a("s_cmp_ge_u32 s26, 8"); a("s_cbranch_scc1 L_nobcn")
            a("v_readfirstlane_b32 s4, v16")
            for r_ in range(82, 96, 2): a("s_add_u32 s80, s80, s%d" % r_); a("s_add_u32 s81, s81, s%d" % (r_ + 1))
            a("s_lshr_b32 s80, s80, 3"); a("s_ashr_i32 s81, s81, 3"); a("s_sub_u32 s80, s80, s4")
            a("v_mov_b32 v17, s80"); a("s_sub_u32 s5, s80, s81"); a("s_mul_i32 s5, s5, %d" % (0 if gz else gb)); a("s_ashr_i32 s5, s5, 4")
            if gclip: a("s_min_i32 s5, s5, %d" % int(32 * gclip)); a("s_max_i32 s5, s5, %d" % int(-32 * gclip))
            a("v_mov_b32 v18, s5")
            a("s_mov_b64 exec, %d" % bex); a("buffer_store_dwordx2 v[16:17], v11, %s, s73 offen sc1" % sWS); a("s_mov_b64 exec, 1"); a("buffer_store_dword v18, v9, %s, s74 offen offset:128" % sWS); a("s_mov_b64 exec, -1")
            a("L_nobcn:")
            a("s_add_u32 s5, s5, s75")
        a("v_lshrrev_b32 v16, 2, v16"); a("v_lshlrev_b32 v12, 3, v12"); a("v_sub_u32 v16, v16, v12"); a("v_add_u32 v16, %s, v16" % ("s5" if gb else "s75"))
        a("s_mov_b64 exec, 1"); a("ds_write_b32 v9, v16 offset:%d" % L_C); a("s_mov_b64 exec, -1")
        a("s_sub_u32 s11, s11, 1"); a("s_cmp_lg_u32 s11, 0"); a("s_cbranch_scc1 L_ctl")
        a("L_ctl_end:")
        a("v_mov_b32 v12, %d" % (4 * fin)); a("s_mov_b64 exec, 1"); a("buffer_store_dword v12, v9, %s, s72 offen" % sWS); a("s_mov_b64 exec, -1")
        a("L_ctl_done:")
        a("s_cmp_ge_u32 s8, 16"); a("s_cbranch_scc1 L_hdone")

    a("L_l2:")
    a("s_sub_u32 s101, s3, 4")
    a("s_mul_i32 s73, s9, %d" % (8 * 7168)); a("s_lshl_b32 s5, s8, 8"); a("s_add_u32 s73, s73, s5"); a("s_add_u32 s73, s73, %d" % WS_P)
    a("s_lshl_b32 s4, s101, 11"); a("v_add_u32 v5, s4, v%d" % vLin)
    a("s_cmp_ge_u32 s8, 16"); a("s_cbranch_scc1 L_down")
    def publish(n, vE):
        for w in range(n): a("ds_read_b128 %s, v6 offset:%d" % (vr(vE[w]), L_LP + 2048 * w))
        a("s_waitcnt lgkmcnt(%d)" % (n - 2))
        for i in (0, 2): a("v_pk_add_f32 %s, %s, %s" % (vr(vE[0] + i, 2), vr(vE[0] + i, 2), vr(vE[1] + i, 2)))
        a("s_waitcnt lgkmcnt(0)")
        if n == 4:
            for i in (0, 2): a("v_pk_add_f32 %s, %s, %s" % (vr(vE[2] + i, 2), vr(vE[2] + i, 2), vr(vE[3] + i, 2)))
        for i in (0, 2): a("v_pk_add_f32 %s, %s, %s" % (vr(vE[0] + i, 2), vr(vE[0] + i, 2), vr(vE[2] + i, 2)))
        for i in range(4): a("v_min_u32 v%d, -2, v%d" % (vE[0] + i, vE[0] + i))
        store2("buffer_store_dwordx4 %s, v7, %s, s73 offen" % (vr(vE[0]), sWS), "s100")
    vm = VM(a)
    vA, vE, vW, vP, A4, Y4 = [16, 20], [24, 28, 32, 36], 40, 72, 104, 108
    srd(a, 60, 24, 4718592); srd(a, 48, 16, 9216); srd(a, 68, 34, 9216)
    a("v_lshrrev_b32 v3, 4, v0"); a("v_mul_u32_u24 v2, %d, v3" % (8 * 1152)); a("v_and_b32 v4, 15, v0"); a("v_lshl_add_u32 v2, v4, 3, v2")
    a("v_mul_u32_u24 v7, %d, v3" % (2 * 7168)); a("v_lshl_add_u32 v7, v4, 4, v7")
    a("v_lshlrev_b32 v9, 9, v4"); a("v_lshl_or_b32 v9, v3, 4, v9")
    if wx4:
        a("v_bfe_u32 v8, v0, 3, 1"); a("v_and_b32 v4, 7, v0")
        a("v_mul_u32_u24 v2, %d, v3" % (8 * 1152)); a("v_mul_u32_u24 v6, %d, v8" % (32 * 1152)); a("v_add_u32 v2, v2, v6"); a("v_lshl_add_u32 v2, v4, 4, v2")
        a("v_mul_u32_u24 v7, %d, v3" % (2 * 7168)); a("v_lshl_add_u32 v7, v4, 5, v7"); a("v_lshl_add_u32 v7, v8, 4, v7")
    a("s_lshl_b32 s72, s8, 2"); a("s_add_u32 s72, s72, s101"); a("s_mul_i32 s72, s72, %d" % (64 * 1152)); a("s_lshl_b32 s4, s9, 7"); a("s_add_u32 s72, s72, s4")
    a("s_lshl_b32 s14, s8, 13"); a("s_lshl_b32 s5, s101, 7"); a("s_add_u32 s14, s14, s5"); a("s_add_u32 s14, s14, %d" % WS_O)
    if orep > 1: a("s_and_b32 s5, s9, %d" % (orep - 1)); a("s_lshl_b32 s5, s5, 17"); a("s_add_u32 s14, s14, s5")
    a("s_and_b32 s15, s101, 1"); a("s_mul_i32 s4, s15, 7168"); a("s_add_u32 s73, s73, s4"); a("s_lshl_b32 s4, s15, 10"); a("v_add_u32 v6, s4, v%d" % vLin)
    a("s_lshr_b32 s4, s8, 1"); a("s_and_b32 s5, s8, 1"); a("s_lshl_b32 s5, s5, 1"); a("s_add_u32 s5, s5, s15")
    a("s_lshl_b32 s74, s9, 3"); a("s_add_u32 s74, s74, s4"); a("s_mul_i32 s74, s74, 7168"); a("s_lshl_b32 s15, s5, 6"); a("s_add_u32 s74, s74, s15"); a("s_add_u32 s74, s74, %d" % WS_P)
    a("s_mul_i32 s75, s4, 1152"); a("s_lshl_b32 s15, s9, 7"); a("s_add_u32 s75, s75, s15"); a("s_lshl_b32 s15, s5, 5"); a("s_add_u32 s75, s75, s15")
    a("s_add_u32 s15, s74, 4096")
    a("v_and_b32 v4, 3, v0"); a("v_lshlrev_b32 v11, 3, v4"); a("v_lshl_or_b32 v11, v3, 1, v11")
    a("v_lshrrev_b32 v3, 2, v0"); a("v_lshlrev_b32 v3, 8, v3"); a("v_lshl_or_b32 v10, v4, 4, v3")
    a("buffer_load_ushort v12, v11, %s, s75 offen" % sX)
    for i in range(4): a("v_mov_b32 v%d, 0" % (Y4 + i))
    a("s_mov_b32 s30, -1"); a("s_mov_b32 s31, 0xffff"); a("s_mov_b64 s[28:29], -1")
    late_clear()
    a("s_barrier")
    ldO = ["buffer_load_dwordx4 %s, v9, %s, s14 offen offset:%d sc1" % (vr(vA[kb]), sWS, 64 * kb) for kb in range(2)]
    ldA = "buffer_load_dwordx4 %s, v10, %s, s74 offen sc1" % (vr(A4), sWS)
    ldY = "buffer_load_dwordx4 %s, v10, %s, s15 offen sc1" % (vr(Y4), sWS)
    def prel():
        a("s_cmp_lt_u32 s101, 2"); a("s_cbranch_scc1 L_nopre")
        if lc:
            a("s_cmp_eq_u32 s100, 0"); a("s_cbranch_scc1 L_clr_ok"); a("s_mov_b64 exec, s[26:27]")
            a("v_cmp_ne_u32 vcc, 0, v14"); a("s_cmp_eq_u64 vcc, exec"); a("s_cbranch_scc1 L_clr_ok")
            def body(): a(ldC); a("s_waitcnt vmcnt(0)"); a("v_cmp_ne_u32 vcc, 0, v14")
            spin(body, "L_clr"); a("s_mov_b64 exec, -1")
        a(ldA); a("s_mov_b64 exec, s[30:31]"); a(ldY); a("s_mov_b64 exec, -1")
        a("L_nopre:")
    if prelate == 3: prel()
    if lc:
        a("s_and_b32 s22, s2, 7"); a("s_lshl_b32 s22, s22, 8"); a("s_add_u32 s22, s22, %d" % (WS_PRG + 128)); a("v_lshlrev_b32 v13, 2, v0")
        a("s_mov_b32 s26, 0x0fffffff"); a("s_cmp_eq_u32 s9, 0"); a("s_cselect_b32 s26, 0xffff, s26"); a("s_cmp_eq_u32 s9, 8"); a("s_cselect_b32 s26, 0xffff0000, s26"); a("s_mov_b32 s27, 0")
        ldC = "buffer_load_dword v14, v13, %s, s22 offen sc1" % sWS
    w2 = []
    if wx4:
        for j in range(8):
            if j == wsplit: s2_helper(); a("s_barrier")
            if j % 4 == 0: a("s_add_u32 s5, s72, %d" % (j * 1152))
            w2.append(vm.issue("buffer_load_dwordx4 %s, v2, %s, s5 offen offset:%d nt" % (vr(vW + 4 * j), sW2, 1152 * (j % 4))))
    if lc: a("s_mov_b64 exec, s[26:27]"); w2[7] = vm.issue(ldC); a("s_mov_b64 exec, -1")
    for k in range(0 if wx4 else 16):
        kb, j = divmod(k, 8)
        if j % 4 == 0: a("s_add_u32 s5, s72, %d" % ((32 * kb + j) * 1152))
        w2.append(vm.issue("buffer_load_dwordx2 %s, v2, %s, s5 offen offset:%d nt" % (vr(vW + 2 * k, 2), sW2, 1152 * (j % 4))))
    if wsplit is None: s2_helper()
    if wx4:
        if hint:
            a("v_mov_b32 v13, 0"); a("s_mov_b32 s11, %d" % SPIN)
            a("s_cmp_lg_u32 s101, 0"); a("s_cbranch_scc1 L_gow")
            a("s_mul_i32 s4, s8, %d" % HSTR); a("s_add_u32 s4, s4, %d" % WS_HNT)
            a("L_gop:"); a("s_load_dword s5, s[38:39], s4 glc"); a("s_sub_u32 s11, s11, 1"); a("s_waitcnt lgkmcnt(0)")
            a("s_cmp_ge_u32 s5, %d" % hn); a("s_cselect_b32 s11, 0, s11"); a("s_cmp_lg_u32 s11, 0"); a("s_cbranch_scc1 L_gop")
            if nb:
                a("v_mov_b32 v14, 16"); a("s_mov_b64 exec, 1"); a("ds_write_b32 v13, v14 offset:%d" % L_GO); a("s_mov_b64 exec, -1"); a("s_mov_b32 s11, %d" % SPIN)
                a("L_gow:"); a("ds_read_b64 v[14:15], v13 offset:%d" % L_GO); a("s_sub_u32 s11, s11, 1"); a("s_waitcnt lgkmcnt(0)"); a("v_add_u32 v14, v14, v15"); a("v_readfirstlane_b32 s5, v14")
                a("s_cmp_ge_u32 s5, %d" % (16 + nb)); a("s_cselect_b32 s11, 0, s11"); a("s_cmp_lg_u32 s11, 0"); a("s_cbranch_scc1 L_gow")
            else:
                a("v_mov_b32 v14, 1"); a("ds_write_b32 v13, v14 offset:%d" % L_GO); a("s_branch L_go")
                a("L_gow:"); a("ds_read_b32 v14, v13 offset:%d" % L_GO); a("s_sub_u32 s11, s11, 1"); a("s_waitcnt lgkmcnt(0)"); a("v_readfirstlane_b32 s5, v14")
                a("s_cmp_lg_u32 s5, 0"); a("s_cselect_b32 s11, 0, s11"); a("s_cmp_lg_u32 s11, 0"); a("s_cbranch_scc1 L_gow")
            a("L_go:")
            T(3)
        else: vm.wait(w2[min(wx4, 8) - 1])
        if prelate == 2: assert wx4 == 8 and not hint; prel()
        if wx4 <= 8:
            for t_ in ldO: vm.issue(t_)
        for q in range(4) if pp else []:
            vm.wait(w2[2 * q + 1])
            js = (2 * q, 2 * q + 1)
            for j in js:
                for r in range(2): a("v_mov_b32 v%d, v%d" % (112 + 2 * j + r, vW + 4 * j + r))
            for j in js:
                for r in range(2): a("v_mov_b32_dpp v%d, v%d row_ror:8 row_mask:0xf bank_mask:0xc" % (vW + 4 * j + r, vW + 4 * j + 2 + r))
            for j in js:
                for r in range(2): a("v_mov_b32_dpp v%d, v%d row_ror:8 row_mask:0xf bank_mask:0x3" % (vW + 4 * j + 2 + r, 112 + 2 * j + r))
            for kb in range(2):
                for i in range(4):
                    a("v_perm_b32 v%d, v%d, v%d, s%d" % (vP + 16 * kb + 4 * i + q, vW + 4 * (2 * q + 1) + 2 * kb + i // 2, vW + 4 * (2 * q) + 2 * kb + i // 2, 12 + i % 2))
        if not pp:
            vm.wait(w2[7])
            for j in range(8):
                for r in range(2): a("v_mov_b32 v%d, v%d" % (112 + 2 * j + r, vW + 4 * j + r))
            for j in range(8):
                for r in range(2): a("v_mov_b32_dpp v%d, v%d row_ror:8 row_mask:0xf bank_mask:0xc" % (vW + 4 * j + r, vW + 4 * j + 2 + r))
            for j in range(8):
                for r in range(2): a("v_mov_b32_dpp v%d, v%d row_ror:8 row_mask:0xf bank_mask:0x3" % (vW + 4 * j + 2 + r, 112 + 2 * j + r))
            for kb in range(2):
                for i in range(4):
                    for q in range(4):
                        a("v_perm_b32 v%d, v%d, v%d, s%d" % (vP + 16 * kb + 4 * i + q, vW + 4 * (2 * q + 1) + 2 * kb + i // 2, vW + 4 * (2 * q) + 2 * kb + i // 2, 12 + i % 2))
        if wx4 > 8:
            for t_ in ldO: vm.issue(t_)
    else:
        if oearly:
            vm.wait(w2[oearly - 1])
            for t_ in ldO: vm.issue(t_)
        for kb in range(2):
            vm.wait(w2[8 * kb + 7])
            for i in range(4):
                for q in range(4):
                    a("v_perm_b32 v%d, v%d, v%d, s%d" % (vP + 16 * kb + 4 * i + q, vW + 2 * (8 * kb + 2 * q + 1) + i // 2, vW + 2 * (8 * kb + 2 * q) + i // 2, 12 + i % 2))
            if kb == 0 and not oearly:
                for t_ in ldO: vm.issue(t_)
    T(7)
    a("s_waitcnt vmcnt(0)")
    if not prelate: prel()
    mpoll("L_opoll", [(28, ldO, list(range(16, 24)))], npo)
    T(8)
    if prelate == 1 and not pl: prel()
    for kb in range(2):
        for i in range(4): a(MF % (vr(vE[i]), vr(vA[kb]), vr(vP + 16 * kb + 4 * i), "0" if kb == 0 else vr(vE[i])))
    if prelate == 1 and pl: prel()
    for x in range(2):
        for i in range(4): a("v_add_f32 v%d, v%d, v%d" % (vW + 4 * x + i, vE[i] + 2 * x, vE[i] + 2 * x + 1))
        a("ds_write_b128 v5, %s offset:%d" % (vr(vW + 4 * x), L_LP + 1024 * x))
    a("s_waitcnt lgkmcnt(0)"); a("s_barrier")
    a("s_cmp_ge_u32 s101, 2"); a("s_cbranch_scc1 L_final")
    publish(4, vE)
    a("s_branch L_hdone")
    a("L_final:")
    a("v_lshlrev_b32 v12, 16, v12")
    if prelate == 4: prel()
    a("s_mov_b64 s[28:29], -1"); a("s_waitcnt vmcnt(0)")
    if t3:
        def fold(r):
            a("v_permlane32_swap_b32 v%d, v%d" % (r, r + 2)); a("v_permlane32_swap_b32 v%d, v%d" % (r + 1, r + 3))
            a("v_pk_add_f32 %s, %s, %s" % (vr(r, 2), vr(r, 2), vr(r + 2, 2)))
            a("v_permlane16_swap_b32 v%d, v%d" % (r, r + 1)); a("v_add_f32 v%d, v%d, v%d" % (r, r, r + 1))
            for k in (8, 4): a("v_add_f32_dpp v%d, v%d, v%d row_ror:%d %s" % (r, r, r, k, DPP))
            round_bf16(a, r)
        a("s_mov_b64 exec, s[30:31]")
        mpoll("L_ypoll", [(30, [ldY], list(range(Y4, Y4 + 4)))], 1)
        if pf3:
            B4 = 112; ldB = ldA.replace(vr(A4), vr(B4))
            def chk(r, tgt):
                a("s_waitcnt vmcnt(1)"); a("v_max3_u32 v3, v%d, v%d, v%d" % (r, r + 1, r + 2)); a("v_max_u32 v3, v3, v%d" % (r + 3)); a("v_cmp_eq_u32 vcc, -1, v3"); a("s_cbranch_vccz " + tgt)
            a(ldA); fold(Y4); a("s_mov_b32 s11, %d" % SPIN)
            a("L_pp:"); a(ldB); chk(A4, "L_ppa"); a(ldA); chk(B4, "L_ppb")
            a("s_sub_u32 s11, s11, 1"); a("s_cmp_lg_u32 s11, 0"); a("s_cbranch_scc1 L_pp")
            a("L_ppb:"); fold(B4); a("v_add_f32 v4, v12, v%d" % B4); a("s_branch L_ppe")
            a("L_ppa:"); fold(A4); a("v_add_f32 v4, v12, v%d" % A4)
            a("L_ppe:"); round_bf16(a, 4); a("v_add_f32 v4, v4, v%d" % Y4); a("v_cvt_pk_bf16_f32 v4, v4, v4")
        else:
            a(ldA); fold(Y4); a("s_waitcnt vmcnt(0)")
            mpoll("L_ppoll", [(28, [ldA], list(range(A4, A4 + 4)))], 1)
            fold(A4)
            a("v_add_f32 v4, v12, v%d" % A4); round_bf16(a, 4); a("v_add_f32 v4, v4, v%d" % Y4); a("v_cvt_pk_bf16_f32 v4, v4, v4")
    else:
        mpoll("L_ppoll", [(28, [ldA], list(range(A4, A4 + 4))), (30, [ldY], list(range(Y4, Y4 + 4)))], npa)
        for r in (A4, Y4): a("v_permlane32_swap_b32 v%d, v%d" % (r, r + 2)); a("v_permlane32_swap_b32 v%d, v%d" % (r + 1, r + 3))
        for r in (A4, Y4): a("v_add_f32 v%d, v%d, v%d" % (r, r, r + 2)); a("v_add_f32 v%d, v%d, v%d" % (r + 1, r + 1, r + 3))
        for r in (A4, Y4): a("v_permlane16_swap_b32 v%d, v%d" % (r, r + 1))
        for r in (A4, Y4): a("v_add_f32 v%d, v%d, v%d" % (r, r, r + 1))
        for k in (8, 4):
            for r in (A4, Y4): a("v_add_f32_dpp v%d, v%d, v%d row_ror:%d %s" % (r, r, r, k, DPP))
        a("v_cvt_pk_bf16_f32 v3, v%d, v%d" % (A4, Y4)); a("v_lshlrev_b32 v4, 16, v3"); a("v_and_b32 v3, 0xffff0000, v3")
        a("v_add_f32 v4, v12, v4"); round_bf16(a, 4); a("v_add_f32 v4, v4, v3"); a("v_cvt_pk_bf16_f32 v4, v4, v4")
    a("s_mov_b32 exec_lo, 0x000f000f"); a("s_mov_b32 exec_hi, 0x000f000f")
    if hold:
        a("L_hold:"); a("s_memrealtime s[78:79]"); a("s_waitcnt lgkmcnt(0)"); a("s_sub_u32 s78, s78, s76"); a("s_cmp_lt_u32 s78, %d" % (hold * 100)); a("s_cbranch_scc1 L_hold")
    a("buffer_store_short v4, v11, %s, s75 offen %s" % (sOUT, osf))
    a("s_branch L_hdone")

    a("L_down:")
    vm = VM(a)
    vH, vAc, vTp, vW = 16, 24, 56, 64
    srd(a, 60, 32, 5308416)
    a("s_cmp_lt_u32 s2, 224"); a("s_cselect_b32 s100, s100, 0")
    a("v_lshrrev_b32 v3, 3, v0"); a("v_mul_u32_u24 v2, %d, v3" % (8 * 1152)); a("v_and_b32 v4, 7, v0"); a("v_lshl_add_u32 v2, v4, 4, v2")
    a("s_sub_u32 s4, s8, 16"); a("s_mul_i32 s4, s4, 3"); a("s_add_u32 s4, s4, s101")
    a("s_mul_i32 s72, s4, %d" % (128 * 1152)); a("s_lshl_b32 s5, s9, 7"); a("s_add_u32 s72, s72, s5")
    a("s_lshl_b32 s14, s4, 11"); a("s_add_u32 s14, s14, %d" % WS_H)
    actaddr(9, 4, 128)
    a("v_lshrrev_b32 v3, 4, v0"); a("v_and_b32 v4, 15, v0"); a("v_mul_u32_u24 v7, 7168, v3"); a("v_lshl_add_u32 v7, v4, 4, v7")
    a("v_lshlrev_b32 v6, 7, v3"); a("v_bfe_u32 v3, v0, 1, 3"); a("v_lshl_or_b32 v6, v3, 4, v6"); a("v_and_b32 v3, 1, v0"); a("v_lshl_or_b32 v6, v3, 10, v6")
    a("s_lshl_b32 s4, s101, 9"); a("v_add_u32 v6, s4, v6"); a("s_mul_i32 s4, s101, %d" % (4 * 7168)); a("s_add_u32 s73, s73, s4")
    a("v_mov_b32 v10, 32")
    a("v_mov_b32 v11, 0")
    a("s_mul_i32 s4, s9, %d" % hst); a("s_add_u32 s4, s4, %d" % hat)
    def body(): a("ds_read_b32 v8, v11 offset:%d" % L_G); a("s_waitcnt lgkmcnt(0)"); a("v_cmp_le_u32 vcc, s4, v8")
    spin(body, "L_hwait")
    a("s_mov_b64 exec, 1")
    def body(): a("buffer_load_dword v8, v10, %s, 0 offen sc1" % sDBG); a("s_waitcnt vmcnt(0)"); a("v_cmp_le_u32 vcc, 72, v8")
    if not x1 & 4 and not he: spin(body, "L_hcnt")
    a("s_mov_b64 exec, -1")
    for b_ in range(0 if x1 & 256 else 2): vm.issue("buffer_load_dwordx4 %s, v9, %s, s14 offen offset:%d %s" % (vr(vH + 4 * b_), sWS, 1024 * b_, hf))
    if he:
        a("s_mov_b64 s[28:29], -1"); a("s_waitcnt vmcnt(0)")
        mpoll("L_hpoll", [(28, ["buffer_load_dwordx4 %s, v9, %s, s14 offen offset:%d sc1" % (vr(vH + 4 * b_), sWS, 1024 * b_) for b_ in range(2)], list(range(vH, vH + 8)))], 1)
    late_clear()
    a("s_barrier")
    w2 = []
    for k in range(16):
        b_, j = divmod(k, 8)
        if wsplit is not None and k == dsplit: s2_helper(); a("s_barrier")
        if j % 4 == 0: a("s_add_u32 s5, s72, %d" % ((64 * b_ + j) * 1152))
        w2.append(vm.issue("buffer_load_dwordx4 %s, v2, %s, s5 offen offset:%d nt" % (vr(vW + 4 * k), sW2, 1152 * (j % 4))))
    if wsplit is None: s2_helper()
    for b_ in range(2):
        vm.wait(w2[8 * b_ + 7]); block_mm(vW + 32 * b_, vTp, vAc, vH + 4 * b_, b_ == 0)
    T(8)
    block_fold(vTp, vAc)
    for x in range(2): a("ds_write_b128 v5, %s offset:%d" % (vr(vTp + 4 * x), L_LP + 1024 * x))
    a("s_waitcnt lgkmcnt(0)"); a("s_barrier")
    a("s_cmp_ge_u32 s101, 2"); a("s_cbranch_scc1 L_hdone")
    publish(3, [24, 28, 32])
    a("L_hdone:")
    T(9); T.on = ts; T.flush()
    a("L_end:")
    a("s_endpgm")
    a("L_codeend:")
    if lay:
        tx_ = [i.text for i in a.ins]; b_, e_, h_ = tx_.index("; HBEG"), tx_.index("; HEND"), tx_.index("; HOIST")
        a.ins = a.ins[:h_] + a.ins[b_:e_] + a.ins[h_:b_] + a.ins[e_:]
    a.ins = [i for i in a.ins if not i.text.startswith("; H")]
    a.pad()
    head = open("parallel_sum__sliding_block_cached__geglu_ffn__decode.s.ref").read().split("; Override")[0]
    head += "; @launch grid=(256,1,1) block=(%d,1,1) lds=%d\n" % (64 * NW, LDS_BYTES)
    head += '.amdgcn_target "amdgcn-amd-amdhsa--gfx950"\n.text\n.globl %s\n.p2align 8\n.type %s,@function\n' % (KN, KN)
    tail = '.section .rodata,"a"\n.p2align 6\n.amdhsa_kernel %s\n  .amdhsa_next_free_vgpr 256\n  .amdhsa_next_free_sgpr 102\n  .amdhsa_accum_offset 256\n' % KN
    tail += "  .amdhsa_group_segment_fixed_size 0\n  .amdhsa_kernarg_size 96\n  .amdhsa_user_sgpr_count 2\n  .amdhsa_user_sgpr_kernarg_segment_ptr 1\n  .amdhsa_system_sgpr_workgroup_id_x 1\n.end_amdhsa_kernel\n"
    return head + a.text() + tail

def hb(h):
    b = [x for x in range(10, 19) if x != h]; return b + [h]
RAW = None
def report(t, verbose):
    import numpy as np
    def st(name, x):
        x = x.reshape(x.shape[0], -1)
        print("   %-28s min %6.2f mean %6.2f max %6.2f" % (name, np.median(x.min(axis=1)), np.median(x.mean(axis=1)), np.median(x.max(axis=1))))
    s, x, h = t[:, :, :4], t[:, :, 4], t[:, :, 4:]
    m_ = s[..., 1:12].mean(axis=(0, 1, 2))
    if all(np.diff(m_) > 0):
        print("   rates: t", m_, "start", s[..., 0].mean()); print("   rates: w1", x[:, :208, 1:12].mean(axis=(0, 1))); return
    ids = np.arange(256); X, J = ids & 7, ids >> 3
    WO = (ids < 128) | (X == 0); DN = ~WO & ((J - 28) * 7 + X - 1 < 24)
    for i, n in enumerate(["start", "slot 24", "ring full", "S1", "K done", "o sent", "V done"]): st("stream " + n, s[..., i])
    st("stream kernarg", s[..., 10]); st("stream firstK", s[..., 11])
    st("wo perms done", h[:, WO][..., 7]); st("wo o seen", h[:, WO][..., 8]); st("wo end", h[:, WO][:, :, :2, 9])
    st("down mm done", h[:, DN][:, :, :3, 8]); st("down end", h[:, DN][:, :, :2, 9])
    st("aux LN done", x[:, :208, 1]); st("aux L1 mm done", x[:, :208, 2]); st("clear flag sent", t[:, :, 5, 3])
    for i, n in [(10, "flag check start"), (4, "flags seen"), (11, "q seen"), (5, "S1"), (6, "h done")]: st("aux " + n, x[..., i])
    n = len(s); mx = lambda v: v.reshape(n, -1).max(axis=1)
    vmax, osent, oseen, wend, out = mx(s[..., 6]), mx(s[..., 5]), mx(h[:, WO][..., 8]), mx(h[:, WO][:, :, :2, 9]), mx(h[:, WO][:, :, 2:4, 9])
    print("   per-run means: Vmean %.2f Vmax %.2f | +osent %.2f +oseen %.2f +wend %.2f +out %.2f | tail %.2f end %.2f (median %.2f)" % (s[..., 6].mean(), vmax.mean(), (osent - vmax).mean(), (oseen - osent).mean(), (wend - oseen).mean(), (out - wend).mean(), (out - vmax).mean(), out.mean(), np.median(out)))
    print("   per-run rel Vmax: go %.2f perms %.2f downend %.2f" % ((mx(h[:, WO][:, :, 2:, 3]) - vmax).mean(), (mx(h[:, WO][..., 7]) - vmax).mean(), (mx(h[:, DN][:, :, :2, 9]) - vmax).mean()))
    lag = lambda i: (lambda v: v - v.mean(axis=1, keepdims=True))(s[..., i].max(axis=2))
    lv = lag(6)
    for nm, i in (("slot24", 1), ("S1", 3), ("Kdone", 4)):
        l = lag(i)
        print("   lag %s: std %.2f max %.2f | V lag std %.2f max %.2f" % (nm, l.std(), l.max(axis=1).mean(), lv.std(), lv.max(axis=1).mean()))
    sl = np.where(J < 8, J, np.where(J < 17, 9 * X + J - 8, 9 * X + J - 17)); S3 = (J < 26) & (sl % 8 == 3); FR = J >= 26
    for nm, m in (("slice3", S3), ("free", FR), ("wq", (J < 8) & ~S3), ("gate", (J >= 8) & (J < 17) & ~S3), ("up", (J >= 17) & (J < 26) & ~S3)):
        print("   class %-10s n=%3d lag slot24 %.2f S1 %.2f Kdone %.2f V %.2f | share of worst V %.2f" % (nm, m.sum(), lag(1)[:, m].mean(), lag(3)[:, m].mean(), lag(4)[:, m].mean(), lv[:, m].mean(), m[lv.argmax(axis=1)].mean()))
    for nm, i in (("S1", 3), ("Kdone", 4), ("V", 6)):
        l = lag(i)[:, :128].reshape(-1, 16, 8); xm = l.mean(axis=1)
        print("   decomp %s (projection owners): mean %.2f | die means std %.2f max %.2f | within-die std %.2f max %.2f" % (nm, l.mean(), xm.std(axis=1).mean(), (xm.max(axis=1) - xm.mean(axis=1)).mean(), (l - xm[:, None]).std(), (l - xm[:, None]).max(axis=1).mean()))
    XX = ids & 7; GB = (XX >= 2) & (XX <= 5)
    print("   class iod lag (B-A): " + " ".join("%s %.2f(|%.2f|)" % (nm, (lag(i)[:, GB].mean(axis=1) - lag(i)[:, ~GB].mean(axis=1)).mean(), np.abs(lag(i)[:, GB].mean(axis=1) - lag(i)[:, ~GB].mean(axis=1)).mean()) for nm, i in (("start", 0), ("slot24", 1), ("S1", 3), ("Kdone", 4), ("V", 6))))
    for nm, i in (("start", 0), ("slot24", 1), ("ring", 2), ("Kdone", 4), ("V", 6)): print("   class bywave", nm, s[:, :208, :, i].mean(axis=(0, 1)), "free", s[:, 208:, :, i].mean(axis=(0, 1)))
    print("   class helpers start", t[:, :, 4:, 0].mean(axis=(0, 1)), "by j slot24", lag(1).reshape(-1, 32, 8).mean(axis=(0, 2)))
    if verbose:
        np.set_printoptions(linewidth=250, precision=1, suppress=True)
        for nm, i in (("slot24", 1), ("Kdone", 4), ("V", 6)):
            print("   mean lag", nm); print(lag(i).mean(axis=0).reshape(32, 8).T)
        print("   std lag V"); print(lv.std(axis=0).reshape(32, 8).T)
        w = lv.argmax(axis=1); print("   worst wg (x, j):", [(int(k & 7), int(k >> 3)) for k in w[:40]])
        np.set_printoptions(linewidth=250, precision=2, suppress=True)
    print("   class xcd V lag", np.array([lv[:, X == k].mean() for k in range(8)]), "start", np.array([lag(0)[:, X == k].mean() for k in range(8)]))

if __name__ == "__main__":
    kw = eval("dict(%s)" % (sys.argv[2] if len(sys.argv) > 2 else ""))
    open(sys.argv[1], "w").write(gen(**kw))
```

```python
import sys, struct
from asmlib import Asm, VM
KN = "parallel_sum__sliding_block_cached__geglu_ffn__decode_kernel"

def f32(x): return "0x%08x" % struct.unpack("<I", struct.pack("<f", x))[0]
def vr(b, n=4): return "v[%d:%d]" % (b, b + n - 1) if n > 1 else "v%d" % b
DPP = "row_mask:0xf bank_mask:0xf"
MF = "v_mfma_f32_16x16x32_bf16 %s, %s, %s, %s"

WS_L1, WS_STAT, WS_H, WS_PRG, WS_P, WS_O, WS_TS = 0, 0x40000, 0x48000, 0x60000, 0x80000, 0x100000, 0x200000
L_F, L_C, L_Q, L_OP, L_LP, L_G = 0, 4, 1024, 2048, 8192, 16384
LDS_BYTES = 17408
SPIN = 400000
L2E = 1.4426950408889634
NW = 8
sK, sV, sX, sWS, sW1, sW2, sDBG, sOUT = ("s[%d:%d]" % (b, b + 3) for b in (40, 44, 48, 52, 56, 60, 64, 68))

HEADER = """\
; One workgroup per CU (256 x 512 threads). id = 8*j + x; x groups workgroups that normally share a die.
"""

def srd(a, base, ptr, nbytes):
    a("s_mov_b32 s%d, s%d" % (base, ptr)); a("s_mov_b32 s%d, s%d" % (base + 1, ptr + 1))
    a("s_mov_b32 s%d, %s" % (base + 2, nbytes)); a("s_mov_b32 s%d, 0x20000" % (base + 3))

class Stamps:
    def __init__(self, a, on): self.a, self.on = a, on
    def __call__(self, idx):
        if self.on: self.a("s_memrealtime s[%d:%d]" % (76 + 2 * idx, 77 + 2 * idx))
    def flush(self, n=12):
        if not self.on: return
        a = self.a
        a("s_waitcnt lgkmcnt(0)"); srd(a, 52, 38, "0x40000000")
        a("s_mul_i32 s4, s2, %d" % NW); a("s_add_u32 s4, s4, s3"); a("s_lshl_b32 s4, s4, 6"); a("s_add_u32 s4, s4, %d" % WS_TS)
        a("s_mov_b64 exec, 1"); a("v_mov_b32 v0, 0")
        for q in range(n // 4):
            for i in range(4): a("v_mov_b32 v%d, s%d" % (4 + 4 * q + i, 76 + 2 * (4 * q + i)))
            a("buffer_store_dwordx4 %s, v0, %s, s4 offen offset:%d" % (vr(4 + 4 * q), sWS, 16 * q))

def allreduce(a, op, v, t, steps):
    for s in steps:
        if s == 0: a("%s_dpp v%d, v%d, v%d quad_perm:[1,0,3,2] %s" % (op, v, v, v, DPP))
        elif s < 16: a("%s_dpp v%d, v%d, v%d row_ror:%d %s" % (op, v, v, v, s, DPP))
        else:
            a("v_mov_b32 v%d, v%d" % (t, v)); a("v_permlane%d_swap_b32 v%d, v%d" % (s, v, t)); a("%s v%d, v%d, v%d" % (op, v, v, t))

def round_bf16(a, v):
    a("v_cvt_pk_bf16_f32 v%d, v%d, v%d" % (v, v, v)); a("v_and_b32 v%d, 0xffff0000, v%d" % (v, v))

def gen(ts=0, loc=1, d=5, d0=3, nd0=27, nd1=32, dend=6, nramp=120, step=2, R=52, stat_at=100, nfree=32, da=10,
        flagblk=7, lnstep=28, pf=4, lv=(4, 5, 6, 7), th=(-1.5, 1.5, 4), bias=3, lead=4, leadd=0, fbend=114, fin=126, hat=100, pfn=64, pb=1, amap=(9, 11, 13, 12, 14, 15, 17, 18, 16, 8, 10), svk=None, wsplit=3, dsplit=8, oat=4):
    assert sorted(amap) == list(range(8, 19))
    assert R % 2 == 0
    split = wsplit < 8 or dsplit < 16
    RS = 3584 if pb else 7168; SH = 7 if pb else 8; NP = 2 if pb else 4
    a = Asm(); T = Stamps(a, ts)
    uid = [0]
    def lab(p): uid[0] += 1; return "L_%s%d" % (p, uid[0])
    def note(t): a("; " + t)

    def spin(body, label):
        a("s_mov_b32 s11, %d" % SPIN)
        a(label + ":"); body()
        a("s_cmp_eq_u64 vcc, exec"); a("s_cbranch_scc1 %s_ok" % label)
        a("s_sub_u32 s11, s11, 1"); a("s_cmp_lg_u32 s11, 0"); a("s_cbranch_scc1 %s" % label)
        a(label + "_ok:")

    def umax(regs):
        if len(regs) == 2: a("v_max_u32 v3, v%d, v%d" % tuple(regs)); return
        a("v_max3_u32 v3, v%d, v%d, v%d" % tuple(regs[:3])); rest = regs[3:]
        while len(rest) >= 2: a("v_max3_u32 v3, v3, v%d, v%d" % tuple(rest[:2])); rest = rest[2:]
        if rest: a("v_max_u32 v3, v3, v%d" % rest[0])

    def mpoll(label, loads, regs):
        def check(): umax(regs); a("v_cmp_eq_u32 vcc, -1, v3"); a("s_and_b64 exec, exec, vcc"); a("s_cbranch_scc0 %s_ok" % label)
        a("s_mov_b32 s11, %d" % SPIN)
        check()
        a(label + ":")
        for t in loads: a(t)
        a("s_waitcnt vmcnt(0)"); check()
        a("s_sub_u32 s11, s11, 1"); a("s_cmp_lg_u32 s11, 0"); a("s_cbranch_scc1 %s" % label)
        a(label + "_ok:")
        a("s_mov_b64 exec, -1")

    def store2(text):
        f, e = lab("far"), lab("sent")
        a("s_cmp_eq_u32 s100, 0"); a("s_cbranch_scc1 " + f); a(text); a("s_branch " + e); a(f + ":"); a(text + " sc1"); a(e + ":")

    def roles():
        note("s8 = partial slot (0..15 wo head pair, 16..27 w_down slice, >= 28 none), s9 = output column slice")
        e = lab("role")
        a("s_and_b32 s9, s2, 7"); a("s_lshr_b32 s8, s2, 3")
        a("s_cmp_lt_u32 s8, 16"); a("s_cbranch_scc1 " + e)
        a("s_sub_u32 s8, s8, 16"); a("s_cmp_eq_u32 s9, 0"); a("s_cselect_b32 s9, 8, s9"); a("s_cbranch_scc1 " + e)
        a("s_add_u32 s8, s8, 16"); a("s_cmp_lt_u32 s8, 28"); a("s_cbranch_scc1 " + e)
        a("s_mul_i32 s8, s8, 7"); a("s_add_u32 s8, s8, s9"); a("s_sub_u32 s8, s8, %d" % (28 * 7 + 1 - 16))
        a("s_mov_b32 s9, 0"); a("s_cmp_lt_u32 s8, 28"); a("s_cbranch_scc1 " + e)
        a("s_mov_b32 s9, 8"); a("s_sub_u32 s8, s8, 12")
        a(e + ":")

    def oslot(dst):
        a("s_and_b32 s4, s6, 15"); a("s_lshl_b32 s4, s4, 13"); a("s_lshr_b32 s5, s6, 4"); a("s_lshl_b32 s5, s5, 1"); a("s_add_u32 s5, s5, s7")
        a("s_lshl_b32 s5, s5, 9"); a("s_add_u32 s4, s4, s5"); a("s_add_u32 %s, s4, %d" % (dst, WS_O))

    def l1slot(dst):
        a("s_and_b32 %s, s2, 7" % dst); a("s_lshl_b32 %s, %s, 5" % (dst, dst)); a("s_lshr_b32 s4, s2, 3"); a("s_add_u32 %s, %s, s4" % (dst, dst)); a("s_lshl_b32 %s, %s, 10" % (dst, dst))

    def slots(kind, e, lin, t):
        op = ("buffer_load_dword v%d" % (t + 2) if kind == "read" else "buffer_store_dwordx4 %s" % vr(e)) + ", v%d, %s, %s offen"
        fl = " sc1" if kind == "far" else ""
        k0, k = lab("nol"), lab("nop")
        l1slot("s5")
        a("s_lshr_b32 s4, s2, 3"); a("s_lshl_b32 s4, 1, s4"); a("s_and_b32 s4, s4, 0x%x" % (0xff | (0x1ff << 17))); a("s_cbranch_scc0 " + k0)
        a(op % (lin, sWS, "s5") + fl); a(k0 + ":")
        a("s_lshl_b32 s4, s6, 1"); a("s_add_u32 s4, s4, s7"); a("s_lshl_b32 s4, s4, 7"); a("s_add_u32 s4, s4, %d" % WS_STAT)
        a("s_mov_b64 exec, 0xff"); a(op % (lin, sWS, "s4") + fl); a("s_mov_b64 exec, -1")
        a("s_cmp_ge_u32 s8, 28"); a("s_cbranch_scc1 " + k)
        a("v_lshrrev_b32 v%d, %d, v0" % (t, 3 if pb else 4)); a("v_mul_u32_u24 v%d, %d, v%d" % (t, RS, t)); a("v_and_b32 v%d, %d, v0" % (t + 1, 7 if pb else 15)); a("v_lshl_add_u32 v%d, v%d, 4, v%d" % (t, t + 1, t))
        a("s_mul_i32 s4, s9, %d" % (8 * RS)); a("s_lshl_b32 s5, s8, %d" % SH); a("s_add_u32 s4, s4, s5"); a("s_add_u32 s4, s4, %d" % WS_P); a("s_add_u32 s5, s4, %d" % (4 * RS))
        st = [op % (t, sWS, s_) for s_ in (("s4",) if pb else ("s4", "s5"))]
        if kind != "far":
            f = lab("rem")
            a("s_cmp_lt_u32 s2, 224"); a("s_cselect_b32 s10, 0, s8"); a("s_cmp_ge_u32 s10, 16"); a("s_cbranch_scc1 " + (k if kind == "read" else f))
            for x_ in st: a(x_)
            if kind == "near": a("s_branch " + k); a(f + ":")
        if kind != "read":
            for x_ in st: a(x_ + " sc1")
        a(k + ":")

    def block_mm(base, tp, acc, act, first, hook=None):
        for i in range(8):
            t = tp + 4 * (i % 2)
            for q in range(4): a("v_perm_b32 v%d, v%d, v%d, s%d" % (t + q, base + 4 * (2 * q + 1) + i // 2, base + 4 * (2 * q) + i // 2, 12 + i % 2))
            if i > 0: a(MF % (vr(acc + 4 * (i - 1)), vr(act), vr(tp + 4 * ((i - 1) % 2)), "0" if first else vr(acc + 4 * (i - 1))))
            if hook and i % 4 == 0: hook()
        a(MF % (vr(acc + 28), vr(act), vr(tp + 4), "0" if first else vr(acc + 28)))
    def block_fold(dst, acc):
        for i in range(8): a("v_add_f32_dpp v%d, v%d, v%d row_ror:8 row_mask:0xf bank_mask:0x3" % (dst + i, acc + 4 * i + 1, acc + 4 * i))
        for i in range(8): a("v_add_f32_dpp v%d, v%d, v%d row_ror:8 row_mask:0xf bank_mask:0xc" % (dst + i, acc + 4 * i + 2, acc + 4 * i + 3))
    def actaddr(dst, t, rowbytes):
        a("v_bfe_u32 v%d, v0, 1, 3" % dst); a("v_mul_u32_u24 v%d, %d, v%d" % (dst, rowbytes, dst)); a("v_lshrrev_b32 v%d, 4, v0" % t); a("v_lshl_add_u32 v%d, v%d, 5, v%d" % (dst, t, dst))
        a("v_and_b32 v%d, 1, v0" % t); a("v_lshl_add_u32 v%d, v%d, 4, v%d" % (dst, t, dst))
    def prgaddr(line, word):
        a("s_and_b32 %s, s2, 7" % line); a("s_lshl_b32 %s, %s, 8" % (line, line)); a("s_add_u32 %s, %s, %d" % (line, line, WS_PRG))
        a("s_lshr_b32 %s, s2, 3" % word); a("s_lshl_b32 %s, %s, 2" % (word, word)); a("s_add_u32 %s, %s, %s" % (word, word, line))

    a(KN + ":")
    T(0)
    a("s_cmp_ge_u32 s2, 256"); a("s_cbranch_scc1 L_end")
    a("s_load_dwordx16 s[16:31], s[0:1], 0"); a("s_load_dwordx8 s[32:39], s[0:1], 64")
    a("v_lshrrev_b32 v1, 6, v0"); a("v_and_b32 v0, 63, v0"); a("v_readfirstlane_b32 s3, v1")
    a("s_and_b32 s6, s2, 7"); a("s_lshl_b32 s6, s6, 1"); a("s_bfe_u32 s7, s2, 0x10003"); a("s_or_b32 s6, s6, s7")
    a("s_and_b32 s7, s2, 0x70"); a("s_or_b32 s6, s6, s7"); a("s_lshr_b32 s7, s2, 7")
    a("s_cmp_lt_u32 s3, 4"); a("s_cbranch_scc1 L_stream")
    a("s_cmp_lg_u32 s3, 7"); a("s_cbranch_scc1 L_help")
    a("s_getpc_b64 s[4:5]")
    a("L_pc:")
    a("s_bfe_u32 s8, s2, 0x%x" % (((pf.bit_length() - 1) << 16) + 3)); a("s_mul_i32 s8, s8, %d" % pfn)
    a("v_add_u32 v1, s8, v0"); a("v_lshlrev_b32 v1, 7, v1"); a("v_min_u32 v1, L_codeend-L_pc-4, v1")
    a("global_load_dword v255, v1, s[4:5]")
    a("s_branch L_help")

    a("L_stream:")
    vm = VM(a)
    vKo, vVo, vM, vL, vF = 1, 2, 5, 6, 7
    vMask, vQ0, vQ1, vAcc = 12, 16, 20, 24
    vD = [28, 32]
    pool = list(range(36, 252, 4))
    assert len(pool) >= R + 2
    a("v_lshrrev_b32 v3, 4, v0"); a("v_lshlrev_b32 v3, 6, v3")
    a("v_and_b32 v4, 3, v0"); a("v_lshl_or_b32 v3, v4, 4, v3")
    if amap[10] == amap[9] + 1: a("v_bfe_u32 v4, v0, 2, 2"); a("v_lshl_or_b32 v%d, v4, %d, v3" % (vKo, amap[9]))
    else:
        a("v_bfe_u32 v4, v0, 2, 1"); a("v_lshl_or_b32 v3, v4, %d, v3" % amap[9]); a("v_bfe_u32 v4, v0, 3, 1"); a("v_lshl_or_b32 v%d, v4, %d, v3" % (vKo, amap[10]))
    a("s_lshl_b32 s14, s6, 21"); a("s_lshl_b32 s15, s7, %d" % amap[8]); a("s_add_u32 s14, s14, s15"); a("s_add_u32 s14, s14, %d" % (6144 * 256))
    if amap[1] == amap[0] + 1: a("s_lshl_b32 s15, s3, %d" % amap[0]); a("s_add_u32 s14, s14, s15")
    else:
        a("s_and_b32 s15, s3, 1"); a("s_lshl_b32 s15, s15, %d" % amap[0]); a("s_add_u32 s14, s14, s15")
        a("s_lshr_b32 s15, s3, 1"); a("s_lshl_b32 s15, s15, %d" % amap[1]); a("s_add_u32 s14, s14, s15")
    a("s_mov_b32 s42, 0x10000000"); a("s_mov_b32 s43, 0x20000")
    a("s_waitcnt lgkmcnt(0)")
    a("s_mov_b32 s40, s18"); a("s_mov_b32 s41, s19")
    slot, tok, free, issued = {}, {}, pool[:], [0]
    def issue_next():
        n = issued[0]; issued[0] += 1
        r = free.pop(0); slot[n] = r
        a("s_add_u32 s10, s14, %d" % sum(((n >> i) & 1) << amap[2 + i] for i in range(6)))
        tok[n] = vm.issue("buffer_load_dwordx4 %s, v%d, %s, s10 offen nt" % (vr(r), vKo if n < 64 else vVo, sK if n < 64 else sV))
        if n == 127 and svk is None: note("SV: every V load is issued, second-layer weights may follow"); a("s_barrier")
    for _ in range(d0): issue_next()
    srd(a, 44, 20, "0x10000000"); srd(a, 52, 38, "0x40000000")
    a("v_and_b32 v3, 15, v0"); a("v_lshlrev_b32 v3, 4, v3"); a("v_bfe_u32 v4, v0, 4, 1"); a("v_lshl_or_b32 v3, v4, %d, v3" % amap[9])
    a("v_lshrrev_b32 v4, 5, v0"); a("v_lshl_or_b32 v%d, v4, %d, v3" % (vVo, amap[10]))
    a("v_bfe_u32 v3, v0, 3, 1"); a("v_bfe_u32 v4, v0, 1, 1"); a("v_lshl_or_b32 v3, v3, 1, v4")
    a("v_and_b32 v4, 1, v0"); a("v_lshlrev_b32 v4, 4, v4"); a("v_mov_b32 v5, 0xffff"); a("v_lshlrev_b32 v4, v4, v5")
    for r in range(4):
        a("v_cmp_eq_u32 vcc, %d, v3" % r); a("v_cndmask_b32 v%d, 0, v4, vcc" % (vMask + r))
    oslot("s26"); a("s_lshl_b32 s5, s3, 7"); a("s_add_u32 s26, s26, s5")
    a("s_lshl_b32 s4, s3, 2"); a("v_lshlrev_b32 v9, 4, v0"); a("v_add_u32 v8, s4, v9"); a("v_mov_b32 v253, 0"); a("s_mov_b32 s27, 0")
    def D0(n):
        if n < nd0: return d0
        if n < nd1: return d0 + 1
        if n < nramp: return d
        return min(dend, d + (n - nramp + 1) // step)
    def D(n): return D0(n) + (lv[-1] - d if n >= R else 0)
    def paced():
        n = issued[0]
        if n >= 128: return
        vm.wait(tok[n - D(n)])
        if n >= R:
            if n % 2 == 1: a("s_waitcnt lgkmcnt(0)"); a("v_readfirstlane_b32 s27, v252")
            used = False
            for l_, t_ in reversed(list(zip(lv[:-1], th))):
                m = n - (D0(n) - d + l_)
                if tok[m] > vm.done:
                    a("s_cmp_ge_i32 s27, %d" % int(32 * t_)); a("s_cbranch_scc1 L_hi%d" % n); a("s_waitcnt vmcnt(%d)" % (vm.n - tok[m])); used = True
            if used: a("L_hi%d:" % n)
        issue_next()
        if n >= R:
            a("v_mov_b32 v254, %d" % n); a("ds_write_b32 v8, v254 offset:%d" % L_G)
            if n % 2 == 0: a("ds_read_b32 v252, v253 offset:%d" % L_C)
    def ahead(n):
        while issued[0] < 128 and issued[0] - D(issued[0]) < n: paced()
    while issued[0] < R:
        paced()
        if issued[0] == 24: T(1)
        if issued[0] == nfree:
            a("s_cmp_lt_u32 s2, 208"); a("s_cbranch_scc1 L_nofb"); a("s_barrier"); a("L_nofb:")
    T(2)
    a("s_barrier")
    T(3)
    a("ds_read_b128 %s, v9 offset:%d" % (vr(vQ0), L_Q))
    a("ds_read_b32 v4, v253 offset:%d" % L_F)
    a("v_and_b32 v3, 8, v0"); a("v_cmp_eq_u32 vcc, 0, v3"); a("v_mov_b32 v%d, 0xff800000" % vM)
    a("s_mov_b32 s15, %s" % f32(128 ** -0.5))
    a("s_waitcnt lgkmcnt(0)")
    a("v_readfirstlane_b32 s100, v4")
    for i in range(4): a("v_cndmask_b32 v%d, v%d, 0, vcc" % (vQ1 + i, vQ0 + i))
    for i in range(4): a("v_cndmask_b32 v%d, 0, v%d, vcc" % (vQ0 + i, vQ0 + i))
    vD += [free.pop(), free.pop()]
    S = []
    def qk(c):
        Dr = vD[c % 4]
        vm.wait(tok[2 * c + 1])
        a(MF % (vr(Dr), vr(slot[2 * c]), vr(vQ0), "0")); a(MF % (vr(Dr), vr(slot[2 * c + 1]), vr(vQ1), vr(Dr)))
        free.extend([slot[2 * c], slot[2 * c + 1]])
    def extract(c):
        if c % 4 == 0: S.extend(range(free[-1], free[-1] + 4)); free.pop()
        x, y, DA, DB = S[c], S[c + 1], vD[c % 4], vD[(c + 1) % 4]
        for i in range(4):
            for s_, Dr in ((x, DA), (y, DB)):
                if i == 0: a("v_mov_b32_dpp v%d, v%d quad_perm:[0,0,0,0] %s" % (s_, Dr, DPP))
                else: a("v_add_f32_dpp v%d, v%d, v%d quad_perm:[%d,%d,%d,%d] %s" % (s_, Dr + i, s_, i, i, i, i, DPP))
        for rep in range(2):
            a("v_cvt_pk_bf16_f32 v3, v%d, v%d" % (x, y))
            a("v_lshlrev_b32 v%d, 16, v3" % x); a("v_and_b32 v%d, 0xffff0000, v3" % y)
            if rep == 0: a("v_mul_f32 v%d, s15, v%d" % (x, x)); a("v_mul_f32 v%d, s15, v%d" % (y, y))
        a("v_max3_f32 v%d, v%d, v%d, v%d" % (vM, vM, x, y))
    for c in range(0, 32, 2):
        ahead(2 * c + 3)
        qk(c); qk(c + 1)
        paced(); paced()
        if c >= 2: extract(c - 2)
    extract(30)
    free.extend(vD[2:])
    T(4)
    paced()
    allreduce(a, "v_max_f32", vM, 3, [8, 16, 32])
    a("s_mov_b32 s15, %s" % f32(L2E)); a("v_mul_f32 v%d, s15, v%d" % (vM, vM)); a("v_mov_b32 v%d, 0" % vL); a("v_mov_b32 v4, 0")
    for c in range(0, 32, 4):
        for i in range(4): a("v_fma_f32 v%d, v%d, s15, -v%d" % (S[c + i], S[c + i], vM))
        for i in range(4): a("v_exp_f32 v%d, v%d" % (S[c + i], S[c + i]))
        for i in range(4): a("v_add_f32 v%d, v%d, v%d" % ((vL, 4)[i % 2], (vL, 4)[i % 2], S[c + i]))
        for i in range(4): a("v_cvt_pk_bf16_f32 v%d, v%d, v%d" % (S[c + i], S[c + i], S[c + i]))
        if c % 8 == 4: paced()
    a("v_add_f32 v%d, v%d, v4" % (vL, vL))
    allreduce(a, "v_add_f32", vL, 3, [8, 16, 32])
    a("v_min_u32 v10, -2, v%d" % vM); a("v_min_u32 v11, -2, v%d" % vL)
    a("v_lshlrev_b32 v9, 1, v0"); a("v_and_b32 v9, 0x38, v9"); a("v_lshrrev_b32 v3, 5, v0"); a("v_lshl_or_b32 v9, v3, 7, v9")
    a("s_lshl_b32 s73, s6, 8"); a("s_add_u32 s73, s73, %d" % WS_STAT)
    a("s_lshl_b32 s4, s7, 3"); a("s_add_u32 s4, s4, s3"); a("s_lshl_b32 s4, s4, 4"); a("s_add_u32 s4, s4, s73")
    a("s_mov_b64 exec, 0x11")
    store2("buffer_store_dwordx2 v[10:11], v9, %s, s4 offen" % sWS); vm.n += 1
    a("s_mov_b64 exec, -1")
    vB = vD[:2]
    def prepB(n):
        c, t = divmod(n - 64, 2)
        for r in range(4):
            if (r >> 1) == t: a("v_and_b32 v%d, v%d, v%d" % (vB[n % 2] + r, S[c], vMask + r))
            else: a("v_and_b32_dpp v%d, v%d, v%d row_ror:8 %s" % (vB[n % 2] + r, S[c], vMask + r, DPP))
    prepB(64)
    tstat = None
    ldS = "buffer_load_dwordx2 v[10:11], v9, %s, s73 offen sc1" % sWS
    for n in range(64, 128):
        ahead(n)
        if tstat is None and issued[0] >= stat_at: tstat = vm.issue(ldS)
        vm.wait(tok[n])
        if svk is not None and n == 127 - svk: assert issued[0] == 128; note("SV: second-layer weights may follow"); a("s_barrier")
        a(MF % (vr(vAcc), vr(slot[n]), vr(vB[n % 2]), "0" if n == 64 else vr(vAcc)))
        free.append(slot[n])
        if n % 2 == 1 and issued[0] < 128 and issued[0] - D(issued[0]) > n: paced()
        if n < 127: prepB(n + 1)
        if tstat and tstat > 0 and vm.done >= tstat:
            note("combine the eight (max, sum) pairs of the row: f = exp(own max - row max) / row sum")
            def stat_valid(): a("v_max_u32 v3, v10, v11"); a("v_cmp_ne_u32 vcc, -1, v3")
            stat_valid(); a("s_cmp_eq_u64 vcc, exec"); a("s_cbranch_scc1 L_stat_ok")
            def body(): a(ldS); a("s_waitcnt vmcnt(0)"); stat_valid()
            spin(body, "L_stat")
            a("v_mov_b32 v%d, v10" % vF); allreduce(a, "v_max_f32", vF, 3, [8, 16, 32])
            a("v_sub_f32 v10, v10, v%d" % vF); a("v_sub_f32 v%d, v%d, v%d" % (vF, vM, vF))
            a("v_exp_f32 v10, v10"); a("v_exp_f32 v%d, v%d" % (vF, vF)); a("v_mul_f32 v10, v10, v11")
            paced()
            allreduce(a, "v_add_f32", 10, 3, [8, 16, 32])
            a("v_rcp_f32 v10, v10"); a("v_mul_f32 v%d, v%d, v10" % (vF, vF)); a("v_mov_b32 v%d, v%d" % (vL, vF))
            a("v_bfe_u32 v3, v0, 2, 1"); a("v_mul_u32_u24 v9, 704, v3"); a("v_lshrrev_b32 v4, 4, v0"); a("v_mul_u32_u24 v4, 160, v4"); a("v_add_u32 v9, v9, v4")
            a("v_bfe_u32 v3, v0, 3, 1"); a("v_lshl_add_u32 v9, v3, 4, v9"); a("v_and_b32 v3, 3, v0"); a("v_lshl_add_u32 v9, v3, 2, v9")
            a("s_mul_i32 s4, s3, 1536"); a("s_add_u32 s4, s4, %d" % L_OP); a("v_add_u32 v9, s4, v9")
            a("s_lshr_b32 s4, s3, 1"); a("s_mul_i32 s4, s4, 704"); a("s_and_b32 s5, s3, 1"); a("s_mul_i32 s5, s5, 320"); a("s_add_u32 s4, s4, s5")
            a("v_and_b32 v3, 15, v0"); a("v_lshl_add_u32 v10, v3, 3, v4"); a("v_add_u32 v10, s4, v10"); a("v_lshlrev_b32 v11, 2, v0")
            tstat = -1
    assert tstat == -1
    T(6)
    for i in (0, 2): a("v_pk_mul_f32 %s, %s, v[6:7]" % (vr(vAcc + i, 2), vr(vAcc + i, 2)))
    a("ds_write2_b32 v9, v%d, v%d offset0:0 offset1:8" % (vAcc, vAcc + 1))
    a("ds_write2_b32 v9, v%d, v%d offset0:16 offset1:24" % (vAcc + 2, vAcc + 3))
    a("s_waitcnt lgkmcnt(0)"); a("s_barrier")
    a("s_mov_b32 exec_hi, 0")
    for w in range(4): a("ds_read_b64 %s, v10 offset:%d" % (vr(16 + 2 * w, 2), L_OP + 1536 * w))
    a("s_waitcnt lgkmcnt(2)"); a("v_pk_add_f32 v[16:17], v[16:17], v[18:19]")
    a("s_waitcnt lgkmcnt(0)"); a("v_pk_add_f32 v[20:21], v[20:21], v[22:23]"); a("v_pk_add_f32 v[16:17], v[16:17], v[20:21]")
    a("v_cvt_pk_bf16_f32 v3, v16, v17"); a("v_min_u32 v3, -2, v3")
    a("buffer_store_dword v3, v11, %s, s26 offen sc1" % sWS)
    T(5)
    if split: note("the held-back weight loads go out behind these stores"); a("s_barrier")
    if oat < 0: a("s_waitcnt vmcnt(0)")
    T.flush()
    a("s_endpgm")

    a("L_help:")
    vLin, vWo = 1, 2
    a("v_lshlrev_b32 v%d, 4, v0" % vLin)
    a("s_mov_b32 s12, 0x05040100"); a("s_mov_b32 s13, 0x07060302")
    a("s_cmp_lg_u32 s3, 4"); a("s_cbranch_scc1 L_h567")
    vm = VM(a)
    vXN, vAc, vTp, vRing, w1blk = 8, 44, 244, 116, 4
    a("s_lshr_b32 s101, s2, 3"); a("s_and_b32 s4, s2, 7")
    a("s_cmp_lt_u32 s101, 8"); a("s_movk_i32 s14, 8192"); a("s_cselect_b32 s14, s14, 9216"); a("s_mov_b32 s58, 4718592"); a("s_cselect_b32 s58, s58, 5308416")
    a("s_cselect_b32 s5, 8, 9"); a("s_cselect_b32 s15, 0, 8"); a("s_mul_i32 s4, s4, s5")
    a("s_cmp_lt_u32 s101, 17"); a("s_cselect_b32 s15, s15, 17"); a("s_sub_u32 s15, s101, s15"); a("s_add_u32 s74, s15, s4"); a("s_lshl_b32 s15, s74, 7")
    a("v_lshrrev_b32 v3, 3, v0"); a("v_lshlrev_b32 v3, 3, v3"); a("v_mul_u32_u24 v3, s14, v3"); a("v_and_b32 v2, 7, v0"); a("v_lshl_add_u32 v%d, v2, 4, v3" % vWo)
    actaddr(3, 4, 1152)
    a("s_mul_i32 s75, s14, 57"); a("s_mov_b32 s59, 0x20000")
    a("s_waitcnt lgkmcnt(0)")
    srd(a, 52, 38, "0x40000000"); srd(a, 64, 36, 256)
    a("s_cmp_ge_u32 s2, 208"); a("s_cbranch_scc1 L_nol1")
    a("s_cmp_lt_u32 s101, 17"); a("s_cselect_b32 s56, s28, s30"); a("s_cselect_b32 s57, s29, s31")
    a("s_cmp_lt_u32 s101, 8"); a("s_cselect_b32 s56, s22, s56"); a("s_cselect_b32 s57, s23, s57")
    srd(a, 48, 16, 9216)
    for i in range(9): tx = vm.issue("buffer_load_dwordx4 %s, v3, %s, 0 offen offset:%d" % (vr(vXN + 4 * i), sX, 128 * i))
    w1 = []
    def issue_w1():
        blk, j = divmod(len(w1), 8)
        w1.append(vm.issue("buffer_load_dwordx4 %s, v%d, %s, s15 offen nt" % (vr(vRing + 32 * (blk % w1blk) + 4 * j), vWo, sW1)))
        a("s_add_u32 s15, s15, %s" % ("s75" if j == 7 else "s14"))
    while len(w1) < da: issue_w1()
    def paced1(blk):
        if len(w1) < 72 and len(w1) < 8 * (blk + w1blk): vm.wait(w1[len(w1) - da]); issue_w1()
    ln = Asm(); xf = 44
    def unpack_all():
        for i in range(36): ln("v_lshlrev_b32 v%d, 16, v%d" % (xf + 2 * i, vXN + i)); ln("v_and_b32 v%d, 0xffff0000, v%d" % (xf + 2 * i + 1, vXN + i))
    def pack_all():
        for i in range(36): ln("v_cvt_pk_bf16_f32 v%d, v%d, v%d" % (vXN + i, xf + 2 * i, xf + 2 * i + 1))
    for i in range(4): ln("v_mov_b32 v%d, 0x3f803f80" % (244 + i))
    for i in range(9): ln(MF % ("v[248:251]", "v[244:247]", vr(vXN + 4 * i), "0" if i == 0 else "v[248:251]"))
    unpack_all()
    allreduce(ln, "v_add_f32", 248, 249, [0])
    ln("v_mul_f32 v248, %s, v248" % f32(1 / 576)); ln("v_mov_b32 v4, v248"); round_bf16(ln, 4)
    ln("v_sub_f32 v248, v248, v4"); ln("v_sub_f32 v4, 0, v4"); ln("v_mov_b32 v5, v4")
    for i in range(36): ln("v_pk_add_f32 %s, %s, v[4:5]" % (vr(xf + 2 * i, 2), vr(xf + 2 * i, 2)))
    for i in range(36):
        acc = vr(244 + 2 * (i % 2), 2); x2 = vr(xf + 2 * i, 2)
        ln("v_pk_mul_f32 %s, %s, %s" % (acc, x2, x2) if i < 2 else "v_pk_fma_f32 %s, %s, %s, %s" % (acc, x2, x2, acc))
    ln("v_pk_add_f32 v[244:245], v[244:245], v[246:247]"); ln("v_add_f32 v4, v244, v245")
    allreduce(ln, "v_add_f32", 4, 5, [0, 16, 32])
    ln("v_mul_f32 v4, %s, v4" % f32(1 / 576)); ln("v_fma_f32 v4, -v248, v248, v4"); ln("v_max_f32 v4, 0, v4"); round_bf16(ln, 4)
    ln("v_add_f32 v4, %s, v4" % f32(1e-5)); round_bf16(ln, 4)
    ln("v_sqrt_f32 v4, v4"); round_bf16(ln, 4); ln("v_rcp_f32 v4, v4")
    pack_all(); ln("v_mov_b32 v5, v4"); unpack_all()
    for i in range(36): ln("v_pk_mul_f32 %s, %s, v[4:5]" % (vr(xf + 2 * i, 2), vr(xf + 2 * i, 2)))
    pack_all()
    vm.wait(tx)
    for k, ins in enumerate(ln.ins):
        a(ins.text)
        if k % lnstep == lnstep - 1: paced1(0)
    T(1)
    def flagaddr(): a("v_and_b32 v253, 7, v0"); a("v_and_b32 v254, 24, v0"); a("v_lshl_or_b32 v253, v254, 1, v253"); a("v_lshlrev_b32 v253, 2, v253")
    ldF = "buffer_load_dword v252, v253, %s, 0 offen sc1" % sDBG
    for blk in range(9):
        while len(w1) < min(72, 8 * blk + 7 + da): paced1(blk)
        if blk == flagblk: flagaddr(); tflag = vm.issue(ldF)
        vm.wait(w1[8 * blk + 7])
        block_mm(vRing + 32 * (blk % w1blk), vTp, vAc, vXN + 4 * blk, blk == 0, lambda: paced1(blk))
    T(2)
    block_fold(vTp, vAc)
    for q in range(4): a("v_cvt_pk_bf16_f32 v%d, v%d, v%d" % (12 + q, vTp + 2 * q, vTp + 2 * q + 1))
    for q in range(4): a("v_min_u32 v%d, -2, v%d" % (12 + q, 12 + q))
    vm.wait(tflag)
    a("s_branch L_l1done")
    a("L_nol1:")
    a("s_barrier")
    flagaddr(); a("v_mov_b32 v252, 0")
    a("L_l1done:")
    T(10)
    roles()
    a("s_mov_b32 s5, 0x88888888")
    def fvalid(): a("v_and_b32 v8, s5, v252"); a("v_cmp_eq_u32 vcc, s5, v8")
    fvalid(); a("s_cmp_eq_u64 vcc, exec"); a("s_cbranch_scc1 L_flags_ok")
    def body(): a(ldF); a("s_waitcnt vmcnt(0)"); fvalid()
    spin(body, "L_flags")
    a("v_readfirstlane_b32 s4, v252"); a("v_cmp_eq_u32 vcc, s4, v252"); a("s_cmp_eq_u64 vcc, exec"); a("s_cselect_b32 s100, %d, 0" % loc)
    a("s_cmp_lg_u32 s100, 0"); a("s_cbranch_scc1 L_mode_ok")
    for i in range(4): a("v_mov_b32 v%d, -1" % (16 + i))
    slots("far", 16, vLin, 20)
    a("v_mov_b32 v8, 1"); a("v_mov_b32 v9, 36"); a("s_waitcnt vmcnt(0)"); a("s_mov_b64 exec, 1")
    a("buffer_atomic_add v8, v9, %s, 0 offen sc1" % sDBG)
    def body(): a("buffer_load_dword v8, v9, %s, 0 offen sc1" % sDBG); a("s_waitcnt vmcnt(0)"); a("v_cmp_le_u32 vcc, 0x100, v8")
    spin(body, "L_far")
    a("s_mov_b64 exec, -1")
    a("L_mode_ok:")
    T(4)
    l1slot("s72")
    a("s_cmp_ge_u32 s2, 208"); a("s_cbranch_scc1 L_nol1st")
    a("s_sub_u32 s4, s101, 8"); a("s_cmp_lt_u32 s4, 9"); a("s_cbranch_scc1 L_nol1st")
    store2("buffer_store_dwordx4 v[12:15], v%d, %s, s72 offen" % (vLin, sWS))
    a("L_nol1st:")
    a("v_mov_b32 v8, s100"); a("v_mov_b32 v9, 0"); a("ds_write_b64 v9, v[8:9] offset:%d" % L_F)
    for i in range(4): a("v_mov_b32 v%d, %d" % (16 + i, R - 1))
    a("ds_write_b128 v9, v[16:19] offset:%d" % L_G)
    a("v_bfe_u32 v3, v0, 2, 1"); a("v_lshlrev_b32 v3, 11, v3"); a("v_lshrrev_b32 v4, 5, v0"); a("v_lshl_or_b32 v3, v4, 10, v3")
    a("v_bfe_u32 v4, v0, 4, 1"); a("v_lshl_or_b32 v3, v4, 6, v3"); a("v_and_b32 v4, 3, v0"); a("v_lshl_or_b32 v10, v4, 4, v3")
    a("s_and_b32 s4, s2, 7"); a("s_lshl_b32 s4, s4, 15"); a("s_and_b32 s5, s6, 1"); a("s_lshl_b32 s5, s5, 12"); a("s_add_u32 s4, s4, s5")
    a("s_lshr_b32 s5, s6, 4"); a("s_lshl_b32 s5, s5, 7"); a("s_add_u32 s4, s4, s5")
    def poll4(r, va, label):
        ld = "buffer_load_dwordx4 %s, v%d, %s, s4 offen sc1" % (vr(r), va, sWS)
        a(ld); a("s_waitcnt vmcnt(0)"); mpoll(label, [ld], list(range(r, r + 4)))
    poll4(4, 10, "L_qpoll")
    T(11)
    a("ds_write_b128 v%d, v[4:7] offset:%d" % (vLin, L_Q))
    a("s_waitcnt lgkmcnt(0)"); a("s_barrier")
    T(5)
    a("s_sub_u32 s4, s101, 8"); a("s_cmp_ge_u32 s4, 9"); a("s_cbranch_scc1 L_noh")
    a("s_add_u32 s4, s72, %d" % (9 * 1024))
    poll4(16, vLin, "L_upoll")
    a("s_mov_b32 s4, %s" % f32(0.044715)); a("s_mov_b32 s5, %s" % f32(-2 * (2 / 3.141592653589793) ** 0.5 * L2E))
    g, e = list(range(24, 32)), list(range(32, 40))
    def unpack(dst, src):
        for q in range(4): a("v_lshlrev_b32 v%d, 16, v%d" % (dst[2 * q], src + q)); a("v_and_b32 v%d, 0xffff0000, v%d" % (dst[2 * q + 1], src + q))
    def pack(dst, src):
        for q in range(4): a("v_cvt_pk_bf16_f32 v%d, v%d, v%d" % (dst + q, src[2 * q], src[2 * q + 1]))
    unpack(g, 12)
    for i in range(8): a("v_mul_f32 v%d, v%d, v%d" % (e[i], g[i], g[i]))
    for i in range(8): a("v_fma_f32 v%d, v%d, s4, 1.0" % (e[i], e[i]))
    for i in range(8): a("v_mul_f32 v%d, v%d, v%d" % (e[i], e[i], g[i]))
    for i in range(8): a("v_mul_f32 v%d, s5, v%d" % (e[i], e[i]))
    for i in range(8): a("v_exp_f32 v%d, v%d" % (e[i], e[i]))
    for i in range(8): a("v_add_f32 v%d, 1.0, v%d" % (e[i], e[i]))
    for i in range(8): a("v_rcp_f32 v%d, v%d" % (e[i], e[i]))
    for i in range(8): a("v_mul_f32 v%d, v%d, v%d" % (g[i], g[i], e[i]))
    pack(12, g); unpack(g, 12); unpack(e, 16)
    for i in range(8): a("v_mul_f32 v%d, v%d, v%d" % (g[i], g[i], e[i]))
    pack(12, g)
    for q in range(4): a("v_min_u32 v%d, -2, v%d" % (12 + q, 12 + q))
    a("s_lshl_b32 s4, s74, 10"); a("s_add_u32 s4, s4, %d" % WS_H)
    a("buffer_store_dwordx4 v[12:15], v%d, %s, s4 offen sc1" % (vLin, sWS))
    a("L_noh:")
    T(6)
    a("s_cmp_lt_u32 s8, 28"); a("s_cbranch_scc1 L_l2")
    a("s_branch L_hdone")

    a("L_h567:")
    roles()
    a("s_waitcnt lgkmcnt(0)")
    srd(a, 52, 38, "0x40000000")
    a("s_cmp_lg_u32 s3, 5"); a("s_cbranch_scc1 L_h67")
    for i in range(4): a("v_mov_b32 v%d, -1" % (4 + i))
    oslot("s74"); a("v_lshlrev_b32 v3, 3, v0")
    a("buffer_store_dwordx2 v[4:5], v3, %s, s74 offen sc1" % sWS)
    a("s_lshr_b32 s4, s2, 3"); a("s_sub_u32 s4, s4, 8"); a("s_cmp_ge_u32 s4, 9"); a("s_cbranch_scc1 L_nohcl")
    a("s_and_b32 s5, s2, 7"); a("s_mul_i32 s5, s5, 9"); a("s_add_u32 s4, s4, s5"); a("s_lshl_b32 s4, s4, 10"); a("s_add_u32 s4, s4, %d" % WS_H)
    a("buffer_store_dwordx4 v[4:7], v%d, %s, s4 offen sc1" % (vLin, sWS))
    a("L_nohcl:")
    slots("read", 4, vLin, 8)
    prgaddr("s74", "s72")
    a("s_mov_b64 exec, 1"); a("buffer_load_dword v10, v%d, %s, s74 offen" % (vLin, sWS)); a("s_mov_b64 exec, -1")
    a("s_waitcnt vmcnt(0)")
    slots("near", 4, vLin, 8)
    a("v_mov_b32 v11, %d" % (4 * (R - 4))); a("s_mov_b64 exec, 1"); a("buffer_store_dword v11, v%d, %s, s72 offen" % (vLin, sWS))
    a("s_mov_b64 exec, -1")
    a("s_getreg_b32 s5, hwreg(HW_REG_XCC_ID, 0, 3)"); a("s_or_b32 s5, s5, 8"); a("s_and_b32 s4, s2, 7"); a("s_lshl_b32 s4, s4, 2"); a("s_lshl_b32 s5, s5, s4")
    a("s_bfe_u32 s4, s2, 0x30003"); a("s_lshl_b32 s4, s4, 2"); a("s_and_b32 s10, s2, 192"); a("s_add_u32 s4, s4, s10")
    a("s_waitcnt vmcnt(0)")
    a("s_atomic_or s5, s[36:37], s4"); a("s_waitcnt lgkmcnt(0)")
    T(3)
    a("L_h67:")
    a("s_cmp_eq_u32 s3, 7"); a("s_cselect_b32 s4, 0, s8"); a("s_cmp_ge_u32 s4, 28"); a("s_cbranch_scc1 L_hdone")
    a("s_cmp_lt_u32 s2, 208"); a("s_cbranch_scc1 L_nofb2"); a("s_barrier"); a("L_nofb2:")
    a("s_barrier")
    a("v_mov_b32 v9, 0"); a("ds_read_b32 v4, v9 offset:%d" % L_F); a("s_waitcnt lgkmcnt(0)"); a("v_readfirstlane_b32 s100, v4")
    a("s_cmp_lg_u32 s3, 7"); a("s_cbranch_scc1 L_l2")
    a("s_cmp_eq_u32 s100, 0"); a("s_cbranch_scc1 L_ctl_done")
    prgaddr("s74", "s72")
    a("v_and_b32 v8, 31, v0"); a("v_lshlrev_b32 v8, 2, v8")
    a("s_and_b32 s4, s2, 7"); a("s_cselect_b32 s4, s2, 0"); a("s_cmp_ge_u32 s4, 224"); a("s_cselect_b32 s75, %d, 0" % (32 * lead)); a("s_add_u32 s75, s75, %d" % int(32 * bias))
    if leadd: a("s_cmp_ge_u32 s8, 16"); a("s_cselect_b32 s4, 1, -1"); a("s_mul_i32 s4, s4, %d" % int(16 * leadd)); a("s_and_b32 s5, s2, 7"); a("s_cselect_b32 s4, s4, 0"); a("s_add_u32 s75, s75, s4")
    a("s_mov_b32 s11, %d" % SPIN)
    a("L_ctl:")
    a("ds_read_b128 v[12:15], v9 offset:%d" % L_G); a("s_waitcnt lgkmcnt(0)")
    a("v_add3_u32 v12, v12, v13, v14"); a("v_add_u32 v12, v12, v15"); a("s_mov_b64 exec, 1")
    a("buffer_store_dword v12, v9, %s, s72 offen" % sWS); a("s_mov_b64 exec, -1")
    a("v_readfirstlane_b32 s14, v12"); a("s_cmp_ge_u32 s14, %d" % (4 * fbend)); a("s_cbranch_scc1 L_ctl_end")
    a("buffer_load_dword v16, v8, %s, s74 offen sc1" % sWS); a("s_waitcnt vmcnt(0)")
    allreduce(a, "v_add_u32", 16, 17, [8, 4, 2, 1, 16])
    a("v_lshrrev_b32 v16, 2, v16"); a("v_lshlrev_b32 v12, 3, v12"); a("v_sub_u32 v16, v16, v12"); a("v_add_u32 v16, s75, v16")
    a("s_mov_b64 exec, 1"); a("ds_write_b32 v9, v16 offset:%d" % L_C); a("s_mov_b64 exec, -1")
    a("s_sub_u32 s11, s11, 1"); a("s_cmp_lg_u32 s11, 0"); a("s_cbranch_scc1 L_ctl")
    a("L_ctl_end:")
    a("v_mov_b32 v13, %d" % (4 * fin)); a("s_mov_b64 exec, 1"); a("buffer_store_dword v13, v9, %s, s72 offen" % sWS); a("s_mov_b64 exec, -1")
    a("L_ctl_done:")
    a("s_cmp_ge_u32 s8, 16"); a("s_cbranch_scc1 L_hdone")

    a("L_l2:")
    a("s_sub_u32 s101, s3, 4")
    a("s_mul_i32 s73, s9, %d" % (8 * RS)); a("s_lshl_b32 s5, s8, %d" % SH); a("s_add_u32 s73, s73, s5"); a("s_add_u32 s73, s73, %d" % WS_P)
    a("s_lshl_b32 s4, s101, 11"); a("v_add_u32 v5, s4, v%d" % vLin)
    a("s_cmp_ge_u32 s8, 16"); a("s_cbranch_scc1 L_down")
    def publish(n, vE):
        for w in range(n): a("ds_read_b128 %s, v6 offset:%d" % (vr(vE[w]), L_LP + 2048 * w))
        a("s_waitcnt lgkmcnt(%d)" % (n - 2))
        for i in (0, 2): a("v_pk_add_f32 %s, %s, %s" % (vr(vE[0] + i, 2), vr(vE[0] + i, 2), vr(vE[1] + i, 2)))
        a("s_waitcnt lgkmcnt(0)")
        if n == 4:
            for i in (0, 2): a("v_pk_add_f32 %s, %s, %s" % (vr(vE[2] + i, 2), vr(vE[2] + i, 2), vr(vE[3] + i, 2)))
        for i in (0, 2): a("v_pk_add_f32 %s, %s, %s" % (vr(vE[0] + i, 2), vr(vE[0] + i, 2), vr(vE[2] + i, 2)))
        if pb:
            for i in range(2): a("v_cvt_pk_bf16_f32 v%d, v%d, v%d" % (vE[0] + i, vE[0] + 2 * i, vE[0] + 2 * i + 1))
        for i in range(NP): a("v_min_u32 v%d, -2, v%d" % (vE[0] + i, vE[0] + i))
        store2("buffer_store_dwordx%d %s, v7, %s, s73 offen" % (NP, vr(vE[0], NP), sWS))
    vA, vE, vW, vP, A4, Y4, B4, vX = [16, 20], [24, 28, 32, 36], 40, 72, 104, 108, 112, 116
    srd(a, 60, 24, 4718592); srd(a, 48, 16, 9216); srd(a, 68, 34, 9216)
    a("v_lshrrev_b32 v3, 4, v0"); a("v_and_b32 v4, 15, v0"); a("v_lshlrev_b32 v9, 9, v4"); a("v_lshl_or_b32 v9, v3, 4, v9")
    a("v_bfe_u32 v8, v0, 3, 1"); a("v_and_b32 v4, 7, v0")
    a("v_mul_u32_u24 v2, %d, v3" % (8 * 1152)); a("v_mul_u32_u24 v6, %d, v8" % (32 * 1152)); a("v_add_u32 v2, v2, v6"); a("v_lshl_add_u32 v2, v4, 4, v2")
    a("v_mul_u32_u24 v7, %d, v3" % (2 * RS)); a("v_lshl_add_u32 v7, v4, %d, v7" % (SH - 3)); a("v_lshl_add_u32 v7, v8, %d, v7" % (SH - 4))
    a("s_lshl_b32 s72, s8, 2"); a("s_add_u32 s72, s72, s101"); a("s_mul_i32 s72, s72, %d" % (64 * 1152)); a("s_lshl_b32 s4, s9, 7"); a("s_add_u32 s72, s72, s4")
    a("s_lshl_b32 s14, s8, 13"); a("s_lshl_b32 s5, s101, 7"); a("s_add_u32 s14, s14, s5"); a("s_add_u32 s14, s14, %d" % WS_O)
    a("s_and_b32 s15, s101, 1"); a("s_mul_i32 s4, s15, %d" % RS); a("s_add_u32 s73, s73, s4"); a("s_lshl_b32 s4, s15, 10"); a("v_add_u32 v6, s4, v%d" % vLin)
    a("s_lshr_b32 s4, s8, 1"); a("s_and_b32 s5, s8, 1"); a("s_lshl_b32 s5, s5, 1"); a("s_add_u32 s5, s5, s15")
    a("s_lshl_b32 s74, s9, 3"); a("s_add_u32 s74, s74, s4"); a("s_mul_i32 s74, s74, %d" % RS); a("s_lshl_b32 s15, s5, %d" % (SH - 2)); a("s_add_u32 s74, s74, s15"); a("s_add_u32 s74, s74, %d" % WS_P)
    a("s_mul_i32 s75, s4, 1152"); a("s_lshl_b32 s15, s9, 7"); a("s_add_u32 s75, s75, s15"); a("s_lshl_b32 s15, s5, 5"); a("s_add_u32 s75, s75, s15")
    a("s_add_u32 s15, s74, %d" % (16 << SH)); a("s_add_u32 s10, s72, %d" % (4 * 1152))
    a("v_and_b32 v4, 3, v0"); a("v_lshlrev_b32 v11, 3, v4"); a("v_lshl_or_b32 v11, v3, 1, v11")
    a("v_lshrrev_b32 v3, 2, v0"); a("v_lshlrev_b32 v3, %d, v3" % SH); a("v_lshl_or_b32 v10, v4, %d, v3" % (SH - 4))
    a("buffer_load_ushort v%d, v11, %s, s75 offen" % (vX, sX))
    for i in range(4): a("v_mov_b32 v%d, 0" % (Y4 + i))
    ldO = ["buffer_load_dwordx4 %s, v9, %s, s14 offen offset:%d sc1" % (vr(vA[kb]), sWS, 64 * kb) for kb in range(2)]
    ldA, ldB = ("buffer_load_dwordx%d %s, v10, %s, s74 offen sc1" % (NP, vr(r, NP), sWS) for r in (A4, B4))
    ldY = "buffer_load_dwordx%d %s, v10, %s, s15 offen sc1" % (NP, vr(Y4, NP), sWS)
    vm = VM(a); w2 = []
    def s2():
        a("s_barrier")
        if split: a("s_barrier")
    a("s_barrier")
    for j in range(9):
        if j == wsplit: s2()
        if j < 8: w2.append(vm.issue("buffer_load_dwordx4 %s, v2, %s, %s offen offset:%d nt" % (vr(vW + 4 * j), sW2, "s72" if j < 4 else "s10", 1152 * (j % 4))))
    if oat < 0:
        note("this barrier opens once the streaming waves have ended, i.e. their output stores are acknowledged")
        a("s_barrier")
        for t_ in ldO: vm.issue(t_)
    for q in range(4):
        js = (2 * q, 2 * q + 1)
        for j in js:
            vm.wait(w2[j])
            if j + 1 == oat:
                for t_ in ldO: vm.issue(t_)
        for j in js:
            for r in range(2): a("v_mov_b32 v%d, v%d" % (120 + 2 * j + r, vW + 4 * j + r))
        for j in js:
            for r in range(2): a("v_mov_b32_dpp v%d, v%d row_ror:8 row_mask:0xf bank_mask:0xc" % (vW + 4 * j + r, vW + 4 * j + 2 + r))
        for j in js:
            for r in range(2): a("v_mov_b32_dpp v%d, v%d row_ror:8 row_mask:0xf bank_mask:0x3" % (vW + 4 * j + 2 + r, 120 + 2 * j + r))
        for kb in range(2):
            for i in range(4):
                a("v_perm_b32 v%d, v%d, v%d, s%d" % (vP + 16 * kb + 4 * i + q, vW + 4 * (2 * q + 1) + 2 * kb + i // 2, vW + 4 * (2 * q) + 2 * kb + i // 2, 12 + i % 2))
    if oat > 8:
        for t_ in ldO: a(t_)
    a("v_lshlrev_b32 v%d, 16, v%d" % (vX, vX))
    T(7)
    a("s_waitcnt vmcnt(0)")
    mpoll("L_opoll", ldO, list(range(16, 24)))
    T(8)
    for kb in range(2):
        for i in range(4): a(MF % (vr(vE[i]), vr(vA[kb]), vr(vP + 16 * kb + 4 * i), "0" if kb == 0 else vr(vE[i])))
    a("s_cmp_lt_u32 s101, 2"); a("s_cbranch_scc1 L_nopre")
    a("s_mov_b32 exec_hi, 0xffff"); a(ldY); a("s_mov_b32 exec_hi, -1")
    a("L_nopre:")
    for x in range(2):
        for i in range(4): a("v_add_f32 v%d, v%d, v%d" % (vW + 4 * x + i, vE[i] + 2 * x, vE[i] + 2 * x + 1))
        a("ds_write_b128 v5, %s offset:%d" % (vr(vW + 4 * x), L_LP + 1024 * x))
    a("s_waitcnt lgkmcnt(0)"); a("s_barrier")
    a("s_cmp_ge_u32 s101, 2"); a("s_cbranch_scc1 L_final")
    publish(4, vE)
    a("s_branch L_hdone")
    a("L_final:")
    def fold(r):
        if pb:
            a("v_lshlrev_b32 v%d, 16, v%d" % (r + 2, r + 1)); a("v_and_b32 v%d, 0xffff0000, v%d" % (r + 3, r + 1))
            a("v_and_b32 v%d, 0xffff0000, v%d" % (r + 1, r)); a("v_lshlrev_b32 v%d, 16, v%d" % (r, r))
        a("v_permlane32_swap_b32 v%d, v%d" % (r, r + 2)); a("v_permlane32_swap_b32 v%d, v%d" % (r + 1, r + 3))
        a("v_pk_add_f32 %s, %s, %s" % (vr(r, 2), vr(r, 2), vr(r + 2, 2)))
        a("v_permlane16_swap_b32 v%d, v%d" % (r, r + 1)); a("v_add_f32 v%d, v%d, v%d" % (r, r, r + 1))
        for k in (8, 4): a("v_add_f32_dpp v%d, v%d, v%d row_ror:%d %s" % (r, r, r, k, DPP))
        round_bf16(a, r)
    def chk(r, tgt):
        a("s_waitcnt vmcnt(1)"); umax(list(range(r, r + NP))); a("v_cmp_eq_u32 vcc, -1, v3"); a("s_cmp_eq_u64 vcc, 0"); a("s_cbranch_scc1 " + tgt)
    a("s_waitcnt vmcnt(0)")
    mpoll("L_ypoll", [ldY], list(range(Y4, Y4 + NP)))
    a(ldA); fold(Y4); a("s_mov_b32 s11, %d" % SPIN)
    a("L_pp:"); a(ldB); chk(A4, "L_ppa"); a(ldA); chk(B4, "L_ppb")
    a("s_sub_u32 s11, s11, 1"); a("s_cmp_lg_u32 s11, 0"); a("s_cbranch_scc1 L_pp")
    a("L_ppb:"); fold(B4); a("v_add_f32 v4, v%d, v%d" % (vX, B4)); a("s_branch L_ppe")
    a("L_ppa:"); fold(A4); a("v_add_f32 v4, v%d, v%d" % (vX, A4))
    a("L_ppe:"); round_bf16(a, 4); a("v_add_f32 v4, v4, v%d" % Y4); a("v_cvt_pk_bf16_f32 v4, v4, v4")
    a("s_mov_b32 exec_lo, 0x000f000f"); a("s_mov_b32 exec_hi, 0x000f000f")
    a("buffer_store_short v4, v11, %s, s75 offen" % sOUT)
    a("s_branch L_hdone")

    a("L_down:")
    vm = VM(a)
    vH, vAc, vTp, vW = 16, 24, 56, 64
    srd(a, 60, 32, 5308416)
    a("s_cmp_lt_u32 s2, 224"); a("s_cselect_b32 s100, s100, 0")
    a("v_lshrrev_b32 v3, 3, v0"); a("v_mul_u32_u24 v2, %d, v3" % (8 * 1152)); a("v_and_b32 v4, 7, v0"); a("v_lshl_add_u32 v2, v4, 4, v2")
    a("s_sub_u32 s4, s8, 16"); a("s_mul_i32 s4, s4, 3"); a("s_add_u32 s4, s4, s101")
    a("s_mul_i32 s72, s4, %d" % (128 * 1152)); a("s_lshl_b32 s5, s9, 7"); a("s_add_u32 s72, s72, s5")
    a("s_lshl_b32 s14, s4, 11"); a("s_add_u32 s14, s14, %d" % WS_H)
    actaddr(9, 4, 128)
    a("v_lshrrev_b32 v3, 4, v0"); a("v_and_b32 v4, 15, v0"); a("v_mul_u32_u24 v7, %d, v3" % RS); a("v_lshl_add_u32 v7, v4, %d, v7" % (SH - 4))
    a("v_lshlrev_b32 v6, 7, v3"); a("v_bfe_u32 v3, v0, 1, 3"); a("v_lshl_or_b32 v6, v3, 4, v6"); a("v_and_b32 v3, 1, v0"); a("v_lshl_or_b32 v6, v3, 10, v6")
    a("s_lshl_b32 s4, s101, 9"); a("v_add_u32 v6, s4, v6"); a("s_mul_i32 s4, s101, %d" % (4 * RS)); a("s_add_u32 s73, s73, s4")
    a("v_mov_b32 v11, 0")
    def body(): a("ds_read_b32 v8, v11 offset:%d" % L_G); a("s_waitcnt lgkmcnt(0)"); a("v_cmp_le_u32 vcc, %d, v8" % hat)
    spin(body, "L_hwait")
    ldH = ["buffer_load_dwordx4 %s, v9, %s, s14 offen offset:%d sc1" % (vr(vH + 4 * b_), sWS, 1024 * b_) for b_ in range(2)]
    for t_ in ldH: a(t_)
    a("s_waitcnt vmcnt(0)")
    mpoll("L_hpoll", ldH, list(range(vH, vH + 8)))
    a("s_barrier")
    w2 = []
    for k in range(17):
        b_, j = divmod(k, 8)
        if k == dsplit: s2()
        if k == 16: break
        if j % 4 == 0: a("s_add_u32 s5, s72, %d" % ((64 * b_ + j) * 1152))
        w2.append(vm.issue("buffer_load_dwordx4 %s, v2, %s, s5 offen offset:%d nt" % (vr(vW + 4 * k), sW2, 1152 * (j % 4))))
    for b_ in range(2):
        base, tp = vW + 32 * b_, 128 + 32 * b_
        for q in range(4):
            vm.wait(w2[8 * b_ + 2 * q + 1])
            for i in range(8):
                a("v_perm_b32 v%d, v%d, v%d, s%d" % (tp + 4 * i + q, base + 4 * (2 * q + 1) + i // 2, base + 4 * (2 * q) + i // 2, 12 + i % 2))
                if q == 3 and i >= 2: a(MF % (vr(vAc + 4 * (i - 2)), vr(vH + 4 * b_), vr(tp + 4 * (i - 2)), "0" if b_ == 0 else vr(vAc + 4 * (i - 2))))
        for i in (6, 7): a(MF % (vr(vAc + 4 * i), vr(vH + 4 * b_), vr(tp + 4 * i), "0" if b_ == 0 else vr(vAc + 4 * i)))
    T(8)
    block_fold(vTp, vAc)
    for x in range(2): a("ds_write_b128 v5, %s offset:%d" % (vr(vTp + 4 * x), L_LP + 1024 * x))
    a("s_waitcnt lgkmcnt(0)"); a("s_barrier")
    a("s_cmp_ge_u32 s101, 2"); a("s_cbranch_scc1 L_hdone")
    publish(3, [24, 28, 32])
    a("L_hdone:")
    T(9); T.flush()
    a("L_end:")
    a("s_endpgm")
    a("L_codeend:")
    a.pad()
    head = open("parallel_sum__sliding_block_cached__geglu_ffn__decode.s.ref").read().split("; Override")[0]
    head += "; @launch grid=(256,1,1) block=(%d,1,1) lds=%d\n" % (64 * NW, LDS_BYTES) + HEADER
    head += '.amdgcn_target "amdgcn-amd-amdhsa--gfx950"\n.text\n.globl %s\n.p2align 8\n.type %s,@function\n' % (KN, KN)
    tail = '.section .rodata,"a"\n.p2align 6\n.amdhsa_kernel %s\n  .amdhsa_next_free_vgpr 256\n  .amdhsa_next_free_sgpr 102\n  .amdhsa_accum_offset 256\n' % KN
    tail += "  .amdhsa_group_segment_fixed_size 0\n  .amdhsa_kernarg_size 96\n  .amdhsa_user_sgpr_count 2\n  .amdhsa_user_sgpr_kernarg_segment_ptr 1\n  .amdhsa_system_sgpr_workgroup_id_x 1\n.end_amdhsa_kernel\n"
    return head + a.text() + tail

RAW = None
def report(t, verbose):
    import gen10
    gen10.report(t, verbose)

if __name__ == "__main__":
    kw = eval("dict(%s)" % (sys.argv[2] if len(sys.argv) > 2 else ""))
    open(sys.argv[1], "w").write(gen(**kw))
```

```python
import sys, struct
from asmlib import Asm, VM
KN = "parallel_sum__sliding_block_cached__geglu_ffn__decode_kernel"

def f32(x): return "0x%08x" % struct.unpack("<I", struct.pack("<f", x))[0]
def vr(b, n=4): return "v[%d:%d]" % (b, b + n - 1) if n > 1 else "v%d" % b
DPP = "row_mask:0xf bank_mask:0xf"
MF = "v_mfma_f32_16x16x32_bf16 %s, %s, %s, %s"

WS_L1, WS_STAT, WS_H, WS_PRG, WS_P, WS_O, WS_TS = 0, 0x40000, 0x48000, 0x60000, 0x80000, 0x100000, 0x200000
L_F, L_C, L_Q, L_OP, L_LP, L_G = 0, 4, 1024, 2048, 8192, 16384
LDS_BYTES = 17408
SPIN = 400000
L2E = 1.4426950408889634
NW = 8
sK, sV, sX, sWS, sW1, sW2, sDBG, sOUT = ("s[%d:%d]" % (b, b + 3) for b in (40, 44, 48, 52, 56, 60, 64, 68))

HEADER = """\
; One workgroup per CU (256 x 512 threads). id = 8*j + x; x groups workgroups that normally share a die.
"""

def srd(a, base, ptr, nbytes):
    a("s_mov_b32 s%d, s%d" % (base, ptr)); a("s_mov_b32 s%d, s%d" % (base + 1, ptr + 1))
    a("s_mov_b32 s%d, %s" % (base + 2, nbytes)); a("s_mov_b32 s%d, 0x20000" % (base + 3))

class Stamps:
    def __init__(self, a, on): self.a, self.on = a, on
    def __call__(self, idx):
        if self.on: self.a("s_memrealtime s[%d:%d]" % (76 + 2 * idx, 77 + 2 * idx))
    def flush(self, n=12):
        if not self.on: return
        a = self.a
        a("s_waitcnt lgkmcnt(0)"); srd(a, 52, 38, "0x40000000")
        a("s_mul_i32 s4, s2, %d" % NW); a("s_add_u32 s4, s4, s3"); a("s_lshl_b32 s4, s4, 6"); a("s_add_u32 s4, s4, %d" % WS_TS)
        a("s_mov_b64 exec, 1"); a("v_mov_b32 v0, 0")
        for q in range(n // 4):
            for i in range(4): a("v_mov_b32 v%d, s%d" % (4 + 4 * q + i, 76 + 2 * (4 * q + i)))
            a("buffer_store_dwordx4 %s, v0, %s, s4 offen offset:%d" % (vr(4 + 4 * q), sWS, 16 * q))

def allreduce(a, op, v, t, steps):
    for s in steps:
        if s == 0: a("%s_dpp v%d, v%d, v%d quad_perm:[1,0,3,2] %s" % (op, v, v, v, DPP))
        elif s < 16: a("%s_dpp v%d, v%d, v%d row_ror:%d %s" % (op, v, v, v, s, DPP))
        else:
            a("v_mov_b32 v%d, v%d" % (t, v)); a("v_permlane%d_swap_b32 v%d, v%d" % (s, v, t)); a("%s v%d, v%d, v%d" % (op, v, v, t))

def round_bf16(a, v):
    a("v_cvt_pk_bf16_f32 v%d, v%d, v%d" % (v, v, v)); a("v_and_b32 v%d, 0xffff0000, v%d" % (v, v))

def gen(ts=0, loc=1, d=5, d0=3, nd0=27, nd1=32, dend=6, nramp=120, step=2, R=52, stat_at=100, nfree=32, da=10,
        flagblk=7, lnstep=28, pf=4, lv=(4, 5, 6, 7), th=(-1.5, 1.5, 4), bias=3, lead=4, leadd=0, fbend=114, fin=126, hat=100, pfn=64, pb=1, amap=(9, 11, 13, 12, 14, 15, 17, 18, 16, 8, 10), svk=None, wsplit=3, dsplit=8, oat=4, hold=0, holdx=0):
    assert sorted(amap) == list(range(8, 19))
    assert R % 2 == 0
    split = wsplit < 8 or dsplit < 16
    RS = 3584 if pb else 7168; SH = 7 if pb else 8; NP = 2 if pb else 4
    a = Asm(); T = Stamps(a, ts)
    uid = [0]
    def lab(p): uid[0] += 1; return "L_%s%d" % (p, uid[0])
    def note(t): a("; " + t)

    def spin(body, label):
        a("s_mov_b32 s11, %d" % SPIN)
        a(label + ":"); body()
        a("s_cmp_eq_u64 vcc, exec"); a("s_cbranch_scc1 %s_ok" % label)
        a("s_sub_u32 s11, s11, 1"); a("s_cmp_lg_u32 s11, 0"); a("s_cbranch_scc1 %s" % label)
        a(label + "_ok:")

    def umax(regs):
        if len(regs) == 2: a("v_max_u32 v3, v%d, v%d" % tuple(regs)); return
        a("v_max3_u32 v3, v%d, v%d, v%d" % tuple(regs[:3])); rest = regs[3:]
        while len(rest) >= 2: a("v_max3_u32 v3, v3, v%d, v%d" % tuple(rest[:2])); rest = rest[2:]
        if rest: a("v_max_u32 v3, v3, v%d" % rest[0])

    def mpoll(label, loads, regs):
        def check(): umax(regs); a("v_cmp_eq_u32 vcc, -1, v3"); a("s_and_b64 exec, exec, vcc"); a("s_cbranch_scc0 %s_ok" % label)
        a("s_mov_b32 s11, %d" % SPIN)
        check()
        a(label + ":")
        for t in loads: a(t)
        a("s_waitcnt vmcnt(0)"); check()
        a("s_sub_u32 s11, s11, 1"); a("s_cmp_lg_u32 s11, 0"); a("s_cbranch_scc1 %s" % label)
        a(label + "_ok:")
        a("s_mov_b64 exec, -1")

    def store2(text):
        f, e = lab("far"), lab("sent")
        a("s_cmp_eq_u32 s100, 0"); a("s_cbranch_scc1 " + f); a(text); a("s_branch " + e); a(f + ":"); a(text + " sc1"); a(e + ":")

    def roles():
        note("s8 = partial slot (0..15 wo head pair, 16..27 w_down slice, >= 28 none), s9 = output column slice")
        e = lab("role")
        a("s_and_b32 s9, s2, 7"); a("s_lshr_b32 s8, s2, 3")
        a("s_cmp_lt_u32 s8, 16"); a("s_cbranch_scc1 " + e)
        a("s_sub_u32 s8, s8, 16"); a("s_cmp_eq_u32 s9, 0"); a("s_cselect_b32 s9, 8, s9"); a("s_cbranch_scc1 " + e)
        a("s_add_u32 s8, s8, 16"); a("s_cmp_lt_u32 s8, 28"); a("s_cbranch_scc1 " + e)
        a("s_mul_i32 s8, s8, 7"); a("s_add_u32 s8, s8, s9"); a("s_sub_u32 s8, s8, %d" % (28 * 7 + 1 - 16))
        a("s_mov_b32 s9, 0"); a("s_cmp_lt_u32 s8, 28"); a("s_cbranch_scc1 " + e)
        a("s_mov_b32 s9, 8"); a("s_sub_u32 s8, s8, 12")
        a(e + ":")

    def oslot(dst):
        a("s_and_b32 s4, s6, 15"); a("s_lshl_b32 s4, s4, 13"); a("s_lshr_b32 s5, s6, 4"); a("s_lshl_b32 s5, s5, 1"); a("s_add_u32 s5, s5, s7")
        a("s_lshl_b32 s5, s5, 9"); a("s_add_u32 s4, s4, s5"); a("s_add_u32 %s, s4, %d" % (dst, WS_O))

    def l1slot(dst):
        a("s_and_b32 %s, s2, 7" % dst); a("s_lshl_b32 %s, %s, 5" % (dst, dst)); a("s_lshr_b32 s4, s2, 3"); a("s_add_u32 %s, %s, s4" % (dst, dst)); a("s_lshl_b32 %s, %s, 10" % (dst, dst))

    def slots(kind, e, lin, t):
        op = ("buffer_load_dword v%d" % (t + 2) if kind == "read" else "buffer_store_dwordx4 %s" % vr(e)) + ", v%d, %s, %s offen"
        fl = " sc1" if kind == "far" else ""
        k0, k = lab("nol"), lab("nop")
        l1slot("s5")
        a("s_lshr_b32 s4, s2, 3"); a("s_lshl_b32 s4, 1, s4"); a("s_and_b32 s4, s4, 0x%x" % (0xff | (0x1ff << 17))); a("s_cbranch_scc0 " + k0)
        a(op % (lin, sWS, "s5") + fl); a(k0 + ":")
        a("s_lshl_b32 s4, s6, 1"); a("s_add_u32 s4, s4, s7"); a("s_lshl_b32 s4, s4, 7"); a("s_add_u32 s4, s4, %d" % WS_STAT)
        a("s_mov_b64 exec, 0xff"); a(op % (lin, sWS, "s4") + fl); a("s_mov_b64 exec, -1")
        a("s_cmp_ge_u32 s8, 28"); a("s_cbranch_scc1 " + k)
        a("v_lshrrev_b32 v%d, %d, v0" % (t, 3 if pb else 4)); a("v_mul_u32_u24 v%d, %d, v%d" % (t, RS, t)); a("v_and_b32 v%d, %d, v0" % (t + 1, 7 if pb else 15)); a("v_lshl_add_u32 v%d, v%d, 4, v%d" % (t, t + 1, t))
        a("s_mul_i32 s4, s9, %d" % (8 * RS)); a("s_lshl_b32 s5, s8, %d" % SH); a("s_add_u32 s4, s4, s5"); a("s_add_u32 s4, s4, %d" % WS_P); a("s_add_u32 s5, s4, %d" % (4 * RS))
        st = [op % (t, sWS, s_) for s_ in (("s4",) if pb else ("s4", "s5"))]
        if kind != "far":
            f = lab("rem")
            a("s_cmp_lt_u32 s2, 224"); a("s_cselect_b32 s10, 0, s8"); a("s_cmp_ge_u32 s10, 16"); a("s_cbranch_scc1 " + (k if kind == "read" else f))
            for x_ in st: a(x_)
            if kind == "near": a("s_branch " + k); a(f + ":")
        if kind != "read":
            for x_ in st: a(x_ + " sc1")
        a(k + ":")

    def block_mm(base, tp, acc, act, first, hook=None):
        for i in range(8):
            t = tp + 4 * (i % 2)
            for q in range(4): a("v_perm_b32 v%d, v%d, v%d, s%d" % (t + q, base + 4 * (2 * q + 1) + i // 2, base + 4 * (2 * q) + i // 2, 12 + i % 2))
            if i > 0: a(MF % (vr(acc + 4 * (i - 1)), vr(act), vr(tp + 4 * ((i - 1) % 2)), "0" if first else vr(acc + 4 * (i - 1))))
            if hook and i % 4 == 0: hook()
        a(MF % (vr(acc + 28), vr(act), vr(tp + 4), "0" if first else vr(acc + 28)))
    def block_fold(dst, acc):
        for i in range(8): a("v_add_f32_dpp v%d, v%d, v%d row_ror:8 row_mask:0xf bank_mask:0x3" % (dst + i, acc + 4 * i + 1, acc + 4 * i))
        for i in range(8): a("v_add_f32_dpp v%d, v%d, v%d row_ror:8 row_mask:0xf bank_mask:0xc" % (dst + i, acc + 4 * i + 2, acc + 4 * i + 3))
    def actaddr(dst, t, rowbytes):
        a("v_bfe_u32 v%d, v0, 1, 3" % dst); a("v_mul_u32_u24 v%d, %d, v%d" % (dst, rowbytes, dst)); a("v_lshrrev_b32 v%d, 4, v0" % t); a("v_lshl_add_u32 v%d, v%d, 5, v%d" % (dst, t, dst))
        a("v_and_b32 v%d, 1, v0" % t); a("v_lshl_add_u32 v%d, v%d, 4, v%d" % (dst, t, dst))
    def prgaddr(line, word):
        a("s_and_b32 %s, s2, 7" % line); a("s_lshl_b32 %s, %s, 8" % (line, line)); a("s_add_u32 %s, %s, %d" % (line, line, WS_PRG))
        a("s_lshr_b32 %s, s2, 3" % word); a("s_lshl_b32 %s, %s, 2" % (word, word)); a("s_add_u32 %s, %s, %s" % (word, word, line))

    a(KN + ":")
    T(0)
    if hold: a("s_memrealtime s[76:77]")
    a("s_cmp_ge_u32 s2, 256"); a("s_cbranch_scc1 L_end")
    a("s_load_dwordx16 s[16:31], s[0:1], 0"); a("s_load_dwordx8 s[32:39], s[0:1], 64")
    a("v_lshrrev_b32 v1, 6, v0"); a("v_and_b32 v0, 63, v0"); a("v_readfirstlane_b32 s3, v1")
    a("s_and_b32 s6, s2, 7"); a("s_lshl_b32 s6, s6, 1"); a("s_bfe_u32 s7, s2, 0x10003"); a("s_or_b32 s6, s6, s7")
    a("s_and_b32 s7, s2, 0x70"); a("s_or_b32 s6, s6, s7"); a("s_lshr_b32 s7, s2, 7")
    a("s_cmp_lt_u32 s3, 4"); a("s_cbranch_scc1 L_stream")
    a("s_cmp_lg_u32 s3, 7"); a("s_cbranch_scc1 L_help")
    a("s_getpc_b64 s[4:5]")
    a("L_pc:")
    a("s_bfe_u32 s8, s2, 0x%x" % (((pf.bit_length() - 1) << 16) + 3)); a("s_mul_i32 s8, s8, %d" % pfn)
    a("v_add_u32 v1, s8, v0"); a("v_lshlrev_b32 v1, 7, v1"); a("v_min_u32 v1, L_codeend-L_pc-4, v1")
    a("global_load_dword v255, v1, s[4:5]")
    a("s_branch L_help")

    a("L_stream:")
    vm = VM(a)
    vKo, vVo, vM, vL, vF = 1, 2, 5, 6, 7
    vMask, vQ0, vQ1, vAcc = 12, 16, 20, 24
    vD = [28, 32]
    pool = list(range(36, 252, 4))
    assert len(pool) >= R + 2
    a("v_lshrrev_b32 v3, 4, v0"); a("v_lshlrev_b32 v3, 6, v3")
    a("v_and_b32 v4, 3, v0"); a("v_lshl_or_b32 v3, v4, 4, v3")
    if amap[10] == amap[9] + 1: a("v_bfe_u32 v4, v0, 2, 2"); a("v_lshl_or_b32 v%d, v4, %d, v3" % (vKo, amap[9]))
    else:
        a("v_bfe_u32 v4, v0, 2, 1"); a("v_lshl_or_b32 v3, v4, %d, v3" % amap[9]); a("v_bfe_u32 v4, v0, 3, 1"); a("v_lshl_or_b32 v%d, v4, %d, v3" % (vKo, amap[10]))
    a("s_lshl_b32 s14, s6, 21"); a("s_lshl_b32 s15, s7, %d" % amap[8]); a("s_add_u32 s14, s14, s15"); a("s_add_u32 s14, s14, %d" % (6144 * 256))
    if amap[1] == amap[0] + 1: a("s_lshl_b32 s15, s3, %d" % amap[0]); a("s_add_u32 s14, s14, s15")
    else:
        a("s_and_b32 s15, s3, 1"); a("s_lshl_b32 s15, s15, %d" % amap[0]); a("s_add_u32 s14, s14, s15")
        a("s_lshr_b32 s15, s3, 1"); a("s_lshl_b32 s15, s15, %d" % amap[1]); a("s_add_u32 s14, s14, s15")
    a("s_mov_b32 s42, 0x10000000"); a("s_mov_b32 s43, 0x20000")
    a("s_waitcnt lgkmcnt(0)")
    a("s_mov_b32 s40, s18"); a("s_mov_b32 s41, s19")
    slot, tok, free, issued = {}, {}, pool[:], [0]
    def issue_next():
        n = issued[0]; issued[0] += 1
        r = free.pop(0); slot[n] = r
        a("s_add_u32 s10, s14, %d" % sum(((n >> i) & 1) << amap[2 + i] for i in range(6)))
        tok[n] = vm.issue("buffer_load_dwordx4 %s, v%d, %s, s10 offen nt" % (vr(r), vKo if n < 64 else vVo, sK if n < 64 else sV))
        if n == 127 and svk is None: note("SV: every V load is issued, second-layer weights may follow"); a("s_barrier")
    for _ in range(d0): issue_next()
    srd(a, 44, 20, "0x10000000"); srd(a, 52, 38, "0x40000000")
    a("v_and_b32 v3, 15, v0"); a("v_lshlrev_b32 v3, 4, v3"); a("v_bfe_u32 v4, v0, 4, 1"); a("v_lshl_or_b32 v3, v4, %d, v3" % amap[9])
    a("v_lshrrev_b32 v4, 5, v0"); a("v_lshl_or_b32 v%d, v4, %d, v3" % (vVo, amap[10]))
    a("v_bfe_u32 v3, v0, 3, 1"); a("v_bfe_u32 v4, v0, 1, 1"); a("v_lshl_or_b32 v3, v3, 1, v4")
    a("v_and_b32 v4, 1, v0"); a("v_lshlrev_b32 v4, 4, v4"); a("v_mov_b32 v5, 0xffff"); a("v_lshlrev_b32 v4, v4, v5")
    for r in range(4):
        a("v_cmp_eq_u32 vcc, %d, v3" % r); a("v_cndmask_b32 v%d, 0, v4, vcc" % (vMask + r))
    oslot("s26"); a("s_lshl_b32 s5, s3, 7"); a("s_add_u32 s26, s26, s5")
    a("s_lshl_b32 s4, s3, 2"); a("v_lshlrev_b32 v9, 4, v0"); a("v_add_u32 v8, s4, v9"); a("v_mov_b32 v253, 0"); a("s_mov_b32 s27, 0")
    def D0(n):
        if n < nd0: return d0
        if n < nd1: return d0 + 1
        if n < nramp: return d
        return min(dend, d + (n - nramp + 1) // step)
    def D(n): return D0(n) + (lv[-1] - d if n >= R else 0)
    def paced():
        n = issued[0]
        if n >= 128: return
        vm.wait(tok[n - D(n)])
        if n >= R:
            if n % 2 == 1: a("s_waitcnt lgkmcnt(0)"); a("v_readfirstlane_b32 s27, v252")
            used = False
            for l_, t_ in reversed(list(zip(lv[:-1], th))):
                m = n - (D0(n) - d + l_)
                if tok[m] > vm.done:
                    a("s_cmp_ge_i32 s27, %d" % int(32 * t_)); a("s_cbranch_scc1 L_hi%d" % n); a("s_waitcnt vmcnt(%d)" % (vm.n - tok[m])); used = True
            if used: a("L_hi%d:" % n)
        issue_next()
        if n >= R:
            a("v_mov_b32 v254, %d" % n); a("ds_write_b32 v8, v254 offset:%d" % L_G)
            if n % 2 == 0: a("ds_read_b32 v252, v253 offset:%d" % L_C)
    def ahead(n):
        while issued[0] < 128 and issued[0] - D(issued[0]) < n: paced()
    while issued[0] < R:
        paced()
        if issued[0] == 24: T(1)
        if issued[0] == nfree:
            a("s_cmp_lt_u32 s2, 208"); a("s_cbranch_scc1 L_nofb"); a("s_barrier"); a("L_nofb:")
    T(2)
    a("s_barrier")
    T(3)
    a("ds_read_b128 %s, v9 offset:%d" % (vr(vQ0), L_Q))
    a("ds_read_b32 v4, v253 offset:%d" % L_F)
    a("v_and_b32 v3, 8, v0"); a("v_cmp_eq_u32 vcc, 0, v3"); a("v_mov_b32 v%d, 0xff800000" % vM)
    a("s_mov_b32 s15, %s" % f32(128 ** -0.5))
    a("s_waitcnt lgkmcnt(0)")
    a("v_readfirstlane_b32 s100, v4")
    for i in range(4): a("v_cndmask_b32 v%d, v%d, 0, vcc" % (vQ1 + i, vQ0 + i))
    for i in range(4): a("v_cndmask_b32 v%d, 0, v%d, vcc" % (vQ0 + i, vQ0 + i))
    vD += [free.pop(), free.pop()]
    S = []
    def qk(c):
        Dr = vD[c % 4]
        vm.wait(tok[2 * c + 1])
        a(MF % (vr(Dr), vr(slot[2 * c]), vr(vQ0), "0")); a(MF % (vr(Dr), vr(slot[2 * c + 1]), vr(vQ1), vr(Dr)))
        free.extend([slot[2 * c], slot[2 * c + 1]])
    def extract(c):
        if c % 4 == 0: S.extend(range(free[-1], free[-1] + 4)); free.pop()
        x, y, DA, DB = S[c], S[c + 1], vD[c % 4], vD[(c + 1) % 4]
        for i in range(4):
            for s_, Dr in ((x, DA), (y, DB)):
                if i == 0: a("v_mov_b32_dpp v%d, v%d quad_perm:[0,0,0,0] %s" % (s_, Dr, DPP))
                else: a("v_add_f32_dpp v%d, v%d, v%d quad_perm:[%d,%d,%d,%d] %s" % (s_, Dr + i, s_, i, i, i, i, DPP))
        for rep in range(2):
            a("v_cvt_pk_bf16_f32 v3, v%d, v%d" % (x, y))
            a("v_lshlrev_b32 v%d, 16, v3" % x); a("v_and_b32 v%d, 0xffff0000, v3" % y)
            if rep == 0: a("v_mul_f32 v%d, s15, v%d" % (x, x)); a("v_mul_f32 v%d, s15, v%d" % (y, y))
        a("v_max3_f32 v%d, v%d, v%d, v%d" % (vM, vM, x, y))
    for c in range(0, 32, 2):
        ahead(2 * c + 3)
        qk(c); qk(c + 1)
        paced(); paced()
        if c >= 2: extract(c - 2)
    extract(30)
    free.extend(vD[2:])
    T(4)
    paced()
    allreduce(a, "v_max_f32", vM, 3, [8, 16, 32])
    a("s_mov_b32 s15, %s" % f32(L2E)); a("v_mul_f32 v%d, s15, v%d" % (vM, vM)); a("v_mov_b32 v%d, 0" % vL); a("v_mov_b32 v4, 0")
    for c in range(0, 32, 4):
        for i in range(4): a("v_fma_f32 v%d, v%d, s15, -v%d" % (S[c + i], S[c + i], vM))
        for i in range(4): a("v_exp_f32 v%d, v%d" % (S[c + i], S[c + i]))
        for i in range(4): a("v_add_f32 v%d, v%d, v%d" % ((vL, 4)[i % 2], (vL, 4)[i % 2], S[c + i]))
        for i in range(4): a("v_cvt_pk_bf16_f32 v%d, v%d, v%d" % (S[c + i], S[c + i], S[c + i]))
        if c % 8 == 4: paced()
    a("v_add_f32 v%d, v%d, v4" % (vL, vL))
    allreduce(a, "v_add_f32", vL, 3, [8, 16, 32])
    a("v_min_u32 v10, -2, v%d" % vM); a("v_min_u32 v11, -2, v%d" % vL)
    a("v_lshlrev_b32 v9, 1, v0"); a("v_and_b32 v9, 0x38, v9"); a("v_lshrrev_b32 v3, 5, v0"); a("v_lshl_or_b32 v9, v3, 7, v9")
    a("s_lshl_b32 s73, s6, 8"); a("s_add_u32 s73, s73, %d" % WS_STAT)
    a("s_lshl_b32 s4, s7, 3"); a("s_add_u32 s4, s4, s3"); a("s_lshl_b32 s4, s4, 4"); a("s_add_u32 s4, s4, s73")
    a("s_mov_b64 exec, 0x11")
    store2("buffer_store_dwordx2 v[10:11], v9, %s, s4 offen" % sWS); vm.n += 1
    a("s_mov_b64 exec, -1")
    vB = vD[:2]
    def prepB(n):
        c, t = divmod(n - 64, 2)
        for r in range(4):
            if (r >> 1) == t: a("v_and_b32 v%d, v%d, v%d" % (vB[n % 2] + r, S[c], vMask + r))
            else: a("v_and_b32_dpp v%d, v%d, v%d row_ror:8 %s" % (vB[n % 2] + r, S[c], vMask + r, DPP))
    prepB(64)
    tstat = None
    ldS = "buffer_load_dwordx2 v[10:11], v9, %s, s73 offen sc1" % sWS
    for n in range(64, 128):
        ahead(n)
        if tstat is None and issued[0] >= stat_at: tstat = vm.issue(ldS)
        vm.wait(tok[n])
        if svk is not None and n == 127 - svk: assert issued[0] == 128; note("SV: second-layer weights may follow"); a("s_barrier")
        a(MF % (vr(vAcc), vr(slot[n]), vr(vB[n % 2]), "0" if n == 64 else vr(vAcc)))
        free.append(slot[n])
        if n % 2 == 1 and issued[0] < 128 and issued[0] - D(issued[0]) > n: paced()
        if n < 127: prepB(n + 1)
        if tstat and tstat > 0 and vm.done >= tstat:
            note("combine the eight (max, sum) pairs of the row: f = exp(own max - row max) / row sum")
            def stat_valid(): a("v_max_u32 v3, v10, v11"); a("v_cmp_ne_u32 vcc, -1, v3")
            stat_valid(); a("s_cmp_eq_u64 vcc, exec"); a("s_cbranch_scc1 L_stat_ok")
            def body(): a(ldS); a("s_waitcnt vmcnt(0)"); stat_valid()
            spin(body, "L_stat")
            a("v_mov_b32 v%d, v10" % vF); allreduce(a, "v_max_f32", vF, 3, [8, 16, 32])
            a("v_sub_f32 v10, v10, v%d" % vF); a("v_sub_f32 v%d, v%d, v%d" % (vF, vM, vF))
            a("v_exp_f32 v10, v10"); a("v_exp_f32 v%d, v%d" % (vF, vF)); a("v_mul_f32 v10, v10, v11")
            paced()
            allreduce(a, "v_add_f32", 10, 3, [8, 16, 32])
            a("v_rcp_f32 v10, v10"); a("v_mul_f32 v%d, v%d, v10" % (vF, vF)); a("v_mov_b32 v%d, v%d" % (vL, vF))
            a("v_bfe_u32 v3, v0, 2, 1"); a("v_mul_u32_u24 v9, 704, v3"); a("v_lshrrev_b32 v4, 4, v0"); a("v_mul_u32_u24 v4, 160, v4"); a("v_add_u32 v9, v9, v4")
            a("v_bfe_u32 v3, v0, 3, 1"); a("v_lshl_add_u32 v9, v3, 4, v9"); a("v_and_b32 v3, 3, v0"); a("v_lshl_add_u32 v9, v3, 2, v9")
            a("s_mul_i32 s4, s3, 1536"); a("s_add_u32 s4, s4, %d" % L_OP); a("v_add_u32 v9, s4, v9")
            a("s_lshr_b32 s4, s3, 1"); a("s_mul_i32 s4, s4, 704"); a("s_and_b32 s5, s3, 1"); a("s_mul_i32 s5, s5, 320"); a("s_add_u32 s4, s4, s5")
            a("v_and_b32 v3, 15, v0"); a("v_lshl_add_u32 v10, v3, 3, v4"); a("v_add_u32 v10, s4, v10"); a("v_lshlrev_b32 v11, 2, v0")
            tstat = -1
    assert tstat == -1
    T(6)
    for i in (0, 2): a("v_pk_mul_f32 %s, %s, v[6:7]" % (vr(vAcc + i, 2), vr(vAcc + i, 2)))
    a("ds_write2_b32 v9, v%d, v%d offset0:0 offset1:8" % (vAcc, vAcc + 1))
    a("ds_write2_b32 v9, v%d, v%d offset0:16 offset1:24" % (vAcc + 2, vAcc + 3))
    a("s_waitcnt lgkmcnt(0)"); a("s_barrier")
    a("s_mov_b32 exec_hi, 0")
    for w in range(4): a("ds_read_b64 %s, v10 offset:%d" % (vr(16 + 2 * w, 2), L_OP + 1536 * w))
    a("s_waitcnt lgkmcnt(2)"); a("v_pk_add_f32 v[16:17], v[16:17], v[18:19]")
    a("s_waitcnt lgkmcnt(0)"); a("v_pk_add_f32 v[20:21], v[20:21], v[22:23]"); a("v_pk_add_f32 v[16:17], v[16:17], v[20:21]")
    a("v_cvt_pk_bf16_f32 v3, v16, v17"); a("v_min_u32 v3, -2, v3")
    a("buffer_store_dword v3, v11, %s, s26 offen sc1" % sWS)
    T(5)
    if split: note("the held-back weight loads go out behind these stores"); a("s_barrier")
    if oat < 0: a("s_waitcnt vmcnt(0)")
    T.flush()
    a("s_endpgm")

    a("L_help:")
    vLin, vWo = 1, 2
    a("v_lshlrev_b32 v%d, 4, v0" % vLin)
    a("s_mov_b32 s12, 0x05040100"); a("s_mov_b32 s13, 0x07060302")
    a("s_cmp_lg_u32 s3, 4"); a("s_cbranch_scc1 L_h567")
    vm = VM(a)
    vXN, vAc, vTp, vRing, w1blk = 8, 44, 244, 116, 4
    a("s_lshr_b32 s101, s2, 3"); a("s_and_b32 s4, s2, 7")
    a("s_cmp_lt_u32 s101, 8"); a("s_movk_i32 s14, 8192"); a("s_cselect_b32 s14, s14, 9216"); a("s_mov_b32 s58, 4718592"); a("s_cselect_b32 s58, s58, 5308416")
    a("s_cselect_b32 s5, 8, 9"); a("s_cselect_b32 s15, 0, 8"); a("s_mul_i32 s4, s4, s5")
    a("s_cmp_lt_u32 s101, 17"); a("s_cselect_b32 s15, s15, 17"); a("s_sub_u32 s15, s101, s15"); a("s_add_u32 s74, s15, s4"); a("s_lshl_b32 s15, s74, 7")
    a("v_lshrrev_b32 v3, 3, v0"); a("v_lshlrev_b32 v3, 3, v3"); a("v_mul_u32_u24 v3, s14, v3"); a("v_and_b32 v2, 7, v0"); a("v_lshl_add_u32 v%d, v2, 4, v3" % vWo)
    actaddr(3, 4, 1152)
    a("s_mul_i32 s75, s14, 57"); a("s_mov_b32 s59, 0x20000")
    a("s_waitcnt lgkmcnt(0)")
    srd(a, 52, 38, "0x40000000"); srd(a, 64, 36, 256)
    a("s_cmp_ge_u32 s2, 208"); a("s_cbranch_scc1 L_nol1")
    a("s_cmp_lt_u32 s101, 17"); a("s_cselect_b32 s56, s28, s30"); a("s_cselect_b32 s57, s29, s31")
    a("s_cmp_lt_u32 s101, 8"); a("s_cselect_b32 s56, s22, s56"); a("s_cselect_b32 s57, s23, s57")
    srd(a, 48, 16, 9216)
    for i in range(9): tx = vm.issue("buffer_load_dwordx4 %s, v3, %s, 0 offen offset:%d" % (vr(vXN + 4 * i), sX, 128 * i))
    w1 = []
    def issue_w1():
        blk, j = divmod(len(w1), 8)
        w1.append(vm.issue("buffer_load_dwordx4 %s, v%d, %s, s15 offen nt" % (vr(vRing + 32 * (blk % w1blk) + 4 * j), vWo, sW1)))
        a("s_add_u32 s15, s15, %s" % ("s75" if j == 7 else "s14"))
    while len(w1) < da: issue_w1()
    def paced1(blk):
        if len(w1) < 72 and len(w1) < 8 * (blk + w1blk): vm.wait(w1[len(w1) - da]); issue_w1()
    ln = Asm(); xf = 44
    def unpack_all():
        for i in range(36): ln("v_lshlrev_b32 v%d, 16, v%d" % (xf + 2 * i, vXN + i)); ln("v_and_b32 v%d, 0xffff0000, v%d" % (xf + 2 * i + 1, vXN + i))
    def pack_all():
        for i in range(36): ln("v_cvt_pk_bf16_f32 v%d, v%d, v%d" % (vXN + i, xf + 2 * i, xf + 2 * i + 1))
    for i in range(4): ln("v_mov_b32 v%d, 0x3f803f80" % (244 + i))
    for i in range(9): ln(MF % ("v[248:251]", "v[244:247]", vr(vXN + 4 * i), "0" if i == 0 else "v[248:251]"))
    unpack_all()
    allreduce(ln, "v_add_f32", 248, 249, [0])
    ln("v_mul_f32 v248, %s, v248" % f32(1 / 576)); ln("v_mov_b32 v4, v248"); round_bf16(ln, 4)
    ln("v_sub_f32 v248, v248, v4"); ln("v_sub_f32 v4, 0, v4"); ln("v_mov_b32 v5, v4")
    for i in range(36): ln("v_pk_add_f32 %s, %s, v[4:5]" % (vr(xf + 2 * i, 2), vr(xf + 2 * i, 2)))
    for i in range(36):
        acc = vr(244 + 2 * (i % 2), 2); x2 = vr(xf + 2 * i, 2)
        ln("v_pk_mul_f32 %s, %s, %s" % (acc, x2, x2) if i < 2 else "v_pk_fma_f32 %s, %s, %s, %s" % (acc, x2, x2, acc))
    ln("v_pk_add_f32 v[244:245], v[244:245], v[246:247]"); ln("v_add_f32 v4, v244, v245")
    allreduce(ln, "v_add_f32", 4, 5, [0, 16, 32])
    ln("v_mul_f32 v4, %s, v4" % f32(1 / 576)); ln("v_fma_f32 v4, -v248, v248, v4"); ln("v_max_f32 v4, 0, v4"); round_bf16(ln, 4)
    ln("v_add_f32 v4, %s, v4" % f32(1e-5)); round_bf16(ln, 4)
    ln("v_sqrt_f32 v4, v4"); round_bf16(ln, 4); ln("v_rcp_f32 v4, v4")
    pack_all(); ln("v_mov_b32 v5, v4"); unpack_all()
    for i in range(36): ln("v_pk_mul_f32 %s, %s, v[4:5]" % (vr(xf + 2 * i, 2), vr(xf + 2 * i, 2)))
    pack_all()
    vm.wait(tx)
    for k, ins in enumerate(ln.ins):
        a(ins.text)
        if k % lnstep == lnstep - 1: paced1(0)
    T(1)
    def flagaddr(): a("v_and_b32 v253, 7, v0"); a("v_and_b32 v254, 24, v0"); a("v_lshl_or_b32 v253, v254, 1, v253"); a("v_lshlrev_b32 v253, 2, v253")
    ldF = "buffer_load_dword v252, v253, %s, 0 offen sc1" % sDBG
    for blk in range(9):
        while len(w1) < min(72, 8 * blk + 7 + da): paced1(blk)
        if blk == flagblk: flagaddr(); tflag = vm.issue(ldF)
        vm.wait(w1[8 * blk + 7])
        block_mm(vRing + 32 * (blk % w1blk), vTp, vAc, vXN + 4 * blk, blk == 0, lambda: paced1(blk))
    T(2)
    block_fold(vTp, vAc)
    for q in range(4): a("v_cvt_pk_bf16_f32 v%d, v%d, v%d" % (12 + q, vTp + 2 * q, vTp + 2 * q + 1))
    for q in range(4): a("v_min_u32 v%d, -2, v%d" % (12 + q, 12 + q))
    vm.wait(tflag)
    a("s_branch L_l1done")
    a("L_nol1:")
    a("s_barrier")
    flagaddr(); a("v_mov_b32 v252, 0")
    a("L_l1done:")
    T(10)
    roles()
    a("s_mov_b32 s5, 0x88888888")
    def fvalid(): a("v_and_b32 v8, s5, v252"); a("v_cmp_eq_u32 vcc, s5, v8")
    fvalid(); a("s_cmp_eq_u64 vcc, exec"); a("s_cbranch_scc1 L_flags_ok")
    def body(): a(ldF); a("s_waitcnt vmcnt(0)"); fvalid()
    spin(body, "L_flags")
    a("v_readfirstlane_b32 s4, v252"); a("v_cmp_eq_u32 vcc, s4, v252"); a("s_cmp_eq_u64 vcc, exec"); a("s_cselect_b32 s100, %d, 0" % loc)
    a("s_cmp_lg_u32 s100, 0"); a("s_cbranch_scc1 L_mode_ok")
    for i in range(4): a("v_mov_b32 v%d, -1" % (16 + i))
    slots("far", 16, vLin, 20)
    a("v_mov_b32 v8, 1"); a("v_mov_b32 v9, 36"); a("s_waitcnt vmcnt(0)"); a("s_mov_b64 exec, 1")
    a("buffer_atomic_add v8, v9, %s, 0 offen sc1" % sDBG)
    def body(): a("buffer_load_dword v8, v9, %s, 0 offen sc1" % sDBG); a("s_waitcnt vmcnt(0)"); a("v_cmp_le_u32 vcc, 0x100, v8")
    spin(body, "L_far")
    a("s_mov_b64 exec, -1")
    a("L_mode_ok:")
    T(4)
    l1slot("s72")
    a("s_cmp_ge_u32 s2, 208"); a("s_cbranch_scc1 L_nol1st")
    a("s_sub_u32 s4, s101, 8"); a("s_cmp_lt_u32 s4, 9"); a("s_cbranch_scc1 L_nol1st")
    store2("buffer_store_dwordx4 v[12:15], v%d, %s, s72 offen" % (vLin, sWS))
    a("L_nol1st:")
    a("v_mov_b32 v8, s100"); a("v_mov_b32 v9, 0"); a("ds_write_b64 v9, v[8:9] offset:%d" % L_F)
    for i in range(4): a("v_mov_b32 v%d, %d" % (16 + i, R - 1))
    a("ds_write_b128 v9, v[16:19] offset:%d" % L_G)
    a("v_bfe_u32 v3, v0, 2, 1"); a("v_lshlrev_b32 v3, 11, v3"); a("v_lshrrev_b32 v4, 5, v0"); a("v_lshl_or_b32 v3, v4, 10, v3")
    a("v_bfe_u32 v4, v0, 4, 1"); a("v_lshl_or_b32 v3, v4, 6, v3"); a("v_and_b32 v4, 3, v0"); a("v_lshl_or_b32 v10, v4, 4, v3")
    a("s_and_b32 s4, s2, 7"); a("s_lshl_b32 s4, s4, 15"); a("s_and_b32 s5, s6, 1"); a("s_lshl_b32 s5, s5, 12"); a("s_add_u32 s4, s4, s5")
    a("s_lshr_b32 s5, s6, 4"); a("s_lshl_b32 s5, s5, 7"); a("s_add_u32 s4, s4, s5")
    def poll4(r, va, label):
        ld = "buffer_load_dwordx4 %s, v%d, %s, s4 offen sc1" % (vr(r), va, sWS)
        a(ld); a("s_waitcnt vmcnt(0)"); mpoll(label, [ld], list(range(r, r + 4)))
    poll4(4, 10, "L_qpoll")
    T(11)
    a("ds_write_b128 v%d, v[4:7] offset:%d" % (vLin, L_Q))
    a("s_waitcnt lgkmcnt(0)"); a("s_barrier")
    T(5)
    a("s_sub_u32 s4, s101, 8"); a("s_cmp_ge_u32 s4, 9"); a("s_cbranch_scc1 L_noh")
    a("s_add_u32 s4, s72, %d" % (9 * 1024))
    poll4(16, vLin, "L_upoll")
    a("s_mov_b32 s4, %s" % f32(0.044715)); a("s_mov_b32 s5, %s" % f32(-2 * (2 / 3.141592653589793) ** 0.5 * L2E))
    g, e = list(range(24, 32)), list(range(32, 40))
    def unpack(dst, src):
        for q in range(4): a("v_lshlrev_b32 v%d, 16, v%d" % (dst[2 * q], src + q)); a("v_and_b32 v%d, 0xffff0000, v%d" % (dst[2 * q + 1], src + q))
    def pack(dst, src):
        for q in range(4): a("v_cvt_pk_bf16_f32 v%d, v%d, v%d" % (dst + q, src[2 * q], src[2 * q + 1]))
    unpack(g, 12)
    for i in range(8): a("v_mul_f32 v%d, v%d, v%d" % (e[i], g[i], g[i]))
    for i in range(8): a("v_fma_f32 v%d, v%d, s4, 1.0" % (e[i], e[i]))
    for i in range(8): a("v_mul_f32 v%d, v%d, v%d" % (e[i], e[i], g[i]))
    for i in range(8): a("v_mul_f32 v%d, s5, v%d" % (e[i], e[i]))
    for i in range(8): a("v_exp_f32 v%d, v%d" % (e[i], e[i]))
    for i in range(8): a("v_add_f32 v%d, 1.0, v%d" % (e[i], e[i]))
    for i in range(8): a("v_rcp_f32 v%d, v%d" % (e[i], e[i]))
    for i in range(8): a("v_mul_f32 v%d, v%d, v%d" % (g[i], g[i], e[i]))
    pack(12, g); unpack(g, 12); unpack(e, 16)
    for i in range(8): a("v_mul_f32 v%d, v%d, v%d" % (g[i], g[i], e[i]))
    pack(12, g)
    for q in range(4): a("v_min_u32 v%d, -2, v%d" % (12 + q, 12 + q))
    a("s_lshl_b32 s4, s74, 10"); a("s_add_u32 s4, s4, %d" % WS_H)
    a("buffer_store_dwordx4 v[12:15], v%d, %s, s4 offen sc1" % (vLin, sWS))
    a("L_noh:")
    T(6)
    a("s_cmp_lt_u32 s8, 28"); a("s_cbranch_scc1 L_l2")
    a("s_branch L_hdone")

    a("L_h567:")
    roles()
    a("s_waitcnt lgkmcnt(0)")
    srd(a, 52, 38, "0x40000000")
    a("s_cmp_lg_u32 s3, 5"); a("s_cbranch_scc1 L_h67")
    for i in range(4): a("v_mov_b32 v%d, -1" % (4 + i))
    oslot("s74"); a("v_lshlrev_b32 v3, 3, v0")
    a("buffer_store_dwordx2 v[4:5], v3, %s, s74 offen sc1" % sWS)
    a("s_lshr_b32 s4, s2, 3"); a("s_sub_u32 s4, s4, 8"); a("s_cmp_ge_u32 s4, 9"); a("s_cbranch_scc1 L_nohcl")
    a("s_and_b32 s5, s2, 7"); a("s_mul_i32 s5, s5, 9"); a("s_add_u32 s4, s4, s5"); a("s_lshl_b32 s4, s4, 10"); a("s_add_u32 s4, s4, %d" % WS_H)
    a("buffer_store_dwordx4 v[4:7], v%d, %s, s4 offen sc1" % (vLin, sWS))
    a("L_nohcl:")
    slots("read", 4, vLin, 8)
    prgaddr("s74", "s72")
    a("s_mov_b64 exec, 1"); a("buffer_load_dword v10, v%d, %s, s74 offen" % (vLin, sWS)); a("s_mov_b64 exec, -1")
    a("s_waitcnt vmcnt(0)")
    slots("near", 4, vLin, 8)
    a("v_mov_b32 v11, %d" % (4 * (R - 4))); a("s_mov_b64 exec, 1"); a("buffer_store_dword v11, v%d, %s, s72 offen" % (vLin, sWS))
    a("s_mov_b64 exec, -1")
    a("s_getreg_b32 s5, hwreg(HW_REG_XCC_ID, 0, 3)"); a("s_or_b32 s5, s5, 8"); a("s_and_b32 s4, s2, 7"); a("s_lshl_b32 s4, s4, 2"); a("s_lshl_b32 s5, s5, s4")
    a("s_bfe_u32 s4, s2, 0x30003"); a("s_lshl_b32 s4, s4, 2"); a("s_and_b32 s10, s2, 192"); a("s_add_u32 s4, s4, s10")
    a("s_waitcnt vmcnt(0)")
    a("s_atomic_or s5, s[36:37], s4"); a("s_waitcnt lgkmcnt(0)")
    T(3)
    a("L_h67:")
    a("s_cmp_eq_u32 s3, 7"); a("s_cselect_b32 s4, 0, s8"); a("s_cmp_ge_u32 s4, 28"); a("s_cbranch_scc1 L_hdone")
    a("s_cmp_lt_u32 s2, 208"); a("s_cbranch_scc1 L_nofb2"); a("s_barrier"); a("L_nofb2:")
    a("s_barrier")
    a("v_mov_b32 v9, 0"); a("ds_read_b32 v4, v9 offset:%d" % L_F); a("s_waitcnt lgkmcnt(0)"); a("v_readfirstlane_b32 s100, v4")
    a("s_cmp_lg_u32 s3, 7"); a("s_cbranch_scc1 L_l2")
    a("s_cmp_eq_u32 s100, 0"); a("s_cbranch_scc1 L_ctl_done")
    prgaddr("s74", "s72")
    a("v_and_b32 v8, 31, v0"); a("v_lshlrev_b32 v8, 2, v8")
    a("s_and_b32 s4, s2, 7"); a("s_cselect_b32 s4, s2, 0"); a("s_cmp_ge_u32 s4, 224"); a("s_cselect_b32 s75, %d, 0" % (32 * lead)); a("s_add_u32 s75, s75, %d" % int(32 * bias))
    if leadd: a("s_cmp_ge_u32 s8, 16"); a("s_cselect_b32 s4, 1, -1"); a("s_mul_i32 s4, s4, %d" % int(16 * leadd)); a("s_and_b32 s5, s2, 7"); a("s_cselect_b32 s4, s4, 0"); a("s_add_u32 s75, s75, s4")
    a("s_mov_b32 s11, %d" % SPIN)
    a("L_ctl:")
    a("ds_read_b128 v[12:15], v9 offset:%d" % L_G); a("s_waitcnt lgkmcnt(0)")
    a("v_add3_u32 v12, v12, v13, v14"); a("v_add_u32 v12, v12, v15"); a("s_mov_b64 exec, 1")
    a("buffer_store_dword v12, v9, %s, s72 offen" % sWS); a("s_mov_b64 exec, -1")
    a("v_readfirstlane_b32 s14, v12"); a("s_cmp_ge_u32 s14, %d" % (4 * fbend)); a("s_cbranch_scc1 L_ctl_end")
    a("buffer_load_dword v16, v8, %s, s74 offen sc1" % sWS); a("s_waitcnt vmcnt(0)")
    allreduce(a, "v_add_u32", 16, 17, [8, 4, 2, 1, 16])
    a("v_lshrrev_b32 v16, 2, v16"); a("v_lshlrev_b32 v12, 3, v12"); a("v_sub_u32 v16, v16, v12"); a("v_add_u32 v16, s75, v16")
    a("s_mov_b64 exec, 1"); a("ds_write_b32 v9, v16 offset:%d" % L_C); a("s_mov_b64 exec, -1")
    a("s_sub_u32 s11, s11, 1"); a("s_cmp_lg_u32 s11, 0"); a("s_cbranch_scc1 L_ctl")
    a("L_ctl_end:")
    a("v_mov_b32 v13, %d" % (4 * fin)); a("s_mov_b64 exec, 1"); a("buffer_store_dword v13, v9, %s, s72 offen" % sWS); a("s_mov_b64 exec, -1")
    a("L_ctl_done:")
    a("s_cmp_ge_u32 s8, 16"); a("s_cbranch_scc1 L_hdone")

    a("L_l2:")
    a("s_sub_u32 s101, s3, 4")
    a("s_mul_i32 s73, s9, %d" % (8 * RS)); a("s_lshl_b32 s5, s8, %d" % SH); a("s_add_u32 s73, s73, s5"); a("s_add_u32 s73, s73, %d" % WS_P)
    a("s_lshl_b32 s4, s101, 11"); a("v_add_u32 v5, s4, v%d" % vLin)
    a("s_cmp_ge_u32 s8, 16"); a("s_cbranch_scc1 L_down")
    def publish(n, vE):
        for w in range(n): a("ds_read_b128 %s, v6 offset:%d" % (vr(vE[w]), L_LP + 2048 * w))
        a("s_waitcnt lgkmcnt(%d)" % (n - 2))
        for i in (0, 2): a("v_pk_add_f32 %s, %s, %s" % (vr(vE[0] + i, 2), vr(vE[0] + i, 2), vr(vE[1] + i, 2)))
        a("s_waitcnt lgkmcnt(0)")
        if n == 4:
            for i in (0, 2): a("v_pk_add_f32 %s, %s, %s" % (vr(vE[2] + i, 2), vr(vE[2] + i, 2), vr(vE[3] + i, 2)))
        for i in (0, 2): a("v_pk_add_f32 %s, %s, %s" % (vr(vE[0] + i, 2), vr(vE[0] + i, 2), vr(vE[2] + i, 2)))
        if pb:
            for i in range(2): a("v_cvt_pk_bf16_f32 v%d, v%d, v%d" % (vE[0] + i, vE[0] + 2 * i, vE[0] + 2 * i + 1))
        for i in range(NP): a("v_min_u32 v%d, -2, v%d" % (vE[0] + i, vE[0] + i))
        store2("buffer_store_dwordx%d %s, v7, %s, s73 offen" % (NP, vr(vE[0], NP), sWS))
    vA, vE, vW, vP, A4, Y4, B4, vX = [16, 20], [24, 28, 32, 36], 40, 72, 104, 108, 112, 116
    srd(a, 60, 24, 4718592); srd(a, 48, 16, 9216); srd(a, 68, 34, 9216)
    a("v_lshrrev_b32 v3, 4, v0"); a("v_and_b32 v4, 15, v0"); a("v_lshlrev_b32 v9, 9, v4"); a("v_lshl_or_b32 v9, v3, 4, v9")
    a("v_bfe_u32 v8, v0, 3, 1"); a("v_and_b32 v4, 7, v0")
    a("v_mul_u32_u24 v2, %d, v3" % (8 * 1152)); a("v_mul_u32_u24 v6, %d, v8" % (32 * 1152)); a("v_add_u32 v2, v2, v6"); a("v_lshl_add_u32 v2, v4, 4, v2")
    a("v_mul_u32_u24 v7, %d, v3" % (2 * RS)); a("v_lshl_add_u32 v7, v4, %d, v7" % (SH - 3)); a("v_lshl_add_u32 v7, v8, %d, v7" % (SH - 4))
    a("s_lshl_b32 s72, s8, 2"); a("s_add_u32 s72, s72, s101"); a("s_mul_i32 s72, s72, %d" % (64 * 1152)); a("s_lshl_b32 s4, s9, 7"); a("s_add_u32 s72, s72, s4")
    a("s_lshl_b32 s14, s8, 13"); a("s_lshl_b32 s5, s101, 7"); a("s_add_u32 s14, s14, s5"); a("s_add_u32 s14, s14, %d" % WS_O)
    a("s_and_b32 s15, s101, 1"); a("s_mul_i32 s4, s15, %d" % RS); a("s_add_u32 s73, s73, s4"); a("s_lshl_b32 s4, s15, 10"); a("v_add_u32 v6, s4, v%d" % vLin)
    a("s_lshr_b32 s4, s8, 1"); a("s_and_b32 s5, s8, 1"); a("s_lshl_b32 s5, s5, 1"); a("s_add_u32 s5, s5, s15")
    a("s_lshl_b32 s74, s9, 3"); a("s_add_u32 s74, s74, s4"); a("s_mul_i32 s74, s74, %d" % RS); a("s_lshl_b32 s15, s5, %d" % (SH - 2)); a("s_add_u32 s74, s74, s15"); a("s_add_u32 s74, s74, %d" % WS_P)
    a("s_mul_i32 s75, s4, 1152"); a("s_lshl_b32 s15, s9, 7"); a("s_add_u32 s75, s75, s15"); a("s_lshl_b32 s15, s5, 5"); a("s_add_u32 s75, s75, s15")
    a("s_add_u32 s15, s74, %d" % (16 << SH)); a("s_add_u32 s10, s72, %d" % (4 * 1152))
    a("v_and_b32 v4, 3, v0"); a("v_lshlrev_b32 v11, 3, v4"); a("v_lshl_or_b32 v11, v3, 1, v11")
    a("v_lshrrev_b32 v3, 2, v0"); a("v_lshlrev_b32 v3, %d, v3" % SH); a("v_lshl_or_b32 v10, v4, %d, v3" % (SH - 4))
    a("buffer_load_ushort v%d, v11, %s, s75 offen" % (vX, sX))
    for i in range(4): a("v_mov_b32 v%d, 0" % (Y4 + i))
    ldO = ["buffer_load_dwordx4 %s, v9, %s, s14 offen offset:%d sc1" % (vr(vA[kb]), sWS, 64 * kb) for kb in range(2)]
    ldA, ldB = ("buffer_load_dwordx%d %s, v10, %s, s74 offen sc1" % (NP, vr(r, NP), sWS) for r in (A4, B4))
    ldY = "buffer_load_dwordx%d %s, v10, %s, s15 offen sc1" % (NP, vr(Y4, NP), sWS)
    vm = VM(a); w2 = []
    def s2():
        a("s_barrier")
        if split: a("s_barrier")
    a("s_barrier")
    for j in range(9):
        if j == wsplit: s2()
        if j < 8: w2.append(vm.issue("buffer_load_dwordx4 %s, v2, %s, %s offen offset:%d nt" % (vr(vW + 4 * j), sW2, "s72" if j < 4 else "s10", 1152 * (j % 4))))
    if oat < 0:
        note("this barrier opens once the streaming waves have ended, i.e. their output stores are acknowledged")
        a("s_barrier")
        for t_ in ldO: vm.issue(t_)
    for q in range(4):
        js = (2 * q, 2 * q + 1)
        for j in js:
            vm.wait(w2[j])
            if j + 1 == oat:
                for t_ in ldO: vm.issue(t_)
        for j in js:
            for r in range(2): a("v_mov_b32 v%d, v%d" % (120 + 2 * j + r, vW + 4 * j + r))
        for j in js:
            for r in range(2): a("v_mov_b32_dpp v%d, v%d row_ror:8 row_mask:0xf bank_mask:0xc" % (vW + 4 * j + r, vW + 4 * j + 2 + r))
        for j in js:
            for r in range(2): a("v_mov_b32_dpp v%d, v%d row_ror:8 row_mask:0xf bank_mask:0x3" % (vW + 4 * j + 2 + r, 120 + 2 * j + r))
        for kb in range(2):
            for i in range(4):
                a("v_perm_b32 v%d, v%d, v%d, s%d" % (vP + 16 * kb + 4 * i + q, vW + 4 * (2 * q + 1) + 2 * kb + i // 2, vW + 4 * (2 * q) + 2 * kb + i // 2, 12 + i % 2))
    if oat > 8:
        for t_ in ldO: a(t_)
    a("v_lshlrev_b32 v%d, 16, v%d" % (vX, vX))
    T(7)
    a("s_waitcnt vmcnt(0)")
    mpoll("L_opoll", ldO, list(range(16, 24)))
    T(8)
    for kb in range(2):
        for i in range(4): a(MF % (vr(vE[i]), vr(vA[kb]), vr(vP + 16 * kb + 4 * i), "0" if kb == 0 else vr(vE[i])))
    a("s_cmp_lt_u32 s101, 2"); a("s_cbranch_scc1 L_nopre")
    a("s_mov_b32 exec_hi, 0xffff"); a(ldY); a("s_mov_b32 exec_hi, -1")
    a("L_nopre:")
    for x in range(2):
        for i in range(4): a("v_add_f32 v%d, v%d, v%d" % (vW + 4 * x + i, vE[i] + 2 * x, vE[i] + 2 * x + 1))
        a("ds_write_b128 v5, %s offset:%d" % (vr(vW + 4 * x), L_LP + 1024 * x))
    a("s_waitcnt lgkmcnt(0)"); a("s_barrier")
    a("s_cmp_ge_u32 s101, 2"); a("s_cbranch_scc1 L_final")
    publish(4, vE)
    a("s_branch L_hdone")
    a("L_final:")
    def fold(r):
        if pb:
            a("v_lshlrev_b32 v%d, 16, v%d" % (r + 2, r + 1)); a("v_and_b32 v%d, 0xffff0000, v%d" % (r + 3, r + 1))
            a("v_and_b32 v%d, 0xffff0000, v%d" % (r + 1, r)); a("v_lshlrev_b32 v%d, 16, v%d" % (r, r))
        a("v_permlane32_swap_b32 v%d, v%d" % (r, r + 2)); a("v_permlane32_swap_b32 v%d, v%d" % (r + 1, r + 3))
        a("v_pk_add_f32 %s, %s, %s" % (vr(r, 2), vr(r, 2), vr(r + 2, 2)))
        a("v_permlane16_swap_b32 v%d, v%d" % (r, r + 1)); a("v_add_f32 v%d, v%d, v%d" % (r, r, r + 1))
        for k in (8, 4): a("v_add_f32_dpp v%d, v%d, v%d row_ror:%d %s" % (r, r, r, k, DPP))
        round_bf16(a, r)
    def chk(r, tgt):
        a("s_waitcnt vmcnt(1)"); umax(list(range(r, r + NP))); a("v_cmp_eq_u32 vcc, -1, v3"); a("s_cmp_eq_u64 vcc, 0"); a("s_cbranch_scc1 " + tgt)
    a("s_waitcnt vmcnt(0)")
    mpoll("L_ypoll", [ldY], list(range(Y4, Y4 + NP)))
    a(ldA); fold(Y4); a("s_mov_b32 s11, %d" % SPIN)
    a("L_pp:"); a(ldB); chk(A4, "L_ppa"); a(ldA); chk(B4, "L_ppb")
    a("s_sub_u32 s11, s11, 1"); a("s_cmp_lg_u32 s11, 0"); a("s_cbranch_scc1 L_pp")
    a("L_ppb:"); fold(B4); a("v_add_f32 v4, v%d, v%d" % (vX, B4)); a("s_branch L_ppe")
    a("L_ppa:"); fold(A4); a("v_add_f32 v4, v%d, v%d" % (vX, A4))
    a("L_ppe:"); round_bf16(a, 4); a("v_add_f32 v4, v4, v%d" % Y4); a("v_cvt_pk_bf16_f32 v4, v4, v4")
    a("s_mov_b32 exec_lo, 0x000f000f"); a("s_mov_b32 exec_hi, 0x000f000f")
    a("buffer_store_short v4, v11, %s, s75 offen" % sOUT)
    if hold:
        a("s_and_b32 s4, s2, 7"); a("s_cmp_lg_u32 s4, %d" % holdx); a("s_cbranch_scc1 L_hdone")
        a("L_hold:"); a("s_memrealtime s[78:79]"); a("s_waitcnt lgkmcnt(0)"); a("s_sub_u32 s78, s78, s76"); a("s_cmp_lt_u32 s78, %d" % (hold * 100)); a("s_cbranch_scc1 L_hold")
    a("s_branch L_hdone")

    a("L_down:")
    vm = VM(a)
    vH, vAc, vTp, vW = 16, 24, 56, 64
    srd(a, 60, 32, 5308416)
    a("s_cmp_lt_u32 s2, 224"); a("s_cselect_b32 s100, s100, 0")
    a("v_lshrrev_b32 v3, 3, v0"); a("v_mul_u32_u24 v2, %d, v3" % (8 * 1152)); a("v_and_b32 v4, 7, v0"); a("v_lshl_add_u32 v2, v4, 4, v2")
    a("s_sub_u32 s4, s8, 16"); a("s_mul_i32 s4, s4, 3"); a("s_add_u32 s4, s4, s101")
    a("s_mul_i32 s72, s4, %d" % (128 * 1152)); a("s_lshl_b32 s5, s9, 7"); a("s_add_u32 s72, s72, s5")
    a("s_lshl_b32 s14, s4, 11"); a("s_add_u32 s14, s14, %d" % WS_H)
    actaddr(9, 4, 128)
    a("v_lshrrev_b32 v3, 4, v0"); a("v_and_b32 v4, 15, v0"); a("v_mul_u32_u24 v7, %d, v3" % RS); a("v_lshl_add_u32 v7, v4, %d, v7" % (SH - 4))
    a("v_lshlrev_b32 v6, 7, v3"); a("v_bfe_u32 v3, v0, 1, 3"); a("v_lshl_or_b32 v6, v3, 4, v6"); a("v_and_b32 v3, 1, v0"); a("v_lshl_or_b32 v6, v3, 10, v6")
    a("s_lshl_b32 s4, s101, 9"); a("v_add_u32 v6, s4, v6"); a("s_mul_i32 s4, s101, %d" % (4 * RS)); a("s_add_u32 s73, s73, s4")
    a("v_mov_b32 v11, 0")
    def body(): a("ds_read_b32 v8, v11 offset:%d" % L_G); a("s_waitcnt lgkmcnt(0)"); a("v_cmp_le_u32 vcc, %d, v8" % hat)
    spin(body, "L_hwait")
    ldH = ["buffer_load_dwordx4 %s, v9, %s, s14 offen offset:%d sc1" % (vr(vH + 4 * b_), sWS, 1024 * b_) for b_ in range(2)]
    for t_ in ldH: a(t_)
    a("s_waitcnt vmcnt(0)")
    mpoll("L_hpoll", ldH, list(range(vH, vH + 8)))
    a("s_barrier")
    w2 = []
    for k in range(17):
        b_, j = divmod(k, 8)
        if k == dsplit: s2()
        if k == 16: break
        if j % 4 == 0: a("s_add_u32 s5, s72, %d" % ((64 * b_ + j) * 1152))
        w2.append(vm.issue("buffer_load_dwordx4 %s, v2, %s, s5 offen offset:%d nt" % (vr(vW + 4 * k), sW2, 1152 * (j % 4))))
    for b_ in range(2):
        base, tp = vW + 32 * b_, 128 + 32 * b_
        for q in range(4):
            vm.wait(w2[8 * b_ + 2 * q + 1])
            for i in range(8):
                a("v_perm_b32 v%d, v%d, v%d, s%d" % (tp + 4 * i + q, base + 4 * (2 * q + 1) + i // 2, base + 4 * (2 * q) + i // 2, 12 + i % 2))
                if q == 3 and i >= 2: a(MF % (vr(vAc + 4 * (i - 2)), vr(vH + 4 * b_), vr(tp + 4 * (i - 2)), "0" if b_ == 0 else vr(vAc + 4 * (i - 2))))
        for i in (6, 7): a(MF % (vr(vAc + 4 * i), vr(vH + 4 * b_), vr(tp + 4 * i), "0" if b_ == 0 else vr(vAc + 4 * i)))
    T(8)
    block_fold(vTp, vAc)
    for x in range(2): a("ds_write_b128 v5, %s offset:%d" % (vr(vTp + 4 * x), L_LP + 1024 * x))
    a("s_waitcnt lgkmcnt(0)"); a("s_barrier")
    a("s_cmp_ge_u32 s101, 2"); a("s_cbranch_scc1 L_hdone")
    publish(3, [24, 28, 32])
    a("L_hdone:")
    T(9); T.flush()
    a("L_end:")
    a("s_endpgm")
    a("L_codeend:")
    a.pad()
    head = open("parallel_sum__sliding_block_cached__geglu_ffn__decode.s.ref").read().split("; Override")[0]
    head += "; @launch grid=(256,1,1) block=(%d,1,1) lds=%d\n" % (64 * NW, LDS_BYTES) + HEADER
    head += '.amdgcn_target "amdgcn-amd-amdhsa--gfx950"\n.text\n.globl %s\n.p2align 8\n.type %s,@function\n' % (KN, KN)
    tail = '.section .rodata,"a"\n.p2align 6\n.amdhsa_kernel %s\n  .amdhsa_next_free_vgpr 256\n  .amdhsa_next_free_sgpr 102\n  .amdhsa_accum_offset 256\n' % KN
    tail += "  .amdhsa_group_segment_fixed_size 0\n  .amdhsa_kernarg_size 96\n  .amdhsa_user_sgpr_count 2\n  .amdhsa_user_sgpr_kernarg_segment_ptr 1\n  .amdhsa_system_sgpr_workgroup_id_x 1\n.end_amdhsa_kernel\n"
    return head + a.text() + tail

RAW = None
def report(t, verbose):
    import gen10
    gen10.report(t, verbose)

if __name__ == "__main__":
    kw = eval("dict(%s)" % (sys.argv[2] if len(sys.argv) > 2 else ""))
    open(sys.argv[1], "w").write(gen(**kw))
```

```python
import sys, struct
from asmlib import Asm, VM
KN = "parallel_sum__sliding_block_cached__geglu_ffn__decode_kernel"

def f32(x): return "0x%08x" % struct.unpack("<I", struct.pack("<f", x))[0]
def vr(b, n=4): return "v[%d:%d]" % (b, b + n - 1) if n > 1 else "v%d" % b
DPP = "row_mask:0xf bank_mask:0xf"
MF = "v_mfma_f32_16x16x32_bf16 %s, %s, %s, %s"

WS_L1, WS_STAT, WS_H, WS_PRG, WS_P, WS_O, WS_TS = 0, 0x40000, 0x48000, 0x60000, 0x80000, 0x100000, 0x200000
L_F, L_C, L_Q, L_OP, L_LP, L_G = 0, 4, 1024, 2048, 8192, 16384
LDS_BYTES = 17408
SPIN = 400000
L2E = 1.4426950408889634
NW = 8
sK, sV, sX, sWS, sW1, sW2, sDBG, sOUT = ("s[%d:%d]" % (b, b + 3) for b in (40, 44, 48, 52, 56, 60, 64, 68))

HEADER = """\
; One workgroup per CU (256 x 512 threads). id = 8*j + x; x groups workgroups that normally share a die.
"""

def srd(a, base, ptr, nbytes):
    a("s_mov_b32 s%d, s%d" % (base, ptr)); a("s_mov_b32 s%d, s%d" % (base + 1, ptr + 1))
    a("s_mov_b32 s%d, %s" % (base + 2, nbytes)); a("s_mov_b32 s%d, 0x20000" % (base + 3))

class Stamps:
    def __init__(self, a, on): self.a, self.on = a, on
    def __call__(self, idx):
        if self.on: self.a("s_memrealtime s[%d:%d]" % (76 + 2 * idx, 77 + 2 * idx))
    def flush(self, n=12):
        if not self.on: return
        a = self.a
        a("s_waitcnt lgkmcnt(0)"); srd(a, 52, 38, "0x40000000")
        a("s_mul_i32 s4, s2, %d" % NW); a("s_add_u32 s4, s4, s3"); a("s_lshl_b32 s4, s4, 6"); a("s_add_u32 s4, s4, %d" % WS_TS)
        a("s_mov_b64 exec, 1"); a("v_mov_b32 v0, 0")
        for q in range(n // 4):
            for i in range(4): a("v_mov_b32 v%d, s%d" % (4 + 4 * q + i, 76 + 2 * (4 * q + i)))
            a("buffer_store_dwordx4 %s, v0, %s, s4 offen offset:%d" % (vr(4 + 4 * q), sWS, 16 * q))

def allreduce(a, op, v, t, steps):
    for s in steps:
        if s == 0: a("%s_dpp v%d, v%d, v%d quad_perm:[1,0,3,2] %s" % (op, v, v, v, DPP))
        elif s < 16: a("%s_dpp v%d, v%d, v%d row_ror:%d %s" % (op, v, v, v, s, DPP))
        else:
            a("v_mov_b32 v%d, v%d" % (t, v)); a("v_permlane%d_swap_b32 v%d, v%d" % (s, v, t)); a("%s v%d, v%d, v%d" % (op, v, v, t))

def round_bf16(a, v):
    a("v_cvt_pk_bf16_f32 v%d, v%d, v%d" % (v, v, v)); a("v_and_b32 v%d, 0xffff0000, v%d" % (v, v))

def gen(ts=0, loc=1, d=5, d0=3, nd0=27, nd1=32, dend=6, nramp=120, step=2, R=52, stat_at=100, nfree=32, da=10,
        flagblk=7, lnstep=28, pf=4, lv=(4, 5, 6, 7), th=(-1.5, 1.5, 4), bias=3, lead=4, leadd=0, fbend=114, fin=126, hat=100, pfn=64, pb=1, amap=(9, 11, 13, 12, 14, 15, 17, 18, 16, 8, 10), svk=None, wsplit=3, dsplit=9, oat=4, pad=0, t2=1, probe=0, pm=16, opair=1):
    assert sorted(amap) == list(range(8, 19))
    assert R % 2 == 0
    split = wsplit < 8 or dsplit < 16
    RS = 3584 if pb else 7168; SH = 7 if pb else 8; NP = 2 if pb else 4
    a = Asm(); T = Stamps(a, ts)
    uid = [0]
    def lab(p): uid[0] += 1; return "L_%s%d" % (p, uid[0])
    def note(t): a("; " + t)

    def spin(body, label):
        a("s_mov_b32 s11, %d" % SPIN)
        a(label + ":"); body()
        a("s_cmp_eq_u64 vcc, exec"); a("s_cbranch_scc1 %s_ok" % label)
        a("s_sub_u32 s11, s11, 1"); a("s_cmp_lg_u32 s11, 0"); a("s_cbranch_scc1 %s" % label)
        a(label + "_ok:")

    def umax(regs):
        if len(regs) == 2: a("v_max_u32 v3, v%d, v%d" % tuple(regs)); return
        a("v_max3_u32 v3, v%d, v%d, v%d" % tuple(regs[:3])); rest = regs[3:]
        while len(rest) >= 2: a("v_max3_u32 v3, v3, v%d, v%d" % tuple(rest[:2])); rest = rest[2:]
        if rest: a("v_max_u32 v3, v3, v%d" % rest[0])

    def mpoll(label, loads, regs):
        def check(): umax(regs); a("v_cmp_eq_u32 vcc, -1, v3"); a("s_and_b64 exec, exec, vcc"); a("s_cbranch_scc0 %s_ok" % label)
        a("s_mov_b32 s11, %d" % SPIN)
        check()
        a(label + ":")
        for t in loads: a(t)
        a("s_waitcnt vmcnt(0)"); check()
        a("s_sub_u32 s11, s11, 1"); a("s_cmp_lg_u32 s11, 0"); a("s_cbranch_scc1 %s" % label)
        a(label + "_ok:")
        a("s_mov_b64 exec, -1")

    def store2(text):
        f, e = lab("far"), lab("sent")
        a("s_cmp_eq_u32 s100, 0"); a("s_cbranch_scc1 " + f); a(text); a("s_branch " + e); a(f + ":"); a(text + " sc1"); a(e + ":")

    def roles():
        note("s8 = partial slot (0..15 wo head pair, 16..27 w_down slice, >= 28 none), s9 = output column slice")
        e = lab("role")
        a("s_and_b32 s9, s2, 7"); a("s_lshr_b32 s8, s2, 3")
        a("s_cmp_lt_u32 s8, 16"); a("s_cbranch_scc1 " + e)
        a("s_sub_u32 s8, s8, 16"); a("s_cmp_eq_u32 s9, 0"); a("s_cselect_b32 s9, 8, s9"); a("s_cbranch_scc1 " + e)
        a("s_add_u32 s8, s8, 16"); a("s_cmp_lt_u32 s8, 28"); a("s_cbranch_scc1 " + e)
        a("s_mul_i32 s8, s8, 7"); a("s_add_u32 s8, s8, s9"); a("s_sub_u32 s8, s8, %d" % (28 * 7 + 1 - 16))
        a("s_mov_b32 s9, 0"); a("s_cmp_lt_u32 s8, 28"); a("s_cbranch_scc1 " + e)
        a("s_mov_b32 s9, 8"); a("s_sub_u32 s8, s8, 12")
        a(e + ":")

    def oslot(dst):
        a("s_and_b32 s4, s6, 15"); a("s_lshl_b32 s4, s4, 13"); a("s_lshr_b32 s5, s6, 4"); a("s_lshl_b32 s5, s5, 1"); a("s_add_u32 s5, s5, s7")
        a("s_lshl_b32 s5, s5, %d" % (6 if opair else 9)); a("s_add_u32 s4, s4, s5"); a("s_add_u32 %s, s4, %d" % (dst, WS_O))

    def l1slot(dst):
        a("s_and_b32 %s, s2, 7" % dst); a("s_lshl_b32 %s, %s, 5" % (dst, dst)); a("s_lshr_b32 s4, s2, 3"); a("s_add_u32 %s, %s, s4" % (dst, dst)); a("s_lshl_b32 %s, %s, 10" % (dst, dst))

    def slots(kind, e, lin, t):
        op = ("buffer_load_dword v%d" % (t + 2) if kind == "read" else "buffer_store_dwordx4 %s" % vr(e)) + ", v%d, %s, %s offen"
        fl = " sc1" if kind == "far" else ""
        k0, k = lab("nol"), lab("nop")
        l1slot("s5")
        a("s_lshr_b32 s4, s2, 3"); a("s_lshl_b32 s4, 1, s4"); a("s_and_b32 s4, s4, 0x%x" % (0xff | (0x1ff << 17))); a("s_cbranch_scc0 " + k0)
        a(op % (lin, sWS, "s5") + fl); a(k0 + ":")
        a("s_lshl_b32 s4, s6, 1"); a("s_add_u32 s4, s4, s7"); a("s_lshl_b32 s4, s4, 7"); a("s_add_u32 s4, s4, %d" % WS_STAT)
        a("s_mov_b64 exec, 0xff"); a(op % (lin, sWS, "s4") + fl); a("s_mov_b64 exec, -1")
        a("s_cmp_ge_u32 s8, 28"); a("s_cbranch_scc1 " + k)
        a("v_lshrrev_b32 v%d, %d, v0" % (t, 3 if pb else 4)); a("v_mul_u32_u24 v%d, %d, v%d" % (t, RS, t)); a("v_and_b32 v%d, %d, v0" % (t + 1, 7 if pb else 15)); a("v_lshl_add_u32 v%d, v%d, 4, v%d" % (t, t + 1, t))
        a("s_mul_i32 s4, s9, %d" % (8 * RS)); a("s_lshl_b32 s5, s8, %d" % SH); a("s_add_u32 s4, s4, s5"); a("s_add_u32 s4, s4, %d" % WS_P); a("s_add_u32 s5, s4, %d" % (4 * RS))
        st = [op % (t, sWS, s_) for s_ in (("s4",) if pb else ("s4", "s5"))]
        if kind != "far":
            f = lab("rem")
            a("s_cmp_lt_u32 s2, 224"); a("s_cselect_b32 s10, 0, s8"); a("s_cmp_ge_u32 s10, 16"); a("s_cbranch_scc1 " + (k if kind == "read" else f))
            for x_ in st: a(x_)
            if kind == "near": a("s_branch " + k); a(f + ":")
        if kind != "read":
            for x_ in st: a(x_ + " sc1")
        a(k + ":")

    def block_mm(base, tp, acc, act, first, hook=None):
        for i in range(8):
            t = tp + 4 * (i % 2)
            for q in range(4): a("v_perm_b32 v%d, v%d, v%d, s%d" % (t + q, base + 4 * (2 * q + 1) + i // 2, base + 4 * (2 * q) + i // 2, 12 + i % 2))
            if i > 0: a(MF % (vr(acc + 4 * (i - 1)), vr(act), vr(tp + 4 * ((i - 1) % 2)), "0" if first else vr(acc + 4 * (i - 1))))
            if hook and i % 4 == 0: hook()
        a(MF % (vr(acc + 28), vr(act), vr(tp + 4), "0" if first else vr(acc + 28)))
    def block_fold(dst, acc):
        for i in range(8): a("v_add_f32_dpp v%d, v%d, v%d row_ror:8 row_mask:0xf bank_mask:0x3" % (dst + i, acc + 4 * i + 1, acc + 4 * i))
        for i in range(8): a("v_add_f32_dpp v%d, v%d, v%d row_ror:8 row_mask:0xf bank_mask:0xc" % (dst + i, acc + 4 * i + 2, acc + 4 * i + 3))
    def actaddr(dst, t, rowbytes):
        a("v_bfe_u32 v%d, v0, 1, 3" % dst); a("v_mul_u32_u24 v%d, %d, v%d" % (dst, rowbytes, dst)); a("v_lshrrev_b32 v%d, 4, v0" % t); a("v_lshl_add_u32 v%d, v%d, 5, v%d" % (dst, t, dst))
        a("v_and_b32 v%d, 1, v0" % t); a("v_lshl_add_u32 v%d, v%d, 4, v%d" % (dst, t, dst))
    def prgaddr(line, word):
        a("s_and_b32 %s, s2, 7" % line); a("s_lshl_b32 %s, %s, 8" % (line, line)); a("s_add_u32 %s, %s, %d" % (line, line, WS_PRG))
        a("s_lshr_b32 %s, s2, 3" % word); a("s_lshl_b32 %s, %s, 2" % (word, word)); a("s_add_u32 %s, %s, %s" % (word, word, line))

    a(KN + ":")
    T(0)
    a("s_cmp_ge_u32 s2, 256"); a("s_cbranch_scc1 L_end")
    a("s_load_dwordx16 s[16:31], s[0:1], 0"); a("s_load_dwordx8 s[32:39], s[0:1], 64")
    a("v_lshrrev_b32 v1, 6, v0"); a("v_and_b32 v0, 63, v0"); a("v_readfirstlane_b32 s3, v1")
    a("s_and_b32 s6, s2, 7"); a("s_lshl_b32 s6, s6, 1"); a("s_bfe_u32 s7, s2, 0x10003"); a("s_or_b32 s6, s6, s7")
    a("s_and_b32 s7, s2, 0x70"); a("s_or_b32 s6, s6, s7"); a("s_lshr_b32 s7, s2, 7")
    a("s_cmp_lt_u32 s3, 4"); a("s_cbranch_scc1 L_stream")
    a("s_cmp_lg_u32 s3, 7"); a("s_cbranch_scc1 L_help")
    a("s_getpc_b64 s[4:5]")
    a("L_pc:")
    a("s_bfe_u32 s8, s2, 0x%x" % (((pf.bit_length() - 1) << 16) + 3)); a("s_mul_i32 s8, s8, %d" % pfn)
    a("v_add_u32 v1, s8, v0"); a("v_lshlrev_b32 v1, 7, v1"); a("v_min_u32 v1, L_codeend-L_pc-4, v1")
    a("v_mov_b32 v3, s5"); a("v_add_co_u32 v2, vcc, s4, v1"); a("v_addc_co_u32 v3, vcc, 0, v3, vcc")
    a("global_load_dword v255, v[2:3], off")
    a("s_branch L_help")

    a("L_stream:")
    vm = VM(a)
    vKo, vVo, vM, vL, vF = 1, 2, 5, 6, 7
    vMask, vQ0, vQ1, vAcc = 12, 16, 20, 24
    vD = [28, 32]
    pool = list(range(36, 252, 4))
    assert len(pool) >= R + 2
    a("v_lshrrev_b32 v3, 4, v0"); a("v_lshlrev_b32 v3, 6, v3")
    a("v_and_b32 v4, 3, v0"); a("v_lshl_or_b32 v3, v4, 4, v3")
    if amap[10] == amap[9] + 1: a("v_bfe_u32 v4, v0, 2, 2"); a("v_lshl_or_b32 v%d, v4, %d, v3" % (vKo, amap[9]))
    else:
        a("v_bfe_u32 v4, v0, 2, 1"); a("v_lshl_or_b32 v3, v4, %d, v3" % amap[9]); a("v_bfe_u32 v4, v0, 3, 1"); a("v_lshl_or_b32 v%d, v4, %d, v3" % (vKo, amap[10]))
    a("s_lshl_b32 s14, s6, 21"); a("s_lshl_b32 s15, s7, %d" % amap[8]); a("s_add_u32 s14, s14, s15"); a("s_add_u32 s14, s14, %d" % (6144 * 256))
    if amap[1] == amap[0] + 1: a("s_lshl_b32 s15, s3, %d" % amap[0]); a("s_add_u32 s14, s14, s15")
    else:
        a("s_and_b32 s15, s3, 1"); a("s_lshl_b32 s15, s15, %d" % amap[0]); a("s_add_u32 s14, s14, s15")
        a("s_lshr_b32 s15, s3, 1"); a("s_lshl_b32 s15, s15, %d" % amap[1]); a("s_add_u32 s14, s14, s15")
    a("s_mov_b32 s42, 0x10000000"); a("s_mov_b32 s43, 0x20000")
    a("s_waitcnt lgkmcnt(0)")
    a("s_mov_b32 s40, s18"); a("s_mov_b32 s41, s19")
    slot, tok, free, issued = {}, {}, pool[:], [0]
    def issue_next():
        n = issued[0]; issued[0] += 1
        r = free.pop(0); slot[n] = r
        a("s_add_u32 s10, s14, %d" % sum(((n >> i) & 1) << amap[2 + i] for i in range(6)))
        tok[n] = vm.issue("buffer_load_dwordx4 %s, v%d, %s, s10 offen nt" % (vr(r), vKo if n < 64 else vVo, sK if n < 64 else sV))
        if n == 127 and svk is None: note("SV: every V load is issued, second-layer weights may follow"); a("s_barrier")
    for _ in range(d0): issue_next()
    srd(a, 44, 20, "0x10000000"); srd(a, 52, 38, "0x40000000")
    a("v_and_b32 v3, 15, v0"); a("v_lshlrev_b32 v3, 4, v3"); a("v_bfe_u32 v4, v0, 4, 1"); a("v_lshl_or_b32 v3, v4, %d, v3" % amap[9])
    a("v_lshrrev_b32 v4, 5, v0"); a("v_lshl_or_b32 v%d, v4, %d, v3" % (vVo, amap[10]))
    a("v_bfe_u32 v3, v0, 3, 1"); a("v_bfe_u32 v4, v0, 1, 1"); a("v_lshl_or_b32 v3, v3, 1, v4")
    a("v_and_b32 v4, 1, v0"); a("v_lshlrev_b32 v4, 4, v4"); a("v_mov_b32 v5, 0xffff"); a("v_lshlrev_b32 v4, v4, v5")
    for r in range(4):
        a("v_cmp_eq_u32 vcc, %d, v3" % r); a("v_cndmask_b32 v%d, 0, v4, vcc" % (vMask + r))
    oslot("s26"); a("s_lshl_b32 s5, s3, %d" % (11 if opair else 7)); a("s_add_u32 s26, s26, s5")
    a("s_lshl_b32 s4, s3, 2"); a("v_lshlrev_b32 v9, 4, v0"); a("v_add_u32 v8, s4, v9"); a("v_mov_b32 v253, 0"); a("s_mov_b32 s27, 0")
    def D0(n):
        if n < nd0: return d0
        if n < nd1: return d0 + 1
        if n < nramp: return d
        return min(dend, d + (n - nramp + 1) // step)
    def D(n): return D0(n) + (lv[-1] - d if n >= R else 0)
    def paced():
        n = issued[0]
        if n >= 128: return
        vm.wait(tok[n - D(n)])
        if n >= R:
            if n % 2 == 1: a("s_waitcnt lgkmcnt(0)"); a("v_readfirstlane_b32 s27, v252")
            used = False
            for l_, t_ in reversed(list(zip(lv[:-1], th))):
                m = n - (D0(n) - d + l_)
                if tok[m] > vm.done:
                    a("s_cmp_ge_i32 s27, %d" % int(32 * t_)); a("s_cbranch_scc1 L_hi%d" % n); a("s_waitcnt vmcnt(%d)" % (vm.n - tok[m])); used = True
            if used: a("L_hi%d:" % n)
        issue_next()
        if n >= R:
            a("v_mov_b32 v254, %d" % n); a("ds_write_b32 v8, v254 offset:%d" % L_G)
            if n % 2 == 0: a("ds_read_b32 v252, v253 offset:%d" % L_C)
    def ahead(n):
        while issued[0] < 128 and issued[0] - D(issued[0]) < n: paced()
    while issued[0] < R:
        paced()
        if issued[0] == 24: T(1)
        if issued[0] == nfree:
            a("s_cmp_lt_u32 s2, 208"); a("s_cbranch_scc1 L_nofb"); a("s_barrier"); a("L_nofb:")
    T(2)
    a("s_barrier")
    T(3)
    a("ds_read_b128 %s, v9 offset:%d" % (vr(vQ0), L_Q))
    a("ds_read_b32 v4, v253 offset:%d" % L_F)
    a("v_and_b32 v3, 8, v0"); a("v_cmp_eq_u32 vcc, 0, v3"); a("v_mov_b32 v%d, 0xff800000" % vM)
    a("s_mov_b32 s15, %s" % f32(128 ** -0.5))
    a("s_waitcnt lgkmcnt(0)")
    a("v_readfirstlane_b32 s100, v4")
    for i in range(4): a("v_cndmask_b32 v%d, v%d, 0, vcc" % (vQ1 + i, vQ0 + i))
    for i in range(4): a("v_cndmask_b32 v%d, 0, v%d, vcc" % (vQ0 + i, vQ0 + i))
    vD += [free.pop(), free.pop()]
    S = []
    def qk(c):
        Dr = vD[c % 4]
        vm.wait(tok[2 * c + 1])
        a(MF % (vr(Dr), vr(slot[2 * c]), vr(vQ0), "0")); a(MF % (vr(Dr), vr(slot[2 * c + 1]), vr(vQ1), vr(Dr)))
        free.extend([slot[2 * c], slot[2 * c + 1]])
    def extract(c):
        if c % 4 == 0: S.extend(range(free[-1], free[-1] + 4)); free.pop()
        x, y, DA, DB = S[c], S[c + 1], vD[c % 4], vD[(c + 1) % 4]
        for i in range(4):
            for s_, Dr in ((x, DA), (y, DB)):
                if i == 0: a("v_mov_b32_dpp v%d, v%d quad_perm:[0,0,0,0] %s" % (s_, Dr, DPP))
                else: a("v_add_f32_dpp v%d, v%d, v%d quad_perm:[%d,%d,%d,%d] %s" % (s_, Dr + i, s_, i, i, i, i, DPP))
        for rep in range(2):
            a("v_cvt_pk_bf16_f32 v3, v%d, v%d" % (x, y))
            a("v_lshlrev_b32 v%d, 16, v3" % x); a("v_and_b32 v%d, 0xffff0000, v3" % y)
            if rep == 0: a("v_mul_f32 v%d, s15, v%d" % (x, x)); a("v_mul_f32 v%d, s15, v%d" % (y, y))
        a("v_max3_f32 v%d, v%d, v%d, v%d" % (vM, vM, x, y))
    for c in range(0, 32, 2):
        ahead(2 * c + 3)
        qk(c); qk(c + 1)
        paced(); paced()
        if c >= 2: extract(c - 2)
    extract(30)
    free.extend(vD[2:])
    T(4)
    paced()
    allreduce(a, "v_max_f32", vM, 3, [8, 16, 32])
    a("s_mov_b32 s15, %s" % f32(L2E)); a("v_mul_f32 v%d, s15, v%d" % (vM, vM)); a("v_mov_b32 v%d, 0" % vL); a("v_mov_b32 v4, 0")
    for c in range(0, 32, 4):
        for i in range(4): a("v_fma_f32 v%d, v%d, s15, -v%d" % (S[c + i], S[c + i], vM))
        for i in range(4): a("v_exp_f32 v%d, v%d" % (S[c + i], S[c + i]))
        for i in range(4): a("v_add_f32 v%d, v%d, v%d" % ((vL, 4)[i % 2], (vL, 4)[i % 2], S[c + i]))
        for i in range(4): a("v_cvt_pk_bf16_f32 v%d, v%d, v%d" % (S[c + i], S[c + i], S[c + i]))
        if c % 8 == 4: paced()
    a("v_add_f32 v%d, v%d, v4" % (vL, vL))
    allreduce(a, "v_add_f32", vL, 3, [8, 16, 32])
    a("v_min_u32 v10, -2, v%d" % vM); a("v_min_u32 v11, -2, v%d" % vL)
    a("v_lshlrev_b32 v9, 1, v0"); a("v_and_b32 v9, 0x38, v9"); a("v_lshrrev_b32 v3, 5, v0"); a("v_lshl_or_b32 v9, v3, 7, v9")
    a("s_lshl_b32 s73, s6, 8"); a("s_add_u32 s73, s73, %d" % WS_STAT)
    a("s_lshl_b32 s4, s7, 3"); a("s_add_u32 s4, s4, s3"); a("s_lshl_b32 s4, s4, 4"); a("s_add_u32 s4, s4, s73")
    a("s_mov_b64 exec, 0x11")
    store2("buffer_store_dwordx2 v[10:11], v9, %s, s4 offen" % sWS); vm.n += 1
    a("s_mov_b64 exec, -1")
    vB = vD[:2]
    def prepB(n):
        c, t = divmod(n - 64, 2)
        for r in range(4):
            if (r >> 1) == t: a("v_and_b32 v%d, v%d, v%d" % (vB[n % 2] + r, S[c], vMask + r))
            else: a("v_and_b32_dpp v%d, v%d, v%d row_ror:8 %s" % (vB[n % 2] + r, S[c], vMask + r, DPP))
    prepB(64)
    tstat = None
    ldS = "buffer_load_dwordx2 v[10:11], v9, %s, s73 offen sc1" % sWS
    for n in range(64, 128):
        ahead(n)
        if tstat is None and issued[0] >= stat_at: tstat = vm.issue(ldS)
        vm.wait(tok[n])
        if svk is not None and n == 127 - svk: assert issued[0] == 128; note("SV: second-layer weights may follow"); a("s_barrier")
        a(MF % (vr(vAcc), vr(slot[n]), vr(vB[n % 2]), "0" if n == 64 else vr(vAcc)))
        free.append(slot[n])
        if n % 2 == 1 and issued[0] < 128 and issued[0] - D(issued[0]) > n: paced()
        if n < 127: prepB(n + 1)
        if tstat and tstat > 0 and vm.done >= tstat:
            note("combine the eight (max, sum) pairs of the row: f = exp(own max - row max) / row sum")
            def stat_valid(): a("v_max_u32 v3, v10, v11"); a("v_cmp_ne_u32 vcc, -1, v3")
            stat_valid(); a("s_cmp_eq_u64 vcc, exec"); a("s_cbranch_scc1 L_stat_ok")
            def body(): a(ldS); a("s_waitcnt vmcnt(0)"); stat_valid()
            spin(body, "L_stat")
            a("v_mov_b32 v%d, v10" % vF); allreduce(a, "v_max_f32", vF, 3, [8, 16, 32])
            a("v_sub_f32 v10, v10, v%d" % vF); a("v_sub_f32 v%d, v%d, v%d" % (vF, vM, vF))
            a("v_exp_f32 v10, v10"); a("v_exp_f32 v%d, v%d" % (vF, vF)); a("v_mul_f32 v10, v10, v11")
            paced()
            allreduce(a, "v_add_f32", 10, 3, [8, 16, 32])
            a("v_rcp_f32 v10, v10"); a("v_mul_f32 v%d, v%d, v10" % (vF, vF)); a("v_mov_b32 v%d, v%d" % (vL, vF))
            a("v_bfe_u32 v3, v0, 2, 1"); a("v_mul_u32_u24 v9, 704, v3"); a("v_lshrrev_b32 v4, 4, v0"); a("v_mul_u32_u24 v4, 160, v4"); a("v_add_u32 v9, v9, v4")
            a("v_bfe_u32 v3, v0, 3, 1"); a("v_lshl_add_u32 v9, v3, 4, v9"); a("v_and_b32 v3, 3, v0"); a("v_lshl_add_u32 v9, v3, 2, v9")
            a("s_mul_i32 s4, s3, 1536"); a("s_add_u32 s4, s4, %d" % L_OP); a("v_add_u32 v9, s4, v9")
            a("s_lshr_b32 s4, s3, 1"); a("s_mul_i32 s4, s4, 704"); a("s_and_b32 s5, s3, 1"); a("s_mul_i32 s5, s5, 320"); a("s_add_u32 s4, s4, s5")
            a("v_and_b32 v3, 15, v0"); a("v_lshl_add_u32 v10, v3, 3, v4"); a("v_add_u32 v10, s4, v10"); a("v_lshlrev_b32 v11, 2, v0")
            if opair: a("v_lshlrev_b32 v11, 2, v3"); a("v_lshrrev_b32 v3, 4, v0"); a("v_lshl_or_b32 v11, v3, 10, v11")
            tstat = -1
    assert tstat == -1
    T(6)
    for i in (0, 2): a("v_pk_mul_f32 %s, %s, v[6:7]" % (vr(vAcc + i, 2), vr(vAcc + i, 2)))
    a("ds_write2_b32 v9, v%d, v%d offset0:0 offset1:8" % (vAcc, vAcc + 1))
    a("ds_write2_b32 v9, v%d, v%d offset0:16 offset1:24" % (vAcc + 2, vAcc + 3))
    a("s_waitcnt lgkmcnt(0)"); a("s_barrier")
    a("s_mov_b32 exec_hi, 0")
    for w in range(4): a("ds_read_b64 %s, v10 offset:%d" % (vr(16 + 2 * w, 2), L_OP + 1536 * w))
    a("s_waitcnt lgkmcnt(2)"); a("v_pk_add_f32 v[16:17], v[16:17], v[18:19]")
    a("s_waitcnt lgkmcnt(0)"); a("v_pk_add_f32 v[20:21], v[20:21], v[22:23]"); a("v_pk_add_f32 v[16:17], v[16:17], v[20:21]")
    a("v_cvt_pk_bf16_f32 v3, v16, v17"); a("v_min_u32 v3, -2, v3")
    a("buffer_store_dword v3, v11, %s, s26 offen sc1" % sWS)
    T(5)
    if split: note("the held-back weight loads go out behind these stores"); a("s_barrier")
    if oat < 0: a("s_waitcnt vmcnt(0)")
    T.flush()
    a("s_endpgm")

    a("L_help:")
    vLin, vWo = 1, 2
    a("v_lshlrev_b32 v%d, 4, v0" % vLin)
    a("s_mov_b32 s12, 0x05040100"); a("s_mov_b32 s13, 0x07060302")
    a("s_cmp_lg_u32 s3, 4"); a("s_cbranch_scc1 L_h567")
    vm = VM(a)
    vXN, vAc, vTp, vRing, w1blk = 8, 44, 244, 116, 4
    a("s_lshr_b32 s101, s2, 3"); a("s_and_b32 s4, s2, 7")
    a("s_cmp_lt_u32 s101, 8"); a("s_movk_i32 s14, 8192"); a("s_cselect_b32 s14, s14, 9216"); a("s_mov_b32 s58, 4718592"); a("s_cselect_b32 s58, s58, 5308416")
    a("s_cselect_b32 s5, 8, 9"); a("s_cselect_b32 s15, 0, 8"); a("s_mul_i32 s4, s4, s5")
    a("s_cmp_lt_u32 s101, 17"); a("s_cselect_b32 s15, s15, 17"); a("s_sub_u32 s15, s101, s15"); a("s_add_u32 s74, s15, s4"); a("s_lshl_b32 s15, s74, 7")
    a("v_lshrrev_b32 v3, 3, v0"); a("v_lshlrev_b32 v3, 3, v3"); a("v_mul_u32_u24 v3, s14, v3"); a("v_and_b32 v2, 7, v0"); a("v_lshl_add_u32 v%d, v2, 4, v3" % vWo)
    actaddr(3, 4, 1152)
    a("s_mul_i32 s75, s14, 57"); a("s_mov_b32 s59, 0x20000")
    a("s_waitcnt lgkmcnt(0)")
    srd(a, 52, 38, "0x40000000"); srd(a, 64, 36, 256)
    a("s_cmp_ge_u32 s2, 208"); a("s_cbranch_scc1 L_nol1")
    a("s_cmp_lt_u32 s101, 17"); a("s_cselect_b32 s56, s28, s30"); a("s_cselect_b32 s57, s29, s31")
    a("s_cmp_lt_u32 s101, 8"); a("s_cselect_b32 s56, s22, s56"); a("s_cselect_b32 s57, s23, s57")
    srd(a, 48, 16, 9216)
    for i in range(9): tx = vm.issue("buffer_load_dwordx4 %s, v3, %s, 0 offen offset:%d" % (vr(vXN + 4 * i), sX, 128 * i))
    w1 = []
    def issue_w1():
        blk, j = divmod(len(w1), 8)
        w1.append(vm.issue("buffer_load_dwordx4 %s, v%d, %s, s15 offen nt" % (vr(vRing + 32 * (blk % w1blk) + 4 * j), vWo, sW1)))
        a("s_add_u32 s15, s15, %s" % ("s75" if j == 7 else "s14"))
    while len(w1) < da: issue_w1()
    def paced1(blk):
        if len(w1) < 72 and len(w1) < 8 * (blk + w1blk): vm.wait(w1[len(w1) - da]); issue_w1()
    ln = Asm(); xf = 44
    def unpack_all():
        for i in range(36): ln("v_lshlrev_b32 v%d, 16, v%d" % (xf + 2 * i, vXN + i)); ln("v_and_b32 v%d, 0xffff0000, v%d" % (xf + 2 * i + 1, vXN + i))
    def pack_all():
        for i in range(36): ln("v_cvt_pk_bf16_f32 v%d, v%d, v%d" % (vXN + i, xf + 2 * i, xf + 2 * i + 1))
    for i in range(4): ln("v_mov_b32 v%d, 0x3f803f80" % (244 + i))
    for i in range(9): ln(MF % ("v[248:251]", "v[244:247]", vr(vXN + 4 * i), "0" if i == 0 else "v[248:251]"))
    unpack_all()
    allreduce(ln, "v_add_f32", 248, 249, [0])
    ln("v_mul_f32 v248, %s, v248" % f32(1 / 576)); ln("v_mov_b32 v4, v248"); round_bf16(ln, 4)
    ln("v_sub_f32 v248, v248, v4"); ln("v_sub_f32 v4, 0, v4"); ln("v_mov_b32 v5, v4")
    for i in range(36): ln("v_pk_add_f32 %s, %s, v[4:5]" % (vr(xf + 2 * i, 2), vr(xf + 2 * i, 2)))
    for i in range(36):
        acc = vr(244 + 2 * (i % 2), 2); x2 = vr(xf + 2 * i, 2)
        ln("v_pk_mul_f32 %s, %s, %s" % (acc, x2, x2) if i < 2 else "v_pk_fma_f32 %s, %s, %s, %s" % (acc, x2, x2, acc))
    ln("v_pk_add_f32 v[244:245], v[244:245], v[246:247]"); ln("v_add_f32 v4, v244, v245")
    allreduce(ln, "v_add_f32", 4, 5, [0, 16, 32])
    ln("v_mul_f32 v4, %s, v4" % f32(1 / 576)); ln("v_fma_f32 v4, -v248, v248, v4"); ln("v_max_f32 v4, 0, v4"); round_bf16(ln, 4)
    ln("v_add_f32 v4, %s, v4" % f32(1e-5)); round_bf16(ln, 4)
    ln("v_sqrt_f32 v4, v4"); round_bf16(ln, 4); ln("v_rcp_f32 v4, v4")
    pack_all(); ln("v_mov_b32 v5, v4"); unpack_all()
    for i in range(36): ln("v_pk_mul_f32 %s, %s, v[4:5]" % (vr(xf + 2 * i, 2), vr(xf + 2 * i, 2)))
    pack_all()
    vm.wait(tx)
    for k, ins in enumerate(ln.ins):
        a(ins.text)
        if k % lnstep == lnstep - 1: paced1(0)
    T(1)
    def flagaddr(): a("v_and_b32 v253, 7, v0"); a("v_and_b32 v254, 24, v0"); a("v_lshl_or_b32 v253, v254, 1, v253"); a("v_lshlrev_b32 v253, 2, v253")
    ldF = "buffer_load_dword v252, v253, %s, 0 offen sc1" % sDBG
    for blk in range(9):
        while len(w1) < min(72, 8 * blk + 7 + da): paced1(blk)
        if blk == flagblk: flagaddr(); tflag = vm.issue(ldF)
        vm.wait(w1[8 * blk + 7])
        block_mm(vRing + 32 * (blk % w1blk), vTp, vAc, vXN + 4 * blk, blk == 0, lambda: paced1(blk))
    T(2)
    block_fold(vTp, vAc)
    for q in range(4): a("v_cvt_pk_bf16_f32 v%d, v%d, v%d" % (12 + q, vTp + 2 * q, vTp + 2 * q + 1))
    for q in range(4): a("v_min_u32 v%d, -2, v%d" % (12 + q, 12 + q))
    vm.wait(tflag)
    a("s_branch L_l1done")
    a("L_nol1:")
    a("s_barrier")
    flagaddr(); a("v_mov_b32 v252, 0")
    a("L_l1done:")
    T(10)
    roles()
    a("s_mov_b32 s5, 0x88888888")
    def fvalid(): a("v_and_b32 v8, s5, v252"); a("v_cmp_eq_u32 vcc, s5, v8")
    fvalid(); a("s_cmp_eq_u64 vcc, exec"); a("s_cbranch_scc1 L_flags_ok")
    def body(): a(ldF); a("s_waitcnt vmcnt(0)"); fvalid()
    spin(body, "L_flags")
    a("v_readfirstlane_b32 s4, v252"); a("v_cmp_eq_u32 vcc, s4, v252"); a("s_cmp_eq_u64 vcc, exec"); a("s_cselect_b32 s100, %d, 0" % loc)
    a("s_cmp_lg_u32 s100, 0"); a("s_cbranch_scc1 L_mode_ok")
    for i in range(4): a("v_mov_b32 v%d, -1" % (16 + i))
    slots("far", 16, vLin, 20)
    a("v_mov_b32 v8, 1"); a("v_mov_b32 v9, 36"); a("s_waitcnt vmcnt(0)"); a("s_mov_b64 exec, 1")
    a("buffer_atomic_add v8, v9, %s, 0 offen sc1" % sDBG)
    def body(): a("buffer_load_dword v8, v9, %s, 0 offen sc1" % sDBG); a("s_waitcnt vmcnt(0)"); a("v_cmp_le_u32 vcc, 0x100, v8")
    spin(body, "L_far")
    a("s_mov_b64 exec, -1")
    a("L_mode_ok:")
    T(4)
    l1slot("s72")
    a("s_cmp_ge_u32 s2, 208"); a("s_cbranch_scc1 L_nol1st")
    a("s_sub_u32 s4, s101, 8"); a("s_cmp_lt_u32 s4, 9"); a("s_cbranch_scc1 L_nol1st")
    store2("buffer_store_dwordx4 v[12:15], v%d, %s, s72 offen" % (vLin, sWS))
    a("L_nol1st:")
    a("v_mov_b32 v8, s100"); a("v_mov_b32 v9, 0"); a("ds_write_b64 v9, v[8:9] offset:%d" % L_F)
    for i in range(4): a("v_mov_b32 v%d, %d" % (16 + i, R - 1))
    a("ds_write_b128 v9, v[16:19] offset:%d" % L_G)
    a("v_bfe_u32 v3, v0, 2, 1"); a("v_lshlrev_b32 v3, 11, v3"); a("v_lshrrev_b32 v4, 5, v0"); a("v_lshl_or_b32 v3, v4, 10, v3")
    a("v_bfe_u32 v4, v0, 4, 1"); a("v_lshl_or_b32 v3, v4, 6, v3"); a("v_and_b32 v4, 3, v0"); a("v_lshl_or_b32 v10, v4, 4, v3")
    a("s_and_b32 s4, s2, 7"); a("s_lshl_b32 s4, s4, 15"); a("s_and_b32 s5, s6, 1"); a("s_lshl_b32 s5, s5, 12"); a("s_add_u32 s4, s4, s5")
    a("s_lshr_b32 s5, s6, 4"); a("s_lshl_b32 s5, s5, 7"); a("s_add_u32 s4, s4, s5")
    def poll4(r, va, label):
        ld = "buffer_load_dwordx4 %s, v%d, %s, s4 offen sc1" % (vr(r), va, sWS)
        a(ld); a("s_waitcnt vmcnt(0)"); mpoll(label, [ld], list(range(r, r + 4)))
    poll4(4, 10, "L_qpoll")
    T(11)
    a("ds_write_b128 v%d, v[4:7] offset:%d" % (vLin, L_Q))
    a("s_waitcnt lgkmcnt(0)"); a("s_barrier")
    T(5)
    a("s_sub_u32 s4, s101, 8"); a("s_cmp_ge_u32 s4, 9"); a("s_cbranch_scc1 L_noh")
    a("s_add_u32 s4, s72, %d" % (9 * 1024))
    poll4(16, vLin, "L_upoll")
    a("s_mov_b32 s4, %s" % f32(0.044715)); a("s_mov_b32 s5, %s" % f32(-2 * (2 / 3.141592653589793) ** 0.5 * L2E))
    g, e = list(range(24, 32)), list(range(32, 40))
    def unpack(dst, src):
        for q in range(4): a("v_lshlrev_b32 v%d, 16, v%d" % (dst[2 * q], src + q)); a("v_and_b32 v%d, 0xffff0000, v%d" % (dst[2 * q + 1], src + q))
    def pack(dst, src):
        for q in range(4): a("v_cvt_pk_bf16_f32 v%d, v%d, v%d" % (dst + q, src[2 * q], src[2 * q + 1]))
    unpack(g, 12)
    for i in range(8): a("v_mul_f32 v%d, v%d, v%d" % (e[i], g[i], g[i]))
    for i in range(8): a("v_fma_f32 v%d, v%d, s4, 1.0" % (e[i], e[i]))
    for i in range(8): a("v_mul_f32 v%d, v%d, v%d" % (e[i], e[i], g[i]))
    for i in range(8): a("v_mul_f32 v%d, s5, v%d" % (e[i], e[i]))
    for i in range(8): a("v_exp_f32 v%d, v%d" % (e[i], e[i]))
    for i in range(8): a("v_add_f32 v%d, 1.0, v%d" % (e[i], e[i]))
    for i in range(8): a("v_rcp_f32 v%d, v%d" % (e[i], e[i]))
    for i in range(8): a("v_mul_f32 v%d, v%d, v%d" % (g[i], g[i], e[i]))
    pack(12, g); unpack(g, 12); unpack(e, 16)
    for i in range(8): a("v_mul_f32 v%d, v%d, v%d" % (g[i], g[i], e[i]))
    pack(12, g)
    for q in range(4): a("v_min_u32 v%d, -2, v%d" % (12 + q, 12 + q))
    a("s_lshl_b32 s4, s74, 10"); a("s_add_u32 s4, s4, %d" % WS_H)
    a("buffer_store_dwordx4 v[12:15], v%d, %s, s4 offen sc1" % (vLin, sWS))
    a("L_noh:")
    T(6)
    a("s_cmp_lt_u32 s8, 28"); a("s_cbranch_scc1 L_l2")
    a("s_branch L_hdone")

    a("L_h567:")
    roles()
    a("s_waitcnt lgkmcnt(0)")
    srd(a, 52, 38, "0x40000000")
    a("s_cmp_lg_u32 s3, 5"); a("s_cbranch_scc1 L_h67")
    for i in range(4): a("v_mov_b32 v%d, -1" % (4 + i))
    oslot("s74"); a("v_lshlrev_b32 v3, 3, v0")
    if opair:
        a("s_mul_i32 s4, s7, %d" % (1024 - 64)); a("s_add_u32 s74, s74, s4")
        a("v_and_b32 v3, 15, v0"); a("v_lshlrev_b32 v3, 3, v3"); a("v_lshrrev_b32 v8, 4, v0"); a("v_lshl_or_b32 v3, v8, 11, v3")
    a("buffer_store_dwordx2 v[4:5], v3, %s, s74 offen sc1" % sWS)
    a("s_lshr_b32 s4, s2, 3"); a("s_sub_u32 s4, s4, 8"); a("s_cmp_ge_u32 s4, 9"); a("s_cbranch_scc1 L_nohcl")
    a("s_and_b32 s5, s2, 7"); a("s_mul_i32 s5, s5, 9"); a("s_add_u32 s4, s4, s5"); a("s_lshl_b32 s4, s4, 10"); a("s_add_u32 s4, s4, %d" % WS_H)
    a("buffer_store_dwordx4 v[4:7], v%d, %s, s4 offen sc1" % (vLin, sWS))
    a("L_nohcl:")
    slots("read", 4, vLin, 8)
    prgaddr("s74", "s72")
    a("s_mov_b64 exec, 1"); a("buffer_load_dword v10, v%d, %s, s74 offen" % (vLin, sWS)); a("s_mov_b64 exec, -1")
    a("s_waitcnt vmcnt(0)")
    slots("near", 4, vLin, 8)
    a("v_mov_b32 v11, %d" % (4 * (R - 4))); a("s_mov_b64 exec, 1"); a("buffer_store_dword v11, v%d, %s, s72 offen" % (vLin, sWS))
    a("s_mov_b64 exec, -1")
    a("s_getreg_b32 s5, hwreg(HW_REG_XCC_ID, 0, 3)"); a("s_or_b32 s5, s5, 8"); a("s_and_b32 s4, s2, 7"); a("s_lshl_b32 s4, s4, 2"); a("s_lshl_b32 s5, s5, s4")
    a("s_bfe_u32 s4, s2, 0x30003"); a("s_lshl_b32 s4, s4, 2"); a("s_and_b32 s10, s2, 192"); a("s_add_u32 s4, s4, s10")
    a("s_waitcnt vmcnt(0)")
    a("s_atomic_or s5, s[36:37], s4"); a("s_waitcnt lgkmcnt(0)")
    T(3)
    a("L_h67:")
    a("s_cmp_eq_u32 s3, 7"); a("s_cselect_b32 s4, 0, s8"); a("s_cmp_ge_u32 s4, 28"); a("s_cbranch_scc1 L_hdone")
    a("s_cmp_lt_u32 s2, 208"); a("s_cbranch_scc1 L_nofb2"); a("s_barrier"); a("L_nofb2:")
    a("s_barrier")
    a("v_mov_b32 v9, 0"); a("ds_read_b32 v4, v9 offset:%d" % L_F); a("s_waitcnt lgkmcnt(0)"); a("v_readfirstlane_b32 s100, v4")
    a("s_cmp_lg_u32 s3, 7"); a("s_cbranch_scc1 L_l2")
    a("s_cmp_eq_u32 s100, 0"); a("s_cbranch_scc1 L_ctl_done")
    prgaddr("s74", "s72")
    a("v_and_b32 v8, 31, v0"); a("v_lshlrev_b32 v8, 2, v8")
    a("s_and_b32 s4, s2, 7"); a("s_cselect_b32 s4, s2, 0"); a("s_cmp_ge_u32 s4, 224"); a("s_cselect_b32 s75, %d, 0" % (32 * lead)); a("s_add_u32 s75, s75, %d" % int(32 * bias))
    if leadd: a("s_cmp_ge_u32 s8, 16"); a("s_cselect_b32 s4, 1, -1"); a("s_mul_i32 s4, s4, %d" % int(16 * leadd)); a("s_and_b32 s5, s2, 7"); a("s_cselect_b32 s4, s4, 0"); a("s_add_u32 s75, s75, s4")
    a("s_mov_b32 s11, %d" % SPIN)
    a("L_ctl:")
    a("ds_read_b128 v[12:15], v9 offset:%d" % L_G); a("s_waitcnt lgkmcnt(0)")
    a("v_add3_u32 v12, v12, v13, v14"); a("v_add_u32 v12, v12, v15"); a("s_mov_b64 exec, 1")
    a("buffer_store_dword v12, v9, %s, s72 offen" % sWS); a("s_mov_b64 exec, -1")
    a("v_readfirstlane_b32 s14, v12"); a("s_cmp_ge_u32 s14, %d" % (4 * fbend)); a("s_cbranch_scc1 L_ctl_end")
    a("buffer_load_dword v16, v8, %s, s74 offen sc1" % sWS); a("s_waitcnt vmcnt(0)")
    allreduce(a, "v_add_u32", 16, 17, [8, 4, 2, 1, 16])
    a("v_lshrrev_b32 v16, 2, v16"); a("v_lshlrev_b32 v12, 3, v12"); a("v_sub_u32 v16, v16, v12"); a("v_add_u32 v16, s75, v16")
    a("s_mov_b64 exec, 1"); a("ds_write_b32 v9, v16 offset:%d" % L_C); a("s_mov_b64 exec, -1")
    a("s_sub_u32 s11, s11, 1"); a("s_cmp_lg_u32 s11, 0"); a("s_cbranch_scc1 L_ctl")
    a("L_ctl_end:")
    a("v_mov_b32 v13, %d" % (4 * fin)); a("s_mov_b64 exec, 1"); a("buffer_store_dword v13, v9, %s, s72 offen" % sWS); a("s_mov_b64 exec, -1")
    a("L_ctl_done:")
    a("s_cmp_ge_u32 s8, 16"); a("s_cbranch_scc1 L_hdone")

    a("L_l2:")
    a("s_sub_u32 s101, s3, 4")
    a("s_mul_i32 s73, s9, %d" % (8 * RS)); a("s_lshl_b32 s5, s8, %d" % SH); a("s_add_u32 s73, s73, s5"); a("s_add_u32 s73, s73, %d" % WS_P)
    a("s_lshl_b32 s4, s101, 11"); a("v_add_u32 v5, s4, v%d" % vLin)
    a("s_cmp_ge_u32 s8, 16"); a("s_cbranch_scc1 L_down")
    def publish(n, vE):
        for w in range(n): a("ds_read_b128 %s, v6 offset:%d" % (vr(vE[w]), L_LP + 2048 * w))
        a("s_waitcnt lgkmcnt(%d)" % (n - 2))
        for i in (0, 2): a("v_pk_add_f32 %s, %s, %s" % (vr(vE[0] + i, 2), vr(vE[0] + i, 2), vr(vE[1] + i, 2)))
        a("s_waitcnt lgkmcnt(0)")
        if n == 4:
            for i in (0, 2): a("v_pk_add_f32 %s, %s, %s" % (vr(vE[2] + i, 2), vr(vE[2] + i, 2), vr(vE[3] + i, 2)))
        for i in (0, 2): a("v_pk_add_f32 %s, %s, %s" % (vr(vE[0] + i, 2), vr(vE[0] + i, 2), vr(vE[2] + i, 2)))
        if pb:
            for i in range(2): a("v_cvt_pk_bf16_f32 v%d, v%d, v%d" % (vE[0] + i, vE[0] + 2 * i, vE[0] + 2 * i + 1))
        for i in range(NP): a("v_min_u32 v%d, -2, v%d" % (vE[0] + i, vE[0] + i))
        store2("buffer_store_dwordx%d %s, v7, %s, s73 offen" % (NP, vr(vE[0], NP), sWS))
    vA, vE, vW, vP, A4, Y4, B4, vX = [16, 20], [24, 28, 32, 36], 40, 72, 104, 108, 112, 116
    srd(a, 60, 24, 4718592); srd(a, 48, 16, 9216); srd(a, 68, 34, 9216)
    a("v_lshrrev_b32 v3, 4, v0"); a("v_and_b32 v4, 15, v0"); a("v_lshlrev_b32 v9, %d, v4" % (6 if opair else 9)); a("v_lshl_or_b32 v9, v3, 4, v9")
    a("v_bfe_u32 v8, v0, 3, 1"); a("v_and_b32 v4, 7, v0")
    a("v_mul_u32_u24 v2, %d, v3" % (8 * 1152)); a("v_mul_u32_u24 v6, %d, v8" % (32 * 1152)); a("v_add_u32 v2, v2, v6"); a("v_lshl_add_u32 v2, v4, 4, v2")
    a("v_mul_u32_u24 v7, %d, v3" % (2 * RS)); a("v_lshl_add_u32 v7, v4, %d, v7" % (SH - 3)); a("v_lshl_add_u32 v7, v8, %d, v7" % (SH - 4))
    a("s_lshl_b32 s72, s8, 2"); a("s_add_u32 s72, s72, s101"); a("s_mul_i32 s72, s72, %d" % (64 * 1152)); a("s_lshl_b32 s4, s9, 7"); a("s_add_u32 s72, s72, s4")
    a("s_lshl_b32 s14, s8, 13"); a("s_lshl_b32 s5, s101, %d" % (11 if opair else 7)); a("s_add_u32 s14, s14, s5"); a("s_add_u32 s14, s14, %d" % WS_O)
    a("s_and_b32 s15, s101, 1"); a("s_mul_i32 s4, s15, %d" % RS); a("s_add_u32 s73, s73, s4"); a("s_lshl_b32 s4, s15, 10"); a("v_add_u32 v6, s4, v%d" % vLin)
    a("s_lshr_b32 s4, s8, 1"); a("s_and_b32 s5, s8, 1"); a("s_lshl_b32 s5, s5, 1"); a("s_add_u32 s5, s5, s15")
    a("s_lshl_b32 s74, s9, 3"); a("s_add_u32 s74, s74, s4"); a("s_mul_i32 s74, s74, %d" % RS); a("s_lshl_b32 s15, s5, %d" % (SH - 2)); a("s_add_u32 s74, s74, s15"); a("s_add_u32 s74, s74, %d" % WS_P)
    a("s_mul_i32 s75, s4, 1152"); a("s_lshl_b32 s15, s9, 7"); a("s_add_u32 s75, s75, s15"); a("s_lshl_b32 s15, s5, 5"); a("s_add_u32 s75, s75, s15")
    a("s_add_u32 s15, s74, %d" % (16 << SH)); a("s_add_u32 s10, s72, %d" % (4 * 1152))
    a("v_and_b32 v4, 3, v0"); a("v_lshlrev_b32 v11, 3, v4"); a("v_lshl_or_b32 v11, v3, 1, v11")
    a("v_lshrrev_b32 v3, 2, v0"); a("v_lshlrev_b32 v3, %d, v3" % SH); a("v_lshl_or_b32 v10, v4, %d, v3" % (SH - 4))
    a("buffer_load_ushort v%d, v11, %s, s75 offen" % (vX, sX))
    for i in range(4): a("v_mov_b32 v%d, 0" % (Y4 + i))
    ldO = ["buffer_load_dwordx4 %s, v9, %s, s14 offen offset:%d sc1" % (vr(vA[kb]), sWS, (1024 if opair else 64) * kb) for kb in range(2)]
    ldA, ldB = ("buffer_load_dwordx%d %s, v10, %s, s74 offen sc1" % (NP, vr(r, NP), sWS) for r in (A4, B4))
    ldY = "buffer_load_dwordx%d %s, v10, %s, s15 offen sc1" % (NP, vr(Y4, NP), sWS)
    vm = VM(a); w2 = []
    PR = (list(range(40, 48)) + list(range(56, 60)) + list(range(64, 68)))[:pm]
    def probes():
        for k, r in enumerate(PR): a("s_load_dword s%d, s[22:23], %d glc" % (r, 64 * (k * 16 // pm + (k & 1 if pm < 16 else 0)) + 1084 if opair else 512 * (k * 16 // pm) + 124))
    def s2(pr=0):
        if pr == 1: probes()
        a("s_barrier")
        if pr == 2: probes()
        if split: a("s_barrier")
    if probe: a("s_add_u32 s22, s38, s14"); a("s_addc_u32 s23, s39, 0")
    a("s_barrier")
    for j in range(9):
        if j == wsplit: s2(probe)
        if j < 8: w2.append(vm.issue("buffer_load_dwordx4 %s, v2, %s, %s offen offset:%d nt" % (vr(vW + 4 * j), sW2, "s72" if j < 4 else "s10", 1152 * (j % 4))))
    if oat < 0:
        note("this barrier opens once the streaming waves have ended, i.e. their output stores are acknowledged")
        a("s_barrier")
        for t_ in ldO: vm.issue(t_)
    def pairs(qs, vm, oat):
      for q in qs:
        js = (2 * q, 2 * q + 1)
        for j in js:
            vm.wait(w2[j])
            if j + 1 == oat:
                for t_ in ldO: vm.issue(t_)
        for j in js:
            for r in range(2): a("v_mov_b32 v%d, v%d" % (120 + 2 * j + r, vW + 4 * j + r))
        for j in js:
            for r in range(2): a("v_mov_b32_dpp v%d, v%d row_ror:8 row_mask:0xf bank_mask:0xc" % (vW + 4 * j + r, vW + 4 * j + 2 + r))
        for j in js:
            for r in range(2): a("v_mov_b32_dpp v%d, v%d row_ror:8 row_mask:0xf bank_mask:0x3" % (vW + 4 * j + 2 + r, 120 + 2 * j + r))
        for kb in range(2):
            for i in range(4):
                a("v_perm_b32 v%d, v%d, v%d, s%d" % (vP + 16 * kb + 4 * i + q, vW + 4 * (2 * q + 1) + 2 * kb + i // 2, vW + 4 * (2 * q) + 2 * kb + i // 2, 12 + i % 2))
    if probe:
        note("producers seen complete through uncached probes are gathered at once, otherwise after the next weights land")
        if probe == 3: probes()
        pairs([0], vm, 0)
        a("s_waitcnt lgkmcnt(0)")
        for r in PR[1:]: a("s_max_u32 s%d, s%d, s%d" % (PR[0], PR[0], r))
        a("s_cmp_eq_u32 s%d, -1" % PR[0]); a("s_cbranch_scc1 L_olate")
        v1 = vm.copy()
        for t_ in ldO: v1.issue(t_)
        pairs([1, 2, 3], v1, 0)
        a("s_branch L_ojoin")
        a("L_olate:")
        pairs([1, 2, 3], vm, oat)
    else: pairs(range(4), vm, oat)
    if oat > 8:
        for t_ in ldO: a(t_)
    if probe: a("L_ojoin:")
    a("v_lshlrev_b32 v%d, 16, v%d" % (vX, vX))
    T(7)
    a("s_waitcnt vmcnt(0)")
    mpoll("L_opoll", ldO, list(range(16, 24)))
    T(8)
    if t2:
        def rows(i):
            for x in range(2): a("v_add_f32 v%d, v%d, v%d" % (vW + 4 * x + i, vE[i] + 2 * x, vE[i] + 2 * x + 1))
        for i in range(4):
            for kb in range(2): a(MF % (vr(vE[i]), vr(vA[kb]), vr(vP + 16 * kb + 4 * i), "0" if kb == 0 else vr(vE[i])))
        a("s_cmp_lt_u32 s101, 2"); a("s_cbranch_scc1 L_nopre")
        a("s_mov_b32 exec_hi, 0xffff"); a(ldY); a("s_mov_b32 exec_hi, -1")
        a("L_nopre:")
        for i in range(4): rows(i)
        for x in range(2): a("ds_write_b128 v5, %s offset:%d" % (vr(vW + 4 * x), L_LP + 1024 * x))
    else:
        for kb in range(2):
            for i in range(4): a(MF % (vr(vE[i]), vr(vA[kb]), vr(vP + 16 * kb + 4 * i), "0" if kb == 0 else vr(vE[i])))
        a("s_cmp_lt_u32 s101, 2"); a("s_cbranch_scc1 L_nopre")
        a("s_mov_b32 exec_hi, 0xffff"); a(ldY); a("s_mov_b32 exec_hi, -1")
        a("L_nopre:")
        for x in range(2):
            for i in range(4): a("v_add_f32 v%d, v%d, v%d" % (vW + 4 * x + i, vE[i] + 2 * x, vE[i] + 2 * x + 1))
            a("ds_write_b128 v5, %s offset:%d" % (vr(vW + 4 * x), L_LP + 1024 * x))
    a("s_waitcnt lgkmcnt(0)"); a("s_barrier")
    a("s_cmp_ge_u32 s101, 2"); a("s_cbranch_scc1 L_final")
    publish(4, vE)
    a("s_branch L_hdone")
    a("L_final:")
    def fold(r):
        if pb:
            a("v_lshlrev_b32 v%d, 16, v%d" % (r + 2, r + 1)); a("v_and_b32 v%d, 0xffff0000, v%d" % (r + 3, r + 1))
            a("v_and_b32 v%d, 0xffff0000, v%d" % (r + 1, r)); a("v_lshlrev_b32 v%d, 16, v%d" % (r, r))
        a("v_permlane32_swap_b32 v%d, v%d" % (r, r + 2)); a("v_permlane32_swap_b32 v%d, v%d" % (r + 1, r + 3))
        a("v_pk_add_f32 %s, %s, %s" % (vr(r, 2), vr(r, 2), vr(r + 2, 2)))
        a("v_permlane16_swap_b32 v%d, v%d" % (r, r + 1)); a("v_add_f32 v%d, v%d, v%d" % (r, r, r + 1))
        for k in (8, 4): a("v_add_f32_dpp v%d, v%d, v%d row_ror:%d %s" % (r, r, r, k, DPP))
        round_bf16(a, r)
    def chk(r, tgt):
        a("s_waitcnt vmcnt(1)"); umax(list(range(r, r + NP))); a("v_cmp_eq_u32 vcc, -1, v3"); a("s_cmp_eq_u64 vcc, 0"); a("s_cbranch_scc1 " + tgt)
    a("s_waitcnt vmcnt(0)")
    mpoll("L_ypoll", [ldY], list(range(Y4, Y4 + NP)))
    a(ldA); fold(Y4); a("s_mov_b32 s11, %d" % SPIN)
    a("L_pp:"); a(ldB); chk(A4, "L_ppa"); a(ldA); chk(B4, "L_ppb")
    a("s_sub_u32 s11, s11, 1"); a("s_cmp_lg_u32 s11, 0"); a("s_cbranch_scc1 L_pp")
    a("L_ppb:"); fold(B4); a("v_add_f32 v4, v%d, v%d" % (vX, B4)); a("s_branch L_ppe")
    a("L_ppa:"); fold(A4); a("v_add_f32 v4, v%d, v%d" % (vX, A4))
    a("L_ppe:"); round_bf16(a, 4); a("v_add_f32 v4, v4, v%d" % Y4); a("v_cvt_pk_bf16_f32 v4, v4, v4")
    a("s_mov_b32 exec_lo, 0x000f000f"); a("s_mov_b32 exec_hi, 0x000f000f")
    a("buffer_store_short v4, v11, %s, s75 offen" % sOUT)
    a("s_branch L_hdone")

    a("L_down:")
    vm = VM(a)
    vH, vAc, vTp, vW = 16, 24, 56, 64
    srd(a, 60, 32, 5308416)
    a("s_cmp_lt_u32 s2, 224"); a("s_cselect_b32 s100, s100, 0")
    a("v_lshrrev_b32 v3, 3, v0"); a("v_mul_u32_u24 v2, %d, v3" % (8 * 1152)); a("v_and_b32 v4, 7, v0"); a("v_lshl_add_u32 v2, v4, 4, v2")
    a("s_sub_u32 s4, s8, 16"); a("s_mul_i32 s4, s4, 3"); a("s_add_u32 s4, s4, s101")
    a("s_mul_i32 s72, s4, %d" % (128 * 1152)); a("s_lshl_b32 s5, s9, 7"); a("s_add_u32 s72, s72, s5")
    a("s_lshl_b32 s14, s4, 11"); a("s_add_u32 s14, s14, %d" % WS_H)
    actaddr(9, 4, 128)
    a("v_lshrrev_b32 v3, 4, v0"); a("v_and_b32 v4, 15, v0"); a("v_mul_u32_u24 v7, %d, v3" % RS); a("v_lshl_add_u32 v7, v4, %d, v7" % (SH - 4))
    a("v_lshlrev_b32 v6, 7, v3"); a("v_bfe_u32 v3, v0, 1, 3"); a("v_lshl_or_b32 v6, v3, 4, v6"); a("v_and_b32 v3, 1, v0"); a("v_lshl_or_b32 v6, v3, 10, v6")
    a("s_lshl_b32 s4, s101, 9"); a("v_add_u32 v6, s4, v6"); a("s_mul_i32 s4, s101, %d" % (4 * RS)); a("s_add_u32 s73, s73, s4")
    a("v_mov_b32 v11, 0")
    def body(): a("ds_read_b32 v8, v11 offset:%d" % L_G); a("s_waitcnt lgkmcnt(0)"); a("v_cmp_le_u32 vcc, %d, v8" % hat)
    spin(body, "L_hwait")
    ldH = ["buffer_load_dwordx4 %s, v9, %s, s14 offen offset:%d sc1" % (vr(vH + 4 * b_), sWS, 1024 * b_) for b_ in range(2)]
    for t_ in ldH: a(t_)
    a("s_waitcnt vmcnt(0)")
    mpoll("L_hpoll", ldH, list(range(vH, vH + 8)))
    a("s_barrier")
    w2 = []
    for k in range(17):
        b_, j = divmod(k, 8)
        if k == dsplit: s2()
        if k == 16: break
        if j % 4 == 0: a("s_add_u32 s5, s72, %d" % ((64 * b_ + j) * 1152))
        w2.append(vm.issue("buffer_load_dwordx4 %s, v2, %s, s5 offen offset:%d nt" % (vr(vW + 4 * k), sW2, 1152 * (j % 4))))
    for b_ in range(2):
        base, tp = vW + 32 * b_, 128 + 32 * b_
        for q in range(4):
            vm.wait(w2[8 * b_ + 2 * q + 1])
            for i in range(8):
                a("v_perm_b32 v%d, v%d, v%d, s%d" % (tp + 4 * i + q, base + 4 * (2 * q + 1) + i // 2, base + 4 * (2 * q) + i // 2, 12 + i % 2))
                if q == 3 and i >= 2: a(MF % (vr(vAc + 4 * (i - 2)), vr(vH + 4 * b_), vr(tp + 4 * (i - 2)), "0" if b_ == 0 else vr(vAc + 4 * (i - 2))))
        for i in (6, 7): a(MF % (vr(vAc + 4 * i), vr(vH + 4 * b_), vr(tp + 4 * i), "0" if b_ == 0 else vr(vAc + 4 * i)))
    T(8)
    block_fold(vTp, vAc)
    for x in range(2): a("ds_write_b128 v5, %s offset:%d" % (vr(vTp + 4 * x), L_LP + 1024 * x))
    a("s_waitcnt lgkmcnt(0)"); a("s_barrier")
    a("s_cmp_ge_u32 s101, 2"); a("s_cbranch_scc1 L_hdone")
    publish(3, [24, 28, 32])
    a("L_hdone:")
    T(9); T.flush()
    a("L_end:")
    a("s_endpgm")
    a("L_codeend:")
    a.pad()
    head = open("parallel_sum__sliding_block_cached__geglu_ffn__decode.s.ref").read().split("; Override")[0]
    head += "; @launch grid=(256,1,1) block=(%d,1,1) lds=%d\n" % (64 * NW, LDS_BYTES) + HEADER
    head += '.amdgcn_target "amdgcn-amd-amdhsa--gfx950"\n.text\n' + ('.fill %d, 4, 0xbf810000\n' % (pad // 4) if pad else '') + '.globl %s\n.p2align 8\n.type %s,@function\n' % (KN, KN)
    tail = '.section .rodata,"a"\n.p2align 6\n.amdhsa_kernel %s\n  .amdhsa_next_free_vgpr 256\n  .amdhsa_next_free_sgpr 102\n  .amdhsa_accum_offset 256\n' % KN
    tail += "  .amdhsa_group_segment_fixed_size 0\n  .amdhsa_kernarg_size 96\n  .amdhsa_user_sgpr_count 2\n  .amdhsa_user_sgpr_kernarg_segment_ptr 1\n  .amdhsa_system_sgpr_workgroup_id_x 1\n.end_amdhsa_kernel\n"
    return head + a.text() + tail

RAW = None
def report(t, verbose):
    import gen10
    gen10.report(t, verbose)
    import numpy as np
    ids = np.arange(256); X, J = ids & 7, ids >> 3
    WO = (ids < 128) | (X == 0); unit = np.where(J < 16, J, J - 16); hkv = 2 * X + (J & 1)
    rows = []
    for u in t:
        osent = u[:, :4, 5].max(axis=1); vd = u[:, :4, 6].max(axis=1); gl = np.array([osent[hkv == g].max() for g in range(16)])
        os_ = np.where(WO[:, None], u[:, 4:, 8], -1); c, w = np.unravel_index(os_.argmax(), os_.shape)
        rows.append((os_[c, w] - u[c, 4 + w, 7], os_[c, w] - gl[unit[c]], vd[c] - vd.max(), gl[unit[c]] - osent.max(), u[c, 4 + w, 7] - vd[c]))
    r = np.array(rows)
    print("   crit: seen-perms %.2f seen-grouplast %.2f ownV-Vmax %.2f grouplast-last %.2f perms-ownV %.2f" % tuple(r.mean(axis=0)))
    p1 = r[:, 0] < 0.4
    print("   crit: share near own weights %.2f;" % p1.mean(), "A:", r[p1].mean(axis=0), "B:", r[~p1].mean(axis=0))

if __name__ == "__main__":
    kw = eval("dict(%s)" % (sys.argv[2] if len(sys.argv) > 2 else ""))
    open(sys.argv[1], "w").write(gen(**kw))
```

```python
import sys, struct
from asmlib import Asm, VM
KN = "parallel_sum__sliding_block_cached__geglu_ffn__decode_kernel"

def f32(x): return "0x%08x" % struct.unpack("<I", struct.pack("<f", x))[0]
def vr(b, n=4): return "v[%d:%d]" % (b, b + n - 1) if n > 1 else "v%d" % b
DPP = "row_mask:0xf bank_mask:0xf"
MF = "v_mfma_f32_16x16x32_bf16 %s, %s, %s, %s"

WS_GO = 0x68000
WS_L1, WS_STAT, WS_H, WS_PRG, WS_P, WS_O, WS_TS = 0, 0x40000, 0x48000, 0x60000, 0x80000, 0x100000, 0x200000
L_F, L_C, L_Q, L_OP, L_LP, L_G = 0, 4, 1024, 2048, 8192, 16384
LDS_BYTES = 17408
SPIN = 400000
L2E = 1.4426950408889634
NW = 8
sK, sV, sX, sWS, sW1, sW2, sDBG, sOUT = ("s[%d:%d]" % (b, b + 3) for b in (40, 44, 48, 52, 56, 60, 64, 68))

HEADER = """\
; One workgroup per CU (256 x 512 threads). id = 8*j + x; x groups workgroups that normally share a die.
"""

def srd(a, base, ptr, nbytes):
    a("s_mov_b32 s%d, s%d" % (base, ptr)); a("s_mov_b32 s%d, s%d" % (base + 1, ptr + 1))
    a("s_mov_b32 s%d, %s" % (base + 2, nbytes)); a("s_mov_b32 s%d, 0x20000" % (base + 3))

class Stamps:
    def __init__(self, a, on): self.a, self.on = a, on
    def __call__(self, idx):
        if self.on: self.a("s_memrealtime s[%d:%d]" % (76 + 2 * idx, 77 + 2 * idx))
    def flush(self, n=12):
        if not self.on: return
        a = self.a
        a("s_waitcnt lgkmcnt(0)"); srd(a, 52, 38, "0x40000000")
        a("s_mul_i32 s4, s2, %d" % NW); a("s_add_u32 s4, s4, s3"); a("s_lshl_b32 s4, s4, 6"); a("s_add_u32 s4, s4, %d" % WS_TS)
        a("s_mov_b64 exec, 1"); a("v_mov_b32 v0, 0")
        for q in range(n // 4):
            for i in range(4): a("v_mov_b32 v%d, s%d" % (4 + 4 * q + i, 76 + 2 * (4 * q + i)))
            a("buffer_store_dwordx4 %s, v0, %s, s4 offen offset:%d" % (vr(4 + 4 * q), sWS, 16 * q))

def allreduce(a, op, v, t, steps):
    for s in steps:
        if s == 0: a("%s_dpp v%d, v%d, v%d quad_perm:[1,0,3,2] %s" % (op, v, v, v, DPP))
        elif s < 16: a("%s_dpp v%d, v%d, v%d row_ror:%d %s" % (op, v, v, v, s, DPP))
        else:
            a("v_mov_b32 v%d, v%d" % (t, v)); a("v_permlane%d_swap_b32 v%d, v%d" % (s, v, t)); a("%s v%d, v%d, v%d" % (op, v, v, t))

def round_bf16(a, v):
    a("v_cvt_pk_bf16_f32 v%d, v%d, v%d" % (v, v, v)); a("v_and_b32 v%d, 0xffff0000, v%d" % (v, v))

def gen(ts=0, loc=1, d=5, d0=3, nd0=27, nd1=32, dend=6, nramp=120, step=2, R=52, stat_at=100, nfree=32, da=10,
        flagblk=7, lnstep=28, pf=4, lv=(4, 5, 6, 7), th=(-1.5, 1.5, 4), bias=3.25, lead=4, leadd=0, fbend=114, fin=126, hat=100, pfn=64, pb=1, amap=(9, 11, 13, 12, 14, 15, 17, 18, 16, 8, 10), svk=None, wsplit=3, dsplit=9, oat=4, pad=0, t2=1, probe=0, pm=16, opair=1, prio=0, pst=1, w1f='nt', w2f='nt', par=0.4):
    assert sorted(amap) == list(range(8, 19))
    assert R % 2 == 0
    split = wsplit < 8 or dsplit < 16
    RS = 3584 if pb else 7168; SH = 7 if pb else 8; NP = 2 if pb else 4
    a = Asm(); T = Stamps(a, ts)
    uid = [0]
    def lab(p): uid[0] += 1; return "L_%s%d" % (p, uid[0])
    def note(t): a("; " + t)

    def spin(body, label):
        a("s_mov_b32 s11, %d" % SPIN)
        a(label + ":"); body()
        a("s_cmp_eq_u64 vcc, exec"); a("s_cbranch_scc1 %s_ok" % label)
        a("s_sub_u32 s11, s11, 1"); a("s_cmp_lg_u32 s11, 0"); a("s_cbranch_scc1 %s" % label)
        a(label + "_ok:")

    def umax(regs):
        if len(regs) == 2: a("v_max_u32 v3, v%d, v%d" % tuple(regs)); return
        a("v_max3_u32 v3, v%d, v%d, v%d" % tuple(regs[:3])); rest = regs[3:]
        while len(rest) >= 2: a("v_max3_u32 v3, v3, v%d, v%d" % tuple(rest[:2])); rest = rest[2:]
        if rest: a("v_max_u32 v3, v3, v%d" % rest[0])

    def mpoll(label, loads, regs):
        def check(): umax(regs); a("v_cmp_eq_u32 vcc, -1, v3"); a("s_and_b64 exec, exec, vcc"); a("s_cbranch_scc0 %s_ok" % label)
        a("s_mov_b32 s11, %d" % SPIN)
        check()
        a(label + ":")
        for t in loads: a(t)
        a("s_waitcnt vmcnt(0)"); check()
        a("s_sub_u32 s11, s11, 1"); a("s_cmp_lg_u32 s11, 0"); a("s_cbranch_scc1 %s" % label)
        a(label + "_ok:")
        a("s_mov_b64 exec, -1")

    def store2(text):
        f, e = lab("far"), lab("sent")
        a("s_cmp_eq_u32 s100, 0"); a("s_cbranch_scc1 " + f); a(text); a("s_branch " + e); a(f + ":"); a(text + " sc1"); a(e + ":")

    def roles():
        note("s8 = partial slot (0..15 wo head pair, 16..27 w_down slice, >= 28 none), s9 = output column slice")
        e = lab("role")
        a("s_and_b32 s9, s2, 7"); a("s_lshr_b32 s8, s2, 3")
        a("s_cmp_lt_u32 s8, 16"); a("s_cbranch_scc1 " + e)
        a("s_sub_u32 s8, s8, 16"); a("s_cmp_eq_u32 s9, 0"); a("s_cselect_b32 s9, 8, s9"); a("s_cbranch_scc1 " + e)
        a("s_add_u32 s8, s8, 16"); a("s_cmp_lt_u32 s8, 28"); a("s_cbranch_scc1 " + e)
        a("s_mul_i32 s8, s8, 7"); a("s_add_u32 s8, s8, s9"); a("s_sub_u32 s8, s8, %d" % (28 * 7 + 1 - 16))
        a("s_mov_b32 s9, 0"); a("s_cmp_lt_u32 s8, 28"); a("s_cbranch_scc1 " + e)
        a("s_mov_b32 s9, 8"); a("s_sub_u32 s8, s8, 12")
        a(e + ":")

    def oslot(dst):
        a("s_and_b32 s4, s6, 15"); a("s_lshl_b32 s4, s4, 13"); a("s_lshr_b32 s5, s6, 4"); a("s_lshl_b32 s5, s5, 1"); a("s_add_u32 s5, s5, s7")
        a("s_lshl_b32 s5, s5, %d" % (6 if opair else 9)); a("s_add_u32 s4, s4, s5"); a("s_add_u32 %s, s4, %d" % (dst, WS_O))

    def l1slot(dst):
        a("s_and_b32 %s, s2, 7" % dst); a("s_lshl_b32 %s, %s, 5" % (dst, dst)); a("s_lshr_b32 s4, s2, 3"); a("s_add_u32 %s, %s, s4" % (dst, dst)); a("s_lshl_b32 %s, %s, 10" % (dst, dst))

    def slots(kind, e, lin, t):
        op = ("buffer_load_dword v%d" % (t + 2) if kind == "read" else "buffer_store_dwordx4 %s" % vr(e)) + ", v%d, %s, %s offen"
        fl = " sc1" if kind == "far" else ""
        k0, k = lab("nol"), lab("nop")
        l1slot("s5")
        a("s_lshr_b32 s4, s2, 3"); a("s_lshl_b32 s4, 1, s4"); a("s_and_b32 s4, s4, 0x%x" % (0xff | (0x1ff << 17))); a("s_cbranch_scc0 " + k0)
        a(op % (lin, sWS, "s5") + fl); a(k0 + ":")
        a("s_lshl_b32 s4, s6, 1"); a("s_add_u32 s4, s4, s7"); a("s_lshl_b32 s4, s4, 7"); a("s_add_u32 s4, s4, %d" % WS_STAT)
        a("s_mov_b64 exec, 0xff"); a(op % (lin, sWS, "s4") + fl); a("s_mov_b64 exec, -1")
        a("s_cmp_ge_u32 s8, 28"); a("s_cbranch_scc1 " + k)
        a("v_lshrrev_b32 v%d, %d, v0" % (t, 3 if pb else 4)); a("v_mul_u32_u24 v%d, %d, v%d" % (t, RS, t)); a("v_and_b32 v%d, %d, v0" % (t + 1, 7 if pb else 15)); a("v_lshl_add_u32 v%d, v%d, 4, v%d" % (t, t + 1, t))
        a("s_mul_i32 s4, s9, %d" % (8 * RS)); a("s_lshl_b32 s5, s8, %d" % SH); a("s_add_u32 s4, s4, s5"); a("s_add_u32 s4, s4, %d" % WS_P); a("s_add_u32 s5, s4, %d" % (4 * RS))
        st = [op % (t, sWS, s_) for s_ in (("s4",) if pb else ("s4", "s5"))]
        if kind != "far":
            f = lab("rem")
            a("s_cmp_lt_u32 s2, 224"); a("s_cselect_b32 s10, 0, s8"); a("s_cmp_ge_u32 s10, 16"); a("s_cbranch_scc1 " + (k if kind == "read" else f))
            for x_ in st: a(x_)
            if kind == "near": a("s_branch " + k); a(f + ":")
        if kind != "read":
            for x_ in st: a(x_ + " sc1")
        a(k + ":")

    def block_mm(base, tp, acc, act, first, hook=None):
        for i in range(8):
            t = tp + 4 * (i % 2)
            for q in range(4): a("v_perm_b32 v%d, v%d, v%d, s%d" % (t + q, base + 4 * (2 * q + 1) + i // 2, base + 4 * (2 * q) + i // 2, 12 + i % 2))
            if i > 0: a(MF % (vr(acc + 4 * (i - 1)), vr(act), vr(tp + 4 * ((i - 1) % 2)), "0" if first else vr(acc + 4 * (i - 1))))
            if hook and i % 4 == 0: hook()
        a(MF % (vr(acc + 28), vr(act), vr(tp + 4), "0" if first else vr(acc + 28)))
    def block_fold(dst, acc):
        for i in range(8): a("v_add_f32_dpp v%d, v%d, v%d row_ror:8 row_mask:0xf bank_mask:0x3" % (dst + i, acc + 4 * i + 1, acc + 4 * i))
        for i in range(8): a("v_add_f32_dpp v%d, v%d, v%d row_ror:8 row_mask:0xf bank_mask:0xc" % (dst + i, acc + 4 * i + 2, acc + 4 * i + 3))
    def actaddr(dst, t, rowbytes):
        a("v_bfe_u32 v%d, v0, 1, 3" % dst); a("v_mul_u32_u24 v%d, %d, v%d" % (dst, rowbytes, dst)); a("v_lshrrev_b32 v%d, 4, v0" % t); a("v_lshl_add_u32 v%d, v%d, 5, v%d" % (dst, t, dst))
        a("v_and_b32 v%d, 1, v0" % t); a("v_lshl_add_u32 v%d, v%d, 4, v%d" % (dst, t, dst))
    def prgaddr(line, word):
        a("s_and_b32 %s, s2, 7" % line); a("s_lshl_b32 %s, %s, 8" % (line, line)); a("s_add_u32 %s, %s, %d" % (line, line, WS_PRG))
        a("s_lshr_b32 %s, s2, 3" % word); a("s_lshl_b32 %s, %s, 2" % (word, word)); a("s_add_u32 %s, %s, %s" % (word, word, line))

    a(KN + ":")
    T(0)
    a("s_cmp_ge_u32 s2, 256"); a("s_cbranch_scc1 L_end")
    a("s_load_dwordx16 s[16:31], s[0:1], 0"); a("s_load_dwordx8 s[32:39], s[0:1], 64")
    a("v_lshrrev_b32 v1, 6, v0"); a("v_and_b32 v0, 63, v0"); a("v_readfirstlane_b32 s3, v1")
    a("s_and_b32 s6, s2, 7"); a("s_lshl_b32 s6, s6, 1"); a("s_bfe_u32 s7, s2, 0x10003"); a("s_or_b32 s6, s6, s7")
    a("s_and_b32 s7, s2, 0x70"); a("s_or_b32 s6, s6, s7"); a("s_lshr_b32 s7, s2, 7")
    a("s_cmp_lt_u32 s3, 4"); a("s_cbranch_scc1 L_stream")
    a("s_cmp_lg_u32 s3, 7"); a("s_cbranch_scc1 L_help")
    a("s_getpc_b64 s[4:5]")
    a("L_pc:")
    a("s_bfe_u32 s8, s2, 0x%x" % (((pf.bit_length() - 1) << 16) + 3)); a("s_mul_i32 s8, s8, %d" % pfn)
    a("v_add_u32 v1, s8, v0"); a("v_lshlrev_b32 v1, 7, v1"); a("v_min_u32 v1, L_codeend-L_pc-4, v1")
    a("v_mov_b32 v3, s5"); a("v_add_co_u32 v2, vcc, s4, v1"); a("v_addc_co_u32 v3, vcc, 0, v3, vcc")
    a("global_load_dword v255, v[2:3], off")
    a("s_branch L_help")

    a("L_stream:")
    vm = VM(a)
    vKo, vVo, vM, vL, vF = 1, 2, 5, 6, 7
    vMask, vQ0, vQ1, vAcc = 12, 16, 20, 24
    vD = [28, 32]
    pool = list(range(36, 252, 4))
    assert len(pool) >= R + 2
    a("v_lshrrev_b32 v3, 4, v0"); a("v_lshlrev_b32 v3, 6, v3")
    a("v_and_b32 v4, 3, v0"); a("v_lshl_or_b32 v3, v4, 4, v3")
    if amap[10] == amap[9] + 1: a("v_bfe_u32 v4, v0, 2, 2"); a("v_lshl_or_b32 v%d, v4, %d, v3" % (vKo, amap[9]))
    else:
        a("v_bfe_u32 v4, v0, 2, 1"); a("v_lshl_or_b32 v3, v4, %d, v3" % amap[9]); a("v_bfe_u32 v4, v0, 3, 1"); a("v_lshl_or_b32 v%d, v4, %d, v3" % (vKo, amap[10]))
    a("s_lshl_b32 s14, s6, 21"); a("s_lshl_b32 s15, s7, %d" % amap[8]); a("s_add_u32 s14, s14, s15"); a("s_add_u32 s14, s14, %d" % (6144 * 256))
    if amap[1] == amap[0] + 1: a("s_lshl_b32 s15, s3, %d" % amap[0]); a("s_add_u32 s14, s14, s15")
    else:
        a("s_and_b32 s15, s3, 1"); a("s_lshl_b32 s15, s15, %d" % amap[0]); a("s_add_u32 s14, s14, s15")
        a("s_lshr_b32 s15, s3, 1"); a("s_lshl_b32 s15, s15, %d" % amap[1]); a("s_add_u32 s14, s14, s15")
    a("s_mov_b32 s42, 0x10000000"); a("s_mov_b32 s43, 0x20000")
    a("s_waitcnt lgkmcnt(0)")
    a("s_mov_b32 s40, s18"); a("s_mov_b32 s41, s19")
    slot, tok, free, issued = {}, {}, pool[:], [0]
    def issue_next():
        n = issued[0]; issued[0] += 1
        r = free.pop(0); slot[n] = r
        a("s_add_u32 s10, s14, %d" % sum(((n >> i) & 1) << amap[2 + i] for i in range(6)))
        tok[n] = vm.issue("buffer_load_dwordx4 %s, v%d, %s, s10 offen nt" % (vr(r), vKo if n < 64 else vVo, sK if n < 64 else sV))
        if n == 127 and svk is None: note("SV: every V load is issued, second-layer weights may follow"); a("s_barrier")
    for _ in range(d0): issue_next()
    if prio: a("s_setprio %d" % prio)
    srd(a, 44, 20, "0x10000000"); srd(a, 52, 38, "0x40000000")
    a("v_and_b32 v3, 15, v0"); a("v_lshlrev_b32 v3, 4, v3"); a("v_bfe_u32 v4, v0, 4, 1"); a("v_lshl_or_b32 v3, v4, %d, v3" % amap[9])
    a("v_lshrrev_b32 v4, 5, v0"); a("v_lshl_or_b32 v%d, v4, %d, v3" % (vVo, amap[10]))
    a("v_bfe_u32 v3, v0, 3, 1"); a("v_bfe_u32 v4, v0, 1, 1"); a("v_lshl_or_b32 v3, v3, 1, v4")
    a("v_and_b32 v4, 1, v0"); a("v_lshlrev_b32 v4, 4, v4"); a("v_mov_b32 v5, 0xffff"); a("v_lshlrev_b32 v4, v4, v5")
    for r in range(4):
        a("v_cmp_eq_u32 vcc, %d, v3" % r); a("v_cndmask_b32 v%d, 0, v4, vcc" % (vMask + r))
    oslot("s26"); a("s_lshl_b32 s5, s3, %d" % (11 if opair else 7)); a("s_add_u32 s26, s26, s5")
    a("s_lshl_b32 s4, s3, 2"); a("v_lshlrev_b32 v9, 4, v0"); a("v_add_u32 v8, s4, v9"); a("v_mov_b32 v253, 0"); a("s_mov_b32 s27, 0")
    def D0(n):
        if n < nd0: return d0
        if n < nd1: return d0 + 1
        if n < nramp: return d
        return min(dend, d + (n - nramp + 1) // step)
    def D(n): return D0(n) + (lv[-1] - d if n >= R else 0)
    def paced():
        n = issued[0]
        if n >= 128: return
        vm.wait(tok[n - D(n)])
        if n >= R:
            if n % 2 == 1: a("s_waitcnt lgkmcnt(0)"); a("v_readfirstlane_b32 s27, v252")
            used = False
            for l_, t_ in reversed(list(zip(lv[:-1], th))):
                m = n - (D0(n) - d + l_)
                if tok[m] > vm.done:
                    a("s_cmp_ge_i32 s27, %d" % int(32 * t_)); a("s_cbranch_scc1 L_hi%d" % n); a("s_waitcnt vmcnt(%d)" % (vm.n - tok[m])); used = True
            if used: a("L_hi%d:" % n)
        issue_next()
        if n >= R:
            if n % pst == 0: a("v_mov_b32 v254, %d" % n); a("ds_write_b32 v8, v254 offset:%d" % L_G)
            if n % 2 == 0: a("ds_read_b32 v252, v253 offset:%d" % L_C)
    def ahead(n):
        while issued[0] < 128 and issued[0] - D(issued[0]) < n: paced()
    while issued[0] < R:
        paced()
        if issued[0] == 24: T(1)
        if issued[0] == nfree:
            a("s_cmp_lt_u32 s2, 208"); a("s_cbranch_scc1 L_nofb"); a("s_barrier"); a("L_nofb:")
    T(2)
    a("s_barrier")
    T(3)
    a("ds_read_b128 %s, v9 offset:%d" % (vr(vQ0), L_Q))
    a("ds_read_b32 v4, v253 offset:%d" % L_F)
    a("v_and_b32 v3, 8, v0"); a("v_cmp_eq_u32 vcc, 0, v3"); a("v_mov_b32 v%d, 0xff800000" % vM)
    a("s_mov_b32 s15, %s" % f32(128 ** -0.5))
    a("s_waitcnt lgkmcnt(0)")
    a("v_readfirstlane_b32 s100, v4")
    for i in range(4): a("v_cndmask_b32 v%d, v%d, 0, vcc" % (vQ1 + i, vQ0 + i))
    for i in range(4): a("v_cndmask_b32 v%d, 0, v%d, vcc" % (vQ0 + i, vQ0 + i))
    vD += [free.pop(), free.pop()]
    S = []
    def qk(c):
        Dr = vD[c % 4]
        vm.wait(tok[2 * c + 1])
        a(MF % (vr(Dr), vr(slot[2 * c]), vr(vQ0), "0")); a(MF % (vr(Dr), vr(slot[2 * c + 1]), vr(vQ1), vr(Dr)))
        free.extend([slot[2 * c], slot[2 * c + 1]])
    def extract(c):
        if c % 4 == 0: S.extend(range(free[-1], free[-1] + 4)); free.pop()
        x, y, DA, DB = S[c], S[c + 1], vD[c % 4], vD[(c + 1) % 4]
        for i in range(4):
            for s_, Dr in ((x, DA), (y, DB)):
                if i == 0: a("v_mov_b32_dpp v%d, v%d quad_perm:[0,0,0,0] %s" % (s_, Dr, DPP))
                else: a("v_add_f32_dpp v%d, v%d, v%d quad_perm:[%d,%d,%d,%d] %s" % (s_, Dr + i, s_, i, i, i, i, DPP))
        for rep in range(2):
            a("v_cvt_pk_bf16_f32 v3, v%d, v%d" % (x, y))
            a("v_lshlrev_b32 v%d, 16, v3" % x); a("v_and_b32 v%d, 0xffff0000, v3" % y)
            if rep == 0: a("v_mul_f32 v%d, s15, v%d" % (x, x)); a("v_mul_f32 v%d, s15, v%d" % (y, y))
        a("v_max3_f32 v%d, v%d, v%d, v%d" % (vM, vM, x, y))
    for c in range(0, 32, 2):
        ahead(2 * c + 3)
        qk(c); qk(c + 1)
        paced(); paced()
        if c >= 2: extract(c - 2)
    extract(30)
    free.extend(vD[2:])
    T(4)
    paced()
    allreduce(a, "v_max_f32", vM, 3, [8, 16, 32])
    a("s_mov_b32 s15, %s" % f32(L2E)); a("v_mul_f32 v%d, s15, v%d" % (vM, vM)); a("v_mov_b32 v%d, 0" % vL); a("v_mov_b32 v4, 0")
    for c in range(0, 32, 4):
        for i in range(4): a("v_fma_f32 v%d, v%d, s15, -v%d" % (S[c + i], S[c + i], vM))
        for i in range(4): a("v_exp_f32 v%d, v%d" % (S[c + i], S[c + i]))
        for i in range(4): a("v_add_f32 v%d, v%d, v%d" % ((vL, 4)[i % 2], (vL, 4)[i % 2], S[c + i]))
        for i in range(4): a("v_cvt_pk_bf16_f32 v%d, v%d, v%d" % (S[c + i], S[c + i], S[c + i]))
        if c % 8 == 4: paced()
    a("v_add_f32 v%d, v%d, v4" % (vL, vL))
    allreduce(a, "v_add_f32", vL, 3, [8, 16, 32])
    a("v_min_u32 v10, -2, v%d" % vM); a("v_min_u32 v11, -2, v%d" % vL)
    a("v_lshlrev_b32 v9, 1, v0"); a("v_and_b32 v9, 0x38, v9"); a("v_lshrrev_b32 v3, 5, v0"); a("v_lshl_or_b32 v9, v3, 7, v9")
    a("s_lshl_b32 s73, s6, 8"); a("s_add_u32 s73, s73, %d" % WS_STAT)
    a("s_lshl_b32 s4, s7, 3"); a("s_add_u32 s4, s4, s3"); a("s_lshl_b32 s4, s4, 4"); a("s_add_u32 s4, s4, s73")
    a("s_mov_b64 exec, 0x11")
    store2("buffer_store_dwordx2 v[10:11], v9, %s, s4 offen" % sWS); vm.n += 1
    a("s_mov_b64 exec, -1")
    vB = vD[:2]
    def prepB(n):
        c, t = divmod(n - 64, 2)
        for r in range(4):
            if (r >> 1) == t: a("v_and_b32 v%d, v%d, v%d" % (vB[n % 2] + r, S[c], vMask + r))
            else: a("v_and_b32_dpp v%d, v%d, v%d row_ror:8 %s" % (vB[n % 2] + r, S[c], vMask + r, DPP))
    prepB(64)
    tstat = None
    ldS = "buffer_load_dwordx2 v[10:11], v9, %s, s73 offen sc1" % sWS
    for n in range(64, 128):
        ahead(n)
        if tstat is None and issued[0] >= stat_at: tstat = vm.issue(ldS)
        vm.wait(tok[n])
        if svk is not None and n == 127 - svk: assert issued[0] == 128; note("SV: second-layer weights may follow"); a("s_barrier")
        a(MF % (vr(vAcc), vr(slot[n]), vr(vB[n % 2]), "0" if n == 64 else vr(vAcc)))
        free.append(slot[n])
        if n % 2 == 1 and issued[0] < 128 and issued[0] - D(issued[0]) > n: paced()
        if n < 127: prepB(n + 1)
        if tstat and tstat > 0 and vm.done >= tstat:
            note("combine the eight (max, sum) pairs of the row: f = exp(own max - row max) / row sum")
            def stat_valid(): a("v_max_u32 v3, v10, v11"); a("v_cmp_ne_u32 vcc, -1, v3")
            stat_valid(); a("s_cmp_eq_u64 vcc, exec"); a("s_cbranch_scc1 L_stat_ok")
            def body(): a(ldS); a("s_waitcnt vmcnt(0)"); stat_valid()
            spin(body, "L_stat")
            a("v_mov_b32 v%d, v10" % vF); allreduce(a, "v_max_f32", vF, 3, [8, 16, 32])
            a("v_sub_f32 v10, v10, v%d" % vF); a("v_sub_f32 v%d, v%d, v%d" % (vF, vM, vF))
            a("v_exp_f32 v10, v10"); a("v_exp_f32 v%d, v%d" % (vF, vF)); a("v_mul_f32 v10, v10, v11")
            paced()
            allreduce(a, "v_add_f32", 10, 3, [8, 16, 32])
            a("v_rcp_f32 v10, v10"); a("v_mul_f32 v%d, v%d, v10" % (vF, vF)); a("v_mov_b32 v%d, v%d" % (vL, vF))
            a("v_bfe_u32 v3, v0, 2, 1"); a("v_mul_u32_u24 v9, 704, v3"); a("v_lshrrev_b32 v4, 4, v0"); a("v_mul_u32_u24 v4, 160, v4"); a("v_add_u32 v9, v9, v4")
            a("v_bfe_u32 v3, v0, 3, 1"); a("v_lshl_add_u32 v9, v3, 4, v9"); a("v_and_b32 v3, 3, v0"); a("v_lshl_add_u32 v9, v3, 2, v9")
            a("s_mul_i32 s4, s3, 1536"); a("s_add_u32 s4, s4, %d" % L_OP); a("v_add_u32 v9, s4, v9")
            a("s_lshr_b32 s4, s3, 1"); a("s_mul_i32 s4, s4, 704"); a("s_and_b32 s5, s3, 1"); a("s_mul_i32 s5, s5, 320"); a("s_add_u32 s4, s4, s5")
            a("v_and_b32 v3, 15, v0"); a("v_lshl_add_u32 v10, v3, 3, v4"); a("v_add_u32 v10, s4, v10"); a("v_lshlrev_b32 v11, 2, v0")
            if opair: a("v_lshlrev_b32 v11, 2, v3"); a("v_lshrrev_b32 v3, 4, v0"); a("v_lshl_or_b32 v11, v3, 10, v11")
            tstat = -1
    assert tstat == -1
    T(6)
    for i in (0, 2): a("v_pk_mul_f32 %s, %s, v[6:7]" % (vr(vAcc + i, 2), vr(vAcc + i, 2)))
    a("ds_write2_b32 v9, v%d, v%d offset0:0 offset1:8" % (vAcc, vAcc + 1))
    a("ds_write2_b32 v9, v%d, v%d offset0:16 offset1:24" % (vAcc + 2, vAcc + 3))
    a("s_waitcnt lgkmcnt(0)"); a("s_barrier")
    a("s_mov_b32 exec_hi, 0")
    for w in range(4): a("ds_read_b64 %s, v10 offset:%d" % (vr(16 + 2 * w, 2), L_OP + 1536 * w))
    a("s_waitcnt lgkmcnt(2)"); a("v_pk_add_f32 v[16:17], v[16:17], v[18:19]")
    a("s_waitcnt lgkmcnt(0)"); a("v_pk_add_f32 v[20:21], v[20:21], v[22:23]"); a("v_pk_add_f32 v[16:17], v[16:17], v[20:21]")
    a("v_cvt_pk_bf16_f32 v3, v16, v17"); a("v_min_u32 v3, -2, v3")
    a("buffer_store_dword v3, v11, %s, s26 offen sc1" % sWS)
    T(5)
    if split: note("the held-back weight loads go out behind these stores"); a("s_barrier")
    if oat < 0: a("s_waitcnt vmcnt(0)")
    T.flush()
    a("s_endpgm")

    a("L_help:")
    vLin, vWo = 1, 2
    a("v_lshlrev_b32 v%d, 4, v0" % vLin)
    a("s_mov_b32 s12, 0x05040100"); a("s_mov_b32 s13, 0x07060302")
    a("s_cmp_lg_u32 s3, 4"); a("s_cbranch_scc1 L_h567")
    vm = VM(a)
    vXN, vAc, vTp, vRing, w1blk = 8, 44, 244, 116, 4
    a("s_lshr_b32 s101, s2, 3"); a("s_and_b32 s4, s2, 7")
    a("s_cmp_lt_u32 s101, 8"); a("s_movk_i32 s14, 8192"); a("s_cselect_b32 s14, s14, 9216"); a("s_mov_b32 s58, 4718592"); a("s_cselect_b32 s58, s58, 5308416")
    a("s_cselect_b32 s5, 8, 9"); a("s_cselect_b32 s15, 0, 8"); a("s_mul_i32 s4, s4, s5")
    a("s_cmp_lt_u32 s101, 17"); a("s_cselect_b32 s15, s15, 17"); a("s_sub_u32 s15, s101, s15"); a("s_add_u32 s74, s15, s4"); a("s_lshl_b32 s15, s74, 7")
    a("v_lshrrev_b32 v3, 3, v0"); a("v_lshlrev_b32 v3, 3, v3"); a("v_mul_u32_u24 v3, s14, v3"); a("v_and_b32 v2, 7, v0"); a("v_lshl_add_u32 v%d, v2, 4, v3" % vWo)
    actaddr(3, 4, 1152)
    a("s_mul_i32 s75, s14, 57"); a("s_mov_b32 s59, 0x20000")
    a("s_waitcnt lgkmcnt(0)")
    srd(a, 52, 38, "0x40000000"); srd(a, 64, 36, 256)
    a("s_cmp_ge_u32 s2, 208"); a("s_cbranch_scc1 L_nol1")
    a("s_cmp_lt_u32 s101, 17"); a("s_cselect_b32 s56, s28, s30"); a("s_cselect_b32 s57, s29, s31")
    a("s_cmp_lt_u32 s101, 8"); a("s_cselect_b32 s56, s22, s56"); a("s_cselect_b32 s57, s23, s57")
    srd(a, 48, 16, 9216)
    for i in range(9): tx = vm.issue("buffer_load_dwordx4 %s, v3, %s, 0 offen offset:%d" % (vr(vXN + 4 * i), sX, 128 * i))
    w1 = []
    def issue_w1():
        blk, j = divmod(len(w1), 8)
        w1.append(vm.issue("buffer_load_dwordx4 %s, v%d, %s, s15 offen %s" % (vr(vRing + 32 * (blk % w1blk) + 4 * j), vWo, sW1, w1f)))
        a("s_add_u32 s15, s15, %s" % ("s75" if j == 7 else "s14"))
    while len(w1) < da: issue_w1()
    def paced1(blk):
        if len(w1) < 72 and len(w1) < 8 * (blk + w1blk): vm.wait(w1[len(w1) - da]); issue_w1()
    ln = Asm(); xf = 44
    def unpack_all():
        for i in range(36): ln("v_lshlrev_b32 v%d, 16, v%d" % (xf + 2 * i, vXN + i)); ln("v_and_b32 v%d, 0xffff0000, v%d" % (xf + 2 * i + 1, vXN + i))
    def pack_all():
        for i in range(36): ln("v_cvt_pk_bf16_f32 v%d, v%d, v%d" % (vXN + i, xf + 2 * i, xf + 2 * i + 1))
    for i in range(4): ln("v_mov_b32 v%d, 0x3f803f80" % (244 + i))
    for i in range(9): ln(MF % ("v[248:251]", "v[244:247]", vr(vXN + 4 * i), "0" if i == 0 else "v[248:251]"))
    unpack_all()
    allreduce(ln, "v_add_f32", 248, 249, [0])
    ln("v_mul_f32 v248, %s, v248" % f32(1 / 576)); ln("v_mov_b32 v4, v248"); round_bf16(ln, 4)
    ln("v_sub_f32 v248, v248, v4"); ln("v_sub_f32 v4, 0, v4"); ln("v_mov_b32 v5, v4")
    for i in range(36): ln("v_pk_add_f32 %s, %s, v[4:5]" % (vr(xf + 2 * i, 2), vr(xf + 2 * i, 2)))
    for i in range(36):
        acc = vr(244 + 2 * (i % 2), 2); x2 = vr(xf + 2 * i, 2)
        ln("v_pk_mul_f32 %s, %s, %s" % (acc, x2, x2) if i < 2 else "v_pk_fma_f32 %s, %s, %s, %s" % (acc, x2, x2, acc))
    ln("v_pk_add_f32 v[244:245], v[244:245], v[246:247]"); ln("v_add_f32 v4, v244, v245")
    allreduce(ln, "v_add_f32", 4, 5, [0, 16, 32])
    ln("v_mul_f32 v4, %s, v4" % f32(1 / 576)); ln("v_fma_f32 v4, -v248, v248, v4"); ln("v_max_f32 v4, 0, v4"); round_bf16(ln, 4)
    ln("v_add_f32 v4, %s, v4" % f32(1e-5)); round_bf16(ln, 4)
    ln("v_sqrt_f32 v4, v4"); round_bf16(ln, 4); ln("v_rcp_f32 v4, v4")
    pack_all(); ln("v_mov_b32 v5, v4"); unpack_all()
    for i in range(36): ln("v_pk_mul_f32 %s, %s, v[4:5]" % (vr(xf + 2 * i, 2), vr(xf + 2 * i, 2)))
    pack_all()
    vm.wait(tx)
    for k, ins in enumerate(ln.ins):
        a(ins.text)
        if k % lnstep == lnstep - 1: paced1(0)
    T(1)
    def flagaddr(): a("v_and_b32 v253, 7, v0"); a("v_and_b32 v254, 24, v0"); a("v_lshl_or_b32 v253, v254, 1, v253"); a("v_lshlrev_b32 v253, 2, v253")
    ldF = "buffer_load_dword v252, v253, %s, 0 offen sc1" % sDBG
    for blk in range(9):
        while len(w1) < min(72, 8 * blk + 7 + da): paced1(blk)
        if blk == flagblk: flagaddr(); tflag = vm.issue(ldF)
        vm.wait(w1[8 * blk + 7])
        block_mm(vRing + 32 * (blk % w1blk), vTp, vAc, vXN + 4 * blk, blk == 0, lambda: paced1(blk))
    T(2)
    block_fold(vTp, vAc)
    for q in range(4): a("v_cvt_pk_bf16_f32 v%d, v%d, v%d" % (12 + q, vTp + 2 * q, vTp + 2 * q + 1))
    for q in range(4): a("v_min_u32 v%d, -2, v%d" % (12 + q, 12 + q))
    vm.wait(tflag)
    a("s_branch L_l1done")
    a("L_nol1:")
    a("s_barrier")
    flagaddr(); a("v_mov_b32 v252, 0")
    a("L_l1done:")
    T(10)
    roles()
    a("s_mov_b32 s5, 0x88888888")
    def fvalid(): a("v_and_b32 v8, s5, v252"); a("v_cmp_eq_u32 vcc, s5, v8")
    fvalid(); a("s_cmp_eq_u64 vcc, exec"); a("s_cbranch_scc1 L_flags_ok")
    def body(): a(ldF); a("s_waitcnt vmcnt(0)"); fvalid()
    spin(body, "L_flags")
    a("v_readfirstlane_b32 s4, v252"); a("v_cmp_eq_u32 vcc, s4, v252"); a("s_cmp_eq_u64 vcc, exec"); a("s_cselect_b32 s100, %d, 0" % loc)
    a("s_cmp_lg_u32 s100, 0"); a("s_cbranch_scc1 L_mode_ok")
    for i in range(4): a("v_mov_b32 v%d, -1" % (16 + i))
    slots("far", 16, vLin, 20)
    a("s_lshl_b32 s10, s2, 7"); a("s_add_u32 s10, s10, %d" % WS_GO); a("v_lshlrev_b32 v20, 7, v0"); a("v_mov_b32 v21, 1")
    a("s_mov_b64 exec, 1"); a("buffer_store_dword v16, v20, %s, s10 offen sc1" % sWS); a("s_waitcnt vmcnt(0)")
    a("s_and_b32 s5, s2, 3"); a("s_lshl_b32 s5, s5, 6"); a("s_add_u32 s5, s5, 36")
    a("s_mov_b32 s4, 1"); a("s_atomic_add s4, s[36:37], s5 glc"); a("s_waitcnt lgkmcnt(0)")
    a("s_and_b32 s4, s4, 63"); a("s_cmp_lg_u32 s4, 63"); a("s_cbranch_scc1 L_notlast")
    a("s_mov_b32 s4, 1"); a("s_atomic_add s4, s[36:37], 40 glc"); a("s_waitcnt lgkmcnt(0)")
    a("s_and_b32 s4, s4, 3"); a("s_cmp_lg_u32 s4, 3"); a("s_cbranch_scc1 L_notlast")
    a("s_mov_b64 exec, -1")
    for k in range(4): a("s_mov_b32 s4, %d" % (WS_GO + 8192 * k)); a("buffer_store_dword v21, v20, %s, s4 offen sc1" % sWS)
    a("s_mov_b64 exec, 1")
    a("L_notlast:")
    def body(): a("buffer_load_dword v8, v20, %s, s10 offen sc1" % sWS); a("s_waitcnt vmcnt(0)"); a("v_cmp_ne_u32 vcc, -1, v8")
    spin(body, "L_far")
    a("s_mov_b64 exec, -1")
    a("L_mode_ok:")
    T(4)
    l1slot("s72")
    a("s_cmp_ge_u32 s2, 208"); a("s_cbranch_scc1 L_nol1st")
    a("s_sub_u32 s4, s101, 8"); a("s_cmp_lt_u32 s4, 9"); a("s_cbranch_scc1 L_nol1st")
    store2("buffer_store_dwordx4 v[12:15], v%d, %s, s72 offen" % (vLin, sWS))
    a("L_nol1st:")
    a("v_mov_b32 v8, s100"); a("v_mov_b32 v9, 0"); a("ds_write_b64 v9, v[8:9] offset:%d" % L_F)
    for i in range(4): a("v_mov_b32 v%d, %d" % (16 + i, R - 1))
    a("ds_write_b128 v9, v[16:19] offset:%d" % L_G)
    a("v_bfe_u32 v3, v0, 2, 1"); a("v_lshlrev_b32 v3, 11, v3"); a("v_lshrrev_b32 v4, 5, v0"); a("v_lshl_or_b32 v3, v4, 10, v3")
    a("v_bfe_u32 v4, v0, 4, 1"); a("v_lshl_or_b32 v3, v4, 6, v3"); a("v_and_b32 v4, 3, v0"); a("v_lshl_or_b32 v10, v4, 4, v3")
    a("s_and_b32 s4, s2, 7"); a("s_lshl_b32 s4, s4, 15"); a("s_and_b32 s5, s6, 1"); a("s_lshl_b32 s5, s5, 12"); a("s_add_u32 s4, s4, s5")
    a("s_lshr_b32 s5, s6, 4"); a("s_lshl_b32 s5, s5, 7"); a("s_add_u32 s4, s4, s5")
    def poll4(r, va, label):
        ld = "buffer_load_dwordx4 %s, v%d, %s, s4 offen sc1" % (vr(r), va, sWS)
        a(ld); a("s_waitcnt vmcnt(0)"); mpoll(label, [ld], list(range(r, r + 4)))
    poll4(4, 10, "L_qpoll")
    T(11)
    a("ds_write_b128 v%d, v[4:7] offset:%d" % (vLin, L_Q))
    a("s_waitcnt lgkmcnt(0)"); a("s_barrier")
    T(5)
    a("s_sub_u32 s4, s101, 8"); a("s_cmp_ge_u32 s4, 9"); a("s_cbranch_scc1 L_noh")
    a("s_add_u32 s4, s72, %d" % (9 * 1024))
    poll4(16, vLin, "L_upoll")
    a("s_mov_b32 s4, %s" % f32(0.044715)); a("s_mov_b32 s5, %s" % f32(-2 * (2 / 3.141592653589793) ** 0.5 * L2E))
    g, e = list(range(24, 32)), list(range(32, 40))
    def unpack(dst, src):
        for q in range(4): a("v_lshlrev_b32 v%d, 16, v%d" % (dst[2 * q], src + q)); a("v_and_b32 v%d, 0xffff0000, v%d" % (dst[2 * q + 1], src + q))
    def pack(dst, src):
        for q in range(4): a("v_cvt_pk_bf16_f32 v%d, v%d, v%d" % (dst + q, src[2 * q], src[2 * q + 1]))
    unpack(g, 12)
    for i in range(8): a("v_mul_f32 v%d, v%d, v%d" % (e[i], g[i], g[i]))
    for i in range(8): a("v_fma_f32 v%d, v%d, s4, 1.0" % (e[i], e[i]))
    for i in range(8): a("v_mul_f32 v%d, v%d, v%d" % (e[i], e[i], g[i]))
    for i in range(8): a("v_mul_f32 v%d, s5, v%d" % (e[i], e[i]))
    for i in range(8): a("v_exp_f32 v%d, v%d" % (e[i], e[i]))
    for i in range(8): a("v_add_f32 v%d, 1.0, v%d" % (e[i], e[i]))
    for i in range(8): a("v_rcp_f32 v%d, v%d" % (e[i], e[i]))
    for i in range(8): a("v_mul_f32 v%d, v%d, v%d" % (g[i], g[i], e[i]))
    pack(12, g); unpack(g, 12); unpack(e, 16)
    for i in range(8): a("v_mul_f32 v%d, v%d, v%d" % (g[i], g[i], e[i]))
    pack(12, g)
    for q in range(4): a("v_min_u32 v%d, -2, v%d" % (12 + q, 12 + q))
    a("s_lshl_b32 s4, s74, 10"); a("s_add_u32 s4, s4, %d" % WS_H)
    a("buffer_store_dwordx4 v[12:15], v%d, %s, s4 offen sc1" % (vLin, sWS))
    a("L_noh:")
    T(6)
    a("s_cmp_lt_u32 s8, 28"); a("s_cbranch_scc1 L_l2")
    a("s_branch L_hdone")

    a("L_h567:")
    roles()
    a("s_waitcnt lgkmcnt(0)")
    srd(a, 52, 38, "0x40000000")
    a("s_cmp_lg_u32 s3, 5"); a("s_cbranch_scc1 L_h67")
    for i in range(4): a("v_mov_b32 v%d, -1" % (4 + i))
    oslot("s74"); a("v_lshlrev_b32 v3, 3, v0")
    if opair:
        a("s_mul_i32 s4, s7, %d" % (1024 - 64)); a("s_add_u32 s74, s74, s4")
        a("v_and_b32 v3, 15, v0"); a("v_lshlrev_b32 v3, 3, v3"); a("v_lshrrev_b32 v8, 4, v0"); a("v_lshl_or_b32 v3, v8, 11, v3")
    a("buffer_store_dwordx2 v[4:5], v3, %s, s74 offen sc1" % sWS)
    a("s_lshr_b32 s4, s2, 3"); a("s_sub_u32 s4, s4, 8"); a("s_cmp_ge_u32 s4, 9"); a("s_cbranch_scc1 L_nohcl")
    a("s_and_b32 s5, s2, 7"); a("s_mul_i32 s5, s5, 9"); a("s_add_u32 s4, s4, s5"); a("s_lshl_b32 s4, s4, 10"); a("s_add_u32 s4, s4, %d" % WS_H)
    a("buffer_store_dwordx4 v[4:7], v%d, %s, s4 offen sc1" % (vLin, sWS))
    a("L_nohcl:")
    slots("read", 4, vLin, 8)
    prgaddr("s74", "s72")
    a("s_mov_b64 exec, 1"); a("buffer_load_dword v10, v%d, %s, s74 offen" % (vLin, sWS)); a("s_mov_b64 exec, -1")
    a("s_waitcnt vmcnt(0)")
    slots("near", 4, vLin, 8)
    a("v_mov_b32 v11, %d" % (4 * (R - 4))); a("s_mov_b64 exec, 1"); a("buffer_store_dword v11, v%d, %s, s72 offen" % (vLin, sWS))
    a("s_mov_b64 exec, -1")
    a("s_getreg_b32 s5, hwreg(HW_REG_XCC_ID, 0, 3)"); a("s_or_b32 s5, s5, 8"); a("s_and_b32 s4, s2, 7"); a("s_lshl_b32 s4, s4, 2"); a("s_lshl_b32 s5, s5, s4")
    a("s_bfe_u32 s4, s2, 0x30003"); a("s_lshl_b32 s4, s4, 2"); a("s_and_b32 s10, s2, 192"); a("s_add_u32 s4, s4, s10")
    a("s_waitcnt vmcnt(0)")
    a("s_atomic_or s5, s[36:37], s4"); a("s_waitcnt lgkmcnt(0)")
    T(3)
    a("L_h67:")
    a("s_cmp_eq_u32 s3, 7"); a("s_cselect_b32 s4, 0, s8"); a("s_cmp_ge_u32 s4, 28"); a("s_cbranch_scc1 L_hdone")
    a("s_cmp_lt_u32 s2, 208"); a("s_cbranch_scc1 L_nofb2"); a("s_barrier"); a("L_nofb2:")
    a("s_barrier")
    a("v_mov_b32 v9, 0"); a("ds_read_b32 v4, v9 offset:%d" % L_F); a("s_waitcnt lgkmcnt(0)"); a("v_readfirstlane_b32 s100, v4")
    a("s_cmp_lg_u32 s3, 7"); a("s_cbranch_scc1 L_l2")
    a("s_cmp_eq_u32 s100, 0"); a("s_cbranch_scc1 L_ctl_done")
    prgaddr("s74", "s72")
    a("v_and_b32 v8, 31, v0"); a("v_lshlrev_b32 v8, 2, v8")
    a("s_and_b32 s4, s2, 7"); a("s_cselect_b32 s4, s2, 0"); a("s_cmp_ge_u32 s4, 224"); a("s_cselect_b32 s75, %d, 0" % (32 * lead)); a("s_add_u32 s75, s75, %d" % int(32 * bias))
    if leadd: a("s_cmp_ge_u32 s8, 16"); a("s_cselect_b32 s4, 1, -1"); a("s_mul_i32 s4, s4, %d" % int(16 * leadd)); a("s_and_b32 s5, s2, 7"); a("s_cselect_b32 s4, s4, 0"); a("s_add_u32 s75, s75, s4")
    if par:
        note("even dies see slightly longer memory latency than odd ones")
        a("s_getreg_b32 s4, hwreg(HW_REG_XCC_ID, 0, 1)"); a("s_mul_i32 s4, s4, %d" % int(-64 * par)); a("s_add_u32 s4, s4, %d" % int(32 * par)); a("s_add_u32 s75, s75, s4")
    a("s_mov_b32 s11, %d" % SPIN)
    a("L_ctl:")
    a("ds_read_b128 v[12:15], v9 offset:%d" % L_G); a("s_waitcnt lgkmcnt(0)")
    a("v_add3_u32 v12, v12, v13, v14"); a("v_add_u32 v12, v12, v15"); a("s_mov_b64 exec, 1")
    a("buffer_store_dword v12, v9, %s, s72 offen" % sWS); a("s_mov_b64 exec, -1")
    a("v_readfirstlane_b32 s14, v12"); a("s_cmp_ge_u32 s14, %d" % (4 * fbend)); a("s_cbranch_scc1 L_ctl_end")
    a("buffer_load_dword v16, v8, %s, s74 offen sc1" % sWS); a("s_waitcnt vmcnt(0)")
    allreduce(a, "v_add_u32", 16, 17, [8, 4, 2, 1, 16])
    a("v_lshrrev_b32 v16, 2, v16"); a("v_lshlrev_b32 v12, 3, v12"); a("v_sub_u32 v16, v16, v12"); a("v_add_u32 v16, s75, v16")
    a("s_mov_b64 exec, 1"); a("ds_write_b32 v9, v16 offset:%d" % L_C); a("s_mov_b64 exec, -1")
    a("s_sub_u32 s11, s11, 1"); a("s_cmp_lg_u32 s11, 0"); a("s_cbranch_scc1 L_ctl")
    a("L_ctl_end:")
    a("v_mov_b32 v13, %d" % (4 * fin)); a("s_mov_b64 exec, 1"); a("buffer_store_dword v13, v9, %s, s72 offen" % sWS); a("s_mov_b64 exec, -1")
    a("L_ctl_done:")
    a("s_cmp_ge_u32 s8, 16"); a("s_cbranch_scc1 L_hdone")

    a("L_l2:")
    a("s_sub_u32 s101, s3, 4")
    a("s_mul_i32 s73, s9, %d" % (8 * RS)); a("s_lshl_b32 s5, s8, %d" % SH); a("s_add_u32 s73, s73, s5"); a("s_add_u32 s73, s73, %d" % WS_P)
    a("s_lshl_b32 s4, s101, 11"); a("v_add_u32 v5, s4, v%d" % vLin)
    a("s_cmp_ge_u32 s8, 16"); a("s_cbranch_scc1 L_down")
    def publish(n, vE):
        for w in range(n): a("ds_read_b128 %s, v6 offset:%d" % (vr(vE[w]), L_LP + 2048 * w))
        a("s_waitcnt lgkmcnt(%d)" % (n - 2))
        for i in (0, 2): a("v_pk_add_f32 %s, %s, %s" % (vr(vE[0] + i, 2), vr(vE[0] + i, 2), vr(vE[1] + i, 2)))
        a("s_waitcnt lgkmcnt(0)")
        if n == 4:
            for i in (0, 2): a("v_pk_add_f32 %s, %s, %s" % (vr(vE[2] + i, 2), vr(vE[2] + i, 2), vr(vE[3] + i, 2)))
        for i in (0, 2): a("v_pk_add_f32 %s, %s, %s" % (vr(vE[0] + i, 2), vr(vE[0] + i, 2), vr(vE[2] + i, 2)))
        if pb:
            for i in range(2): a("v_cvt_pk_bf16_f32 v%d, v%d, v%d" % (vE[0] + i, vE[0] + 2 * i, vE[0] + 2 * i + 1))
        for i in range(NP): a("v_min_u32 v%d, -2, v%d" % (vE[0] + i, vE[0] + i))
        store2("buffer_store_dwordx%d %s, v7, %s, s73 offen" % (NP, vr(vE[0], NP), sWS))
    vA, vE, vW, vP, A4, Y4, B4, vX = [16, 20], [24, 28, 32, 36], 40, 72, 104, 108, 112, 116
    srd(a, 60, 24, 4718592); srd(a, 48, 16, 9216); srd(a, 68, 34, 9216)
    a("v_lshrrev_b32 v3, 4, v0"); a("v_and_b32 v4, 15, v0"); a("v_lshlrev_b32 v9, %d, v4" % (6 if opair else 9)); a("v_lshl_or_b32 v9, v3, 4, v9")
    a("v_bfe_u32 v8, v0, 3, 1"); a("v_and_b32 v4, 7, v0")
    a("v_mul_u32_u24 v2, %d, v3" % (8 * 1152)); a("v_mul_u32_u24 v6, %d, v8" % (32 * 1152)); a("v_add_u32 v2, v2, v6"); a("v_lshl_add_u32 v2, v4, 4, v2")
    a("v_mul_u32_u24 v7, %d, v3" % (2 * RS)); a("v_lshl_add_u32 v7, v4, %d, v7" % (SH - 3)); a("v_lshl_add_u32 v7, v8, %d, v7" % (SH - 4))
    a("s_lshl_b32 s72, s8, 2"); a("s_add_u32 s72, s72, s101"); a("s_mul_i32 s72, s72, %d" % (64 * 1152)); a("s_lshl_b32 s4, s9, 7"); a("s_add_u32 s72, s72, s4")
    a("s_lshl_b32 s14, s8, 13"); a("s_lshl_b32 s5, s101, %d" % (11 if opair else 7)); a("s_add_u32 s14, s14, s5"); a("s_add_u32 s14, s14, %d" % WS_O)
    a("s_and_b32 s15, s101, 1"); a("s_mul_i32 s4, s15, %d" % RS); a("s_add_u32 s73, s73, s4"); a("s_lshl_b32 s4, s15, 10"); a("v_add_u32 v6, s4, v%d" % vLin)
    a("s_lshr_b32 s4, s8, 1"); a("s_and_b32 s5, s8, 1"); a("s_lshl_b32 s5, s5, 1"); a("s_add_u32 s5, s5, s15")
    a("s_lshl_b32 s74, s9, 3"); a("s_add_u32 s74, s74, s4"); a("s_mul_i32 s74, s74, %d" % RS); a("s_lshl_b32 s15, s5, %d" % (SH - 2)); a("s_add_u32 s74, s74, s15"); a("s_add_u32 s74, s74, %d" % WS_P)
    a("s_mul_i32 s75, s4, 1152"); a("s_lshl_b32 s15, s9, 7"); a("s_add_u32 s75, s75, s15"); a("s_lshl_b32 s15, s5, 5"); a("s_add_u32 s75, s75, s15")
    a("s_add_u32 s15, s74, %d" % (16 << SH)); a("s_add_u32 s10, s72, %d" % (4 * 1152))
    a("v_and_b32 v4, 3, v0"); a("v_lshlrev_b32 v11, 3, v4"); a("v_lshl_or_b32 v11, v3, 1, v11")
    a("v_lshrrev_b32 v3, 2, v0"); a("v_lshlrev_b32 v3, %d, v3" % SH); a("v_lshl_or_b32 v10, v4, %d, v3" % (SH - 4))
    a("buffer_load_ushort v%d, v11, %s, s75 offen" % (vX, sX))
    for i in range(4): a("v_mov_b32 v%d, 0" % (Y4 + i))
    ldO = ["buffer_load_dwordx4 %s, v9, %s, s14 offen offset:%d sc1" % (vr(vA[kb]), sWS, (1024 if opair else 64) * kb) for kb in range(2)]
    ldA, ldB = ("buffer_load_dwordx%d %s, v10, %s, s74 offen sc1" % (NP, vr(r, NP), sWS) for r in (A4, B4))
    ldY = "buffer_load_dwordx%d %s, v10, %s, s15 offen sc1" % (NP, vr(Y4, NP), sWS)
    vm = VM(a); w2 = []
    PR = (list(range(40, 48)) + list(range(56, 60)) + list(range(64, 68)))[:pm]
    def probes():
        for k, r in enumerate(PR): a("s_load_dword s%d, s[22:23], %d glc" % (r, 64 * (k * 16 // pm + (k & 1 if pm < 16 else 0)) + 1084 if opair else 512 * (k * 16 // pm) + 124))
    def s2(pr=0):
        if pr == 1: probes()
        a("s_barrier")
        if pr == 2: probes()
        if split: a("s_barrier")
    if probe: a("s_add_u32 s22, s38, s14"); a("s_addc_u32 s23, s39, 0")
    a("s_barrier")
    for j in range(9):
        if j == wsplit: s2(probe)
        if j < 8: w2.append(vm.issue("buffer_load_dwordx4 %s, v2, %s, %s offen offset:%d %s" % (vr(vW + 4 * j), sW2, "s72" if j < 4 else "s10", 1152 * (j % 4), w2f)))
    if oat < 0:
        note("this barrier opens once the streaming waves have ended, i.e. their output stores are acknowledged")
        a("s_barrier")
        for t_ in ldO: vm.issue(t_)
    def pairs(qs, vm, oat):
      for q in qs:
        js = (2 * q, 2 * q + 1)
        for j in js:
            vm.wait(w2[j])
            if j + 1 == oat:
                for t_ in ldO: vm.issue(t_)
        for j in js:
            for r in range(2): a("v_mov_b32 v%d, v%d" % (120 + 2 * j + r, vW + 4 * j + r))
        for j in js:
            for r in range(2): a("v_mov_b32_dpp v%d, v%d row_ror:8 row_mask:0xf bank_mask:0xc" % (vW + 4 * j + r, vW + 4 * j + 2 + r))
        for j in js:
            for r in range(2): a("v_mov_b32_dpp v%d, v%d row_ror:8 row_mask:0xf bank_mask:0x3" % (vW + 4 * j + 2 + r, 120 + 2 * j + r))
        for kb in range(2):
            for i in range(4):
                a("v_perm_b32 v%d, v%d, v%d, s%d" % (vP + 16 * kb + 4 * i + q, vW + 4 * (2 * q + 1) + 2 * kb + i // 2, vW + 4 * (2 * q) + 2 * kb + i // 2, 12 + i % 2))
    if probe:
        note("producers seen complete through uncached probes are gathered at once, otherwise after the next weights land")
        if probe == 3: probes()
        pairs([0], vm, 0)
        a("s_waitcnt lgkmcnt(0)")
        for r in PR[1:]: a("s_max_u32 s%d, s%d, s%d" % (PR[0], PR[0], r))
        a("s_cmp_eq_u32 s%d, -1" % PR[0]); a("s_cbranch_scc1 L_olate")
        v1 = vm.copy()
        for t_ in ldO: v1.issue(t_)
        pairs([1, 2, 3], v1, 0)
        a("s_branch L_ojoin")
        a("L_olate:")
        pairs([1, 2, 3], vm, oat)
    else: pairs(range(4), vm, oat)
    if oat > 8:
        for t_ in ldO: a(t_)
    if probe: a("L_ojoin:")
    a("v_lshlrev_b32 v%d, 16, v%d" % (vX, vX))
    T(7)
    a("s_waitcnt vmcnt(0)")
    mpoll("L_opoll", ldO, list(range(16, 24)))
    T(8)
    if t2:
        def rows(i):
            for x in range(2): a("v_add_f32 v%d, v%d, v%d" % (vW + 4 * x + i, vE[i] + 2 * x, vE[i] + 2 * x + 1))
        for i in range(4):
            for kb in range(2): a(MF % (vr(vE[i]), vr(vA[kb]), vr(vP + 16 * kb + 4 * i), "0" if kb == 0 else vr(vE[i])))
        a("s_cmp_lt_u32 s101, 2"); a("s_cbranch_scc1 L_nopre")
        a("s_mov_b32 exec_hi, 0xffff"); a(ldY); a("s_mov_b32 exec_hi, -1")
        a("L_nopre:")
        for i in range(4): rows(i)
        for x in range(2): a("ds_write_b128 v5, %s offset:%d" % (vr(vW + 4 * x), L_LP + 1024 * x))
    else:
        for kb in range(2):
            for i in range(4): a(MF % (vr(vE[i]), vr(vA[kb]), vr(vP + 16 * kb + 4 * i), "0" if kb == 0 else vr(vE[i])))
        a("s_cmp_lt_u32 s101, 2"); a("s_cbranch_scc1 L_nopre")
        a("s_mov_b32 exec_hi, 0xffff"); a(ldY); a("s_mov_b32 exec_hi, -1")
        a("L_nopre:")
        for x in range(2):
            for i in range(4): a("v_add_f32 v%d, v%d, v%d" % (vW + 4 * x + i, vE[i] + 2 * x, vE[i] + 2 * x + 1))
            a("ds_write_b128 v5, %s offset:%d" % (vr(vW + 4 * x), L_LP + 1024 * x))
    a("s_waitcnt lgkmcnt(0)"); a("s_barrier")
    a("s_cmp_ge_u32 s101, 2"); a("s_cbranch_scc1 L_final")
    publish(4, vE)
    a("s_branch L_hdone")
    a("L_final:")
    def fold(r):
        if pb:
            a("v_lshlrev_b32 v%d, 16, v%d" % (r + 2, r + 1)); a("v_and_b32 v%d, 0xffff0000, v%d" % (r + 3, r + 1))
            a("v_and_b32 v%d, 0xffff0000, v%d" % (r + 1, r)); a("v_lshlrev_b32 v%d, 16, v%d" % (r, r))
        a("v_permlane32_swap_b32 v%d, v%d" % (r, r + 2)); a("v_permlane32_swap_b32 v%d, v%d" % (r + 1, r + 3))
        a("v_pk_add_f32 %s, %s, %s" % (vr(r, 2), vr(r, 2), vr(r + 2, 2)))
        a("v_permlane16_swap_b32 v%d, v%d" % (r, r + 1)); a("v_add_f32 v%d, v%d, v%d" % (r, r, r + 1))
        for k in (8, 4): a("v_add_f32_dpp v%d, v%d, v%d row_ror:%d %s" % (r, r, r, k, DPP))
        round_bf16(a, r)
    def chk(r, tgt):
        a("s_waitcnt vmcnt(1)"); umax(list(range(r, r + NP))); a("v_cmp_eq_u32 vcc, -1, v3"); a("s_cmp_eq_u64 vcc, 0"); a("s_cbranch_scc1 " + tgt)
    a("s_waitcnt vmcnt(0)")
    mpoll("L_ypoll", [ldY], list(range(Y4, Y4 + NP)))
    a(ldA); fold(Y4); a("s_mov_b32 s11, %d" % SPIN)
    a("L_pp:"); a(ldB); chk(A4, "L_ppa"); a(ldA); chk(B4, "L_ppb")
    a("s_sub_u32 s11, s11, 1"); a("s_cmp_lg_u32 s11, 0"); a("s_cbranch_scc1 L_pp")
    a("L_ppb:"); fold(B4); a("v_add_f32 v4, v%d, v%d" % (vX, B4)); a("s_branch L_ppe")
    a("L_ppa:"); fold(A4); a("v_add_f32 v4, v%d, v%d" % (vX, A4))
    a("L_ppe:"); round_bf16(a, 4); a("v_add_f32 v4, v4, v%d" % Y4); a("v_cvt_pk_bf16_f32 v4, v4, v4")
    a("s_mov_b32 exec_lo, 0x000f000f"); a("s_mov_b32 exec_hi, 0x000f000f")
    a("buffer_store_short v4, v11, %s, s75 offen" % sOUT)
    a("s_branch L_hdone")

    a("L_down:")
    vm = VM(a)
    vH, vAc, vTp, vW = 16, 24, 56, 64
    srd(a, 60, 32, 5308416)
    a("s_cmp_lt_u32 s2, 224"); a("s_cselect_b32 s100, s100, 0")
    a("v_lshrrev_b32 v3, 3, v0"); a("v_mul_u32_u24 v2, %d, v3" % (8 * 1152)); a("v_and_b32 v4, 7, v0"); a("v_lshl_add_u32 v2, v4, 4, v2")
    a("s_sub_u32 s4, s8, 16"); a("s_mul_i32 s4, s4, 3"); a("s_add_u32 s4, s4, s101")
    a("s_mul_i32 s72, s4, %d" % (128 * 1152)); a("s_lshl_b32 s5, s9, 7"); a("s_add_u32 s72, s72, s5")
    a("s_lshl_b32 s14, s4, 11"); a("s_add_u32 s14, s14, %d" % WS_H)
    actaddr(9, 4, 128)
    a("v_lshrrev_b32 v3, 4, v0"); a("v_and_b32 v4, 15, v0"); a("v_mul_u32_u24 v7, %d, v3" % RS); a("v_lshl_add_u32 v7, v4, %d, v7" % (SH - 4))
    a("v_lshlrev_b32 v6, 7, v3"); a("v_bfe_u32 v3, v0, 1, 3"); a("v_lshl_or_b32 v6, v3, 4, v6"); a("v_and_b32 v3, 1, v0"); a("v_lshl_or_b32 v6, v3, 10, v6")
    a("s_lshl_b32 s4, s101, 9"); a("v_add_u32 v6, s4, v6"); a("s_mul_i32 s4, s101, %d" % (4 * RS)); a("s_add_u32 s73, s73, s4")
    a("v_mov_b32 v11, 0")
    def body(): a("ds_read_b32 v8, v11 offset:%d" % L_G); a("s_waitcnt lgkmcnt(0)"); a("v_cmp_le_u32 vcc, %d, v8" % hat)
    spin(body, "L_hwait")
    ldH = ["buffer_load_dwordx4 %s, v9, %s, s14 offen offset:%d sc1" % (vr(vH + 4 * b_), sWS, 1024 * b_) for b_ in range(2)]
    for t_ in ldH: a(t_)
    a("s_waitcnt vmcnt(0)")
    mpoll("L_hpoll", ldH, list(range(vH, vH + 8)))
    a("s_barrier")
    w2 = []
    for k in range(17):
        b_, j = divmod(k, 8)
        if k == dsplit: s2()
        if k == 16: break
        if j % 4 == 0: a("s_add_u32 s5, s72, %d" % ((64 * b_ + j) * 1152))
        w2.append(vm.issue("buffer_load_dwordx4 %s, v2, %s, s5 offen offset:%d %s" % (vr(vW + 4 * k), sW2, 1152 * (j % 4), w2f)))
    for b_ in range(2):
        base, tp = vW + 32 * b_, 128 + 32 * b_
        for q in range(4):
            vm.wait(w2[8 * b_ + 2 * q + 1])
            for i in range(8):
                a("v_perm_b32 v%d, v%d, v%d, s%d" % (tp + 4 * i + q, base + 4 * (2 * q + 1) + i // 2, base + 4 * (2 * q) + i // 2, 12 + i % 2))
                if q == 3 and i >= 2: a(MF % (vr(vAc + 4 * (i - 2)), vr(vH + 4 * b_), vr(tp + 4 * (i - 2)), "0" if b_ == 0 else vr(vAc + 4 * (i - 2))))
        for i in (6, 7): a(MF % (vr(vAc + 4 * i), vr(vH + 4 * b_), vr(tp + 4 * i), "0" if b_ == 0 else vr(vAc + 4 * i)))
    T(8)
    block_fold(vTp, vAc)
    for x in range(2): a("ds_write_b128 v5, %s offset:%d" % (vr(vTp + 4 * x), L_LP + 1024 * x))
    a("s_waitcnt lgkmcnt(0)"); a("s_barrier")
    a("s_cmp_ge_u32 s101, 2"); a("s_cbranch_scc1 L_hdone")
    publish(3, [24, 28, 32])
    a("L_hdone:")
    T(9); T.flush()
    a("L_end:")
    a("s_endpgm")
    a("L_codeend:")
    a.pad()
    head = open("parallel_sum__sliding_block_cached__geglu_ffn__decode.s.ref").read().split("; Override")[0]
    head += "; @launch grid=(256,1,1) block=(%d,1,1) lds=%d\n" % (64 * NW, LDS_BYTES) + HEADER
    head += '.amdgcn_target "amdgcn-amd-amdhsa--gfx950"\n.text\n' + ('.fill %d, 4, 0xbf810000\n' % (pad // 4) if pad else '') + '.globl %s\n.p2align 8\n.type %s,@function\n' % (KN, KN)
    tail = '.section .rodata,"a"\n.p2align 6\n.amdhsa_kernel %s\n  .amdhsa_next_free_vgpr 256\n  .amdhsa_next_free_sgpr 102\n  .amdhsa_accum_offset 256\n' % KN
    tail += "  .amdhsa_group_segment_fixed_size 0\n  .amdhsa_kernarg_size 96\n  .amdhsa_user_sgpr_count 2\n  .amdhsa_user_sgpr_kernarg_segment_ptr 1\n  .amdhsa_system_sgpr_workgroup_id_x 1\n.end_amdhsa_kernel\n"
    return head + a.text() + tail

RAW = None
def report(t, verbose):
    import gen10
    gen10.report(t, verbose)
    import numpy as np
    ids = np.arange(256); X, J = ids & 7, ids >> 3
    WO = (ids < 128) | (X == 0); unit = np.where(J < 16, J, J - 16); hkv = 2 * X + (J & 1)
    rows = []
    for u in t:
        osent = u[:, :4, 5].max(axis=1); vd = u[:, :4, 6].max(axis=1); gl = np.array([osent[hkv == g].max() for g in range(16)])
        os_ = np.where(WO[:, None], u[:, 4:, 8], -1); c, w = np.unravel_index(os_.argmax(), os_.shape)
        rows.append((os_[c, w] - u[c, 4 + w, 7], os_[c, w] - gl[unit[c]], vd[c] - vd.max(), gl[unit[c]] - osent.max(), u[c, 4 + w, 7] - vd[c]))
    r = np.array(rows)
    print("   crit: seen-perms %.2f seen-grouplast %.2f ownV-Vmax %.2f grouplast-last %.2f perms-ownV %.2f" % tuple(r.mean(axis=0)))
    p1 = r[:, 0] < 0.4
    print("   crit: share near own weights %.2f;" % p1.mean(), "A:", r[p1].mean(axis=0), "B:", r[~p1].mean(axis=0))

if __name__ == "__main__":
    kw = eval("dict(%s)" % (sys.argv[2] if len(sys.argv) > 2 else ""))
    open(sys.argv[1], "w").write(gen(**kw))
```

```python
import sys, struct
from asmlib import Asm, VM
KN = "parallel_sum__sliding_block_cached__geglu_ffn__decode_kernel"

def f32(x): return "0x%08x" % struct.unpack("<I", struct.pack("<f", x))[0]
def vr(b, n=4): return "v[%d:%d]" % (b, b + n - 1) if n > 1 else "v%d" % b
DPP = "row_mask:0xf bank_mask:0xf"
MF = "v_mfma_f32_16x16x32_bf16 %s, %s, %s, %s"

WS_GO = 0x68000
WS_L1, WS_STAT, WS_H, WS_PRG, WS_P, WS_O, WS_TS = 0, 0x40000, 0x48000, 0x60000, 0x80000, 0x100000, 0x200000
L_C4 = 16
L_R = 8
L_F, L_C, L_Q, L_OP, L_LP, L_G = 0, 4, 1024, 2048, 8192, 16384
LDS_BYTES = 17408
SPIN = 400000
L2E = 1.4426950408889634
NW = 8
TSN = [36, 41, 46, 51, 60, 70, 80, 90, 100, 110, 119]
sK, sV, sX, sWS, sW1, sW2, sDBG, sOUT = ("s[%d:%d]" % (b, b + 3) for b in (40, 44, 48, 52, 56, 60, 64, 68))

HEADER = """\
; One workgroup per CU (256 x 512 threads). id = 8*j + x; x groups workgroups that normally share a die.
"""

def srd(a, base, ptr, nbytes):
    a("s_mov_b32 s%d, s%d" % (base, ptr)); a("s_mov_b32 s%d, s%d" % (base + 1, ptr + 1))
    a("s_mov_b32 s%d, %s" % (base + 2, nbytes)); a("s_mov_b32 s%d, 0x20000" % (base + 3))

class Stamps:
    def __init__(self, a, on): self.a, self.on = a, on
    def __call__(self, idx):
        if self.on: self.a("s_memrealtime s[%d:%d]" % (76 + 2 * idx, 77 + 2 * idx))
    def flush(self, n=12):
        if not self.on: return
        a = self.a
        a("s_waitcnt lgkmcnt(0)"); srd(a, 52, 38, "0x40000000")
        a("s_mul_i32 s4, s2, %d" % NW); a("s_add_u32 s4, s4, s3"); a("s_lshl_b32 s4, s4, 6"); a("s_add_u32 s4, s4, %d" % WS_TS)
        a("s_mov_b64 exec, 1"); a("v_mov_b32 v0, 0")
        for q in range(n // 4):
            for i in range(4): a("v_mov_b32 v%d, s%d" % (4 + 4 * q + i, 76 + 2 * (4 * q + i)))
            a("buffer_store_dwordx4 %s, v0, %s, s4 offen offset:%d" % (vr(4 + 4 * q), sWS, 16 * q))

def allreduce(a, op, v, t, steps):
    for s in steps:
        if s == 0: a("%s_dpp v%d, v%d, v%d quad_perm:[1,0,3,2] %s" % (op, v, v, v, DPP))
        elif s < 16: a("%s_dpp v%d, v%d, v%d row_ror:%d %s" % (op, v, v, v, s, DPP))
        else:
            a("v_mov_b32 v%d, v%d" % (t, v)); a("v_permlane%d_swap_b32 v%d, v%d" % (s, v, t)); a("%s v%d, v%d, v%d" % (op, v, v, t))

def round_bf16(a, v):
    a("v_cvt_pk_bf16_f32 v%d, v%d, v%d" % (v, v, v)); a("v_and_b32 v%d, 0xffff0000, v%d" % (v, v))

def gen(ts=0, loc=1, d=5, d0=3, nd0=27, nd1=32, dend=6, nramp=120, step=2, R=50, stat_at=100, nfree=32, da=10,
        flagblk=7, lnstep=28, pf=4, lv=(4, 5, 6, 7), th=(-1.5, 1.5, 4), bias=3.25, lead=4, leadd=0, fbend=114, fin=126, hat=100, pfn=64, pb=1, amap=(9, 11, 13, 12, 14, 15, 17, 18, 16, 8, 10), svk=None, wsplit=3, dsplit=9, oat=4, pad=0, t2=1, probe=0, pm=16, opair=1, prio=0, pst=1, w1f='nt', w2f='nt', par=0.4, x1=0, vt=0, s1x=0, s1p=0, vrev=0, ilv=0, nost=0, hsv=2, hlin=1, dah=0, prim=0xff, pw=0, st=0, nb1=1, C0=36, ec=0, bias1=1.6, nb=30):
    assert sorted(amap) == list(range(8, 19))
    assert R % 2 == 0 and C0 % 2 == 0
    if not nb1: C0 = R
    split = wsplit < 8 or dsplit < 16
    RS = 3584 if pb else 7168; SH = 7 if pb else 8; NP = 2 if pb else 4
    a = Asm(); T = Stamps(a, ts)
    uid = [0]
    def lab(p): uid[0] += 1; return "L_%s%d" % (p, uid[0])
    def note(t): a("; " + t)

    def spin(body, label):
        a("s_mov_b32 s11, %d" % SPIN)
        a(label + ":"); body()
        a("s_cmp_eq_u64 vcc, exec"); a("s_cbranch_scc1 %s_ok" % label)
        a("s_sub_u32 s11, s11, 1"); a("s_cmp_lg_u32 s11, 0"); a("s_cbranch_scc1 %s" % label)
        a(label + "_ok:")

    def umax(regs):
        if len(regs) == 2: a("v_max_u32 v3, v%d, v%d" % tuple(regs)); return
        a("v_max3_u32 v3, v%d, v%d, v%d" % tuple(regs[:3])); rest = regs[3:]
        while len(rest) >= 2: a("v_max3_u32 v3, v3, v%d, v%d" % tuple(rest[:2])); rest = rest[2:]
        if rest: a("v_max_u32 v3, v3, v%d" % rest[0])

    def mpoll(label, loads, regs):
        def check(): umax(regs); a("v_cmp_eq_u32 vcc, -1, v3"); a("s_and_b64 exec, exec, vcc"); a("s_cbranch_scc0 %s_ok" % label)
        a("s_mov_b32 s11, %d" % SPIN)
        check()
        a(label + ":")
        for t in loads: a(t)
        a("s_waitcnt vmcnt(0)"); check()
        a("s_sub_u32 s11, s11, 1"); a("s_cmp_lg_u32 s11, 0"); a("s_cbranch_scc1 %s" % label)
        a(label + "_ok:")
        a("s_mov_b64 exec, -1")

    def store2(text):
        f, e = lab("far"), lab("sent")
        a("s_cmp_eq_u32 s100, 0"); a("s_cbranch_scc1 " + f); a(text); a("s_branch " + e); a(f + ":"); a(text + " sc1"); a(e + ":")

    def roles():
        note("s8 = partial slot (0..15 wo head pair, 16..27 w_down slice, >= 28 none), s9 = output column slice")
        e = lab("role")
        a("s_and_b32 s9, s2, 7"); a("s_lshr_b32 s8, s2, 3")
        a("s_cmp_lt_u32 s8, 16"); a("s_cbranch_scc1 " + e)
        a("s_sub_u32 s8, s8, 16"); a("s_cmp_eq_u32 s9, 0"); a("s_cselect_b32 s9, 8, s9"); a("s_cbranch_scc1 " + e)
        a("s_add_u32 s8, s8, 16"); a("s_cmp_lt_u32 s8, 28"); a("s_cbranch_scc1 " + e)
        a("s_mul_i32 s8, s8, 7"); a("s_add_u32 s8, s8, s9"); a("s_sub_u32 s8, s8, %d" % (28 * 7 + 1 - 16))
        a("s_mov_b32 s9, 0"); a("s_cmp_lt_u32 s8, 28"); a("s_cbranch_scc1 " + e)
        a("s_mov_b32 s9, 8"); a("s_sub_u32 s8, s8, 12")
        a(e + ":")

    def oslot(dst):
        a("s_and_b32 s4, s6, 15"); a("s_lshl_b32 s4, s4, 13"); a("s_lshr_b32 s5, s6, 4"); a("s_lshl_b32 s5, s5, 1"); a("s_add_u32 s5, s5, s7")
        a("s_lshl_b32 s5, s5, %d" % (6 if opair else 9)); a("s_add_u32 s4, s4, s5"); a("s_add_u32 %s, s4, %d" % (dst, WS_O))

    def l1slot(dst):
        a("s_and_b32 %s, s2, 7" % dst); a("s_lshl_b32 %s, %s, 5" % (dst, dst)); a("s_lshr_b32 s4, s2, 3"); a("s_add_u32 %s, %s, s4" % (dst, dst)); a("s_lshl_b32 %s, %s, 10" % (dst, dst))

    def slots(kind, e, lin, t):
        op = ("buffer_load_dword v%d" % (t + 2) if kind == "read" else "buffer_store_dwordx4 %s" % vr(e)) + ", v%d, %s, %s offen"
        fl = " sc1" if kind == "far" else ""
        k0, k = lab("nol"), lab("nop")
        l1slot("s5")
        a("s_lshr_b32 s4, s2, 3"); a("s_lshl_b32 s4, 1, s4"); a("s_and_b32 s4, s4, 0x%x" % (0xff | (0x1ff << 17))); a("s_cbranch_scc0 " + k0)
        a(op % (lin, sWS, "s5") + fl); a(k0 + ":")
        a("s_lshl_b32 s4, s6, 1"); a("s_add_u32 s4, s4, s7"); a("s_lshl_b32 s4, s4, 7"); a("s_add_u32 s4, s4, %d" % WS_STAT)
        a("s_mov_b64 exec, 0xff"); a(op % (lin, sWS, "s4") + fl); a("s_mov_b64 exec, -1")
        a("s_cmp_ge_u32 s8, 28"); a("s_cbranch_scc1 " + k)
        a("v_lshrrev_b32 v%d, %d, v0" % (t, 3 if pb else 4)); a("v_mul_u32_u24 v%d, %d, v%d" % (t, RS, t)); a("v_and_b32 v%d, %d, v0" % (t + 1, 7 if pb else 15)); a("v_lshl_add_u32 v%d, v%d, 4, v%d" % (t, t + 1, t))
        a("s_mul_i32 s4, s9, %d" % (8 * RS)); a("s_lshl_b32 s5, s8, %d" % SH); a("s_add_u32 s4, s4, s5"); a("s_add_u32 s4, s4, %d" % WS_P); a("s_add_u32 s5, s4, %d" % (4 * RS))
        st = [op % (t, sWS, s_) for s_ in (("s4",) if pb else ("s4", "s5"))]
        if kind != "far":
            f = lab("rem")
            a("s_cmp_lt_u32 s2, 224"); a("s_cselect_b32 s10, 0, s8"); a("s_cmp_ge_u32 s10, 16"); a("s_cbranch_scc1 " + (k if kind == "read" else f))
            for x_ in st: a(x_)
            if kind == "near": a("s_branch " + k); a(f + ":")
        if kind != "read":
            for x_ in st: a(x_ + " sc1")
        a(k + ":")

    def block_mm(base, tp, acc, act, first, hook=None):
        for i in range(8):
            t = tp + 4 * (i % 2)
            for q in range(4): a("v_perm_b32 v%d, v%d, v%d, s%d" % (t + q, base + 4 * (2 * q + 1) + i // 2, base + 4 * (2 * q) + i // 2, 12 + i % 2))
            if i > 0: a(MF % (vr(acc + 4 * (i - 1)), vr(act), vr(tp + 4 * ((i - 1) % 2)), "0" if first else vr(acc + 4 * (i - 1))))
            if hook and i % 4 == 0: hook()
        a(MF % (vr(acc + 28), vr(act), vr(tp + 4), "0" if first else vr(acc + 28)))
    def block_fold(dst, acc):
        for i in range(8): a("v_add_f32_dpp v%d, v%d, v%d row_ror:8 row_mask:0xf bank_mask:0x3" % (dst + i, acc + 4 * i + 1, acc + 4 * i))
        for i in range(8): a("v_add_f32_dpp v%d, v%d, v%d row_ror:8 row_mask:0xf bank_mask:0xc" % (dst + i, acc + 4 * i + 2, acc + 4 * i + 3))
    def actaddr(dst, t, rowbytes):
        a("v_bfe_u32 v%d, v0, 1, 3" % dst); a("v_mul_u32_u24 v%d, %d, v%d" % (dst, rowbytes, dst)); a("v_lshrrev_b32 v%d, 4, v0" % t); a("v_lshl_add_u32 v%d, v%d, 5, v%d" % (dst, t, dst))
        a("v_and_b32 v%d, 1, v0" % t); a("v_lshl_add_u32 v%d, v%d, 4, v%d" % (dst, t, dst))
    def prgaddr(line, word):
        a("s_and_b32 %s, s2, 7" % line); a("s_lshl_b32 %s, %s, 8" % (line, line)); a("s_add_u32 %s, %s, %d" % (line, line, WS_PRG))
        a("s_lshr_b32 %s, s2, 3" % word); a("s_lshl_b32 %s, %s, 2" % (word, word)); a("s_add_u32 %s, %s, %s" % (word, word, line))

    a(KN + ":")
    T(0)
    a("s_cmp_ge_u32 s2, 256"); a("s_cbranch_scc1 L_end")
    a("s_load_dwordx16 s[16:31], s[0:1], 0"); a("s_load_dwordx8 s[32:39], s[0:1], 64")
    a("v_lshrrev_b32 v1, 6, v0"); a("v_and_b32 v0, 63, v0"); a("v_readfirstlane_b32 s3, v1")
    a("s_and_b32 s6, s2, 7"); a("s_lshl_b32 s6, s6, 1"); a("s_bfe_u32 s7, s2, 0x10003"); a("s_or_b32 s6, s6, s7")
    a("s_and_b32 s7, s2, 0x70"); a("s_or_b32 s6, s6, s7"); a("s_lshr_b32 s7, s2, 7")
    a("s_cmp_lt_u32 s3, 4"); a("s_cbranch_scc1 L_stream")
    a("s_cmp_lg_u32 s3, 7"); a("s_cbranch_scc1 L_help")
    a("s_getpc_b64 s[4:5]")
    a("L_pc:")
    a("s_bfe_u32 s8, s2, 0x%x" % (((pf.bit_length() - 1) << 16) + 3)); a("s_mul_i32 s8, s8, %d" % pfn)
    a("v_add_u32 v1, s8, v0"); a("v_lshlrev_b32 v1, 7, v1"); a("v_min_u32 v1, L_codeend-L_pc-4, v1")
    a("v_mov_b32 v3, s5"); a("v_add_co_u32 v2, vcc, s4, v1"); a("v_addc_co_u32 v3, vcc, 0, v3, vcc")
    a("global_load_dword v255, v[2:3], off")
    a("s_branch L_help")

    a("L_stream:")
    vm = VM(a)
    vKo, vVo, vM, vL, vF = 1, 2, 5, 6, 7
    vMask, vQ0, vQ1, vAcc = 12, 16, 20, 24
    vD = [28, 32]
    pool = list(range(36, 252, 4))
    assert len(pool) >= R + (4 if nb1 else 2)
    a("v_lshrrev_b32 v3, 4, v0"); a("v_lshlrev_b32 v3, 6, v3")
    a("v_and_b32 v4, 3, v0"); a("v_lshl_or_b32 v3, v4, 4, v3")
    if amap[10] == amap[9] + 1: a("v_bfe_u32 v4, v0, 2, 2"); a("v_lshl_or_b32 v%d, v4, %d, v3" % (vKo, amap[9]))
    else:
        a("v_bfe_u32 v4, v0, 2, 1"); a("v_lshl_or_b32 v3, v4, %d, v3" % amap[9]); a("v_bfe_u32 v4, v0, 3, 1"); a("v_lshl_or_b32 v%d, v4, %d, v3" % (vKo, amap[10]))
    a("s_lshl_b32 s14, s6, 21"); a("s_lshl_b32 s15, s7, %d" % amap[8]); a("s_add_u32 s14, s14, s15"); a("s_add_u32 s14, s14, %d" % (6144 * 256))
    if amap[1] == amap[0] + 1: a("s_lshl_b32 s15, s3, %d" % amap[0]); a("s_add_u32 s14, s14, s15")
    else:
        a("s_and_b32 s15, s3, 1"); a("s_lshl_b32 s15, s15, %d" % amap[0]); a("s_add_u32 s14, s14, s15")
        a("s_lshr_b32 s15, s3, 1"); a("s_lshl_b32 s15, s15, %d" % amap[1]); a("s_add_u32 s14, s14, s15")
    a("s_mov_b32 s42, 0x10000000"); a("s_mov_b32 s43, 0x20000")
    a("s_waitcnt lgkmcnt(0)")
    a("s_mov_b32 s40, s18"); a("s_mov_b32 s41, s19")
    if ts == 3: T.on = 0
    slot, tok, free, issued = {}, {}, pool[:], [0]
    def kidx(n): return n if n < 64 else (n - 64) ^ vrev
    def issue_next():
        n = issued[0]; issued[0] += 1
        r = free.pop(0); slot[n] = r
        a("s_add_u32 s10, s14, %d" % sum(((kidx(n) >> i) & 1) << amap[2 + i] for i in range(6)))
        tok[n] = vm.issue("buffer_load_dwordx4 %s, v%d, %s, s10 offen nt" % (vr(r), vKo if n < 64 else vVo, sK if n < 64 else sV))
        if ts == 3 and n in TSN: T.on = 1; T(1 + TSN.index(n)); T.on = 0
        if n == 127 and svk is None: note("SV: every V load is issued, second-layer weights may follow"); a("s_barrier")
    for _ in range(d0): issue_next()
    if prio: a("s_setprio %d" % prio)
    srd(a, 44, 20, "0x10000000"); srd(a, 52, 38, "0x40000000")
    if vt:
        a("s_mov_b64 exec, 1"); vm.issue("buffer_load_dword v255, v%d, %s, s14 offen nt" % (vKo, sV)); a("s_mov_b64 exec, -1")
    a("v_and_b32 v3, 15, v0"); a("v_lshlrev_b32 v3, 4, v3"); a("v_bfe_u32 v4, v0, 4, 1"); a("v_lshl_or_b32 v3, v4, %d, v3" % amap[9])
    a("v_lshrrev_b32 v4, 5, v0"); a("v_lshl_or_b32 v%d, v4, %d, v3" % (vVo, amap[10]))
    a("v_bfe_u32 v3, v0, 3, 1"); a("v_bfe_u32 v4, v0, 1, 1"); a("v_lshl_or_b32 v3, v3, 1, v4")
    a("v_and_b32 v4, 1, v0"); a("v_lshlrev_b32 v4, 4, v4"); a("v_mov_b32 v5, 0xffff"); a("v_lshlrev_b32 v4, v4, v5")
    for r in range(4):
        a("v_cmp_eq_u32 vcc, %d, v3" % r); a("v_cndmask_b32 v%d, 0, v4, vcc" % (vMask + r))
    oslot("s26"); a("s_lshl_b32 s5, s3, %d" % (11 if opair else 7)); a("s_add_u32 s26, s26, s5")
    a("s_lshl_b32 s4, s3, 2"); a("v_lshlrev_b32 v9, 4, v0"); a("v_add_u32 v8, s4, v9"); a("v_mov_b32 v253, 0"); a("s_mov_b32 s27, 0")
    if pw: a("v_mov_b32 v255, s4")
    def D0(n):
        if n < nd0: return d0
        if n < nd1: return d0 + 1
        if R - s1x <= n < R: return d + (n - (R - s1x) + 1)
        if n < nramp: return d
        return min(dend, d + (n - nramp + 1) // step)
    def D(n): return D0(n) + (lv[-1] - d if n >= C0 else 0)
    def paced():
        n = issued[0]
        if n >= 128: return
        vm.wait(tok[n - D(n)])
        if n >= C0:
            if n % 2 == 1: a("s_waitcnt lgkmcnt(0)"); a("v_readfirstlane_b32 s27, v252")
            used = False
            for l_, t_ in reversed(list(zip(lv[:-1], th))):
                m = n - (D0(n) - d + l_)
                if tok[m] > vm.done:
                    a("s_cmp_ge_i32 s27, %d" % int(32 * t_)); a("s_cbranch_scc1 L_hi%d" % n); a("s_waitcnt vmcnt(%d)" % (vm.n - tok[m])); used = True
            if used: a("L_hi%d:" % n)
        issue_next()
        if nb1 and n == nfree and n < C0: a("v_mov_b32 v254, %d" % n); a("ds_write_b32 v8, v254 offset:%d" % L_G)
        if n >= C0:
            if n % pst == 0: a("v_mov_b32 v254, %d" % n); a("ds_write_b32 v8, v254 offset:%d" % L_G)
            if n % 2 == 0: a("ds_read_b32 v252, v255 offset:%d" % L_C4 if pw else "ds_read_b32 v252, v253 offset:%d" % L_C)
    def ahead(n):
        while issued[0] < 128 and issued[0] - D(issued[0]) < n: paced()
    if nb1: note("E0: the LDS control words are reset"); a("s_barrier")
    while issued[0] < R:
        paced()
        if issued[0] == 24: T(1)
        if issued[0] == nfree and not nb1:
            a("s_cmp_lt_u32 s2, 208"); a("s_cbranch_scc1 L_nofb"); a("s_barrier"); a("L_nofb:")
    T(2)
    if nb1:
        note("q and the die mode are valid once the ready word, read first, is set")
        def rdq(): a("ds_read_b32 v10, v253 offset:%d" % L_R); a("ds_read_b128 %s, v9 offset:%d" % (vr(vQ0), L_Q)); a("ds_read_b32 v4, v253 offset:%d" % L_F)
        rdq(); paced(); paced()
        a("v_cmp_ne_u32 vcc, 0, v10"); a("s_cmp_eq_u64 vcc, exec"); a("s_cbranch_scc1 L_rdy_ok")
        def body(): rdq(); a("s_waitcnt lgkmcnt(0)"); a("v_cmp_ne_u32 vcc, 0, v10")
        spin(body, "L_rdy")
        T(3)
        a("v_and_b32 v3, 8, v0"); a("v_cmp_eq_u32 vcc, 0, v3"); a("v_mov_b32 v%d, 0xff800000" % vM)
        a("s_mov_b32 s15, %s" % f32(128 ** -0.5))
    else:
        note("S1: q and the die mode are in LDS")
        a("s_barrier")
        T(3)
        a("ds_read_b128 %s, v9 offset:%d" % (vr(vQ0), L_Q))
        a("ds_read_b32 v4, v253 offset:%d" % L_F)
        for _ in range(s1p): paced()
        a("v_and_b32 v3, 8, v0"); a("v_cmp_eq_u32 vcc, 0, v3"); a("v_mov_b32 v%d, 0xff800000" % vM)
        a("s_mov_b32 s15, %s" % f32(128 ** -0.5))
        a("s_waitcnt lgkmcnt(0)")
    a("v_readfirstlane_b32 s100, v4")
    if nb1: a("s_and_b32 s100, s100, 1")
    for i in range(4): a("v_cndmask_b32 v%d, v%d, 0, vcc" % (vQ1 + i, vQ0 + i))
    for i in range(4): a("v_cndmask_b32 v%d, 0, v%d, vcc" % (vQ0 + i, vQ0 + i))
    vD += [free.pop(), free.pop()]
    S = []
    def qk(c):
        Dr = vD[c % 4]
        vm.wait(tok[2 * c + 1])
        a(MF % (vr(Dr), vr(slot[2 * c]), vr(vQ0), "0")); a(MF % (vr(Dr), vr(slot[2 * c + 1]), vr(vQ1), vr(Dr)))
        free.extend([slot[2 * c], slot[2 * c + 1]])
    def extract(c, mid=None):
        if c % 4 == 0: S.extend(range(free[-1], free[-1] + 4)); free.pop()
        x, y, DA, DB = S[c], S[c + 1], vD[c % 4], vD[(c + 1) % 4]
        for i in range(4):
            for s_, Dr in ((x, DA), (y, DB)):
                if i == 0: a("v_mov_b32_dpp v%d, v%d quad_perm:[0,0,0,0] %s" % (s_, Dr, DPP))
                else: a("v_add_f32_dpp v%d, v%d, v%d quad_perm:[%d,%d,%d,%d] %s" % (s_, Dr + i, s_, i, i, i, i, DPP))
        if mid: mid()
        for rep in range(2):
            a("v_cvt_pk_bf16_f32 v3, v%d, v%d" % (x, y))
            a("v_lshlrev_b32 v%d, 16, v3" % x); a("v_and_b32 v%d, 0xffff0000, v3" % y)
            if rep == 0: a("v_mul_f32 v%d, s15, v%d" % (x, x)); a("v_mul_f32 v%d, s15, v%d" % (y, y))
        a("v_max3_f32 v%d, v%d, v%d, v%d" % (vM, vM, x, y))
    if ilv:
        for c in range(0, 32, 2):
            ahead(2 * c + 3)
            qk(c); qk(c + 1)
            paced()
            if c >= 2: extract(c - 2, paced)
            else: paced()
    else:
        for c in range(0, 32, 2):
            ahead(2 * c + 3)
            qk(c); qk(c + 1)
            paced(); paced()
            if c >= 2: extract(c - 2)
    extract(30)
    free.extend(vD[2:])
    T(4)
    paced()
    allreduce(a, "v_max_f32", vM, 3, [8, 16, 32])
    a("s_mov_b32 s15, %s" % f32(L2E)); a("v_mul_f32 v%d, s15, v%d" % (vM, vM)); a("v_mov_b32 v%d, 0" % vL); a("v_mov_b32 v4, 0")
    for c in range(0, 32, 4):
        for i in range(4): a("v_fma_f32 v%d, v%d, s15, -v%d" % (S[c + i], S[c + i], vM))
        for i in range(4): a("v_exp_f32 v%d, v%d" % (S[c + i], S[c + i]))
        for i in range(4): a("v_add_f32 v%d, v%d, v%d" % ((vL, 4)[i % 2], (vL, 4)[i % 2], S[c + i]))
        for i in range(4): a("v_cvt_pk_bf16_f32 v%d, v%d, v%d" % (S[c + i], S[c + i], S[c + i]))
        if c % 8 == 4: paced()
    a("v_add_f32 v%d, v%d, v4" % (vL, vL))
    allreduce(a, "v_add_f32", vL, 3, [8, 16, 32])
    a("v_min_u32 v10, -2, v%d" % vM); a("v_min_u32 v11, -2, v%d" % vL)
    a("v_lshlrev_b32 v9, 1, v0"); a("v_and_b32 v9, 0x38, v9"); a("v_lshrrev_b32 v3, 5, v0"); a("v_lshl_or_b32 v9, v3, 7, v9")
    a("s_lshl_b32 s73, s6, 8"); a("s_add_u32 s73, s73, %d" % WS_STAT)
    a("s_lshl_b32 s4, s7, 3"); a("s_add_u32 s4, s4, s3"); a("s_lshl_b32 s4, s4, 4"); a("s_add_u32 s4, s4, s73")
    a("s_mov_b64 exec, 0x11")
    if not nost: store2("buffer_store_dwordx2 v[10:11], v9, %s, s4 offen" % sWS); vm.n += 1
    a("s_mov_b64 exec, -1")
    vB = vD[:2]
    def prepB(n):
        c, t = divmod(kidx(n), 2)
        for r in range(4):
            if (r >> 1) == t: a("v_and_b32 v%d, v%d, v%d" % (vB[n % 2] + r, S[c], vMask + r))
            else: a("v_and_b32_dpp v%d, v%d, v%d row_ror:8 %s" % (vB[n % 2] + r, S[c], vMask + r, DPP))
    prepB(64)
    tstat = None
    ldS = "buffer_load_dwordx2 v[10:11], v9, %s, s73 offen sc1" % sWS
    for n in range(64, 128):
        ahead(n)
        if tstat is None and issued[0] >= stat_at: tstat = vm.issue(ldS)
        vm.wait(tok[n])
        if svk is not None and n == 127 - svk: assert issued[0] == 128; note("SV: second-layer weights may follow"); a("s_barrier")
        a(MF % (vr(vAcc), vr(slot[n]), vr(vB[n % 2]), "0" if n == 64 else vr(vAcc)))
        free.append(slot[n])
        if n % 2 == 1 and issued[0] < 128 and issued[0] - D(issued[0]) > n: paced()
        if n < 127: prepB(n + 1)
        if tstat and tstat > 0 and vm.done >= tstat:
            note("combine the eight (max, sum) pairs of the row: f = exp(own max - row max) / row sum")
            def stat_valid(): a("v_max_u32 v3, v10, v11"); a("v_cmp_ne_u32 vcc, -1, v3")
            if nost: a("s_branch L_stat_ok")
            stat_valid(); a("s_cmp_eq_u64 vcc, exec"); a("s_cbranch_scc1 L_stat_ok")
            def body(): a(ldS); a("s_waitcnt vmcnt(0)"); stat_valid()
            spin(body, "L_stat")
            a("v_mov_b32 v%d, v10" % vF); allreduce(a, "v_max_f32", vF, 3, [8, 16, 32])
            a("v_sub_f32 v10, v10, v%d" % vF); a("v_sub_f32 v%d, v%d, v%d" % (vF, vM, vF))
            a("v_exp_f32 v10, v10"); a("v_exp_f32 v%d, v%d" % (vF, vF)); a("v_mul_f32 v10, v10, v11")
            paced()
            allreduce(a, "v_add_f32", 10, 3, [8, 16, 32])
            a("v_rcp_f32 v10, v10"); a("v_mul_f32 v%d, v%d, v10" % (vF, vF)); a("v_mov_b32 v%d, v%d" % (vL, vF))
            a("v_bfe_u32 v3, v0, 2, 1"); a("v_mul_u32_u24 v9, 704, v3"); a("v_lshrrev_b32 v4, 4, v0"); a("v_mul_u32_u24 v4, 160, v4"); a("v_add_u32 v9, v9, v4")
            a("v_bfe_u32 v3, v0, 3, 1"); a("v_lshl_add_u32 v9, v3, 4, v9"); a("v_and_b32 v3, 3, v0"); a("v_lshl_add_u32 v9, v3, 2, v9")
            a("s_mul_i32 s4, s3, 1536"); a("s_add_u32 s4, s4, %d" % L_OP); a("v_add_u32 v9, s4, v9")
            a("s_lshr_b32 s4, s3, 1"); a("s_mul_i32 s4, s4, 704"); a("s_and_b32 s5, s3, 1"); a("s_mul_i32 s5, s5, 320"); a("s_add_u32 s4, s4, s5")
            a("v_and_b32 v3, 15, v0"); a("v_lshl_add_u32 v10, v3, 3, v4"); a("v_add_u32 v10, s4, v10"); a("v_lshlrev_b32 v11, 2, v0")
            if opair: a("v_lshlrev_b32 v11, 2, v3"); a("v_lshrrev_b32 v3, 4, v0"); a("v_lshl_or_b32 v11, v3, 10, v11")
            tstat = -1
    assert tstat == -1
    T(6)
    for i in (0, 2): a("v_pk_mul_f32 %s, %s, v[6:7]" % (vr(vAcc + i, 2), vr(vAcc + i, 2)))
    a("ds_write2_b32 v9, v%d, v%d offset0:0 offset1:8" % (vAcc, vAcc + 1))
    a("ds_write2_b32 v9, v%d, v%d offset0:16 offset1:24" % (vAcc + 2, vAcc + 3))
    a("s_waitcnt lgkmcnt(0)"); a("s_barrier")
    a("s_mov_b32 exec_hi, 0")
    for w in range(4): a("ds_read_b64 %s, v10 offset:%d" % (vr(16 + 2 * w, 2), L_OP + 1536 * w))
    a("s_waitcnt lgkmcnt(2)"); a("v_pk_add_f32 v[16:17], v[16:17], v[18:19]")
    a("s_waitcnt lgkmcnt(0)"); a("v_pk_add_f32 v[20:21], v[20:21], v[22:23]"); a("v_pk_add_f32 v[16:17], v[16:17], v[20:21]")
    a("v_cvt_pk_bf16_f32 v3, v16, v17"); a("v_min_u32 v3, -2, v3")
    a("buffer_store_dword v3, v11, %s, s26 offen sc1" % sWS)
    T(5)
    if split: note("the held-back weight loads go out behind these stores"); a("s_barrier")
    if oat < 0: a("s_waitcnt vmcnt(0)")
    T.on = ts
    T.flush()
    a("s_endpgm")

    a("L_help:")
    vLin, vWo = 1, 2
    a("v_lshlrev_b32 v%d, 4, v0" % vLin)
    a("s_mov_b32 s12, 0x05040100"); a("s_mov_b32 s13, 0x07060302")
    a("s_cmp_lg_u32 s3, 4"); a("s_cbranch_scc1 L_h567")
    vm = VM(a)
    vXN, vAc, vTp, vRing, w1blk = 8, 44, 244, 116, 4
    a("s_lshr_b32 s101, s2, 3"); a("s_and_b32 s4, s2, 7")
    a("s_cmp_lt_u32 s101, 8"); a("s_movk_i32 s14, 8192"); a("s_cselect_b32 s14, s14, 9216"); a("s_mov_b32 s58, 4718592"); a("s_cselect_b32 s58, s58, 5308416")
    a("s_cselect_b32 s5, 8, 9"); a("s_cselect_b32 s15, 0, 8"); a("s_mul_i32 s4, s4, s5")
    a("s_cmp_lt_u32 s101, 17"); a("s_cselect_b32 s15, s15, 17"); a("s_sub_u32 s15, s101, s15"); a("s_add_u32 s74, s15, s4"); a("s_lshl_b32 s15, s74, 7")
    a("v_lshrrev_b32 v3, 3, v0"); a("v_lshlrev_b32 v3, 3, v3"); a("v_mul_u32_u24 v3, s14, v3"); a("v_and_b32 v2, 7, v0"); a("v_lshl_add_u32 v%d, v2, 4, v3" % vWo)
    actaddr(3, 4, 1152)
    a("s_mul_i32 s75, s14, 57"); a("s_mov_b32 s59, 0x20000")
    a("s_waitcnt lgkmcnt(0)")
    srd(a, 52, 38, "0x40000000"); srd(a, 64, 36, 256)
    a("s_cmp_ge_u32 s2, 208"); a("s_cbranch_scc1 L_nol1")
    a("s_cmp_lt_u32 s101, 17"); a("s_cselect_b32 s56, s28, s30"); a("s_cselect_b32 s57, s29, s31")
    a("s_cmp_lt_u32 s101, 8"); a("s_cselect_b32 s56, s22, s56"); a("s_cselect_b32 s57, s23, s57")
    srd(a, 48, 16, 9216)
    for i in range(9): tx = vm.issue("buffer_load_dwordx4 %s, v3, %s, 0 offen offset:%d" % (vr(vXN + 4 * i), sX, 128 * i))
    w1 = []
    def issue_w1():
        blk, j = divmod(len(w1), 8)
        w1.append(vm.issue("buffer_load_dwordx4 %s, v%d, %s, s15 offen %s" % (vr(vRing + 32 * (blk % w1blk) + 4 * j), vWo, sW1, w1f)))
        a("s_add_u32 s15, s15, %s" % ("s75" if j == 7 else "s14"))
    while len(w1) < da: issue_w1()
    if nb1: a("s_barrier")
    if dah: a("s_lshl_b32 s26, 1, s101"); a("s_and_b32 s26, s26, 0x%x" % prim)
    def paced1(blk):
        if len(w1) < 72 and len(w1) < 8 * (blk + w1blk):
            n = len(w1)
            if dah:
                if n >= dah: vm.wait(w1[n - dah])
                if w1[n - da] > vm.done: a("s_cmp_lg_u32 s26, 0"); a("s_cbranch_scc1 L_w%d" % n); a("s_waitcnt vmcnt(%d)" % (vm.n - w1[n - da])); a("L_w%d:" % n)
            else: vm.wait(w1[n - da])
            issue_w1()
    ln = Asm(); xf = 44
    def unpack_all():
        for i in range(36): ln("v_lshlrev_b32 v%d, 16, v%d" % (xf + 2 * i, vXN + i)); ln("v_and_b32 v%d, 0xffff0000, v%d" % (xf + 2 * i + 1, vXN + i))
    def pack_all():
        for i in range(36): ln("v_cvt_pk_bf16_f32 v%d, v%d, v%d" % (vXN + i, xf + 2 * i, xf + 2 * i + 1))
    for i in range(4): ln("v_mov_b32 v%d, 0x3f803f80" % (244 + i))
    for i in range(9): ln(MF % ("v[248:251]", "v[244:247]", vr(vXN + 4 * i), "0" if i == 0 else "v[248:251]"))
    unpack_all()
    allreduce(ln, "v_add_f32", 248, 249, [0])
    ln("v_mul_f32 v248, %s, v248" % f32(1 / 576)); ln("v_mov_b32 v4, v248"); round_bf16(ln, 4)
    ln("v_sub_f32 v248, v248, v4"); ln("v_sub_f32 v4, 0, v4"); ln("v_mov_b32 v5, v4")
    for i in range(36): ln("v_pk_add_f32 %s, %s, v[4:5]" % (vr(xf + 2 * i, 2), vr(xf + 2 * i, 2)))
    for i in range(36):
        acc = vr(244 + 2 * (i % 2), 2); x2 = vr(xf + 2 * i, 2)
        ln("v_pk_mul_f32 %s, %s, %s" % (acc, x2, x2) if i < 2 else "v_pk_fma_f32 %s, %s, %s, %s" % (acc, x2, x2, acc))
    ln("v_pk_add_f32 v[244:245], v[244:245], v[246:247]"); ln("v_add_f32 v4, v244, v245")
    allreduce(ln, "v_add_f32", 4, 5, [0, 16, 32])
    ln("v_mul_f32 v4, %s, v4" % f32(1 / 576)); ln("v_fma_f32 v4, -v248, v248, v4"); ln("v_max_f32 v4, 0, v4"); round_bf16(ln, 4)
    ln("v_add_f32 v4, %s, v4" % f32(1e-5)); round_bf16(ln, 4)
    ln("v_sqrt_f32 v4, v4"); round_bf16(ln, 4); ln("v_rcp_f32 v4, v4")
    pack_all(); ln("v_mov_b32 v5, v4"); unpack_all()
    for i in range(36): ln("v_pk_mul_f32 %s, %s, v[4:5]" % (vr(xf + 2 * i, 2), vr(xf + 2 * i, 2)))
    pack_all()
    vm.wait(tx)
    for k, ins in enumerate(ln.ins):
        a(ins.text)
        if k % lnstep == lnstep - 1: paced1(0)
    T(1)
    def flagaddr(): a("v_and_b32 v253, 7, v0"); a("v_and_b32 v254, 24, v0"); a("v_lshl_or_b32 v253, v254, 1, v253"); a("v_lshlrev_b32 v253, 2, v253")
    ldF = "buffer_load_dword v252, v253, %s, 0 offen sc1" % sDBG
    for blk in range(9):
        while len(w1) < min(72, 8 * blk + 7 + max(da, dah)): paced1(blk)
        if blk == flagblk and not ec: flagaddr(); tflag = vm.issue(ldF)
        vm.wait(w1[8 * blk + 7])
        block_mm(vRing + 32 * (blk % w1blk), vTp, vAc, vXN + 4 * blk, blk == 0, lambda: paced1(blk))
    T(2)
    block_fold(vTp, vAc)
    for q in range(4): a("v_cvt_pk_bf16_f32 v%d, v%d, v%d" % (12 + q, vTp + 2 * q, vTp + 2 * q + 1))
    for q in range(4): a("v_min_u32 v%d, -2, v%d" % (12 + q, 12 + q))
    if not ec: vm.wait(tflag)
    a("s_branch L_l1done")
    a("L_nol1:")
    if nb1:
        a("s_barrier"); a("v_mov_b32 v9, 0")
        def body(): a("ds_read_b32 v8, v9 offset:%d" % L_G); a("s_waitcnt lgkmcnt(0)"); a("v_cmp_le_u32 vcc, %d, v8" % nfree)
        spin(body, "L_fwait")
    else: a("s_barrier")
    if not ec: flagaddr(); a("v_mov_b32 v252, 0")
    a("L_l1done:")
    T(10)
    roles()
    def modeblock():
        note("all 256 workgroups must have emptied their slots before any hand-off is written or read")
        a("s_mov_b32 s5, 0x88888888")
        def fvalid(): a("v_and_b32 v8, s5, v252"); a("v_cmp_eq_u32 vcc, s5, v8")
        fvalid(); a("s_cmp_eq_u64 vcc, exec"); a("s_cbranch_scc1 L_flags_ok")
        def body(): a(ldF); a("s_waitcnt vmcnt(0)"); fvalid()
        spin(body, "L_flags")
        a("v_readfirstlane_b32 s4, v252"); a("v_cmp_eq_u32 vcc, s4, v252"); a("s_cmp_eq_u64 vcc, exec"); a("s_cselect_b32 s100, %d, 0" % loc)
        a("s_cmp_lg_u32 s100, 0"); a("s_cbranch_scc1 L_mode_ok")
        for i in range(4): a("v_mov_b32 v%d, -1" % (16 + i))
        slots("far", 16, vLin, 20)
        a("s_lshl_b32 s10, s2, 7"); a("s_add_u32 s10, s10, %d" % WS_GO); a("v_lshlrev_b32 v20, 7, v0"); a("v_mov_b32 v21, 1")
        a("s_mov_b64 exec, 1"); a("buffer_store_dword v16, v20, %s, s10 offen sc1" % sWS); a("s_waitcnt vmcnt(0)")
        a("s_and_b32 s5, s2, 3"); a("s_lshl_b32 s5, s5, 6"); a("s_add_u32 s5, s5, 36")
        a("s_mov_b32 s4, 1"); a("s_atomic_add s4, s[36:37], s5 glc"); a("s_waitcnt lgkmcnt(0)")
        a("s_and_b32 s4, s4, 63"); a("s_cmp_lg_u32 s4, 63"); a("s_cbranch_scc1 L_notlast")
        a("s_mov_b32 s4, 1"); a("s_atomic_add s4, s[36:37], 40 glc"); a("s_waitcnt lgkmcnt(0)")
        a("s_and_b32 s4, s4, 3"); a("s_cmp_lg_u32 s4, 3"); a("s_cbranch_scc1 L_notlast")
        a("s_mov_b64 exec, -1")
        for k in range(4): a("s_mov_b32 s4, %d" % (WS_GO + 8192 * k)); a("buffer_store_dword v21, v20, %s, s4 offen sc1" % sWS)
        a("s_mov_b64 exec, 1")
        a("L_notlast:")
        def body(): a("buffer_load_dword v8, v20, %s, s10 offen sc1" % sWS); a("s_waitcnt vmcnt(0)"); a("v_cmp_ne_u32 vcc, -1, v8")
        spin(body, "L_far")
        a("s_mov_b64 exec, -1")
        a("L_mode_ok:")
    if ec:
        a("v_mov_b32 v9, 0")
        def body(): a("ds_read_b32 v8, v9 offset:%d" % L_F); a("s_waitcnt lgkmcnt(0)"); a("v_cmp_ne_u32 vcc, 0, v8")
        spin(body, "L_amode")
        a("v_readfirstlane_b32 s100, v8"); a("s_and_b32 s100, s100, 1")
    else: modeblock()
    T(4)
    l1slot("s72")
    a("s_cmp_ge_u32 s2, 208"); a("s_cbranch_scc1 L_nol1st")
    a("s_sub_u32 s4, s101, 8"); a("s_cmp_lt_u32 s4, 9"); a("s_cbranch_scc1 L_nol1st")
    store2("buffer_store_dwordx4 v[12:15], v%d, %s, s72 offen" % (vLin, sWS))
    a("L_nol1st:")
    if ec: pass
    elif nb1: a("s_add_u32 s4, s100, 2"); a("v_mov_b32 v8, s4"); a("v_mov_b32 v9, 0"); a("ds_write_b32 v9, v8 offset:%d" % L_F)
    else:
        a("v_mov_b32 v8, s100"); a("v_mov_b32 v9, 0"); a("ds_write_b64 v9, v[8:9] offset:%d" % L_F)
        for i in range(4): a("v_mov_b32 v%d, %d" % (16 + i, R - 1))
        a("ds_write_b128 v9, v[16:19] offset:%d" % L_G)
        if pw:
            for i in range(4): a("v_mov_b32 v%d, 0" % (20 + i))
            a("ds_write_b128 v9, v[20:23] offset:%d" % L_C4)
    a("v_bfe_u32 v3, v0, 2, 1"); a("v_lshlrev_b32 v3, 11, v3"); a("v_lshrrev_b32 v4, 5, v0"); a("v_lshl_or_b32 v3, v4, 10, v3")
    a("v_bfe_u32 v4, v0, 4, 1"); a("v_lshl_or_b32 v3, v4, 6, v3"); a("v_and_b32 v4, 3, v0"); a("v_lshl_or_b32 v10, v4, 4, v3")
    a("s_and_b32 s4, s2, 7"); a("s_lshl_b32 s4, s4, 15"); a("s_and_b32 s5, s6, 1"); a("s_lshl_b32 s5, s5, 12"); a("s_add_u32 s4, s4, s5")
    a("s_lshr_b32 s5, s6, 4"); a("s_lshl_b32 s5, s5, 7"); a("s_add_u32 s4, s4, s5")
    def poll4(r, va, label):
        ld = "buffer_load_dwordx4 %s, v%d, %s, s4 offen sc1" % (vr(r), va, sWS)
        a(ld); a("s_waitcnt vmcnt(0)"); mpoll(label, [ld], list(range(r, r + 4)))
    poll4(4, 10, "L_qpoll")
    T(11)
    a("ds_write_b128 v%d, v[4:7] offset:%d" % (vLin, L_Q))
    if nb1: a("ds_write_b32 v9, v8 offset:%d" % L_R); a("s_waitcnt lgkmcnt(0)")
    else: a("s_waitcnt lgkmcnt(0)"); a("s_barrier")
    T(5)
    if x1 & 1: a("s_branch L_noh")
    a("s_sub_u32 s4, s101, 8"); a("s_cmp_ge_u32 s4, 9"); a("s_cbranch_scc1 L_noh")
    a("s_add_u32 s4, s72, %d" % (9 * 1024))
    poll4(16, vLin, "L_upoll")
    a("s_mov_b32 s4, %s" % f32(0.044715)); a("s_mov_b32 s5, %s" % f32(-2 * (2 / 3.141592653589793) ** 0.5 * L2E))
    g, e = list(range(24, 32)), list(range(32, 40))
    def unpack(dst, src):
        for q in range(4): a("v_lshlrev_b32 v%d, 16, v%d" % (dst[2 * q], src + q)); a("v_and_b32 v%d, 0xffff0000, v%d" % (dst[2 * q + 1], src + q))
    def pack(dst, src):
        for q in range(4): a("v_cvt_pk_bf16_f32 v%d, v%d, v%d" % (dst + q, src[2 * q], src[2 * q + 1]))
    unpack(g, 12)
    for i in range(8): a("v_mul_f32 v%d, v%d, v%d" % (e[i], g[i], g[i]))
    for i in range(8): a("v_fma_f32 v%d, v%d, s4, 1.0" % (e[i], e[i]))
    for i in range(8): a("v_mul_f32 v%d, v%d, v%d" % (e[i], e[i], g[i]))
    for i in range(8): a("v_mul_f32 v%d, s5, v%d" % (e[i], e[i]))
    for i in range(8): a("v_exp_f32 v%d, v%d" % (e[i], e[i]))
    for i in range(8): a("v_add_f32 v%d, 1.0, v%d" % (e[i], e[i]))
    for i in range(8): a("v_rcp_f32 v%d, v%d" % (e[i], e[i]))
    for i in range(8): a("v_mul_f32 v%d, v%d, v%d" % (g[i], g[i], e[i]))
    pack(12, g); unpack(g, 12); unpack(e, 16)
    for i in range(8): a("v_mul_f32 v%d, v%d, v%d" % (g[i], g[i], e[i]))
    pack(12, g)
    for q in range(4): a("v_min_u32 v%d, -2, v%d" % (12 + q, 12 + q))
    a("s_lshl_b32 s4, s74, 10"); a("s_add_u32 s4, s4, %d" % WS_H)
    if hlin:
        a("v_bfe_u32 v3, v0, 1, 2"); a("v_lshlrev_b32 v3, 8, v3"); a("v_lshrrev_b32 v4, 3, v0"); a("v_lshl_or_b32 v3, v4, 5, v3"); a("v_and_b32 v4, 1, v0"); a("v_lshl_or_b32 v3, v4, 4, v3")
    a("buffer_store_dwordx4 v[12:15], v%d, %s, s4 offen sc1" % (3 if hlin else vLin, sWS))
    a("L_noh:")
    T(6)
    a("s_cmp_lt_u32 s8, 28"); a("s_cbranch_scc1 L_l2")
    a("s_branch L_hdone")

    a("L_h567:")
    roles()
    a("s_waitcnt lgkmcnt(0)")
    srd(a, 52, 38, "0x40000000")
    if nb1:
        a("s_cmp_eq_u32 s3, 5"); a("s_cbranch_scc1 L_h5")
        for i in range(4): a("v_mov_b32 v%d, 0" % (4 + i))
        a("ds_write_b128 v4, v[4:7] offset:%d" % L_F); a("ds_write_b128 v4, v[4:7] offset:%d" % L_G); a("s_waitcnt lgkmcnt(0)")
        a("s_barrier"); a("s_branch L_h67"); a("L_h5:")
    else: a("s_cmp_lg_u32 s3, 5"); a("s_cbranch_scc1 L_h67")
    for i in range(4): a("v_mov_b32 v%d, -1" % (4 + i))
    oslot("s74"); a("v_lshlrev_b32 v3, 3, v0")
    if opair:
        a("s_mul_i32 s4, s7, %d" % (1024 - 64)); a("s_add_u32 s74, s74, s4")
        a("v_and_b32 v3, 15, v0"); a("v_lshlrev_b32 v3, 3, v3"); a("v_lshrrev_b32 v8, 4, v0"); a("v_lshl_or_b32 v3, v8, 11, v3")
    a("buffer_store_dwordx2 v[4:5], v3, %s, s74 offen sc1" % sWS)
    a("s_lshr_b32 s4, s2, 3"); a("s_sub_u32 s4, s4, 8"); a("s_cmp_ge_u32 s4, 9"); a("s_cbranch_scc1 L_nohcl")
    a("s_and_b32 s5, s2, 7"); a("s_mul_i32 s5, s5, 9"); a("s_add_u32 s4, s4, s5"); a("s_lshl_b32 s4, s4, 10"); a("s_add_u32 s4, s4, %d" % WS_H)
    a("buffer_store_dwordx4 v[4:7], v%d, %s, s4 offen sc1" % (vLin, sWS))
    a("L_nohcl:")
    slots("read", 4, vLin, 8)
    prgaddr("s74", "s72")
    a("s_mov_b64 exec, 1"); a("buffer_load_dword v10, v%d, %s, s74 offen" % (vLin, sWS)); a("s_mov_b64 exec, -1")
    if nb1: a("s_barrier")
    a("s_waitcnt vmcnt(0)")
    slots("near", 4, vLin, 8)
    a("v_mov_b32 v11, %d" % (4 * (ec + 1 if ec else C0 - 4))); a("s_mov_b64 exec, 1"); a("buffer_store_dword v11, v%d, %s, s72 offen" % (vLin, sWS))
    a("s_mov_b64 exec, -1")
    a("s_getreg_b32 s5, hwreg(HW_REG_XCC_ID, 0, 3)"); a("s_or_b32 s5, s5, 8"); a("s_and_b32 s4, s2, 7"); a("s_lshl_b32 s4, s4, 2"); a("s_lshl_b32 s5, s5, s4")
    a("s_bfe_u32 s4, s2, 0x30003"); a("s_lshl_b32 s4, s4, 2"); a("s_and_b32 s10, s2, 192"); a("s_add_u32 s4, s4, s10")
    a("s_waitcnt vmcnt(0)")
    a("s_atomic_or s5, s[36:37], s4"); a("s_waitcnt lgkmcnt(0)")
    if st:
        note("scalar touches warm the address translation of ranges this workgroup reads later")
        a("s_lshl_b32 s4, s6, 21"); a("s_lshl_b32 s5, s7, %d" % amap[8]); a("s_add_u32 s4, s4, s5"); a("s_add_u32 s4, s4, %d" % (6144 * 256))
        r = 40
        if st & 1: a("s_load_dword s%d, s[20:21], s4" % r); r += 1
        for k in range(1, 4):
            a("s_add_u32 s4, s4, 0x20000")
            if st & 2: a("s_load_dword s%d, s[20:21], s4" % r); r += 1
            if st & 4: a("s_load_dword s%d, s[18:19], s4" % r); r += 1
        if st & 8:
            a("s_cmp_lt_u32 s8, 16"); a("s_cselect_b32 s22, s24, s32"); a("s_cselect_b32 s23, s25, s33"); a("s_cselect_b32 s4, 0, 16"); a("s_movk_i32 s5, 256"); a("s_cselect_b32 s5, s5, 384")
            a("s_sub_u32 s4, s8, s4"); a("s_min_u32 s4, s4, 15"); a("s_mul_i32 s4, s4, s5"); a("s_min_u32 s4, s4, 4224"); a("s_mul_i32 s4, s4, 1152")
            a("s_load_dword s56, s[22:23], s4"); a("s_add_u32 s4, s4, %d" % (255 * 1152)); a("s_load_dword s57, s[22:23], s4"); a("s_load_dword s58, s[34:35], 0")
        a("s_waitcnt lgkmcnt(0)")
    T(3)
    a("L_h67:")
    a("s_cmp_eq_u32 s3, 7"); a("s_cselect_b32 s4, 0, s8"); a("s_cmp_ge_u32 s4, 28"); a("s_cbranch_scc1 L_hdone")
    if nb1:
        a("s_cmp_lg_u32 s3, 7"); a("s_cbranch_scc1 L_l2")
        a("v_mov_b32 v9, 0")
        if ec:
            def body(): a("ds_read_b128 v[12:15], v9 offset:%d" % L_G); a("s_waitcnt lgkmcnt(0)"); a("v_min3_u32 v5, v12, v13, v14"); a("v_min_u32 v5, v5, v15"); a("v_cmp_le_u32 vcc, %d, v5" % ec)
            spin(body, "L_mwait")
            srd(a, 64, 36, 256); flagaddr(); a("v_mov_b32 v252, 0")
            modeblock()
            a("s_add_u32 s4, s100, 2"); a("v_mov_b32 v8, s4"); a("v_mov_b32 v9, 0"); a("ds_write_b32 v9, v8 offset:%d" % L_F)
        else:
            def body(): a("ds_read_b32 v4, v9 offset:%d" % L_F); a("ds_read_b128 v[12:15], v9 offset:%d" % L_G); a("s_waitcnt lgkmcnt(0)"); a("v_min3_u32 v5, v12, v13, v14"); a("v_min_u32 v5, v5, v15"); a("v_cmp_le_u32 vcc, %d, v5" % C0); a("v_cndmask_b32 v5, 0, v4, vcc"); a("v_cmp_ne_u32 vcc, 0, v5")
            spin(body, "L_mwait")
            a("v_readfirstlane_b32 s100, v4"); a("s_and_b32 s100, s100, 1")
    else:
        a("s_cmp_lt_u32 s2, 208"); a("s_cbranch_scc1 L_nofb2"); a("s_barrier"); a("L_nofb2:")
        a("s_barrier")
        a("v_mov_b32 v9, 0"); a("ds_read_b32 v4, v9 offset:%d" % L_F); a("s_waitcnt lgkmcnt(0)"); a("v_readfirstlane_b32 s100, v4")
        a("s_cmp_lg_u32 s3, 7"); a("s_cbranch_scc1 L_l2")
    if x1 & 2: a("s_branch L_ctl_done")
    a("s_cmp_eq_u32 s100, 0"); a("s_cbranch_scc1 L_ctl_done")
    prgaddr("s74", "s72")
    a("v_and_b32 v8, 31, v0"); a("v_lshlrev_b32 v8, 2, v8")
    a("s_and_b32 s4, s2, 7"); a("s_cselect_b32 s4, s2, 0"); a("s_cmp_ge_u32 s4, 224"); a("s_cselect_b32 s75, %d, 0" % (32 * lead)); a("s_add_u32 s75, s75, %d" % int(32 * bias))
    if leadd: a("s_cmp_ge_u32 s8, 16"); a("s_cselect_b32 s4, 1, -1"); a("s_mul_i32 s4, s4, %d" % int(16 * leadd)); a("s_and_b32 s5, s2, 7"); a("s_cselect_b32 s4, s4, 0"); a("s_add_u32 s75, s75, s4")
    if par:
        note("even dies see slightly longer memory latency than odd ones")
        a("s_getreg_b32 s4, hwreg(HW_REG_XCC_ID, 0, 1)"); a("s_mul_i32 s4, s4, %d" % int(-64 * par)); a("s_add_u32 s4, s4, %d" % int(32 * par)); a("s_add_u32 s75, s75, s4")
    a("s_mov_b32 s11, %d" % SPIN)
    a("L_ctl:")
    a("ds_read_b128 v[12:15], v9 offset:%d" % L_G)
    if pw: a("ds_read_b32 v18, v8 offset:%d" % L_G)
    a("s_waitcnt lgkmcnt(0)")
    a("v_add3_u32 v12, v12, v13, v14"); a("v_add_u32 v12, v12, v15"); a("s_mov_b64 exec, 1")
    a("buffer_store_dword v12, v9, %s, s72 offen" % sWS); a("s_mov_b64 exec, -1")
    a("v_readfirstlane_b32 s14, v12"); a("s_cmp_ge_u32 s14, %d" % (4 * fbend)); a("s_cbranch_scc1 L_ctl_end")
    a("buffer_load_dword v16, v8, %s, s74 offen sc1" % sWS); a("s_waitcnt vmcnt(0)")
    allreduce(a, "v_add_u32", 16, 17, [8, 4, 2, 1, 16])
    a("v_lshrrev_b32 v16, 2, v16"); a("v_lshlrev_b32 v12, 3, v12"); a("v_sub_u32 v16, v16, v12"); a("v_add_u32 v16, s75, v16")
    if ec: a("s_cmp_lt_u32 s14, %d" % (4 * nb)); a("s_cselect_b32 s4, %d, 0" % int(32 * (bias - bias1))); a("v_subrev_u32 v16, s4, v16")
    if pw:
        a("v_lshlrev_b32 v18, 5, v18"); a("v_sub_u32 v18, v12, v18"); a("v_mul_i32_i24 v18, %d, v18" % pw); a("v_ashrrev_i32 v18, 2, v18"); a("v_add_u32 v16, v16, v18")
        a("s_mov_b64 exec, 15"); a("ds_write_b32 v8, v16 offset:%d" % L_C4); a("s_mov_b64 exec, -1")
    else: a("s_mov_b64 exec, 1"); a("ds_write_b32 v9, v16 offset:%d" % L_C); a("s_mov_b64 exec, -1")
    a("s_sub_u32 s11, s11, 1"); a("s_cmp_lg_u32 s11, 0"); a("s_cbranch_scc1 L_ctl")
    a("L_ctl_end:")
    a("v_mov_b32 v13, %d" % (4 * fin)); a("s_mov_b64 exec, 1"); a("buffer_store_dword v13, v9, %s, s72 offen" % sWS); a("s_mov_b64 exec, -1")
    a("L_ctl_done:")
    a("s_cmp_ge_u32 s8, 16"); a("s_cbranch_scc1 L_hdone")

    a("L_l2:")
    a("s_sub_u32 s101, s3, 4")
    a("s_mul_i32 s73, s9, %d" % (8 * RS)); a("s_lshl_b32 s5, s8, %d" % SH); a("s_add_u32 s73, s73, s5"); a("s_add_u32 s73, s73, %d" % WS_P)
    a("s_lshl_b32 s4, s101, 11"); a("v_add_u32 v5, s4, v%d" % vLin)
    a("s_cmp_ge_u32 s8, 16"); a("s_cbranch_scc1 L_down")
    def publish(n, vE):
        for w in range(n): a("ds_read_b128 %s, v6 offset:%d" % (vr(vE[w]), L_LP + 2048 * w))
        a("s_waitcnt lgkmcnt(%d)" % (n - 2))
        for i in (0, 2): a("v_pk_add_f32 %s, %s, %s" % (vr(vE[0] + i, 2), vr(vE[0] + i, 2), vr(vE[1] + i, 2)))
        a("s_waitcnt lgkmcnt(0)")
        if n == 4:
            for i in (0, 2): a("v_pk_add_f32 %s, %s, %s" % (vr(vE[2] + i, 2), vr(vE[2] + i, 2), vr(vE[3] + i, 2)))
        for i in (0, 2): a("v_pk_add_f32 %s, %s, %s" % (vr(vE[0] + i, 2), vr(vE[0] + i, 2), vr(vE[2] + i, 2)))
        if pb:
            for i in range(2): a("v_cvt_pk_bf16_f32 v%d, v%d, v%d" % (vE[0] + i, vE[0] + 2 * i, vE[0] + 2 * i + 1))
        for i in range(NP): a("v_min_u32 v%d, -2, v%d" % (vE[0] + i, vE[0] + i))
        store2("buffer_store_dwordx%d %s, v7, %s, s73 offen" % (NP, vr(vE[0], NP), sWS))
    vA, vE, vW, vP, A4, Y4, B4, vX = [16, 20], [24, 28, 32, 36], 40, 72, 104, 108, 112, 116
    srd(a, 60, 24, 4718592); srd(a, 48, 16, 9216); srd(a, 68, 34, 9216)
    a("v_lshrrev_b32 v3, 4, v0"); a("v_and_b32 v4, 15, v0"); a("v_lshlrev_b32 v9, %d, v4" % (6 if opair else 9)); a("v_lshl_or_b32 v9, v3, 4, v9")
    a("v_bfe_u32 v8, v0, 3, 1"); a("v_and_b32 v4, 7, v0")
    a("v_mul_u32_u24 v2, %d, v3" % (8 * 1152)); a("v_mul_u32_u24 v6, %d, v8" % (32 * 1152)); a("v_add_u32 v2, v2, v6"); a("v_lshl_add_u32 v2, v4, 4, v2")
    a("v_mul_u32_u24 v7, %d, v3" % (2 * RS)); a("v_lshl_add_u32 v7, v4, %d, v7" % (SH - 3)); a("v_lshl_add_u32 v7, v8, %d, v7" % (SH - 4))
    a("s_lshl_b32 s72, s8, 2"); a("s_add_u32 s72, s72, s101"); a("s_mul_i32 s72, s72, %d" % (64 * 1152)); a("s_lshl_b32 s4, s9, 7"); a("s_add_u32 s72, s72, s4")
    a("s_lshl_b32 s14, s8, 13"); a("s_lshl_b32 s5, s101, %d" % (11 if opair else 7)); a("s_add_u32 s14, s14, s5"); a("s_add_u32 s14, s14, %d" % WS_O)
    a("s_and_b32 s15, s101, 1"); a("s_mul_i32 s4, s15, %d" % RS); a("s_add_u32 s73, s73, s4"); a("s_lshl_b32 s4, s15, 10"); a("v_add_u32 v6, s4, v%d" % vLin)
    a("s_lshr_b32 s4, s8, 1"); a("s_and_b32 s5, s8, 1"); a("s_lshl_b32 s5, s5, 1"); a("s_add_u32 s5, s5, s15")
    a("s_lshl_b32 s74, s9, 3"); a("s_add_u32 s74, s74, s4"); a("s_mul_i32 s74, s74, %d" % RS); a("s_lshl_b32 s15, s5, %d" % (SH - 2)); a("s_add_u32 s74, s74, s15"); a("s_add_u32 s74, s74, %d" % WS_P)
    a("s_mul_i32 s75, s4, 1152"); a("s_lshl_b32 s15, s9, 7"); a("s_add_u32 s75, s75, s15"); a("s_lshl_b32 s15, s5, 5"); a("s_add_u32 s75, s75, s15")
    a("s_add_u32 s15, s74, %d" % (16 << SH)); a("s_add_u32 s10, s72, %d" % (4 * 1152))
    a("v_and_b32 v4, 3, v0"); a("v_lshlrev_b32 v11, 3, v4"); a("v_lshl_or_b32 v11, v3, 1, v11")
    a("v_lshrrev_b32 v3, 2, v0"); a("v_lshlrev_b32 v3, %d, v3" % SH); a("v_lshl_or_b32 v10, v4, %d, v3" % (SH - 4))
    a("buffer_load_ushort v%d, v11, %s, s75 offen" % (vX, sX))
    for i in range(4): a("v_mov_b32 v%d, 0" % (Y4 + i))
    ldO = ["buffer_load_dwordx4 %s, v9, %s, s14 offen offset:%d sc1" % (vr(vA[kb]), sWS, (1024 if opair else 64) * kb) for kb in range(2)]
    ldA, ldB = ("buffer_load_dwordx%d %s, v10, %s, s74 offen sc1" % (NP, vr(r, NP), sWS) for r in (A4, B4))
    ldY = "buffer_load_dwordx%d %s, v10, %s, s15 offen sc1" % (NP, vr(Y4, NP), sWS)
    vm = VM(a); w2 = []
    PR = (list(range(40, 48)) + list(range(56, 60)) + list(range(64, 68)))[:pm]
    def probes():
        for k, r in enumerate(PR): a("s_load_dword s%d, s[22:23], %d glc" % (r, 64 * (k * 16 // pm + (k & 1 if pm < 16 else 0)) + 1084 if opair else 512 * (k * 16 // pm) + 124))
    def getmode(down):
        if not nb1: return
        a("v_mov_b32 v14, 0"); a("ds_read_b32 v14, v14 offset:%d" % L_F); a("s_waitcnt lgkmcnt(0)"); a("v_readfirstlane_b32 s100, v14"); a("s_and_b32 s100, s100, 1")
        if down: a("s_cmp_lt_u32 s2, 224"); a("s_cselect_b32 s100, s100, 0")
    def s2(pr=0):
        if pr == 1: probes()
        a("s_barrier")
        if pr == 2: probes()
        if split: a("s_barrier")
    if probe: a("s_add_u32 s22, s38, s14"); a("s_addc_u32 s23, s39, 0")
    a("s_barrier")
    for j in range(9):
        if j == wsplit: getmode(0); s2(probe)
        if j < 8: w2.append(vm.issue("buffer_load_dwordx4 %s, v2, %s, %s offen offset:%d %s" % (vr(vW + 4 * j), sW2, "s72" if j < 4 else "s10", 1152 * (j % 4), w2f)))
    if oat < 0:
        note("this barrier opens once the streaming waves have ended, i.e. their output stores are acknowledged")
        a("s_barrier")
        for t_ in ldO: vm.issue(t_)
    def pairs(qs, vm, oat):
      for q in qs:
        js = (2 * q, 2 * q + 1)
        for j in js:
            vm.wait(w2[j])
            if j + 1 == oat:
                for t_ in ldO: vm.issue(t_)
        for j in js:
            for r in range(2): a("v_mov_b32 v%d, v%d" % (120 + 2 * j + r, vW + 4 * j + r))
        for j in js:
            for r in range(2): a("v_mov_b32_dpp v%d, v%d row_ror:8 row_mask:0xf bank_mask:0xc" % (vW + 4 * j + r, vW + 4 * j + 2 + r))
        for j in js:
            for r in range(2): a("v_mov_b32_dpp v%d, v%d row_ror:8 row_mask:0xf bank_mask:0x3" % (vW + 4 * j + 2 + r, 120 + 2 * j + r))
        for kb in range(2):
            for i in range(4):
                a("v_perm_b32 v%d, v%d, v%d, s%d" % (vP + 16 * kb + 4 * i + q, vW + 4 * (2 * q + 1) + 2 * kb + i // 2, vW + 4 * (2 * q) + 2 * kb + i // 2, 12 + i % 2))
    if probe:
        note("producers seen complete through uncached probes are gathered at once, otherwise after the next weights land")
        if probe == 3: probes()
        pairs([0], vm, 0)
        a("s_waitcnt lgkmcnt(0)")
        for r in PR[1:]: a("s_max_u32 s%d, s%d, s%d" % (PR[0], PR[0], r))
        a("s_cmp_eq_u32 s%d, -1" % PR[0]); a("s_cbranch_scc1 L_olate")
        v1 = vm.copy()
        for t_ in ldO: v1.issue(t_)
        pairs([1, 2, 3], v1, 0)
        a("s_branch L_ojoin")
        a("L_olate:")
        pairs([1, 2, 3], vm, oat)
    else: pairs(range(4), vm, oat)
    if oat > 8:
        for t_ in ldO: a(t_)
    if probe: a("L_ojoin:")
    a("v_lshlrev_b32 v%d, 16, v%d" % (vX, vX))
    T(7)
    a("s_waitcnt vmcnt(0)")
    mpoll("L_opoll", ldO, list(range(16, 24)))
    T(8)
    if t2:
        def rows(i):
            for x in range(2): a("v_add_f32 v%d, v%d, v%d" % (vW + 4 * x + i, vE[i] + 2 * x, vE[i] + 2 * x + 1))
        for i in range(4):
            for kb in range(2): a(MF % (vr(vE[i]), vr(vA[kb]), vr(vP + 16 * kb + 4 * i), "0" if kb == 0 else vr(vE[i])))
        a("s_cmp_lt_u32 s101, 2"); a("s_cbranch_scc1 L_nopre")
        a("s_mov_b32 exec_hi, 0xffff"); a(ldY); a("s_mov_b32 exec_hi, -1")
        a("L_nopre:")
        for i in range(4): rows(i)
        for x in range(2): a("ds_write_b128 v5, %s offset:%d" % (vr(vW + 4 * x), L_LP + 1024 * x))
    else:
        for kb in range(2):
            for i in range(4): a(MF % (vr(vE[i]), vr(vA[kb]), vr(vP + 16 * kb + 4 * i), "0" if kb == 0 else vr(vE[i])))
        a("s_cmp_lt_u32 s101, 2"); a("s_cbranch_scc1 L_nopre")
        a("s_mov_b32 exec_hi, 0xffff"); a(ldY); a("s_mov_b32 exec_hi, -1")
        a("L_nopre:")
        for x in range(2):
            for i in range(4): a("v_add_f32 v%d, v%d, v%d" % (vW + 4 * x + i, vE[i] + 2 * x, vE[i] + 2 * x + 1))
            a("ds_write_b128 v5, %s offset:%d" % (vr(vW + 4 * x), L_LP + 1024 * x))
    a("s_waitcnt lgkmcnt(0)"); a("s_barrier")
    a("s_cmp_ge_u32 s101, 2"); a("s_cbranch_scc1 L_final")
    publish(4, vE)
    a("s_branch L_hdone")
    a("L_final:")
    def fold(r):
        if pb:
            a("v_lshlrev_b32 v%d, 16, v%d" % (r + 2, r + 1)); a("v_and_b32 v%d, 0xffff0000, v%d" % (r + 3, r + 1))
            a("v_and_b32 v%d, 0xffff0000, v%d" % (r + 1, r)); a("v_lshlrev_b32 v%d, 16, v%d" % (r, r))
        a("v_permlane32_swap_b32 v%d, v%d" % (r, r + 2)); a("v_permlane32_swap_b32 v%d, v%d" % (r + 1, r + 3))
        a("v_pk_add_f32 %s, %s, %s" % (vr(r, 2), vr(r, 2), vr(r + 2, 2)))
        a("v_permlane16_swap_b32 v%d, v%d" % (r, r + 1)); a("v_add_f32 v%d, v%d, v%d" % (r, r, r + 1))
        for k in (8, 4): a("v_add_f32_dpp v%d, v%d, v%d row_ror:%d %s" % (r, r, r, k, DPP))
        round_bf16(a, r)
    def chk(r, tgt):
        a("s_waitcnt vmcnt(1)"); umax(list(range(r, r + NP))); a("v_cmp_eq_u32 vcc, -1, v3"); a("s_cmp_eq_u64 vcc, 0"); a("s_cbranch_scc1 " + tgt)
    a("s_waitcnt vmcnt(0)")
    mpoll("L_ypoll", [ldY], list(range(Y4, Y4 + NP)))
    a(ldA); fold(Y4); a("s_mov_b32 s11, %d" % SPIN)
    a("L_pp:"); a(ldB); chk(A4, "L_ppa"); a(ldA); chk(B4, "L_ppb")
    a("s_sub_u32 s11, s11, 1"); a("s_cmp_lg_u32 s11, 0"); a("s_cbranch_scc1 L_pp")
    a("L_ppb:"); fold(B4); a("v_add_f32 v4, v%d, v%d" % (vX, B4)); a("s_branch L_ppe")
    a("L_ppa:"); fold(A4); a("v_add_f32 v4, v%d, v%d" % (vX, A4))
    a("L_ppe:"); round_bf16(a, 4); a("v_add_f32 v4, v4, v%d" % Y4); a("v_cvt_pk_bf16_f32 v4, v4, v4")
    a("s_mov_b32 exec_lo, 0x000f000f"); a("s_mov_b32 exec_hi, 0x000f000f")
    a("buffer_store_short v4, v11, %s, s75 offen" % sOUT)
    a("s_branch L_hdone")

    a("L_down:")
    vm = VM(a)
    vH, vAc, vTp, vW = 16, 24, 56, 64
    srd(a, 60, 32, 5308416)
    if not nb1: a("s_cmp_lt_u32 s2, 224"); a("s_cselect_b32 s100, s100, 0")
    a("v_lshrrev_b32 v3, 3, v0"); a("v_mul_u32_u24 v2, %d, v3" % (8 * 1152)); a("v_and_b32 v4, 7, v0"); a("v_lshl_add_u32 v2, v4, 4, v2")
    a("s_sub_u32 s4, s8, 16"); a("s_mul_i32 s4, s4, 3"); a("s_add_u32 s4, s4, s101")
    a("s_mul_i32 s72, s4, %d" % (128 * 1152)); a("s_lshl_b32 s5, s9, 7"); a("s_add_u32 s72, s72, s5")
    a("s_lshl_b32 s14, s4, 11"); a("s_add_u32 s14, s14, %d" % WS_H)
    if hlin: a("v_mov_b32 v9, v%d" % vLin)
    else: actaddr(9, 4, 128)
    a("v_lshrrev_b32 v3, 4, v0"); a("v_and_b32 v4, 15, v0"); a("v_mul_u32_u24 v7, %d, v3" % RS); a("v_lshl_add_u32 v7, v4, %d, v7" % (SH - 4))
    a("v_lshlrev_b32 v6, 7, v3"); a("v_bfe_u32 v3, v0, 1, 3"); a("v_lshl_or_b32 v6, v3, 4, v6"); a("v_and_b32 v3, 1, v0"); a("v_lshl_or_b32 v6, v3, 10, v6")
    a("s_lshl_b32 s4, s101, 9"); a("v_add_u32 v6, s4, v6"); a("s_mul_i32 s4, s101, %d" % (4 * RS)); a("s_add_u32 s73, s73, s4")
    if not hsv: a("v_mov_b32 v11, 0"); note("fetch the hidden rows once the streams are well into V")
    def body(): a("ds_read_b32 v8, v11 offset:%d" % L_G); a("s_waitcnt lgkmcnt(0)"); a("v_cmp_le_u32 vcc, %d, v8" % hat)
    if not hsv: spin(body, "L_hwait")
    ldH = ["buffer_load_dwordx4 %s, v9, %s, s14 offen offset:%d sc1" % (vr(vH + 4 * b_), sWS, 1024 * b_) for b_ in range(2)]
    if not x1 & 1 and not hsv:
        for t_ in ldH: a(t_)
        a("s_waitcnt vmcnt(0)")
        mpoll("L_hpoll", ldH, list(range(vH, vH + 8)))
    a("s_barrier")
    w2 = []
    if hsv == 1:
        for t_ in ldH: vm.issue(t_)
    for k in range(17):
        b_, j = divmod(k, 8)
        if k == dsplit:
            if hsv == 2:
                for t_ in ldH: th_ = vm.issue(t_)
            getmode(1); s2()
        if k == 16: break
        if j % 4 == 0: a("s_add_u32 s5, s72, %d" % ((64 * b_ + j) * 1152))
        w2.append(vm.issue("buffer_load_dwordx4 %s, v2, %s, s5 offen offset:%d %s" % (vr(vW + 4 * k), sW2, 1152 * (j % 4), w2f)))
    for b_ in range(2):
        base, tp = vW + 32 * b_, 128 + 32 * b_
        for q in range(4):
            vm.wait(w2[8 * b_ + 2 * q + 1])
            if hsv and b_ == 0 and q == 3:
                if hsv == 2: vm.wait(th_)
                mpoll("L_hpoll", ldH, list(range(vH, vH + 8)))
            for i in range(8):
                a("v_perm_b32 v%d, v%d, v%d, s%d" % (tp + 4 * i + q, base + 4 * (2 * q + 1) + i // 2, base + 4 * (2 * q) + i // 2, 12 + i % 2))
                if q == 3 and i >= 2: a(MF % (vr(vAc + 4 * (i - 2)), vr(vH + 4 * b_), vr(tp + 4 * (i - 2)), "0" if b_ == 0 else vr(vAc + 4 * (i - 2))))
        for i in (6, 7): a(MF % (vr(vAc + 4 * i), vr(vH + 4 * b_), vr(tp + 4 * i), "0" if b_ == 0 else vr(vAc + 4 * i)))
    T(8)
    block_fold(vTp, vAc)
    for x in range(2): a("ds_write_b128 v5, %s offset:%d" % (vr(vTp + 4 * x), L_LP + 1024 * x))
    a("s_waitcnt lgkmcnt(0)"); a("s_barrier")
    a("s_cmp_ge_u32 s101, 2"); a("s_cbranch_scc1 L_hdone")
    publish(3, [24, 28, 32])
    a("L_hdone:")
    T(9); T.flush()
    a("L_end:")
    a("s_endpgm")
    a("L_codeend:")
    a.pad()
    head = open("parallel_sum__sliding_block_cached__geglu_ffn__decode.s.ref").read().split("; Override")[0]
    head += "; @launch grid=(256,1,1) block=(%d,1,1) lds=%d\n" % (64 * NW, LDS_BYTES) + HEADER
    head += '.amdgcn_target "amdgcn-amd-amdhsa--gfx950"\n.text\n' + ('.fill %d, 4, 0xbf810000\n' % (pad // 4) if pad else '') + '.globl %s\n.p2align 8\n.type %s,@function\n' % (KN, KN)
    tail = '.section .rodata,"a"\n.p2align 6\n.amdhsa_kernel %s\n  .amdhsa_next_free_vgpr 256\n  .amdhsa_next_free_sgpr 102\n  .amdhsa_accum_offset 256\n' % KN
    tail += "  .amdhsa_group_segment_fixed_size 0\n  .amdhsa_kernarg_size 96\n  .amdhsa_user_sgpr_count 2\n  .amdhsa_user_sgpr_kernarg_segment_ptr 1\n  .amdhsa_system_sgpr_workgroup_id_x 1\n.end_amdhsa_kernel\n"
    return head + a.text() + tail

RAW = None
def report(t, verbose):
    import gen10, numpy as np
    m_ = t[:, :, :4, 1:12].mean(axis=(0, 1, 2))
    if all(np.diff(m_) > 0):
        print("   event rates: t", m_, "TB/s", np.diff(TSN) * 1.048576 / np.diff(m_)); return
    gen10.report(t, verbose)
    import numpy as np
    ids = np.arange(256); X, J = ids & 7, ids >> 3
    WO = (ids < 128) | (X == 0); unit = np.where(J < 16, J, J - 16); hkv = 2 * X + (J & 1)
    rows = []
    for u in t:
        osent = u[:, :4, 5].max(axis=1); vd = u[:, :4, 6].max(axis=1); gl = np.array([osent[hkv == g].max() for g in range(16)])
        os_ = np.where(WO[:, None], u[:, 4:, 8], -1); c, w = np.unravel_index(os_.argmax(), os_.shape)
        rows.append((os_[c, w] - u[c, 4 + w, 7], os_[c, w] - gl[unit[c]], vd[c] - vd.max(), gl[unit[c]] - osent.max(), u[c, 4 + w, 7] - vd[c]))
    r = np.array(rows)
    print("   crit: seen-perms %.2f seen-grouplast %.2f ownV-Vmax %.2f grouplast-last %.2f perms-ownV %.2f" % tuple(r.mean(axis=0)))
    p1 = r[:, 0] < 0.4
    print("   crit: share near own weights %.2f;" % p1.mean(), "A:", r[p1].mean(axis=0), "B:", r[~p1].mean(axis=0))

if __name__ == "__main__":
    kw = eval("dict(%s)" % (sys.argv[2] if len(sys.argv) > 2 else ""))
    open(sys.argv[1], "w").write(gen(**kw))
```

```python
import sys, struct
from asmlib import Asm, VM
KN = "parallel_sum__sliding_block_cached__geglu_ffn__decode_kernel"

def f32(x): return "0x%08x" % struct.unpack("<I", struct.pack("<f", x))[0]
def vr(b, n=4): return "v[%d:%d]" % (b, b + n - 1) if n > 1 else "v%d" % b
DPP = "row_mask:0xf bank_mask:0xf"
MF = "v_mfma_f32_16x16x32_bf16 %s, %s, %s, %s"

WS_GO = 0x68000
WS_L1, WS_STAT, WS_H, WS_PRG, WS_P, WS_O, WS_TS = 0, 0x40000, 0x48000, 0x60000, 0x80000, 0x100000, 0x200000
L_C4 = 16
L_R = 8
L_GO = 12
L_N = 32
L_X = 36
L_XN = 17408
L_F, L_C, L_Q, L_OP, L_LP, L_G = 0, 4, 1024, 2048, 8192, 16384
LDS_BYTES = 26624
SPIN = 400000
L2E = 1.4426950408889634
NW = 8
TSN = [36, 41, 46, 51, 60, 70, 80, 90, 100, 110, 119]
sK, sV, sX, sWS, sW1, sW2, sDBG, sOUT = ("s[%d:%d]" % (b, b + 3) for b in (40, 44, 48, 52, 56, 60, 64, 68))

HEADER = """\
; One workgroup per CU (256 x 512 threads). id = 8*j + x; x groups workgroups that normally share a die.
"""

def srd(a, base, ptr, nbytes):
    a("s_mov_b32 s%d, s%d" % (base, ptr)); a("s_mov_b32 s%d, s%d" % (base + 1, ptr + 1))
    a("s_mov_b32 s%d, %s" % (base + 2, nbytes)); a("s_mov_b32 s%d, 0x20000" % (base + 3))

class Stamps:
    def __init__(self, a, on): self.a, self.on = a, on
    def __call__(self, idx):
        if self.on: self.a("s_memrealtime s[%d:%d]" % (76 + 2 * idx, 77 + 2 * idx))
    def flush(self, n=12):
        if not self.on: return
        a = self.a
        a("s_waitcnt lgkmcnt(0)"); srd(a, 52, 38, "0x40000000")
        a("s_mul_i32 s4, s2, %d" % NW); a("s_add_u32 s4, s4, s3"); a("s_lshl_b32 s4, s4, 6"); a("s_add_u32 s4, s4, %d" % WS_TS)
        a("s_mov_b64 exec, 1"); a("v_mov_b32 v0, 0")
        for q in range(n // 4):
            for i in range(4): a("v_mov_b32 v%d, s%d" % (4 + 4 * q + i, 76 + 2 * (4 * q + i)))
            a("buffer_store_dwordx4 %s, v0, %s, s4 offen offset:%d" % (vr(4 + 4 * q), sWS, 16 * q))

def allreduce(a, op, v, t, steps):
    for s in steps:
        if s == 0: a("%s_dpp v%d, v%d, v%d quad_perm:[1,0,3,2] %s" % (op, v, v, v, DPP))
        elif s < 16: a("%s_dpp v%d, v%d, v%d row_ror:%d %s" % (op, v, v, v, s, DPP))
        else:
            a("v_mov_b32 v%d, v%d" % (t, v)); a("v_permlane%d_swap_b32 v%d, v%d" % (s, v, t)); a("%s v%d, v%d, v%d" % (op, v, v, t))

def round_bf16(a, v):
    a("v_cvt_pk_bf16_f32 v%d, v%d, v%d" % (v, v, v)); a("v_and_b32 v%d, 0xffff0000, v%d" % (v, v))

def gen(ts=0, loc=1, d=5, d0=3, nd0=27, nd1=32, dend=6, nramp=120, step=2, R=50, stat_at=100, nfree=32, da=10,
        flagblk=7, lnstep=28, pf=4, lv=(4, 5, 6, 7), th=(-1.5, 1.5, 4), bias=3.25, lead=4, leadd=0, fbend=116, fin=127, hat=100, pfn=64, pb=1, amap=(9, 11, 13, 12, 14, 15, 17, 18, 16, 8, 10), svk=None, wsplit=3, dsplit=9, oat=4, pad=0, t2=1, probe=0, pm=16, opair=1, prio=0, pst=1, w1f='nt', w2f='nt', par=0.4, x1=0, vt=0, s1x=0, s1p=0, vrev=0, ilv=0, nost=0, hsv=2, hlin=1, dah=0, prim=0xff, pw=0, st=0, nb1=1, C0=16, ec=0, bias1=1.6, nb=0, wexp=0, nocl=0, da1=7, kw=5, b0=1, dfree=4, nfr=32, leadn=72, lay=1, pfw=5, e5=0, n4=0, sln=1, xw=0, rowb=1, ecf=34, ecl=16, bko=10, p0=19):
    ec = 1; nd0 = 0; nd1 = n4
    assert sorted(amap) == list(range(8, 19))
    assert R % 2 == 0 and C0 % 2 == 0
    if not nb1: C0 = R
    split = wsplit < 8 or dsplit < 16
    RS = 3584 if pb else 7168; SH = 7 if pb else 8; NP = 2 if pb else 4
    a = Asm(); T = Stamps(a, ts)
    uid = [0]
    def lab(p): uid[0] += 1; return "L_%s%d" % (p, uid[0])
    def note(t): a("; " + t)

    def spin(body, label):
        a("s_mov_b32 s11, %d" % SPIN)
        a(label + ":"); body()
        a("s_cmp_eq_u64 vcc, exec"); a("s_cbranch_scc1 %s_ok" % label)
        a("s_sub_u32 s11, s11, 1"); a("s_cmp_lg_u32 s11, 0"); a("s_cbranch_scc1 %s" % label)
        a(label + "_ok:")

    def umax(regs):
        if len(regs) == 2: a("v_max_u32 v3, v%d, v%d" % tuple(regs)); return
        a("v_max3_u32 v3, v%d, v%d, v%d" % tuple(regs[:3])); rest = regs[3:]
        while len(rest) >= 2: a("v_max3_u32 v3, v3, v%d, v%d" % tuple(rest[:2])); rest = rest[2:]
        if rest: a("v_max_u32 v3, v3, v%d" % rest[0])

    def mpoll(label, loads, regs):
        def check(): umax(regs); a("v_cmp_eq_u32 vcc, -1, v3"); a("s_and_b64 exec, exec, vcc"); a("s_cbranch_scc0 %s_ok" % label)
        a("s_mov_b32 s11, %d" % SPIN)
        check()
        a(label + ":")
        for t in loads: a(t)
        a("s_waitcnt vmcnt(0)"); check()
        a("s_sub_u32 s11, s11, 1"); a("s_cmp_lg_u32 s11, 0"); a("s_cbranch_scc1 %s" % label)
        a(label + "_ok:")
        a("s_mov_b64 exec, -1")

    def store2(text):
        f, e = lab("far"), lab("sent")
        a("s_cmp_eq_u32 s100, 0"); a("s_cbranch_scc1 " + f); a(text); a("s_branch " + e); a(f + ":"); a(text + " sc1"); a(e + ":")

    def roles():
        note("s8 = partial slot (0..15 wo head pair, 16..27 w_down slice, >= 28 none), s9 = output column slice")
        e = lab("role")
        a("s_and_b32 s9, s2, 7"); a("s_lshr_b32 s8, s2, 3")
        a("s_cmp_lt_u32 s8, 16"); a("s_cbranch_scc1 " + e)
        a("s_sub_u32 s8, s8, 16"); a("s_cmp_eq_u32 s9, 0"); a("s_cselect_b32 s9, 8, s9"); a("s_cbranch_scc1 " + e)
        a("s_add_u32 s8, s8, 16"); a("s_cmp_lt_u32 s8, 28"); a("s_cbranch_scc1 " + e)
        a("s_mul_i32 s8, s8, 7"); a("s_add_u32 s8, s8, s9"); a("s_sub_u32 s8, s8, %d" % (28 * 7 + 1 - 16))
        a("s_mov_b32 s9, 0"); a("s_cmp_lt_u32 s8, 28"); a("s_cbranch_scc1 " + e)
        a("s_mov_b32 s9, 8"); a("s_sub_u32 s8, s8, 12")
        a(e + ":")

    def oslot(dst):
        a("s_and_b32 s4, s6, 15"); a("s_lshl_b32 s4, s4, 13"); a("s_lshr_b32 s5, s6, 4"); a("s_lshl_b32 s5, s5, 1"); a("s_add_u32 s5, s5, s7")
        a("s_lshl_b32 s5, s5, %d" % (6 if opair else 9)); a("s_add_u32 s4, s4, s5"); a("s_add_u32 %s, s4, %d" % (dst, WS_O))

    def l1slot(dst):
        a("s_and_b32 %s, s2, 7" % dst); a("s_lshl_b32 %s, %s, 5" % (dst, dst)); a("s_lshr_b32 s4, s2, 3"); a("s_add_u32 %s, %s, s4" % (dst, dst)); a("s_lshl_b32 %s, %s, 10" % (dst, dst))

    def slots(kind, e, lin, t):
        op = ("buffer_load_dword v%d" % (t + 2) if kind == "read" else "buffer_store_dwordx4 %s" % vr(e)) + ", v%d, %s, %s offen"
        fl = " sc1" if kind == "far" else ""
        k0, k = lab("nol"), lab("nop")
        l1slot("s5")
        a("s_lshr_b32 s4, s2, 3"); a("s_lshl_b32 s4, 1, s4"); a("s_and_b32 s4, s4, 0x%x" % (0xff | (0x1ff << 17))); a("s_cbranch_scc0 " + k0)
        a(op % (lin, sWS, "s5") + fl); a(k0 + ":")
        a("s_lshl_b32 s4, s6, 1"); a("s_add_u32 s4, s4, s7"); a("s_lshl_b32 s4, s4, 7"); a("s_add_u32 s4, s4, %d" % WS_STAT)
        a("s_mov_b64 exec, 0xff"); a(op % (lin, sWS, "s4") + fl); a("s_mov_b64 exec, -1")
        a("s_cmp_ge_u32 s8, 28"); a("s_cbranch_scc1 " + k)
        a("v_lshrrev_b32 v%d, %d, v0" % (t, 3 if pb else 4)); a("v_mul_u32_u24 v%d, %d, v%d" % (t, RS, t)); a("v_and_b32 v%d, %d, v0" % (t + 1, 7 if pb else 15)); a("v_lshl_add_u32 v%d, v%d, 4, v%d" % (t, t + 1, t))
        a("s_mul_i32 s4, s9, %d" % (8 * RS)); a("s_lshl_b32 s5, s8, %d" % SH); a("s_add_u32 s4, s4, s5"); a("s_add_u32 s4, s4, %d" % WS_P); a("s_add_u32 s5, s4, %d" % (4 * RS))
        st = [op % (t, sWS, s_) for s_ in (("s4",) if pb else ("s4", "s5"))]
        if kind != "far":
            f = lab("rem")
            a("s_cmp_lt_u32 s2, 224"); a("s_cselect_b32 s10, 0, s8"); a("s_cmp_ge_u32 s10, 16"); a("s_cbranch_scc1 " + (k if kind == "read" else f))
            for x_ in st: a(x_)
            if kind == "near": a("s_branch " + k); a(f + ":")
        if kind != "read":
            for x_ in st: a(x_ + " sc1")
        a(k + ":")

    def block_mm(base, tp, acc, act, first, hook=None):
        for i in range(8):
            t = tp + 4 * (i % 2)
            for q in range(4): a("v_perm_b32 v%d, v%d, v%d, s%d" % (t + q, base + 4 * (2 * q + 1) + i // 2, base + 4 * (2 * q) + i // 2, 12 + i % 2))
            if i > 0: a(MF % (vr(acc + 4 * (i - 1)), vr(act), vr(tp + 4 * ((i - 1) % 2)), "0" if first else vr(acc + 4 * (i - 1))))
            if hook and i % 4 == 0: hook()
        a(MF % (vr(acc + 28), vr(act), vr(tp + 4), "0" if first else vr(acc + 28)))
    def block_fold(dst, acc):
        for i in range(8): a("v_add_f32_dpp v%d, v%d, v%d row_ror:8 row_mask:0xf bank_mask:0x3" % (dst + i, acc + 4 * i + 1, acc + 4 * i))
        for i in range(8): a("v_add_f32_dpp v%d, v%d, v%d row_ror:8 row_mask:0xf bank_mask:0xc" % (dst + i, acc + 4 * i + 2, acc + 4 * i + 3))
    def actaddr(dst, t, rowbytes):
        a("v_bfe_u32 v%d, v0, 1, 3" % dst); a("v_mul_u32_u24 v%d, %d, v%d" % (dst, rowbytes, dst)); a("v_lshrrev_b32 v%d, 4, v0" % t); a("v_lshl_add_u32 v%d, v%d, 5, v%d" % (dst, t, dst))
        a("v_and_b32 v%d, 1, v0" % t); a("v_lshl_add_u32 v%d, v%d, 4, v%d" % (dst, t, dst))
    def prgaddr(line, word):
        a("s_and_b32 %s, s2, 7" % line); a("s_lshl_b32 %s, %s, 8" % (line, line)); a("s_add_u32 %s, %s, %d" % (line, line, WS_PRG))
        a("s_lshr_b32 %s, s2, 3" % word); a("s_lshl_b32 %s, %s, 2" % (word, word)); a("s_add_u32 %s, %s, %s" % (word, word, line))

    a(KN + ":")
    T(0)
    a("s_cmp_ge_u32 s2, 256"); a("s_cbranch_scc1 L_end")
    a("s_load_dwordx16 s[16:31], s[0:1], 0"); a("s_load_dwordx8 s[32:39], s[0:1], 64")
    a("v_lshrrev_b32 v1, 6, v0"); a("v_and_b32 v0, 63, v0"); a("v_readfirstlane_b32 s3, v1")
    a("s_and_b32 s6, s2, 7"); a("s_lshl_b32 s6, s6, 1"); a("s_bfe_u32 s7, s2, 0x10003"); a("s_or_b32 s6, s6, s7")
    a("s_and_b32 s7, s2, 0x70"); a("s_or_b32 s6, s6, s7"); a("s_lshr_b32 s7, s2, 7")
    a("s_cmp_lt_u32 s3, 4"); a("s_cbranch_scc1 L_stream")
    a("s_cmp_lg_u32 s3, %d" % pfw); a("s_cbranch_scc1 L_help")
    a("s_getpc_b64 s[4:5]")
    a("L_pc:")
    a("s_bfe_u32 s8, s2, 0x%x" % (((pf.bit_length() - 1) << 16) + 3)); a("s_mul_i32 s8, s8, %d" % pfn)
    a("v_add_u32 v1, s8, v0"); a("v_lshlrev_b32 v1, 7, v1"); a("v_min_u32 v1, L_codeend-L_pc-4, v1")
    a("v_mov_b32 v3, s5"); a("v_add_co_u32 v2, vcc, s4, v1"); a("v_addc_co_u32 v3, vcc, 0, v3, vcc")
    a("global_load_dword v255, v[2:3], off")
    a("s_branch L_help")

    a("L_stream:")
    vm = VM(a)
    vKo, vVo, vM, vL, vF = 1, 2, 5, 6, 7
    vMask, vQ0, vQ1, vAcc = 12, 16, 20, 24
    vD = [28, 32]
    pool = list(range(36, 252, 4))
    assert len(pool) >= R + (4 if nb1 else 2)
    a("v_lshrrev_b32 v3, 4, v0"); a("v_lshlrev_b32 v3, 6, v3")
    a("v_and_b32 v4, 3, v0"); a("v_lshl_or_b32 v3, v4, 4, v3")
    if amap[10] == amap[9] + 1: a("v_bfe_u32 v4, v0, 2, 2"); a("v_lshl_or_b32 v%d, v4, %d, v3" % (vKo, amap[9]))
    else:
        a("v_bfe_u32 v4, v0, 2, 1"); a("v_lshl_or_b32 v3, v4, %d, v3" % amap[9]); a("v_bfe_u32 v4, v0, 3, 1"); a("v_lshl_or_b32 v%d, v4, %d, v3" % (vKo, amap[10]))
    a("s_lshl_b32 s14, s6, 21"); a("s_lshl_b32 s15, s7, %d" % amap[8]); a("s_add_u32 s14, s14, s15"); a("s_add_u32 s14, s14, %d" % (6144 * 256))
    if amap[1] == amap[0] + 1: a("s_lshl_b32 s15, s3, %d" % amap[0]); a("s_add_u32 s14, s14, s15")
    else:
        a("s_and_b32 s15, s3, 1"); a("s_lshl_b32 s15, s15, %d" % amap[0]); a("s_add_u32 s14, s14, s15")
        a("s_lshr_b32 s15, s3, 1"); a("s_lshl_b32 s15, s15, %d" % amap[1]); a("s_add_u32 s14, s14, s15")
    a("s_mov_b32 s42, 0x10000000"); a("s_mov_b32 s43, 0x20000")
    a("s_waitcnt lgkmcnt(0)")
    a("s_mov_b32 s40, s18"); a("s_mov_b32 s41, s19")
    if ts == 3: T.on = 0
    slot, tok, free, issued = {}, {}, pool[:], [0]
    def kidx(n): return n if n < 64 else (n - 64) ^ vrev
    def issue_next():
        n = issued[0]; issued[0] += 1
        r = free.pop(0); slot[n] = r
        a("s_add_u32 s10, s14, %d" % sum(((kidx(n) >> i) & 1) << amap[2 + i] for i in range(6)))
        tok[n] = vm.issue("buffer_load_dwordx4 %s, v%d, %s, s10 offen nt" % (vr(r), vKo if n < 64 else vVo, sK if n < 64 else sV))
        if ts == 3 and n in TSN: T.on = 1; T(1 + TSN.index(n)); T.on = 0
        if n == 127 and svk is None: note("SV: every V load is issued, second-layer weights may follow"); a("s_barrier")
    for _ in range(b0): issue_next()
    if lay: a("s_branch L_smain"); a("; HOIST"); a("L_smain:")
    if prio: a("s_setprio %d" % prio)
    srd(a, 44, 20, "0x10000000"); srd(a, 52, 38, "0x40000000")
    if vt:
        a("s_mov_b64 exec, 1"); vm.issue("buffer_load_dword v255, v%d, %s, s14 offen nt" % (vKo, sV)); a("s_mov_b64 exec, -1")
    a("v_and_b32 v3, 15, v0"); a("v_lshlrev_b32 v3, 4, v3"); a("v_bfe_u32 v4, v0, 4, 1"); a("v_lshl_or_b32 v3, v4, %d, v3" % amap[9])
    a("v_lshrrev_b32 v4, 5, v0"); a("v_lshl_or_b32 v%d, v4, %d, v3" % (vVo, amap[10]))
    a("v_bfe_u32 v3, v0, 3, 1"); a("v_bfe_u32 v4, v0, 1, 1"); a("v_lshl_or_b32 v3, v3, 1, v4")
    a("v_and_b32 v4, 1, v0"); a("v_lshlrev_b32 v4, 4, v4"); a("v_mov_b32 v5, 0xffff"); a("v_lshlrev_b32 v4, v4, v5")
    for r in range(4):
        a("v_cmp_eq_u32 vcc, %d, v3" % r); a("v_cndmask_b32 v%d, 0, v4, vcc" % (vMask + r))
    oslot("s26"); a("s_lshl_b32 s5, s3, %d" % (11 if opair else 7)); a("s_add_u32 s26, s26, s5")
    a("s_lshl_b32 s4, s3, 2"); a("v_lshlrev_b32 v9, 4, v0"); a("v_add_u32 v8, s4, v9"); a("v_mov_b32 v253, 0"); a("s_mov_b32 s27, 0")
    if pw: a("v_mov_b32 v255, s4")
    def D0(n):
        if n < nd0: return d0
        if n < nd1: return d0 + 1
        if R - s1x <= n < R: return d + (n - (R - s1x) + 1)
        if n < nramp: return d
        return min(dend, d + (n - nramp + 1) // step)
    def D(n): return D0(n) + (lv[-1] - d if n >= C0 else 0)
    def paced():
        n = issued[0]
        if n >= 128: return
        if n >= D(n): vm.wait(tok[n - D(n)])
        if dfree <= n < nfr and dfree < d and tok[n - dfree] > vm.done:
            a("s_cbranch_vccz L_fr%d" % n); a("s_waitcnt vmcnt(%d)" % (vm.n - tok[n - dfree])); a("L_fr%d:" % n)
        if n >= C0:
            if n % 2 == 1: a("s_waitcnt lgkmcnt(0)"); a("v_readfirstlane_b32 s27, v252")
            used = False
            for l_, t_ in reversed(list(zip(lv[:-1], th))):
                m = n - (D0(n) - d + l_)
                if tok[m] > vm.done:
                    a("s_cmp_ge_i32 s27, %d" % int(32 * t_)); a("s_cbranch_scc1 L_hi%d" % n); a("s_waitcnt vmcnt(%d)" % (vm.n - tok[m])); used = True
            if used: a("L_hi%d:" % n)
        issue_next()
        if nb1 and n == nfree and n < C0: a("v_mov_b32 v254, %d" % n); a("ds_write_b32 v8, v254 offset:%d" % L_G)
        if n >= C0:
            if n % pst == 0: a("v_mov_b32 v254, %d" % n); a("ds_write_b32 v8, v254 offset:%d" % L_G)
            if n % 2 == 0: a("ds_read_b32 v252, v255 offset:%d" % L_C4 if pw else "ds_read_b32 v252, v253 offset:%d" % L_C)
    def ahead(n):
        while issued[0] < 128 and issued[0] - D(issued[0]) < n: paced()
    if nb1: note("E0: the LDS control words are reset"); a("s_barrier")
    a("s_cmp_ge_u32 s2, 208"); a("s_cbranch_scc1 L_go_ok")
    if sln:
        note("layer norm of two batch rows per wave, rounded step by step like the bf16 reference")
        vx = vm.copy()
        xr = [pool[-1 - i // 4] + i % 4 for i in range(9)]; xf = [pool[-4 - i // 4] + i % 4 for i in range(18)]
        srd(a, 48, 16, 9216)
        a("v_lshrrev_b32 v3, 5, v0"); a("v_mul_u32_u24 v3, 1152, v3"); a("v_and_b32 v4, 31, v0"); a("v_lshl_add_u32 v3, v4, 2, v3"); a("s_mul_i32 s4, s3, 2304")
        if xw: vx.wait(tok[xw - 1])
        for i in range(9): a("buffer_load_dword v%d, v3, %s, s4 offen offset:%d" % (xr[i], sX, 128 * i))
        if not rowb: a("v_bfe_u32 v4, v0, 3, 2"); a("v_lshlrev_b32 v11, 8, v4"); a("v_bfe_u32 v4, v0, 2, 1"); a("v_lshl_or_b32 v11, v4, 4, v11"); a("v_and_b32 v4, 3, v0"); a("v_lshl_or_b32 v11, v4, 2, v11")
        if rowb: a("v_and_b32 v4, 3, v0"); a("v_lshlrev_b32 v11, 8, v4"); a("v_bfe_u32 v4, v0, 2, 3"); a("v_lshl_or_b32 v11, v4, 1, v11")
        a("v_lshrrev_b32 v4, 5, v0"); a("v_lshl_or_b32 v11, v4, 5, v11"); a("s_lshl_b32 s4, s3, 6"); a("v_add_u32 v11, s4, v11")
        a("s_waitcnt vmcnt(0)")
        def unp():
            for i in range(9): a("v_lshlrev_b32 v%d, 16, v%d" % (xf[2 * i], xr[i])); a("v_and_b32 v%d, 0xffff0000, v%d" % (xf[2 * i + 1], xr[i]))
        def pk(op, last):
            for i in range(0, 18, 2): a("%s %s, %s, %s" % (op, vr(xf[i], 2), vr(xf[i], 2), last))
        unp()
        a("v_pk_add_f32 v[4:5], %s, %s" % (vr(xf[0], 2), vr(xf[2], 2)))
        for i in range(4, 18, 2): a("v_pk_add_f32 v[4:5], v[4:5], %s" % vr(xf[i], 2))
        a("v_add_f32 v10, v4, v5"); allreduce(a, "v_add_f32", 10, 3, [8, 4, 2, 1, 16])
        a("v_mul_f32 v10, %s, v10" % f32(1 / 576)); a("v_mov_b32 v4, v10"); round_bf16(a, 4)
        a("v_sub_f32 v10, v10, v4"); a("v_sub_f32 v4, 0, v4"); a("v_mov_b32 v5, v4")
        pk("v_pk_add_f32", "v[4:5]")
        a("v_pk_mul_f32 v[6:7], %s, %s" % (vr(xf[0], 2), vr(xf[0], 2)))
        for i in range(2, 18, 2): a("v_pk_fma_f32 v[6:7], %s, %s, v[6:7]" % (vr(xf[i], 2), vr(xf[i], 2)))
        a("v_add_f32 v4, v6, v7"); allreduce(a, "v_add_f32", 4, 3, [8, 4, 2, 1, 16])
        a("v_mul_f32 v4, %s, v4" % f32(1 / 576)); a("v_fma_f32 v4, -v10, v10, v4"); a("v_max_f32 v4, 0, v4"); round_bf16(a, 4)
        a("v_add_f32 v4, %s, v4" % f32(1e-5)); round_bf16(a, 4)
        a("v_sqrt_f32 v4, v4"); round_bf16(a, 4); a("v_rcp_f32 v4, v4")
        for i in range(9): a("v_cvt_pk_bf16_f32 v%d, v%d, v%d" % (xr[i], xf[2 * i], xf[2 * i + 1]))
        a("v_mov_b32 v5, v4"); unp(); pk("v_pk_mul_f32", "v[4:5]")
        for i in range(9):
            a("v_cvt_pk_bf16_f32 v%d, v%d, v%d" % (xr[i], xf[2 * i], xf[2 * i + 1]))
            if rowb:
                a("ds_write_b16 v11, v%d offset:%d" % (xr[i], L_XN + 1024 * i)); a("ds_write_b16_d16_hi v11, v%d offset:%d" % (xr[i], L_XN + 1024 * i + 16))
            else: a("ds_write_b32 v11, v%d offset:%d" % (xr[i], L_XN + 1024 * i))
        a("v_mov_b32 v4, 1"); a("s_mov_b64 exec, 1"); a("ds_add_u32 v253, v4 offset:%d" % L_X); a("s_mov_b64 exec, -1")
    def body(): a("ds_read_b32 v4, v253 offset:%d" % L_GO); a("s_waitcnt lgkmcnt(0)"); a("v_cmp_le_u32 vcc, 3, v4")
    spin(body, "L_go")
    a("s_cmp_ge_u32 s2, 208"); a("s_cselect_b64 vcc, -1, 0")
    while issued[0] < R:
        paced()
        if issued[0] == 24: T(1)
        if issued[0] == nfree and not nb1:
            a("s_cmp_lt_u32 s2, 208"); a("s_cbranch_scc1 L_nofb"); a("s_barrier"); a("L_nofb:")
    T(2)
    if nb1:
        note("q and the die mode are valid once the ready word, read first, is set")
        def rdq(): a("ds_read_b32 v10, v253 offset:%d" % L_R); a("ds_read_b128 %s, v9 offset:%d" % (vr(vQ0), L_Q)); a("ds_read_b32 v4, v253 offset:%d" % L_F)
        rdq(); paced(); paced()
        a("v_cmp_ne_u32 vcc, 0, v10"); a("s_cmp_eq_u64 vcc, exec"); a("s_cbranch_scc1 L_rdy_ok")
        def body(): rdq(); a("s_waitcnt lgkmcnt(0)"); a("v_cmp_ne_u32 vcc, 0, v10")
        spin(body, "L_rdy")
        T(3)
        a("v_and_b32 v3, 8, v0"); a("v_cmp_eq_u32 vcc, 0, v3"); a("v_mov_b32 v%d, 0xff800000" % vM)
        a("s_mov_b32 s15, %s" % f32(128 ** -0.5))
    else:
        note("S1: q and the die mode are in LDS")
        a("s_barrier")
        T(3)
        a("ds_read_b128 %s, v9 offset:%d" % (vr(vQ0), L_Q))
        a("ds_read_b32 v4, v253 offset:%d" % L_F)
        for _ in range(s1p): paced()
        a("v_and_b32 v3, 8, v0"); a("v_cmp_eq_u32 vcc, 0, v3"); a("v_mov_b32 v%d, 0xff800000" % vM)
        a("s_mov_b32 s15, %s" % f32(128 ** -0.5))
        a("s_waitcnt lgkmcnt(0)")
    a("v_readfirstlane_b32 s100, v4")
    if nb1: a("s_and_b32 s100, s100, 1")
    for i in range(4): a("v_cndmask_b32 v%d, v%d, 0, vcc" % (vQ1 + i, vQ0 + i))
    for i in range(4): a("v_cndmask_b32 v%d, 0, v%d, vcc" % (vQ0 + i, vQ0 + i))
    vD += [free.pop(), free.pop()]
    S = []
    def qk(c):
        Dr = vD[c % 4]
        vm.wait(tok[2 * c + 1])
        a(MF % (vr(Dr), vr(slot[2 * c]), vr(vQ0), "0")); a(MF % (vr(Dr), vr(slot[2 * c + 1]), vr(vQ1), vr(Dr)))
        free.extend([slot[2 * c], slot[2 * c + 1]])
    def extract(c, mid=None):
        if c % 4 == 0: S.extend(range(free[-1], free[-1] + 4)); free.pop()
        x, y, DA, DB = S[c], S[c + 1], vD[c % 4], vD[(c + 1) % 4]
        for i in range(4):
            for s_, Dr in ((x, DA), (y, DB)):
                if i == 0: a("v_mov_b32_dpp v%d, v%d quad_perm:[0,0,0,0] %s" % (s_, Dr, DPP))
                else: a("v_add_f32_dpp v%d, v%d, v%d quad_perm:[%d,%d,%d,%d] %s" % (s_, Dr + i, s_, i, i, i, i, DPP))
        if mid: mid()
        for rep in range(2):
            a("v_cvt_pk_bf16_f32 v3, v%d, v%d" % (x, y))
            a("v_lshlrev_b32 v%d, 16, v3" % x); a("v_and_b32 v%d, 0xffff0000, v3" % y)
            if rep == 0: a("v_mul_f32 v%d, s15, v%d" % (x, x)); a("v_mul_f32 v%d, s15, v%d" % (y, y))
        a("v_max3_f32 v%d, v%d, v%d, v%d" % (vM, vM, x, y))
    if ilv:
        for c in range(0, 32, 2):
            ahead(2 * c + 3)
            qk(c); qk(c + 1)
            paced()
            if c >= 2: extract(c - 2, paced)
            else: paced()
    else:
        for c in range(0, 32, 2):
            ahead(2 * c + 3)
            qk(c); qk(c + 1)
            paced(); paced()
            if c >= 2: extract(c - 2)
    extract(30)
    free.extend(vD[2:])
    T(4)
    paced()
    allreduce(a, "v_max_f32", vM, 3, [8, 16, 32])
    a("s_mov_b32 s15, %s" % f32(L2E)); a("v_mul_f32 v%d, s15, v%d" % (vM, vM)); a("v_mov_b32 v%d, 0" % vL); a("v_mov_b32 v4, 0")
    for c in range(0, 32, 4):
        for i in range(4): a("v_fma_f32 v%d, v%d, s15, -v%d" % (S[c + i], S[c + i], vM))
        for i in range(4): a("v_exp_f32 v%d, v%d" % (S[c + i], S[c + i]))
        for i in range(4): a("v_add_f32 v%d, v%d, v%d" % ((vL, 4)[i % 2], (vL, 4)[i % 2], S[c + i]))
        for i in range(4): a("v_cvt_pk_bf16_f32 v%d, v%d, v%d" % (S[c + i], S[c + i], S[c + i]))
        if c % 8 == 4: paced()
    a("v_add_f32 v%d, v%d, v4" % (vL, vL))
    allreduce(a, "v_add_f32", vL, 3, [8, 16, 32])
    a("v_min_u32 v10, -2, v%d" % vM); a("v_min_u32 v11, -2, v%d" % vL)
    a("v_lshlrev_b32 v9, 1, v0"); a("v_and_b32 v9, 0x38, v9"); a("v_lshrrev_b32 v3, 5, v0"); a("v_lshl_or_b32 v9, v3, 7, v9")
    a("s_lshl_b32 s73, s6, 8"); a("s_add_u32 s73, s73, %d" % WS_STAT)
    a("s_lshl_b32 s4, s7, 3"); a("s_add_u32 s4, s4, s3"); a("s_lshl_b32 s4, s4, 4"); a("s_add_u32 s4, s4, s73")
    a("s_mov_b64 exec, 0x11")
    if not nost: store2("buffer_store_dwordx2 v[10:11], v9, %s, s4 offen" % sWS); vm.n += 1
    a("s_mov_b64 exec, -1")
    vB = vD[:2]
    def prepB(n):
        c, t = divmod(kidx(n), 2)
        for r in range(4):
            if (r >> 1) == t: a("v_and_b32 v%d, v%d, v%d" % (vB[n % 2] + r, S[c], vMask + r))
            else: a("v_and_b32_dpp v%d, v%d, v%d row_ror:8 %s" % (vB[n % 2] + r, S[c], vMask + r, DPP))
    prepB(64)
    tstat = None
    ldS = "buffer_load_dwordx2 v[10:11], v9, %s, s73 offen sc1" % sWS
    for n in range(64, 128):
        ahead(n)
        if tstat is None and issued[0] >= stat_at: tstat = vm.issue(ldS)
        vm.wait(tok[n])
        if svk is not None and n == 127 - svk: assert issued[0] == 128; note("SV: second-layer weights may follow"); a("s_barrier")
        a(MF % (vr(vAcc), vr(slot[n]), vr(vB[n % 2]), "0" if n == 64 else vr(vAcc)))
        free.append(slot[n])
        if n % 2 == 1 and issued[0] < 128 and issued[0] - D(issued[0]) > n: paced()
        if n < 127: prepB(n + 1)
        if tstat and tstat > 0 and vm.done >= tstat:
            note("combine the eight (max, sum) pairs of the row: f = exp(own max - row max) / row sum")
            def stat_valid(): a("v_max_u32 v3, v10, v11"); a("v_cmp_ne_u32 vcc, -1, v3")
            if nost: a("s_branch L_stat_ok")
            stat_valid(); a("s_cmp_eq_u64 vcc, exec"); a("s_cbranch_scc1 L_stat_ok")
            def body(): a(ldS); a("s_waitcnt vmcnt(0)"); stat_valid()
            spin(body, "L_stat")
            a("v_mov_b32 v%d, v10" % vF); allreduce(a, "v_max_f32", vF, 3, [8, 16, 32])
            a("v_sub_f32 v10, v10, v%d" % vF); a("v_sub_f32 v%d, v%d, v%d" % (vF, vM, vF))
            a("v_exp_f32 v10, v10"); a("v_exp_f32 v%d, v%d" % (vF, vF)); a("v_mul_f32 v10, v10, v11")
            paced()
            allreduce(a, "v_add_f32", 10, 3, [8, 16, 32])
            a("v_rcp_f32 v10, v10"); a("v_mul_f32 v%d, v%d, v10" % (vF, vF)); a("v_mov_b32 v%d, v%d" % (vL, vF))
            a("v_bfe_u32 v3, v0, 2, 1"); a("v_mul_u32_u24 v9, 704, v3"); a("v_lshrrev_b32 v4, 4, v0"); a("v_mul_u32_u24 v4, 160, v4"); a("v_add_u32 v9, v9, v4")
            a("v_bfe_u32 v3, v0, 3, 1"); a("v_lshl_add_u32 v9, v3, 4, v9"); a("v_and_b32 v3, 3, v0"); a("v_lshl_add_u32 v9, v3, 2, v9")
            a("s_mul_i32 s4, s3, 1536"); a("s_add_u32 s4, s4, %d" % L_OP); a("v_add_u32 v9, s4, v9")
            a("s_lshr_b32 s4, s3, 1"); a("s_mul_i32 s4, s4, 704"); a("s_and_b32 s5, s3, 1"); a("s_mul_i32 s5, s5, 320"); a("s_add_u32 s4, s4, s5")
            a("v_and_b32 v3, 15, v0"); a("v_lshl_add_u32 v10, v3, 3, v4"); a("v_add_u32 v10, s4, v10"); a("v_lshlrev_b32 v11, 2, v0")
            if opair: a("v_lshlrev_b32 v11, 2, v3"); a("v_lshrrev_b32 v3, 4, v0"); a("v_lshl_or_b32 v11, v3, 10, v11")
            tstat = -1
    assert tstat == -1
    T(6)
    for i in (0, 2): a("v_pk_mul_f32 %s, %s, v[6:7]" % (vr(vAcc + i, 2), vr(vAcc + i, 2)))
    a("ds_write2_b32 v9, v%d, v%d offset0:0 offset1:8" % (vAcc, vAcc + 1))
    a("ds_write2_b32 v9, v%d, v%d offset0:16 offset1:24" % (vAcc + 2, vAcc + 3))
    a("s_waitcnt lgkmcnt(0)"); a("s_barrier")
    a("s_mov_b32 exec_hi, 0")
    for w in range(4): a("ds_read_b64 %s, v10 offset:%d" % (vr(16 + 2 * w, 2), L_OP + 1536 * w))
    a("s_waitcnt lgkmcnt(2)"); a("v_pk_add_f32 v[16:17], v[16:17], v[18:19]")
    a("s_waitcnt lgkmcnt(0)"); a("v_pk_add_f32 v[20:21], v[20:21], v[22:23]"); a("v_pk_add_f32 v[16:17], v[16:17], v[20:21]")
    a("v_cvt_pk_bf16_f32 v3, v16, v17"); a("v_min_u32 v3, -2, v3")
    a("buffer_store_dword v3, v11, %s, s26 offen sc1" % sWS)
    T(5)
    if split: note("the held-back weight loads go out behind these stores"); a("s_barrier")
    if oat < 0: a("s_waitcnt vmcnt(0)")
    T.on = ts
    T.flush()
    a("s_endpgm")

    a("; HBEG")
    a("L_help:")
    vLin, vWo = 1, 2
    a("v_lshlrev_b32 v%d, 4, v0" % vLin)
    a("s_mov_b32 s12, 0x05040100"); a("s_mov_b32 s13, 0x07060302")
    a("s_cmp_eq_u32 s3, 5"); a("s_cbranch_scc1 L_h5")
    vm = VM(a)
    vXN, vAc, vTp, vRing = 8, 44, 244, 116
    a("s_lshr_b32 s101, s2, 3"); a("s_and_b32 s4, s2, 7")
    a("s_cmp_lt_u32 s101, 8"); a("s_movk_i32 s14, 8192"); a("s_cselect_b32 s14, s14, 9216"); a("s_mov_b32 s58, 4718592"); a("s_cselect_b32 s58, s58, 5308416")
    a("s_cselect_b32 s5, 8, 9"); a("s_cselect_b32 s15, 0, 8"); a("s_mul_i32 s4, s4, s5")
    a("s_cmp_lt_u32 s101, 17"); a("s_cselect_b32 s15, s15, 17"); a("s_sub_u32 s15, s101, s15"); a("s_add_u32 s74, s15, s4"); a("s_lshl_b32 s15, s74, 7")
    a("v_lshrrev_b32 v3, 3, v0")
    if not rowb: a("v_lshlrev_b32 v3, 3, v3")
    a("v_mul_u32_u24 v3, s14, v3"); a("v_and_b32 v2, 7, v0"); a("v_lshl_add_u32 v%d, v2, 4, v3" % vWo)
    if not sln: actaddr(3, 4, 1152)
    a("s_sub_u32 s10, s3, 5"); a("s_max_i32 s10, s10, 0"); a("s_mul_i32 s4, s10, 192"); a("s_mul_i32 s4, s4, s14"); a("s_add_u32 s15, s15, s4")
    a("s_lshl_b32 s14, s14, 3" if rowb else "s_mul_i32 s75, s14, 57"); a("s_mov_b32 s59, 0x20000")
    a("s_waitcnt lgkmcnt(0)")
    a("s_cmp_ge_u32 s2, 208"); a("s_cbranch_scc1 L_nol1")
    a("s_cmp_lt_u32 s101, 17"); a("s_cselect_b32 s56, s28, s30"); a("s_cselect_b32 s57, s29, s31")
    a("s_cmp_lt_u32 s101, 8"); a("s_cselect_b32 s56, s22, s56"); a("s_cselect_b32 s57, s23, s57")
    w1 = []
    for n in range(24):
        if n == da1: srd(a, 52, 38, "0x40000000"); a("s_barrier")
        if n >= da1: vm.wait(w1[n - da1])
        w1.append(vm.issue("buffer_load_dwordx4 %s, v%d, %s, s15 offen nt" % (vr(vRing + 4 * n), vWo, sW1)))
        a("s_add_u32 s15, s15, %s" % ("s75" if n % 8 == 7 and not rowb else "s14"))
    if lay: a("s_branch L_amain")
    a("; HEND"); a("L_amain:")
    if not sln: srd(a, 48, 16, 9216)
    a("v_mov_b32 v6, 0"); a("v_mov_b32 v7, 1")
    vm.wait(w1[23 - kw])
    a("s_mov_b64 exec, 1"); a("ds_add_u32 v6, v7 offset:%d" % L_GO); a("s_mov_b64 exec, -1")
    if sln:
        a("s_mul_i32 s4, s10, 3072"); a("v_add_u32 v5, s4, v%d" % vLin)
        def body():
            a("ds_read_b32 v4, v6 offset:%d" % L_X)
            for k in range(3): a("ds_read_b128 %s, v5 offset:%d" % (vr(vXN + 4 * k), L_XN + 1024 * k))
            a("s_waitcnt lgkmcnt(0)"); a("v_cmp_le_u32 vcc, 4, v4")
        spin(body, "L_xw")
    else:
        for i in range(9): tx = vm.issue("buffer_load_dwordx4 %s, v3, %s, 0 offen offset:%d" % (vr(vXN + 4 * i), sX, 128 * i))
        xf = 44
        def unpack_n(n):
            for i in range(n): a("v_lshlrev_b32 v%d, 16, v%d" % (xf + 2 * i, vXN + i)); a("v_and_b32 v%d, 0xffff0000, v%d" % (xf + 2 * i + 1, vXN + i))
        def pack_n(off):
            for i in range(12): a("v_cvt_pk_bf16_f32 v%d, v%d, v%d" % (vXN + i, xf + off + 2 * i, xf + off + 2 * i + 1))
        for i in range(4): a("v_mov_b32 v%d, 0x3f803f80" % (244 + i))
        vm.wait(tx)
        for i in range(9): a(MF % ("v[248:251]", "v[244:247]", vr(vXN + 4 * i), "0" if i == 0 else "v[248:251]"))
        unpack_n(36)
        allreduce(a, "v_add_f32", 248, 249, [0])
        a("v_mul_f32 v248, %s, v248" % f32(1 / 576)); a("v_mov_b32 v4, v248"); round_bf16(a, 4)
        a("v_sub_f32 v248, v248, v4"); a("v_sub_f32 v4, 0, v4"); a("v_mov_b32 v5, v4")
        for i in range(36): a("v_pk_add_f32 %s, %s, v[4:5]" % (vr(xf + 2 * i, 2), vr(xf + 2 * i, 2)))
        for i in range(36):
            acc = vr(244 + 2 * (i % 2), 2); x2 = vr(xf + 2 * i, 2)
            a("v_pk_mul_f32 %s, %s, %s" % (acc, x2, x2) if i < 2 else "v_pk_fma_f32 %s, %s, %s, %s" % (acc, x2, x2, acc))
        a("v_pk_add_f32 v[244:245], v[244:245], v[246:247]"); a("v_add_f32 v4, v244, v245")
        allreduce(a, "v_add_f32", 4, 5, [0, 16, 32])
        a("v_mul_f32 v4, %s, v4" % f32(1 / 576)); a("v_fma_f32 v4, -v248, v248, v4"); a("v_max_f32 v4, 0, v4"); round_bf16(a, 4)
        a("v_add_f32 v4, %s, v4" % f32(1e-5)); round_bf16(a, 4)
        a("v_sqrt_f32 v4, v4"); round_bf16(a, 4); a("v_rcp_f32 v4, v4")
        a("s_cmp_eq_u32 s10, 1"); a("s_cbranch_scc1 L_th1"); a("s_cmp_eq_u32 s10, 2"); a("s_cbranch_scc1 L_th2")
        pack_n(0); a("s_branch L_th"); a("L_th1:"); pack_n(24); a("s_branch L_th"); a("L_th2:"); pack_n(48); a("L_th:")
        a("v_mov_b32 v5, v4"); unpack_n(12)
        for i in range(12): a("v_pk_mul_f32 %s, %s, v[4:5]" % (vr(xf + 2 * i, 2), vr(xf + 2 * i, 2)))
        pack_n(0)
    T(1)
    def flagaddr(): a("v_and_b32 v253, 7, v0"); a("v_and_b32 v254, 24, v0"); a("v_lshl_or_b32 v253, v254, 1, v253"); a("v_lshlrev_b32 v253, 2, v253")
    ldF = "buffer_load_dword v252, v253, %s, 0 offen sc1" % sDBG
    for blk in range(3): vm.wait(w1[8 * blk + 7]); block_mm(vRing + 32 * blk, vTp, vAc, vXN + 4 * blk, blk == 0)
    T(2)
    block_fold(vTp, vAc)
    a("s_cmp_eq_u32 s3, 4"); a("s_cbranch_scc1 L_l1sum")
    a("s_lshl_b32 s4, s10, 11"); a("v_add_u32 v5, s4, v%d" % vLin)
    for x in range(2): a("ds_write_b128 v5, %s offset:%d" % (vr(vTp + 4 * x), L_LP + 1024 * x))
    a("s_mov_b64 exec, 1"); a("ds_add_u32 v6, v7 offset:%d" % L_N); a("s_mov_b64 exec, -1")
    a("s_branch L_h67")
    a("L_l1sum:")
    def body():
        a("ds_read_b32 v8, v6 offset:%d" % L_N)
        for k in range(4): a("ds_read_b128 %s, v%d offset:%d" % (vr(16 + 4 * k), vLin, L_LP + 2048 + 1024 * k))
        a("s_waitcnt lgkmcnt(0)"); a("v_cmp_le_u32 vcc, 2, v8")
    spin(body, "L_l1w")
    for k in range(2):
        for i in range(0, 8, 2): a("v_pk_add_f32 %s, %s, %s" % (vr(vTp + i, 2), vr(vTp + i, 2), vr(16 + 8 * k + i, 2)))
    for q in range(4): a("v_cvt_pk_bf16_f32 v%d, v%d, v%d" % (12 + q, vTp + 2 * q, vTp + 2 * q + 1))
    for q in range(4): a("v_min_u32 v%d, -2, v%d" % (12 + q, 12 + q))
    a("s_branch L_l1done")
    a("L_nol1:")
    srd(a, 52, 38, "0x40000000")
    a("s_barrier")
    a("s_cmp_lg_u32 s3, 4"); a("s_cbranch_scc1 L_h67")
    a("L_l1done:")
    T(10)
    roles()
    def modeblock():
        note("all 256 workgroups must have emptied their slots before any hand-off is written or read")
        a("s_mov_b32 s5, 0x88888888")
        def fvalid(): a("v_and_b32 v8, s5, v252"); a("v_cmp_eq_u32 vcc, s5, v8")
        fvalid(); a("s_cmp_eq_u64 vcc, exec"); a("s_cbranch_scc1 L_flags_ok")
        def body(): a(ldF); a("s_waitcnt vmcnt(0)"); fvalid()
        spin(body, "L_flags")
        a("v_readfirstlane_b32 s4, v252"); a("v_cmp_eq_u32 vcc, s4, v252"); a("s_cmp_eq_u64 vcc, exec"); a("s_cselect_b32 s100, %d, 0" % loc)
        a("s_cmp_lg_u32 s100, 0"); a("s_cbranch_scc1 L_mode_ok")
        for i in range(4): a("v_mov_b32 v%d, -1" % (16 + i))
        slots("far", 16, vLin, 20)
        a("s_lshl_b32 s10, s2, 7"); a("s_add_u32 s10, s10, %d" % WS_GO); a("v_lshlrev_b32 v20, 7, v0"); a("v_mov_b32 v21, 1")
        a("s_mov_b64 exec, 1"); a("buffer_store_dword v16, v20, %s, s10 offen sc1" % sWS); a("s_waitcnt vmcnt(0)")
        a("s_and_b32 s5, s2, 3"); a("s_lshl_b32 s5, s5, 6"); a("s_add_u32 s5, s5, 36")
        a("s_mov_b32 s4, 1"); a("s_atomic_add s4, s[36:37], s5 glc"); a("s_waitcnt lgkmcnt(0)")
        a("s_and_b32 s4, s4, 63"); a("s_cmp_lg_u32 s4, 63"); a("s_cbranch_scc1 L_notlast")
        a("s_mov_b32 s4, 1"); a("s_atomic_add s4, s[36:37], 40 glc"); a("s_waitcnt lgkmcnt(0)")
        a("s_and_b32 s4, s4, 3"); a("s_cmp_lg_u32 s4, 3"); a("s_cbranch_scc1 L_notlast")
        a("s_mov_b64 exec, -1")
        for k in range(4): a("s_mov_b32 s4, %d" % (WS_GO + 8192 * k)); a("buffer_store_dword v21, v20, %s, s4 offen sc1" % sWS)
        a("s_mov_b64 exec, 1")
        a("L_notlast:")
        def body(): a("buffer_load_dword v8, v20, %s, s10 offen sc1" % sWS); a("s_waitcnt vmcnt(0)"); a("v_cmp_ne_u32 vcc, -1, v8")
        spin(body, "L_far")
        a("s_mov_b64 exec, -1")
        a("L_mode_ok:")
    if ec:
        a("v_mov_b32 v9, 0")
        def body(): a("ds_read_b32 v8, v9 offset:%d" % L_F); a("s_waitcnt lgkmcnt(0)"); a("v_cmp_ne_u32 vcc, 0, v8")
        spin(body, "L_amode")
        a("v_readfirstlane_b32 s100, v8"); a("s_and_b32 s100, s100, 1")
    else: modeblock()
    T(4)
    l1slot("s72")
    a("s_cmp_ge_u32 s2, 208"); a("s_cbranch_scc1 L_nol1st")
    a("s_sub_u32 s4, s101, 8"); a("s_cmp_lt_u32 s4, 9"); a("s_cbranch_scc1 L_nol1st")
    store2("buffer_store_dwordx4 v[12:15], v%d, %s, s72 offen" % (vLin, sWS))
    a("L_nol1st:")
    if ec: pass
    elif nb1: a("s_add_u32 s4, s100, 2"); a("v_mov_b32 v8, s4"); a("v_mov_b32 v9, 0"); a("ds_write_b32 v9, v8 offset:%d" % L_F)
    else:
        a("v_mov_b32 v8, s100"); a("v_mov_b32 v9, 0"); a("ds_write_b64 v9, v[8:9] offset:%d" % L_F)
        for i in range(4): a("v_mov_b32 v%d, %d" % (16 + i, R - 1))
        a("ds_write_b128 v9, v[16:19] offset:%d" % L_G)
        if pw:
            for i in range(4): a("v_mov_b32 v%d, 0" % (20 + i))
            a("ds_write_b128 v9, v[20:23] offset:%d" % L_C4)
    a("v_bfe_u32 v3, v0, 2, 1"); a("v_lshlrev_b32 v3, 11, v3"); a("v_lshrrev_b32 v4, 5, v0"); a("v_lshl_or_b32 v3, v4, 10, v3")
    a("v_bfe_u32 v4, v0, 4, 1"); a("v_lshl_or_b32 v3, v4, 6, v3"); a("v_and_b32 v4, 3, v0"); a("v_lshl_or_b32 v10, v4, 4, v3")
    a("s_and_b32 s4, s2, 7"); a("s_lshl_b32 s4, s4, 15"); a("s_and_b32 s5, s6, 1"); a("s_lshl_b32 s5, s5, 12"); a("s_add_u32 s4, s4, s5")
    a("s_lshr_b32 s5, s6, 4"); a("s_lshl_b32 s5, s5, 7"); a("s_add_u32 s4, s4, s5")
    def poll4(r, va, label):
        ld = "buffer_load_dwordx4 %s, v%d, %s, s4 offen sc1" % (vr(r), va, sWS)
        a(ld); a("s_waitcnt vmcnt(0)"); mpoll(label, [ld], list(range(r, r + 4)))
    poll4(4, 10, "L_qpoll")
    T(11)
    a("ds_write_b128 v%d, v[4:7] offset:%d" % (vLin, L_Q))
    if nb1: a("ds_write_b32 v9, v8 offset:%d" % L_R); a("s_waitcnt lgkmcnt(0)")
    else: a("s_waitcnt lgkmcnt(0)"); a("s_barrier")
    T(5)
    if x1 & 1: a("s_branch L_noh")
    a("s_sub_u32 s4, s101, 8"); a("s_cmp_ge_u32 s4, 9"); a("s_cbranch_scc1 L_noh")
    a("s_add_u32 s4, s72, %d" % (9 * 1024))
    poll4(16, vLin, "L_upoll")
    a("s_mov_b32 s4, %s" % f32(0.044715)); a("s_mov_b32 s5, %s" % f32(-2 * (2 / 3.141592653589793) ** 0.5 * L2E))
    g, e = list(range(24, 32)), list(range(32, 40))
    def unpack(dst, src):
        for q in range(4): a("v_lshlrev_b32 v%d, 16, v%d" % (dst[2 * q], src + q)); a("v_and_b32 v%d, 0xffff0000, v%d" % (dst[2 * q + 1], src + q))
    def pack(dst, src):
        for q in range(4): a("v_cvt_pk_bf16_f32 v%d, v%d, v%d" % (dst + q, src[2 * q], src[2 * q + 1]))
    unpack(g, 12)
    for i in range(8): a("v_mul_f32 v%d, v%d, v%d" % (e[i], g[i], g[i]))
    for i in range(8): a("v_fma_f32 v%d, v%d, s4, 1.0" % (e[i], e[i]))
    for i in range(8): a("v_mul_f32 v%d, v%d, v%d" % (e[i], e[i], g[i]))
    for i in range(8): a("v_mul_f32 v%d, s5, v%d" % (e[i], e[i]))
    for i in range(8): a("v_exp_f32 v%d, v%d" % (e[i], e[i]))
    for i in range(8): a("v_add_f32 v%d, 1.0, v%d" % (e[i], e[i]))
    for i in range(8): a("v_rcp_f32 v%d, v%d" % (e[i], e[i]))
    for i in range(8): a("v_mul_f32 v%d, v%d, v%d" % (g[i], g[i], e[i]))
    pack(12, g); unpack(g, 12); unpack(e, 16)
    for i in range(8): a("v_mul_f32 v%d, v%d, v%d" % (g[i], g[i], e[i]))
    pack(12, g)
    for q in range(4): a("v_min_u32 v%d, -2, v%d" % (12 + q, 12 + q))
    a("s_lshl_b32 s4, s74, 10"); a("s_add_u32 s4, s4, %d" % WS_H)
    if hlin:
        a("v_bfe_u32 v3, v0, 1, 2"); a("v_lshlrev_b32 v3, 8, v3"); a("v_lshrrev_b32 v4, 3, v0"); a("v_lshl_or_b32 v3, v4, 5, v3"); a("v_and_b32 v4, 1, v0"); a("v_lshl_or_b32 v3, v4, 4, v3")
    a("buffer_store_dwordx4 v[12:15], v%d, %s, s4 offen sc1" % (3 if hlin else vLin, sWS))
    a("L_noh:")
    T(6)
    a("s_cmp_lt_u32 s8, 28"); a("s_cbranch_scc1 L_l2")
    a("s_branch L_hdone")

    a("L_h5:")
    roles()
    for i in range(4): a("v_mov_b32 v%d, 0" % (4 + i))
    for o_ in (L_F, L_N, L_G): a("ds_write_b128 v4, v[4:7] offset:%d" % o_)
    a("s_waitcnt lgkmcnt(0)")
    if e5: a("s_barrier")
    srd(a, 52, 38, "0x40000000")
    for i in range(4): a("v_mov_b32 v%d, -1" % (4 + i))
    oslot("s74"); a("v_lshlrev_b32 v3, 3, v0")
    if opair:
        a("s_mul_i32 s4, s7, %d" % (1024 - 64)); a("s_add_u32 s74, s74, s4")
        a("v_and_b32 v3, 15, v0"); a("v_lshlrev_b32 v3, 3, v3"); a("v_lshrrev_b32 v8, 4, v0"); a("v_lshl_or_b32 v3, v8, 11, v3")
    a("buffer_store_dwordx2 v[4:5], v3, %s, s74 offen sc1" % sWS)
    a("s_lshr_b32 s4, s2, 3"); a("s_sub_u32 s4, s4, 8"); a("s_cmp_ge_u32 s4, 9"); a("s_cbranch_scc1 L_nohcl")
    a("s_and_b32 s5, s2, 7"); a("s_mul_i32 s5, s5, 9"); a("s_add_u32 s4, s4, s5"); a("s_lshl_b32 s4, s4, 10"); a("s_add_u32 s4, s4, %d" % WS_H)
    a("buffer_store_dwordx4 v[4:7], v%d, %s, s4 offen sc1" % (vLin, sWS))
    a("L_nohcl:")
    if not nocl: slots("read", 4, vLin, 8)
    prgaddr("s74", "s72")
    a("s_mov_b64 exec, 1"); a("buffer_load_dword v10, v%d, %s, s74 offen" % (vLin, sWS)); a("s_mov_b64 exec, -1")
    if not e5: a("s_barrier")
    a("s_waitcnt vmcnt(0)")
    if not nocl: slots("near", 4, vLin, 8)
    a("v_mov_b32 v11, %d" % (4 * p0)); a("s_mov_b64 exec, 1"); a("buffer_store_dword v11, v%d, %s, s72 offen" % (vLin, sWS))
    a("s_mov_b64 exec, -1")
    a("s_getreg_b32 s5, hwreg(HW_REG_XCC_ID, 0, 3)"); a("s_or_b32 s5, s5, 8"); a("s_and_b32 s4, s2, 7"); a("s_lshl_b32 s4, s4, 2"); a("s_lshl_b32 s5, s5, s4")
    a("s_bfe_u32 s4, s2, 0x30003"); a("s_lshl_b32 s4, s4, 2"); a("s_and_b32 s10, s2, 192"); a("s_add_u32 s4, s4, s10")
    a("s_waitcnt vmcnt(0)")
    a("s_atomic_or s5, s[36:37], s4"); a("s_waitcnt lgkmcnt(0)")
    if st:
        note("scalar touches warm the address translation of ranges this workgroup reads later")
        a("s_lshl_b32 s4, s6, 21"); a("s_lshl_b32 s5, s7, %d" % amap[8]); a("s_add_u32 s4, s4, s5"); a("s_add_u32 s4, s4, %d" % (6144 * 256))
        r = 40
        if st & 1: a("s_load_dword s%d, s[20:21], s4" % r); r += 1
        for k in range(1, 4):
            a("s_add_u32 s4, s4, 0x20000")
            if st & 2: a("s_load_dword s%d, s[20:21], s4" % r); r += 1
            if st & 4: a("s_load_dword s%d, s[18:19], s4" % r); r += 1
        if st & 8:
            a("s_cmp_lt_u32 s8, 16"); a("s_cselect_b32 s22, s24, s32"); a("s_cselect_b32 s23, s25, s33"); a("s_cselect_b32 s4, 0, 16"); a("s_movk_i32 s5, 256"); a("s_cselect_b32 s5, s5, 384")
            a("s_sub_u32 s4, s8, s4"); a("s_min_u32 s4, s4, 15"); a("s_mul_i32 s4, s4, s5"); a("s_min_u32 s4, s4, 4224"); a("s_mul_i32 s4, s4, 1152")
            a("s_load_dword s56, s[22:23], s4"); a("s_add_u32 s4, s4, %d" % (255 * 1152)); a("s_load_dword s57, s[22:23], s4"); a("s_load_dword s58, s[34:35], 0")
        a("s_waitcnt lgkmcnt(0)")
    T(3)
    a("L_h67:")
    roles()
    a("s_cmp_eq_u32 s3, 7"); a("s_cselect_b32 s4, 0, s8"); a("s_cmp_ge_u32 s4, 28"); a("s_cbranch_scc1 L_hdone")
    if nb1:
        a("s_cmp_lg_u32 s3, 7"); a("s_cbranch_scc1 L_l2")
        a("v_mov_b32 v9, 0")
        if ec:
            note("read the arrival words once the streams are under way; retries wait for further progress")
            a("s_cmp_ge_u32 s2, 208"); a("s_cselect_b32 s26, %d, %d" % (ecf, ecl))
            srd(a, 64, 36, 256); flagaddr(); a("s_mov_b32 s5, 0x88888888")
            a("L_fl:")
            def body(): a("ds_read_b128 v[12:15], v9 offset:%d" % L_G); a("s_waitcnt lgkmcnt(0)"); a("v_min3_u32 v5, v12, v13, v14"); a("v_min_u32 v5, v5, v15"); a("v_cmp_le_u32 vcc, s26, v5")
            spin(body, "L_mwait")
            a(ldF); a("s_waitcnt vmcnt(0)"); a("v_and_b32 v8, s5, v252"); a("v_cmp_eq_u32 vcc, s5, v8"); a("s_cmp_eq_u64 vcc, exec"); a("s_cbranch_scc1 L_flags_ok")
            a("v_readfirstlane_b32 s26, v5"); a("s_add_u32 s26, s26, %d" % bko); a("s_cmp_le_u32 s26, %d" % R); a("s_cbranch_scc1 L_fl")
            modeblock()
            a("s_add_u32 s4, s100, 2"); a("v_mov_b32 v8, s4"); a("v_mov_b32 v9, 0"); a("ds_write_b32 v9, v8 offset:%d" % L_F)
        else:
            def body(): a("ds_read_b32 v4, v9 offset:%d" % L_F); a("ds_read_b128 v[12:15], v9 offset:%d" % L_G); a("s_waitcnt lgkmcnt(0)"); a("v_min3_u32 v5, v12, v13, v14"); a("v_min_u32 v5, v5, v15"); a("v_cmp_le_u32 vcc, %d, v5" % C0); a("v_cndmask_b32 v5, 0, v4, vcc"); a("v_cmp_ne_u32 vcc, 0, v5")
            spin(body, "L_mwait")
            a("v_readfirstlane_b32 s100, v4"); a("s_and_b32 s100, s100, 1")
    else:
        a("s_cmp_lt_u32 s2, 208"); a("s_cbranch_scc1 L_nofb2"); a("s_barrier"); a("L_nofb2:")
        a("s_barrier")
        a("v_mov_b32 v9, 0"); a("ds_read_b32 v4, v9 offset:%d" % L_F); a("s_waitcnt lgkmcnt(0)"); a("v_readfirstlane_b32 s100, v4")
        a("s_cmp_lg_u32 s3, 7"); a("s_cbranch_scc1 L_l2")
    if x1 & 2: a("s_branch L_ctl_done")
    a("s_cmp_eq_u32 s100, 0"); a("s_cbranch_scc1 L_ctl_done")
    prgaddr("s74", "s72")
    a("v_and_b32 v8, 31, v0"); a("v_lshlrev_b32 v8, 2, v8")
    a("s_and_b32 s4, s2, 7"); a("s_cselect_b32 s4, s2, 0"); a("s_cmp_ge_u32 s4, 224"); a("s_cselect_b32 s75, %d, 0" % (32 * lead)); a("s_mov_b32 s15, s75"); a("s_add_u32 s75, s75, %d" % int(32 * bias))
    if leadd: a("s_cmp_ge_u32 s8, 16"); a("s_cselect_b32 s4, 1, -1"); a("s_mul_i32 s4, s4, %d" % int(16 * leadd)); a("s_and_b32 s5, s2, 7"); a("s_cselect_b32 s4, s4, 0"); a("s_add_u32 s75, s75, s4")
    if par:
        note("even dies see slightly longer memory latency than odd ones")
        a("s_getreg_b32 s4, hwreg(HW_REG_XCC_ID, 0, 1)"); a("s_mul_i32 s4, s4, %d" % int(-64 * par)); a("s_add_u32 s4, s4, %d" % int(32 * par)); a("s_add_u32 s75, s75, s4")
    a("s_mov_b32 s11, %d" % SPIN)
    a("L_ctl:")
    a("ds_read_b128 v[12:15], v9 offset:%d" % L_G)
    if pw: a("ds_read_b32 v18, v8 offset:%d" % L_G)
    a("s_waitcnt lgkmcnt(0)")
    a("v_add3_u32 v12, v12, v13, v14"); a("v_add_u32 v12, v12, v15"); a("s_mov_b64 exec, 1")
    a("buffer_store_dword v12, v9, %s, s72 offen" % sWS); a("s_mov_b64 exec, -1")
    a("v_readfirstlane_b32 s14, v12"); a("s_cmp_ge_u32 s14, %d" % (4 * fbend)); a("s_cbranch_scc1 L_ctl_end")
    a("buffer_load_dword v16, v8, %s, s74 offen sc1" % sWS); a("s_waitcnt vmcnt(0)")
    allreduce(a, "v_add_u32", 16, 17, [8, 4, 2, 1, 16])
    a("v_lshrrev_b32 v16, 2, v16"); a("v_lshlrev_b32 v12, 3, v12"); a("v_sub_u32 v16, v16, v12"); a("v_add_u32 v16, s75, v16")
    if leadn: a("s_cmp_lt_u32 s14, %d" % (4 * leadn)); a("s_cselect_b32 s4, s15, 0"); a("v_subrev_u32 v16, s4, v16")
    if nb: a("s_cmp_lt_u32 s14, %d" % (4 * nb)); a("s_cselect_b32 s4, %d, 0" % int(32 * (bias - bias1))); a("v_subrev_u32 v16, s4, v16")
    if pw:
        a("v_lshlrev_b32 v18, 5, v18"); a("v_sub_u32 v18, v12, v18"); a("v_mul_i32_i24 v18, %d, v18" % pw); a("v_ashrrev_i32 v18, 2, v18"); a("v_add_u32 v16, v16, v18")
        a("s_mov_b64 exec, 15"); a("ds_write_b32 v8, v16 offset:%d" % L_C4); a("s_mov_b64 exec, -1")
    else: a("s_mov_b64 exec, 1"); a("ds_write_b32 v9, v16 offset:%d" % L_C); a("s_mov_b64 exec, -1")
    a("s_sub_u32 s11, s11, 1"); a("s_cmp_lg_u32 s11, 0"); a("s_cbranch_scc1 L_ctl")
    a("L_ctl_end:")
    a("v_mov_b32 v13, %d" % (4 * fin)); a("s_mov_b64 exec, 1"); a("buffer_store_dword v13, v9, %s, s72 offen" % sWS); a("s_mov_b64 exec, -1")
    a("L_ctl_done:")
    a("s_cmp_ge_u32 s8, 16"); a("s_cbranch_scc1 L_hdone")

    a("L_l2:")
    a("s_sub_u32 s101, s3, 4")
    a("s_mul_i32 s73, s9, %d" % (8 * RS)); a("s_lshl_b32 s5, s8, %d" % SH); a("s_add_u32 s73, s73, s5"); a("s_add_u32 s73, s73, %d" % WS_P)
    a("s_lshl_b32 s4, s101, 11"); a("v_add_u32 v5, s4, v%d" % vLin)
    a("s_cmp_ge_u32 s8, 16"); a("s_cbranch_scc1 L_down")
    def publish(n, vE):
        for w in range(n): a("ds_read_b128 %s, v6 offset:%d" % (vr(vE[w]), L_LP + 2048 * w))
        a("s_waitcnt lgkmcnt(%d)" % (n - 2))
        for i in (0, 2): a("v_pk_add_f32 %s, %s, %s" % (vr(vE[0] + i, 2), vr(vE[0] + i, 2), vr(vE[1] + i, 2)))
        a("s_waitcnt lgkmcnt(0)")
        if n == 4:
            for i in (0, 2): a("v_pk_add_f32 %s, %s, %s" % (vr(vE[2] + i, 2), vr(vE[2] + i, 2), vr(vE[3] + i, 2)))
        for i in (0, 2): a("v_pk_add_f32 %s, %s, %s" % (vr(vE[0] + i, 2), vr(vE[0] + i, 2), vr(vE[2] + i, 2)))
        if pb:
            for i in range(2): a("v_cvt_pk_bf16_f32 v%d, v%d, v%d" % (vE[0] + i, vE[0] + 2 * i, vE[0] + 2 * i + 1))
        for i in range(NP): a("v_min_u32 v%d, -2, v%d" % (vE[0] + i, vE[0] + i))
        store2("buffer_store_dwordx%d %s, v7, %s, s73 offen" % (NP, vr(vE[0], NP), sWS))
    vA, vE, vW, vP, A4, Y4, B4, vX = [16, 20], [24, 28, 32, 36], 40, 72, 104, 108, 112, 116
    srd(a, 60, 24, 4718592); srd(a, 48, 16, 9216); srd(a, 68, 34, 9216)
    a("v_lshrrev_b32 v3, 4, v0"); a("v_and_b32 v4, 15, v0"); a("v_lshlrev_b32 v9, %d, v4" % (6 if opair else 9)); a("v_lshl_or_b32 v9, v3, 4, v9")
    a("v_bfe_u32 v8, v0, 3, 1"); a("v_and_b32 v4, 7, v0")
    a("v_mul_u32_u24 v2, %d, v3" % (8 * 1152)); a("v_mul_u32_u24 v6, %d, v8" % (32 * 1152)); a("v_add_u32 v2, v2, v6"); a("v_lshl_add_u32 v2, v4, 4, v2")
    a("v_mul_u32_u24 v7, %d, v3" % (2 * RS)); a("v_lshl_add_u32 v7, v4, %d, v7" % (SH - 3)); a("v_lshl_add_u32 v7, v8, %d, v7" % (SH - 4))
    a("s_lshl_b32 s72, s8, 2"); a("s_add_u32 s72, s72, s101"); a("s_mul_i32 s72, s72, %d" % (64 * 1152)); a("s_lshl_b32 s4, s9, 7"); a("s_add_u32 s72, s72, s4")
    a("s_lshl_b32 s14, s8, 13"); a("s_lshl_b32 s5, s101, %d" % (11 if opair else 7)); a("s_add_u32 s14, s14, s5"); a("s_add_u32 s14, s14, %d" % WS_O)
    a("s_and_b32 s15, s101, 1"); a("s_mul_i32 s4, s15, %d" % RS); a("s_add_u32 s73, s73, s4"); a("s_lshl_b32 s4, s15, 10"); a("v_add_u32 v6, s4, v%d" % vLin)
    a("s_lshr_b32 s4, s8, 1"); a("s_and_b32 s5, s8, 1"); a("s_lshl_b32 s5, s5, 1"); a("s_add_u32 s5, s5, s15")
    a("s_lshl_b32 s74, s9, 3"); a("s_add_u32 s74, s74, s4"); a("s_mul_i32 s74, s74, %d" % RS); a("s_lshl_b32 s15, s5, %d" % (SH - 2)); a("s_add_u32 s74, s74, s15"); a("s_add_u32 s74, s74, %d" % WS_P)
    a("s_mul_i32 s75, s4, 1152"); a("s_lshl_b32 s15, s9, 7"); a("s_add_u32 s75, s75, s15"); a("s_lshl_b32 s15, s5, 5"); a("s_add_u32 s75, s75, s15")
    a("s_add_u32 s15, s74, %d" % (16 << SH)); a("s_add_u32 s10, s72, %d" % (4 * 1152))
    a("v_and_b32 v4, 3, v0"); a("v_lshlrev_b32 v11, 3, v4"); a("v_lshl_or_b32 v11, v3, 1, v11")
    a("v_lshrrev_b32 v3, 2, v0"); a("v_lshlrev_b32 v3, %d, v3" % SH); a("v_lshl_or_b32 v10, v4, %d, v3" % (SH - 4))
    a("buffer_load_ushort v%d, v11, %s, s75 offen" % (vX, sX))
    for i in range(4): a("v_mov_b32 v%d, 0" % (Y4 + i))
    ldO = ["buffer_load_dwordx4 %s, v9, %s, s14 offen offset:%d sc1" % (vr(vA[kb]), sWS, (1024 if opair else 64) * kb) for kb in range(2)]
    ldA, ldB = ("buffer_load_dwordx%d %s, v10, %s, s74 offen sc1" % (NP, vr(r, NP), sWS) for r in (A4, B4))
    ldY = "buffer_load_dwordx%d %s, v10, %s, s15 offen sc1" % (NP, vr(Y4, NP), sWS)
    vm = VM(a); w2 = []
    PR = (list(range(40, 48)) + list(range(56, 60)) + list(range(64, 68)))[:pm]
    def probes():
        for k, r in enumerate(PR): a("s_load_dword s%d, s[22:23], %d glc" % (r, 64 * (k * 16 // pm + (k & 1 if pm < 16 else 0)) + 1084 if opair else 512 * (k * 16 // pm) + 124))
    def getmode(down):
        if not nb1: return
        a("v_mov_b32 v14, 0"); a("ds_read_b32 v14, v14 offset:%d" % L_F); a("s_waitcnt lgkmcnt(0)"); a("v_readfirstlane_b32 s100, v14"); a("s_and_b32 s100, s100, 1")
        if down: a("s_cmp_lt_u32 s2, 224"); a("s_cselect_b32 s100, s100, 0")
    def s2(pr=0):
        if pr == 1: probes()
        a("s_barrier")
        if pr == 2: probes()
        if split: a("s_barrier")
    if probe: a("s_add_u32 s22, s38, s14"); a("s_addc_u32 s23, s39, 0")
    a("s_barrier")
    for j in range(9):
        if j == wsplit: getmode(0); s2(probe)
        if j < 8: w2.append(vm.issue("buffer_load_dwordx4 %s, v2, %s, %s offen offset:%d %s" % (vr(vW + 4 * j), sW2, "s72" if j < 4 else "s10", 1152 * (j % 4), w2f)))
    if oat < 0:
        note("this barrier opens once the streaming waves have ended, i.e. their output stores are acknowledged")
        a("s_barrier")
        for t_ in ldO: vm.issue(t_)
    def pairs(qs, vm, oat):
      for q in qs:
        js = (2 * q, 2 * q + 1)
        for j in js:
            vm.wait(w2[j])
            if j + 1 == oat:
                for t_ in ldO: vm.issue(t_)
        for j in js:
            for r in range(2): a("v_mov_b32 v%d, v%d" % (120 + 2 * j + r, vW + 4 * j + r))
        for j in js:
            for r in range(2): a("v_mov_b32_dpp v%d, v%d row_ror:8 row_mask:0xf bank_mask:0xc" % (vW + 4 * j + r, vW + 4 * j + 2 + r))
        for j in js:
            for r in range(2): a("v_mov_b32_dpp v%d, v%d row_ror:8 row_mask:0xf bank_mask:0x3" % (vW + 4 * j + 2 + r, 120 + 2 * j + r))
        for kb in range(2):
            for i in range(4):
                a("v_perm_b32 v%d, v%d, v%d, s%d" % (vP + 16 * kb + 4 * i + q, vW + 4 * (2 * q + 1) + 2 * kb + i // 2, vW + 4 * (2 * q) + 2 * kb + i // 2, 12 + i % 2))
    if probe:
        note("producers seen complete through uncached probes are gathered at once, otherwise after the next weights land")
        if probe == 3: probes()
        pairs([0], vm, 0)
        a("s_waitcnt lgkmcnt(0)")
        for r in PR[1:]: a("s_max_u32 s%d, s%d, s%d" % (PR[0], PR[0], r))
        a("s_cmp_eq_u32 s%d, -1" % PR[0]); a("s_cbranch_scc1 L_olate")
        v1 = vm.copy()
        for t_ in ldO: v1.issue(t_)
        pairs([1, 2, 3], v1, 0)
        a("s_branch L_ojoin")
        a("L_olate:")
        pairs([1, 2, 3], vm, oat)
    else: pairs(range(4), vm, oat)
    if oat > 8:
        for t_ in ldO: a(t_)
    if probe: a("L_ojoin:")
    a("v_lshlrev_b32 v%d, 16, v%d" % (vX, vX))
    T(7)
    a("s_waitcnt vmcnt(0)")
    mpoll("L_opoll", ldO, list(range(16, 24)))
    T(8)
    if t2:
        def rows(i):
            for x in range(2): a("v_add_f32 v%d, v%d, v%d" % (vW + 4 * x + i, vE[i] + 2 * x, vE[i] + 2 * x + 1))
        for i in range(4):
            for kb in range(2): a(MF % (vr(vE[i]), vr(vA[kb]), vr(vP + 16 * kb + 4 * i), "0" if kb == 0 else vr(vE[i])))
        a("s_cmp_lt_u32 s101, 2"); a("s_cbranch_scc1 L_nopre")
        a("s_mov_b32 exec_hi, 0xffff"); a(ldY); a("s_mov_b32 exec_hi, -1")
        a("L_nopre:")
        for i in range(4): rows(i)
        for x in range(2): a("ds_write_b128 v5, %s offset:%d" % (vr(vW + 4 * x), L_LP + 1024 * x))
    else:
        for kb in range(2):
            for i in range(4): a(MF % (vr(vE[i]), vr(vA[kb]), vr(vP + 16 * kb + 4 * i), "0" if kb == 0 else vr(vE[i])))
        a("s_cmp_lt_u32 s101, 2"); a("s_cbranch_scc1 L_nopre")
        a("s_mov_b32 exec_hi, 0xffff"); a(ldY); a("s_mov_b32 exec_hi, -1")
        a("L_nopre:")
        for x in range(2):
            for i in range(4): a("v_add_f32 v%d, v%d, v%d" % (vW + 4 * x + i, vE[i] + 2 * x, vE[i] + 2 * x + 1))
            a("ds_write_b128 v5, %s offset:%d" % (vr(vW + 4 * x), L_LP + 1024 * x))
    a("s_waitcnt lgkmcnt(0)"); a("s_barrier")
    a("s_cmp_ge_u32 s101, 2"); a("s_cbranch_scc1 L_final")
    publish(4, vE)
    a("s_branch L_hdone")
    a("L_final:")
    def fold(r):
        if pb:
            a("v_lshlrev_b32 v%d, 16, v%d" % (r + 2, r + 1)); a("v_and_b32 v%d, 0xffff0000, v%d" % (r + 3, r + 1))
            a("v_and_b32 v%d, 0xffff0000, v%d" % (r + 1, r)); a("v_lshlrev_b32 v%d, 16, v%d" % (r, r))
        a("v_permlane32_swap_b32 v%d, v%d" % (r, r + 2)); a("v_permlane32_swap_b32 v%d, v%d" % (r + 1, r + 3))
        a("v_pk_add_f32 %s, %s, %s" % (vr(r, 2), vr(r, 2), vr(r + 2, 2)))
        a("v_permlane16_swap_b32 v%d, v%d" % (r, r + 1)); a("v_add_f32 v%d, v%d, v%d" % (r, r, r + 1))
        for k in (8, 4): a("v_add_f32_dpp v%d, v%d, v%d row_ror:%d %s" % (r, r, r, k, DPP))
        round_bf16(a, r)
    def chk(r, tgt):
        a("s_waitcnt vmcnt(1)"); umax(list(range(r, r + NP))); a("v_cmp_eq_u32 vcc, -1, v3"); a("s_cmp_eq_u64 vcc, 0"); a("s_cbranch_scc1 " + tgt)
    a("s_waitcnt vmcnt(0)")
    mpoll("L_ypoll", [ldY], list(range(Y4, Y4 + NP)))
    a(ldA); fold(Y4); a("s_mov_b32 s11, %d" % SPIN)
    a("L_pp:"); a(ldB); chk(A4, "L_ppa"); a(ldA); chk(B4, "L_ppb")
    a("s_sub_u32 s11, s11, 1"); a("s_cmp_lg_u32 s11, 0"); a("s_cbranch_scc1 L_pp")
    a("L_ppb:"); fold(B4); a("v_add_f32 v4, v%d, v%d" % (vX, B4)); a("s_branch L_ppe")
    a("L_ppa:"); fold(A4); a("v_add_f32 v4, v%d, v%d" % (vX, A4))
    a("L_ppe:"); round_bf16(a, 4); a("v_add_f32 v4, v4, v%d" % Y4); a("v_cvt_pk_bf16_f32 v4, v4, v4")
    a("s_mov_b32 exec_lo, 0x000f000f"); a("s_mov_b32 exec_hi, 0x000f000f")
    a("buffer_store_short v4, v11, %s, s75 offen" % sOUT)
    a("s_branch L_hdone")

    a("L_down:")
    vm = VM(a)
    vH, vAc, vTp, vW = 16, 24, 56, 64
    srd(a, 60, 32, 5308416)
    if not nb1: a("s_cmp_lt_u32 s2, 224"); a("s_cselect_b32 s100, s100, 0")
    a("v_lshrrev_b32 v3, 3, v0"); a("v_mul_u32_u24 v2, %d, v3" % (8 * 1152)); a("v_and_b32 v4, 7, v0"); a("v_lshl_add_u32 v2, v4, 4, v2")
    a("s_sub_u32 s4, s8, 16"); a("s_mul_i32 s4, s4, 3"); a("s_add_u32 s4, s4, s101")
    a("s_mul_i32 s72, s4, %d" % (128 * 1152)); a("s_lshl_b32 s5, s9, 7"); a("s_add_u32 s72, s72, s5")
    a("s_lshl_b32 s14, s4, 11"); a("s_add_u32 s14, s14, %d" % WS_H)
    if hlin: a("v_mov_b32 v9, v%d" % vLin)
    else: actaddr(9, 4, 128)
    a("v_lshrrev_b32 v3, 4, v0"); a("v_and_b32 v4, 15, v0"); a("v_mul_u32_u24 v7, %d, v3" % RS); a("v_lshl_add_u32 v7, v4, %d, v7" % (SH - 4))
    a("v_lshlrev_b32 v6, 7, v3"); a("v_bfe_u32 v3, v0, 1, 3"); a("v_lshl_or_b32 v6, v3, 4, v6"); a("v_and_b32 v3, 1, v0"); a("v_lshl_or_b32 v6, v3, 10, v6")
    a("s_lshl_b32 s4, s101, 9"); a("v_add_u32 v6, s4, v6"); a("s_mul_i32 s4, s101, %d" % (4 * RS)); a("s_add_u32 s73, s73, s4")
    if not hsv: a("v_mov_b32 v11, 0"); note("fetch the hidden rows once the streams are well into V")
    def body(): a("ds_read_b32 v8, v11 offset:%d" % L_G); a("s_waitcnt lgkmcnt(0)"); a("v_cmp_le_u32 vcc, %d, v8" % hat)
    if not hsv: spin(body, "L_hwait")
    ldH = ["buffer_load_dwordx4 %s, v9, %s, s14 offen offset:%d sc1" % (vr(vH + 4 * b_), sWS, 1024 * b_) for b_ in range(2)]
    if not x1 & 1 and not hsv:
        for t_ in ldH: a(t_)
        a("s_waitcnt vmcnt(0)")
        mpoll("L_hpoll", ldH, list(range(vH, vH + 8)))
    a("s_barrier")
    w2 = []
    if hsv == 1:
        for t_ in ldH: vm.issue(t_)
    for k in range(17):
        b_, j = divmod(k, 8)
        if k == dsplit:
            if hsv == 2:
                for t_ in ldH: th_ = vm.issue(t_)
            getmode(1); s2()
        if k == 16: break
        if j % 4 == 0: a("s_add_u32 s5, s72, %d" % ((64 * b_ + j) * 1152))
        w2.append(vm.issue("buffer_load_dwordx4 %s, v2, %s, s5 offen offset:%d %s" % (vr(vW + 4 * k), sW2, 1152 * (j % 4), w2f)))
    for b_ in range(2):
        base, tp = vW + 32 * b_, 128 + 32 * b_
        for q in range(4):
            vm.wait(w2[8 * b_ + 2 * q + 1])
            if hsv and b_ == 0 and q == 3:
                if hsv == 2: vm.wait(th_)
                mpoll("L_hpoll", ldH, list(range(vH, vH + 8)))
            for i in range(8):
                a("v_perm_b32 v%d, v%d, v%d, s%d" % (tp + 4 * i + q, base + 4 * (2 * q + 1) + i // 2, base + 4 * (2 * q) + i // 2, 12 + i % 2))
                if q == 3 and i >= 2: a(MF % (vr(vAc + 4 * (i - 2)), vr(vH + 4 * b_), vr(tp + 4 * (i - 2)), "0" if b_ == 0 else vr(vAc + 4 * (i - 2))))
        for i in (6, 7): a(MF % (vr(vAc + 4 * i), vr(vH + 4 * b_), vr(tp + 4 * i), "0" if b_ == 0 else vr(vAc + 4 * i)))
    T(8)
    block_fold(vTp, vAc)
    for x in range(2): a("ds_write_b128 v5, %s offset:%d" % (vr(vTp + 4 * x), L_LP + 1024 * x))
    a("s_waitcnt lgkmcnt(0)"); a("s_barrier")
    a("s_cmp_ge_u32 s101, 2"); a("s_cbranch_scc1 L_hdone")
    publish(3, [24, 28, 32])
    a("L_hdone:")
    T(9); T.flush()
    a("L_end:")
    a("s_endpgm")
    a("L_codeend:")
    if lay:
        tx_ = [i.text for i in a.ins]; b_, e_, h_ = tx_.index("; HBEG"), tx_.index("; HEND"), tx_.index("; HOIST")
        a.ins = a.ins[:h_] + a.ins[b_:e_] + a.ins[h_:b_] + a.ins[e_:]
    a.ins = [i for i in a.ins if i.text not in ("; HBEG", "; HEND", "; HOIST")]
    a.pad()
    head = open("parallel_sum__sliding_block_cached__geglu_ffn__decode.s.ref").read().split("; Override")[0]
    head += "; @launch grid=(256,1,1) block=(%d,1,1) lds=%d\n" % (64 * NW, LDS_BYTES) + HEADER
    head += '.amdgcn_target "amdgcn-amd-amdhsa--gfx950"\n.text\n' + ('.fill %d, 4, 0xbf810000\n' % (pad // 4) if pad else '') + '.globl %s\n.p2align 8\n.type %s,@function\n' % (KN, KN)
    tail = '.section .rodata,"a"\n.p2align 6\n.amdhsa_kernel %s\n  .amdhsa_next_free_vgpr 256\n  .amdhsa_next_free_sgpr 102\n  .amdhsa_accum_offset 256\n' % KN
    tail += "  .amdhsa_group_segment_fixed_size 0\n  .amdhsa_kernarg_size 96\n  .amdhsa_user_sgpr_count 2\n  .amdhsa_user_sgpr_kernarg_segment_ptr 1\n  .amdhsa_system_sgpr_workgroup_id_x 1\n.end_amdhsa_kernel\n"
    return head + a.text() + tail

RAW = None
def report(t, verbose):
    import gen10, numpy as np
    m_ = t[:, :, :4, 1:12].mean(axis=(0, 1, 2))
    if all(np.diff(m_) > 0):
        print("   event rates: t", m_, "TB/s", np.diff(TSN) * 1.048576 / np.diff(m_)); return
    gen10.report(t, verbose)
    import numpy as np
    ids = np.arange(256); X, J = ids & 7, ids >> 3
    WO = (ids < 128) | (X == 0); unit = np.where(J < 16, J, J - 16); hkv = 2 * X + (J & 1)
    rows = []
    for u in t:
        osent = u[:, :4, 5].max(axis=1); vd = u[:, :4, 6].max(axis=1); gl = np.array([osent[hkv == g].max() for g in range(16)])
        os_ = np.where(WO[:, None], u[:, 4:, 8], -1); c, w = np.unravel_index(os_.argmax(), os_.shape)
        rows.append((os_[c, w] - u[c, 4 + w, 7], os_[c, w] - gl[unit[c]], vd[c] - vd.max(), gl[unit[c]] - osent.max(), u[c, 4 + w, 7] - vd[c]))
    r = np.array(rows)
    print("   crit: seen-perms %.2f seen-grouplast %.2f ownV-Vmax %.2f grouplast-last %.2f perms-ownV %.2f" % tuple(r.mean(axis=0)))
    p1 = r[:, 0] < 0.4
    print("   crit: share near own weights %.2f;" % p1.mean(), "A:", r[p1].mean(axis=0), "B:", r[~p1].mean(axis=0))

if __name__ == "__main__":
    kw = eval("dict(%s)" % (sys.argv[2] if len(sys.argv) > 2 else ""))
    open(sys.argv[1], "w").write(gen(**kw))
```

```python
import sys, struct
from asmlib import Asm, VM
KN = "parallel_sum__sliding_block_cached__geglu_ffn__decode_kernel"

def f32(x): return "0x%08x" % struct.unpack("<I", struct.pack("<f", x))[0]
def vr(b, n=4): return "v[%d:%d]" % (b, b + n - 1) if n > 1 else "v%d" % b
DPP = "row_mask:0xf bank_mask:0xf"
MF = "v_mfma_f32_16x16x32_bf16 %s, %s, %s, %s"

WS_GO = 0x68000
WS_L1, WS_STAT, WS_H, WS_PRG, WS_P, WS_O, WS_TS = 0, 0x40000, 0x48000, 0x60000, 0x80000, 0x100000, 0x200000
L_C4 = 16
L_R = 8
L_GO = 12
L_N = 32
L_X = 36
L_XN = 17408
L_F, L_C, L_Q, L_OP, L_LP, L_G = 0, 4, 1024, 2048, 8192, 16384
LDS_BYTES = 26624
SPIN = 400000
L2E = 1.4426950408889634
NW = 8
TSN = [36, 41, 46, 51, 60, 70, 80, 90, 100, 110, 119]
sK, sV, sX, sWS, sW1, sW2, sDBG, sOUT = ("s[%d:%d]" % (b, b + 3) for b in (40, 44, 48, 52, 56, 60, 64, 68))

HEADER = """\
; One workgroup per CU (256 x 512 threads). id = 8*j + x; x groups workgroups that normally share a die.
"""

def srd(a, base, ptr, nbytes):
    a("s_mov_b32 s%d, s%d" % (base, ptr)); a("s_mov_b32 s%d, s%d" % (base + 1, ptr + 1))
    a("s_mov_b32 s%d, %s" % (base + 2, nbytes)); a("s_mov_b32 s%d, 0x20000" % (base + 3))

class Stamps:
    def __init__(self, a, on): self.a, self.on = a, on
    def __call__(self, idx):
        if self.on: self.a("s_memrealtime s[%d:%d]" % (76 + 2 * idx, 77 + 2 * idx))
    def flush(self, n=12):
        if not self.on: return
        a = self.a
        a("s_waitcnt lgkmcnt(0)"); srd(a, 52, 38, "0x40000000")
        a("s_mul_i32 s4, s2, %d" % NW); a("s_add_u32 s4, s4, s3"); a("s_lshl_b32 s4, s4, 6"); a("s_add_u32 s4, s4, %d" % WS_TS)
        a("s_mov_b64 exec, 1"); a("v_mov_b32 v0, 0")
        for q in range(n // 4):
            for i in range(4): a("v_mov_b32 v%d, s%d" % (4 + 4 * q + i, 76 + 2 * (4 * q + i)))
            a("buffer_store_dwordx4 %s, v0, %s, s4 offen offset:%d" % (vr(4 + 4 * q), sWS, 16 * q))

def allreduce(a, op, v, t, steps):
    for s in steps:
        if s == 0: a("%s_dpp v%d, v%d, v%d quad_perm:[1,0,3,2] %s" % (op, v, v, v, DPP))
        elif s < 16: a("%s_dpp v%d, v%d, v%d row_ror:%d %s" % (op, v, v, v, s, DPP))
        else:
            a("v_mov_b32 v%d, v%d" % (t, v)); a("v_permlane%d_swap_b32 v%d, v%d" % (s, v, t)); a("%s v%d, v%d, v%d" % (op, v, v, t))

def round_bf16(a, v):
    a("v_cvt_pk_bf16_f32 v%d, v%d, v%d" % (v, v, v)); a("v_and_b32 v%d, 0xffff0000, v%d" % (v, v))

def gen(ts=0, loc=1, d=5, d0=3, nd0=27, nd1=32, dend=6, nramp=120, step=2, R=50, stat_at=100, nfree=32, da=10,
        flagblk=7, lnstep=28, pf=4, lv=(4, 5, 6, 7), th=(-1.5, 1.5, 4), bias=3.25, lead=4, leadd=0, fbend=116, fin=127, hat=100, pfn=64, pb=1, amap=(9, 11, 13, 12, 14, 15, 17, 18, 16, 8, 10), svk=None, wsplit=3, dsplit=9, oat=4, pad=0, t2=1, probe=0, pm=16, opair=1, prio=0, pst=1, w1f='nt', w2f='nt', par=0.4, x1=0, vt=0, s1x=0, s1p=0, vrev=0, ilv=0, nost=0, hsv=2, hlin=1, dah=0, prim=0xff, pw=0, st=0, nb1=1, C0=16, ec=0, bias1=1.6, nb=0, wexp=0, nocl=0, da1=7, kw=5, b0=1, dfree=4, nfr=32, leadn=72, lay=1, pfw=5, e5=0, ew=0, da2=5, kw2=3, ece=20, n4=0, sln=1, xw=0, rowb=1, ecf=34, ecl=16, bko=10, p0=19):
    ec = 1; nd0 = 0; nd1 = n4
    assert sorted(amap) == list(range(8, 19))
    assert R % 2 == 0 and C0 % 2 == 0
    if not nb1: C0 = R
    split = wsplit < 8 or dsplit < 16
    RS = 3584 if pb else 7168; SH = 7 if pb else 8; NP = 2 if pb else 4
    a = Asm(); T = Stamps(a, ts)
    uid = [0]
    def lab(p): uid[0] += 1; return "L_%s%d" % (p, uid[0])
    def note(t): a("; " + t)

    def spin(body, label):
        a("s_mov_b32 s11, %d" % SPIN)
        a(label + ":"); body()
        a("s_cmp_eq_u64 vcc, exec"); a("s_cbranch_scc1 %s_ok" % label)
        a("s_sub_u32 s11, s11, 1"); a("s_cmp_lg_u32 s11, 0"); a("s_cbranch_scc1 %s" % label)
        a(label + "_ok:")

    def umax(regs):
        if len(regs) == 2: a("v_max_u32 v3, v%d, v%d" % tuple(regs)); return
        a("v_max3_u32 v3, v%d, v%d, v%d" % tuple(regs[:3])); rest = regs[3:]
        while len(rest) >= 2: a("v_max3_u32 v3, v3, v%d, v%d" % tuple(rest[:2])); rest = rest[2:]
        if rest: a("v_max_u32 v3, v3, v%d" % rest[0])

    def mpoll(label, loads, regs):
        def check(): umax(regs); a("v_cmp_eq_u32 vcc, -1, v3"); a("s_and_b64 exec, exec, vcc"); a("s_cbranch_scc0 %s_ok" % label)
        a("s_mov_b32 s11, %d" % SPIN)
        check()
        a(label + ":")
        for t in loads: a(t)
        a("s_waitcnt vmcnt(0)"); check()
        a("s_sub_u32 s11, s11, 1"); a("s_cmp_lg_u32 s11, 0"); a("s_cbranch_scc1 %s" % label)
        a(label + "_ok:")
        a("s_mov_b64 exec, -1")

    def store2(text):
        f, e = lab("far"), lab("sent")
        a("s_cmp_eq_u32 s100, 0"); a("s_cbranch_scc1 " + f); a(text); a("s_branch " + e); a(f + ":"); a(text + " sc1"); a(e + ":")

    def roles():
        note("s8 = partial slot (0..15 wo head pair, 16..27 w_down slice, >= 28 none), s9 = output column slice")
        e = lab("role")
        a("s_and_b32 s9, s2, 7"); a("s_lshr_b32 s8, s2, 3")
        a("s_cmp_lt_u32 s8, 16"); a("s_cbranch_scc1 " + e)
        a("s_sub_u32 s8, s8, 16"); a("s_cmp_eq_u32 s9, 0"); a("s_cselect_b32 s9, 8, s9"); a("s_cbranch_scc1 " + e)
        a("s_add_u32 s8, s8, 16"); a("s_cmp_lt_u32 s8, 28"); a("s_cbranch_scc1 " + e)
        a("s_mul_i32 s8, s8, 7"); a("s_add_u32 s8, s8, s9"); a("s_sub_u32 s8, s8, %d" % (28 * 7 + 1 - 16))
        a("s_mov_b32 s9, 0"); a("s_cmp_lt_u32 s8, 28"); a("s_cbranch_scc1 " + e)
        a("s_mov_b32 s9, 8"); a("s_sub_u32 s8, s8, 12")
        a(e + ":")

    def oslot(dst):
        a("s_and_b32 s4, s6, 15"); a("s_lshl_b32 s4, s4, 13"); a("s_lshr_b32 s5, s6, 4"); a("s_lshl_b32 s5, s5, 1"); a("s_add_u32 s5, s5, s7")
        a("s_lshl_b32 s5, s5, %d" % (6 if opair else 9)); a("s_add_u32 s4, s4, s5"); a("s_add_u32 %s, s4, %d" % (dst, WS_O))

    def l1slot(dst):
        a("s_and_b32 %s, s2, 7" % dst); a("s_lshl_b32 %s, %s, 5" % (dst, dst)); a("s_lshr_b32 s4, s2, 3"); a("s_add_u32 %s, %s, s4" % (dst, dst)); a("s_lshl_b32 %s, %s, 10" % (dst, dst))

    def slots(kind, e, lin, t):
        op = ("buffer_load_dword v%d" % (t + 2) if kind == "read" else "buffer_store_dwordx4 %s" % vr(e)) + ", v%d, %s, %s offen"
        fl = " sc1" if kind == "far" else ""
        k0, k = lab("nol"), lab("nop")
        l1slot("s5")
        a("s_lshr_b32 s4, s2, 3"); a("s_lshl_b32 s4, 1, s4"); a("s_and_b32 s4, s4, 0x%x" % (0xff | (0x1ff << 17))); a("s_cbranch_scc0 " + k0)
        a(op % (lin, sWS, "s5") + fl); a(k0 + ":")
        a("s_lshl_b32 s4, s6, 1"); a("s_add_u32 s4, s4, s7"); a("s_lshl_b32 s4, s4, 7"); a("s_add_u32 s4, s4, %d" % WS_STAT)
        a("s_mov_b64 exec, 0xff"); a(op % (lin, sWS, "s4") + fl); a("s_mov_b64 exec, -1")
        a("s_cmp_ge_u32 s8, 28"); a("s_cbranch_scc1 " + k)
        a("v_lshrrev_b32 v%d, %d, v0" % (t, 3 if pb else 4)); a("v_mul_u32_u24 v%d, %d, v%d" % (t, RS, t)); a("v_and_b32 v%d, %d, v0" % (t + 1, 7 if pb else 15)); a("v_lshl_add_u32 v%d, v%d, 4, v%d" % (t, t + 1, t))
        a("s_mul_i32 s4, s9, %d" % (8 * RS)); a("s_lshl_b32 s5, s8, %d" % SH); a("s_add_u32 s4, s4, s5"); a("s_add_u32 s4, s4, %d" % WS_P); a("s_add_u32 s5, s4, %d" % (4 * RS))
        st = [op % (t, sWS, s_) for s_ in (("s4",) if pb else ("s4", "s5"))]
        if kind != "far":
            f = lab("rem")
            a("s_cmp_lt_u32 s2, 224"); a("s_cselect_b32 s10, 0, s8"); a("s_cmp_ge_u32 s10, 16"); a("s_cbranch_scc1 " + (k if kind == "read" else f))
            for x_ in st: a(x_)
            if kind == "near": a("s_branch " + k); a(f + ":")
        if kind != "read":
            for x_ in st: a(x_ + " sc1")
        a(k + ":")

    def block_mm(base, tp, acc, act, first, hook=None):
        for i in range(8):
            t = tp + 4 * (i % 2)
            for q in range(4): a("v_perm_b32 v%d, v%d, v%d, s%d" % (t + q, base + 4 * (2 * q + 1) + i // 2, base + 4 * (2 * q) + i // 2, 12 + i % 2))
            if i > 0: a(MF % (vr(acc + 4 * (i - 1)), vr(act), vr(tp + 4 * ((i - 1) % 2)), "0" if first else vr(acc + 4 * (i - 1))))
            if hook and i % 4 == 0: hook()
        a(MF % (vr(acc + 28), vr(act), vr(tp + 4), "0" if first else vr(acc + 28)))
    def block_fold(dst, acc):
        for i in range(8): a("v_add_f32_dpp v%d, v%d, v%d row_ror:8 row_mask:0xf bank_mask:0x3" % (dst + i, acc + 4 * i + 1, acc + 4 * i))
        for i in range(8): a("v_add_f32_dpp v%d, v%d, v%d row_ror:8 row_mask:0xf bank_mask:0xc" % (dst + i, acc + 4 * i + 2, acc + 4 * i + 3))
    def actaddr(dst, t, rowbytes):
        a("v_bfe_u32 v%d, v0, 1, 3" % dst); a("v_mul_u32_u24 v%d, %d, v%d" % (dst, rowbytes, dst)); a("v_lshrrev_b32 v%d, 4, v0" % t); a("v_lshl_add_u32 v%d, v%d, 5, v%d" % (dst, t, dst))
        a("v_and_b32 v%d, 1, v0" % t); a("v_lshl_add_u32 v%d, v%d, 4, v%d" % (dst, t, dst))
    def prgaddr(line, word):
        a("s_and_b32 %s, s2, 7" % line); a("s_lshl_b32 %s, %s, 8" % (line, line)); a("s_add_u32 %s, %s, %d" % (line, line, WS_PRG))
        a("s_lshr_b32 %s, s2, 3" % word); a("s_lshl_b32 %s, %s, 2" % (word, word)); a("s_add_u32 %s, %s, %s" % (word, word, line))

    def early_class(dst):
        a("s_sub_u32 %s, s2, 208" % dst); a("s_cmp_lt_u32 %s, 44" % dst); a("s_cselect_b32 %s, s2, 0" % dst); a("s_and_b32 %s, %s, 7" % (dst, dst))
    def down_addr():
        srd(a, 60, 32, 5308416)
        a("v_lshrrev_b32 v3, 3, v0"); a("v_mul_u32_u24 v2, %d, v3" % (8 * 1152)); a("v_and_b32 v4, 7, v0"); a("v_lshl_add_u32 v2, v4, 4, v2")
        a("s_sub_u32 s4, s8, 16"); a("s_mul_i32 s4, s4, 3"); a("s_add_u32 s4, s4, s101")
        a("s_mul_i32 s72, s4, %d" % (128 * 1152)); a("s_lshl_b32 s5, s9, 7"); a("s_add_u32 s72, s72, s5")
    def down_load(vm, k):
        b_, j = divmod(k, 8)
        if j % 4 == 0: a("s_add_u32 s5, s72, %d" % ((64 * b_ + j) * 1152))
        return vm.issue("buffer_load_dwordx4 %s, v2, %s, s5 offen offset:%d %s" % (vr(64 + 4 * k), sW2, 1152 * (j % 4), w2f))

    a(KN + ":")
    T(0)
    a("s_cmp_ge_u32 s2, 256"); a("s_cbranch_scc1 L_end")
    a("s_load_dwordx16 s[16:31], s[0:1], 0"); a("s_load_dwordx8 s[32:39], s[0:1], 64")
    a("v_lshrrev_b32 v1, 6, v0"); a("v_and_b32 v0, 63, v0"); a("v_readfirstlane_b32 s3, v1")
    a("s_and_b32 s6, s2, 7"); a("s_lshl_b32 s6, s6, 1"); a("s_bfe_u32 s7, s2, 0x10003"); a("s_or_b32 s6, s6, s7")
    a("s_and_b32 s7, s2, 0x70"); a("s_or_b32 s6, s6, s7"); a("s_lshr_b32 s7, s2, 7")
    a("s_cmp_lt_u32 s3, 4"); a("s_cbranch_scc1 L_stream")
    a("s_cmp_lg_u32 s3, %d" % pfw); a("s_cbranch_scc1 L_help")
    a("s_getpc_b64 s[4:5]")
    a("L_pc:")
    a("s_bfe_u32 s8, s2, 0x%x" % (((pf.bit_length() - 1) << 16) + 3)); a("s_mul_i32 s8, s8, %d" % pfn)
    a("v_add_u32 v1, s8, v0"); a("v_lshlrev_b32 v1, 7, v1"); a("v_min_u32 v1, L_codeend-L_pc-4, v1")
    a("v_mov_b32 v3, s5"); a("v_add_co_u32 v2, vcc, s4, v1"); a("v_addc_co_u32 v3, vcc, 0, v3, vcc")
    a("global_load_dword v255, v[2:3], off")
    a("s_branch L_help")

    a("L_stream:")
    vm = VM(a)
    vKo, vVo, vM, vL, vF = 1, 2, 5, 6, 7
    vMask, vQ0, vQ1, vAcc = 12, 16, 20, 24
    vD = [28, 32]
    pool = list(range(36, 252, 4))
    assert len(pool) >= R + (4 if nb1 else 2)
    a("v_lshrrev_b32 v3, 4, v0"); a("v_lshlrev_b32 v3, 6, v3")
    a("v_and_b32 v4, 3, v0"); a("v_lshl_or_b32 v3, v4, 4, v3")
    if amap[10] == amap[9] + 1: a("v_bfe_u32 v4, v0, 2, 2"); a("v_lshl_or_b32 v%d, v4, %d, v3" % (vKo, amap[9]))
    else:
        a("v_bfe_u32 v4, v0, 2, 1"); a("v_lshl_or_b32 v3, v4, %d, v3" % amap[9]); a("v_bfe_u32 v4, v0, 3, 1"); a("v_lshl_or_b32 v%d, v4, %d, v3" % (vKo, amap[10]))
    a("s_lshl_b32 s14, s6, 21"); a("s_lshl_b32 s15, s7, %d" % amap[8]); a("s_add_u32 s14, s14, s15"); a("s_add_u32 s14, s14, %d" % (6144 * 256))
    if amap[1] == amap[0] + 1: a("s_lshl_b32 s15, s3, %d" % amap[0]); a("s_add_u32 s14, s14, s15")
    else:
        a("s_and_b32 s15, s3, 1"); a("s_lshl_b32 s15, s15, %d" % amap[0]); a("s_add_u32 s14, s14, s15")
        a("s_lshr_b32 s15, s3, 1"); a("s_lshl_b32 s15, s15, %d" % amap[1]); a("s_add_u32 s14, s14, s15")
    a("s_mov_b32 s42, 0x10000000"); a("s_mov_b32 s43, 0x20000")
    a("s_waitcnt lgkmcnt(0)")
    a("s_mov_b32 s40, s18"); a("s_mov_b32 s41, s19")
    if ts == 3: T.on = 0
    slot, tok, free, issued = {}, {}, pool[:], [0]
    def kidx(n): return n if n < 64 else (n - 64) ^ vrev
    def issue_next():
        n = issued[0]; issued[0] += 1
        r = free.pop(0); slot[n] = r
        a("s_add_u32 s10, s14, %d" % sum(((kidx(n) >> i) & 1) << amap[2 + i] for i in range(6)))
        tok[n] = vm.issue("buffer_load_dwordx4 %s, v%d, %s, s10 offen nt" % (vr(r), vKo if n < 64 else vVo, sK if n < 64 else sV))
        if ts == 3 and n in TSN: T.on = 1; T(1 + TSN.index(n)); T.on = 0
        if n == 127 and svk is None: note("SV: every V load is issued, second-layer weights may follow"); a("s_barrier")
    for _ in range(b0): issue_next()
    if lay: a("s_branch L_smain"); a("; HOIST"); a("L_smain:")
    if prio: a("s_setprio %d" % prio)
    srd(a, 44, 20, "0x10000000"); srd(a, 52, 38, "0x40000000")
    if vt:
        a("s_mov_b64 exec, 1"); vm.issue("buffer_load_dword v255, v%d, %s, s14 offen nt" % (vKo, sV)); a("s_mov_b64 exec, -1")
    a("v_and_b32 v3, 15, v0"); a("v_lshlrev_b32 v3, 4, v3"); a("v_bfe_u32 v4, v0, 4, 1"); a("v_lshl_or_b32 v3, v4, %d, v3" % amap[9])
    a("v_lshrrev_b32 v4, 5, v0"); a("v_lshl_or_b32 v%d, v4, %d, v3" % (vVo, amap[10]))
    a("v_bfe_u32 v3, v0, 3, 1"); a("v_bfe_u32 v4, v0, 1, 1"); a("v_lshl_or_b32 v3, v3, 1, v4")
    a("v_and_b32 v4, 1, v0"); a("v_lshlrev_b32 v4, 4, v4"); a("v_mov_b32 v5, 0xffff"); a("v_lshlrev_b32 v4, v4, v5")
    for r in range(4):
        a("v_cmp_eq_u32 vcc, %d, v3" % r); a("v_cndmask_b32 v%d, 0, v4, vcc" % (vMask + r))
    oslot("s26"); a("s_lshl_b32 s5, s3, %d" % (11 if opair else 7)); a("s_add_u32 s26, s26, s5")
    a("s_lshl_b32 s4, s3, 2"); a("v_lshlrev_b32 v9, 4, v0"); a("v_add_u32 v8, s4, v9"); a("v_mov_b32 v253, 0"); a("s_mov_b32 s27, 0")
    if pw: a("v_mov_b32 v255, s4")
    def D0(n):
        if n < nd0: return d0
        if n < nd1: return d0 + 1
        if R - s1x <= n < R: return d + (n - (R - s1x) + 1)
        if n < nramp: return d
        return min(dend, d + (n - nramp + 1) // step)
    def D(n): return D0(n) + (lv[-1] - d if n >= C0 else 0)
    def paced():
        n = issued[0]
        if n >= 128: return
        if n >= D(n): vm.wait(tok[n - D(n)])
        if dfree <= n < nfr and dfree < d and tok[n - dfree] > vm.done:
            a("s_cbranch_vccz L_fr%d" % n); a("s_waitcnt vmcnt(%d)" % (vm.n - tok[n - dfree])); a("L_fr%d:" % n)
        if n >= C0:
            if n % 2 == 1: a("s_waitcnt lgkmcnt(0)"); a("v_readfirstlane_b32 s27, v252")
            used = False
            for l_, t_ in reversed(list(zip(lv[:-1], th))):
                m = n - (D0(n) - d + l_)
                if tok[m] > vm.done:
                    a("s_cmp_ge_i32 s27, %d" % int(32 * t_)); a("s_cbranch_scc1 L_hi%d" % n); a("s_waitcnt vmcnt(%d)" % (vm.n - tok[m])); used = True
            if used: a("L_hi%d:" % n)
        issue_next()
        if nb1 and n == nfree and n < C0: a("v_mov_b32 v254, %d" % n); a("ds_write_b32 v8, v254 offset:%d" % L_G)
        if n >= C0:
            if n % pst == 0: a("v_mov_b32 v254, %d" % n); a("ds_write_b32 v8, v254 offset:%d" % L_G)
            if n % 2 == 0: a("ds_read_b32 v252, v255 offset:%d" % L_C4 if pw else "ds_read_b32 v252, v253 offset:%d" % L_C)
    def ahead(n):
        while issued[0] < 128 and issued[0] - D(issued[0]) < n: paced()
    if nb1: note("E0: the LDS control words are reset"); a("s_barrier")
    if ew: early_class("s25"); a("s_cbranch_scc1 L_gow")
    a("s_cmp_ge_u32 s2, 208"); a("s_cbranch_scc1 L_go_ok")
    if sln:
        note("layer norm of two batch rows per wave, rounded step by step like the bf16 reference")
        vx = vm.copy()
        xr = [pool[-1 - i // 4] + i % 4 for i in range(9)]; xf = [pool[-4 - i // 4] + i % 4 for i in range(18)]
        srd(a, 48, 16, 9216)
        a("v_lshrrev_b32 v3, 5, v0"); a("v_mul_u32_u24 v3, 1152, v3"); a("v_and_b32 v4, 31, v0"); a("v_lshl_add_u32 v3, v4, 2, v3"); a("s_mul_i32 s4, s3, 2304")
        if xw: vx.wait(tok[xw - 1])
        for i in range(9): a("buffer_load_dword v%d, v3, %s, s4 offen offset:%d" % (xr[i], sX, 128 * i))
        if not rowb: a("v_bfe_u32 v4, v0, 3, 2"); a("v_lshlrev_b32 v11, 8, v4"); a("v_bfe_u32 v4, v0, 2, 1"); a("v_lshl_or_b32 v11, v4, 4, v11"); a("v_and_b32 v4, 3, v0"); a("v_lshl_or_b32 v11, v4, 2, v11")
        if rowb: a("v_and_b32 v4, 3, v0"); a("v_lshlrev_b32 v11, 8, v4"); a("v_bfe_u32 v4, v0, 2, 3"); a("v_lshl_or_b32 v11, v4, 1, v11")
        a("v_lshrrev_b32 v4, 5, v0"); a("v_lshl_or_b32 v11, v4, 5, v11"); a("s_lshl_b32 s4, s3, 6"); a("v_add_u32 v11, s4, v11")
        a("s_waitcnt vmcnt(0)")
        def unp():
            for i in range(9): a("v_lshlrev_b32 v%d, 16, v%d" % (xf[2 * i], xr[i])); a("v_and_b32 v%d, 0xffff0000, v%d" % (xf[2 * i + 1], xr[i]))
        def pk(op, last):
            for i in range(0, 18, 2): a("%s %s, %s, %s" % (op, vr(xf[i], 2), vr(xf[i], 2), last))
        unp()
        a("v_pk_add_f32 v[4:5], %s, %s" % (vr(xf[0], 2), vr(xf[2], 2)))
        for i in range(4, 18, 2): a("v_pk_add_f32 v[4:5], v[4:5], %s" % vr(xf[i], 2))
        a("v_add_f32 v10, v4, v5"); allreduce(a, "v_add_f32", 10, 3, [8, 4, 2, 1, 16])
        a("v_mul_f32 v10, %s, v10" % f32(1 / 576)); a("v_mov_b32 v4, v10"); round_bf16(a, 4)
        a("v_sub_f32 v10, v10, v4"); a("v_sub_f32 v4, 0, v4"); a("v_mov_b32 v5, v4")
        pk("v_pk_add_f32", "v[4:5]")
        a("v_pk_mul_f32 v[6:7], %s, %s" % (vr(xf[0], 2), vr(xf[0], 2)))
        for i in range(2, 18, 2): a("v_pk_fma_f32 v[6:7], %s, %s, v[6:7]" % (vr(xf[i], 2), vr(xf[i], 2)))
        a("v_add_f32 v4, v6, v7"); allreduce(a, "v_add_f32", 4, 3, [8, 4, 2, 1, 16])
        a("v_mul_f32 v4, %s, v4" % f32(1 / 576)); a("v_fma_f32 v4, -v10, v10, v4"); a("v_max_f32 v4, 0, v4"); round_bf16(a, 4)
        a("v_add_f32 v4, %s, v4" % f32(1e-5)); round_bf16(a, 4)
        a("v_sqrt_f32 v4, v4"); round_bf16(a, 4); a("v_rcp_f32 v4, v4")
        for i in range(9): a("v_cvt_pk_bf16_f32 v%d, v%d, v%d" % (xr[i], xf[2 * i], xf[2 * i + 1]))
        a("v_mov_b32 v5, v4"); unp(); pk("v_pk_mul_f32", "v[4:5]")
        for i in range(9):
            a("v_cvt_pk_bf16_f32 v%d, v%d, v%d" % (xr[i], xf[2 * i], xf[2 * i + 1]))
            if rowb:
                a("ds_write_b16 v11, v%d offset:%d" % (xr[i], L_XN + 1024 * i)); a("ds_write_b16_d16_hi v11, v%d offset:%d" % (xr[i], L_XN + 1024 * i + 16))
            else: a("ds_write_b32 v11, v%d offset:%d" % (xr[i], L_XN + 1024 * i))
        a("v_mov_b32 v4, 1"); a("s_mov_b64 exec, 1"); a("s_waitcnt lgkmcnt(0)"); a("ds_add_u32 v253, v4 offset:%d" % L_X); a("s_mov_b64 exec, -1")
    if ew: a("L_gow:")
    def body(): a("ds_read_b32 v4, v253 offset:%d" % L_GO); a("s_waitcnt lgkmcnt(0)"); a("v_cmp_le_u32 vcc, 3, v4")
    spin(body, "L_go")
    a("s_cmp_ge_u32 s2, 208"); a("s_cselect_b64 vcc, -1, 0")
    if ew: a("s_cmp_lg_u32 s25, 0"); a("s_cselect_b64 vcc, 0, vcc")
    while issued[0] < R:
        paced()
        if issued[0] == 24: T(1)
        if issued[0] == nfree and not nb1:
            a("s_cmp_lt_u32 s2, 208"); a("s_cbranch_scc1 L_nofb"); a("s_barrier"); a("L_nofb:")
    T(2)
    if nb1:
        note("q and the die mode are valid once the ready word, read first, is set")
        def rdq(): a("ds_read_b32 v10, v253 offset:%d" % L_R); a("ds_read_b128 %s, v9 offset:%d" % (vr(vQ0), L_Q)); a("ds_read_b32 v4, v253 offset:%d" % L_F)
        rdq(); paced(); paced()
        a("v_cmp_ne_u32 vcc, 0, v10"); a("s_cmp_eq_u64 vcc, exec"); a("s_cbranch_scc1 L_rdy_ok")
        def body(): rdq(); a("s_waitcnt lgkmcnt(0)"); a("v_cmp_ne_u32 vcc, 0, v10")
        spin(body, "L_rdy")
        T(3)
        a("v_and_b32 v3, 8, v0"); a("v_cmp_eq_u32 vcc, 0, v3"); a("v_mov_b32 v%d, 0xff800000" % vM)
        a("s_mov_b32 s15, %s" % f32(128 ** -0.5))
    else:
        note("S1: q and the die mode are in LDS")
        a("s_barrier")
        T(3)
        a("ds_read_b128 %s, v9 offset:%d" % (vr(vQ0), L_Q))
        a("ds_read_b32 v4, v253 offset:%d" % L_F)
        for _ in range(s1p): paced()
        a("v_and_b32 v3, 8, v0"); a("v_cmp_eq_u32 vcc, 0, v3"); a("v_mov_b32 v%d, 0xff800000" % vM)
        a("s_mov_b32 s15, %s" % f32(128 ** -0.5))
        a("s_waitcnt lgkmcnt(0)")
    a("v_readfirstlane_b32 s100, v4")
    if nb1: a("s_and_b32 s100, s100, 1")
    for i in range(4): a("v_cndmask_b32 v%d, v%d, 0, vcc" % (vQ1 + i, vQ0 + i))
    for i in range(4): a("v_cndmask_b32 v%d, 0, v%d, vcc" % (vQ0 + i, vQ0 + i))
    vD += [free.pop(), free.pop()]
    S = []
    def qk(c):
        Dr = vD[c % 4]
        vm.wait(tok[2 * c + 1])
        a(MF % (vr(Dr), vr(slot[2 * c]), vr(vQ0), "0")); a(MF % (vr(Dr), vr(slot[2 * c + 1]), vr(vQ1), vr(Dr)))
        free.extend([slot[2 * c], slot[2 * c + 1]])
    def extract(c, mid=None):
        if c % 4 == 0: S.extend(range(free[-1], free[-1] + 4)); free.pop()
        x, y, DA, DB = S[c], S[c + 1], vD[c % 4], vD[(c + 1) % 4]
        for i in range(4):
            for s_, Dr in ((x, DA), (y, DB)):
                if i == 0: a("v_mov_b32_dpp v%d, v%d quad_perm:[0,0,0,0] %s" % (s_, Dr, DPP))
                else: a("v_add_f32_dpp v%d, v%d, v%d quad_perm:[%d,%d,%d,%d] %s" % (s_, Dr + i, s_, i, i, i, i, DPP))
        if mid: mid()
        for rep in range(2):
            a("v_cvt_pk_bf16_f32 v3, v%d, v%d" % (x, y))
            a("v_lshlrev_b32 v%d, 16, v3" % x); a("v_and_b32 v%d, 0xffff0000, v3" % y)
            if rep == 0: a("v_mul_f32 v%d, s15, v%d" % (x, x)); a("v_mul_f32 v%d, s15, v%d" % (y, y))
        a("v_max3_f32 v%d, v%d, v%d, v%d" % (vM, vM, x, y))
    if ilv:
        for c in range(0, 32, 2):
            ahead(2 * c + 3)
            qk(c); qk(c + 1)
            paced()
            if c >= 2: extract(c - 2, paced)
            else: paced()
    else:
        for c in range(0, 32, 2):
            ahead(2 * c + 3)
            qk(c); qk(c + 1)
            paced(); paced()
            if c >= 2: extract(c - 2)
    extract(30)
    free.extend(vD[2:])
    T(4)
    paced()
    allreduce(a, "v_max_f32", vM, 3, [8, 16, 32])
    a("s_mov_b32 s15, %s" % f32(L2E)); a("v_mul_f32 v%d, s15, v%d" % (vM, vM)); a("v_mov_b32 v%d, 0" % vL); a("v_mov_b32 v4, 0")
    for c in range(0, 32, 4):
        for i in range(4): a("v_fma_f32 v%d, v%d, s15, -v%d" % (S[c + i], S[c + i], vM))
        for i in range(4): a("v_exp_f32 v%d, v%d" % (S[c + i], S[c + i]))
        for i in range(4): a("v_add_f32 v%d, v%d, v%d" % ((vL, 4)[i % 2], (vL, 4)[i % 2], S[c + i]))
        for i in range(4): a("v_cvt_pk_bf16_f32 v%d, v%d, v%d" % (S[c + i], S[c + i], S[c + i]))
        if c % 8 == 4: paced()
    a("v_add_f32 v%d, v%d, v4" % (vL, vL))
    allreduce(a, "v_add_f32", vL, 3, [8, 16, 32])
    a("v_min_u32 v10, -2, v%d" % vM); a("v_min_u32 v11, -2, v%d" % vL)
    a("v_lshlrev_b32 v9, 1, v0"); a("v_and_b32 v9, 0x38, v9"); a("v_lshrrev_b32 v3, 5, v0"); a("v_lshl_or_b32 v9, v3, 7, v9")
    a("s_lshl_b32 s73, s6, 8"); a("s_add_u32 s73, s73, %d" % WS_STAT)
    a("s_lshl_b32 s4, s7, 3"); a("s_add_u32 s4, s4, s3"); a("s_lshl_b32 s4, s4, 4"); a("s_add_u32 s4, s4, s73")
    a("s_mov_b64 exec, 0x11")
    if not nost: store2("buffer_store_dwordx2 v[10:11], v9, %s, s4 offen" % sWS); vm.n += 1
    a("s_mov_b64 exec, -1")
    vB = vD[:2]
    def prepB(n):
        c, t = divmod(kidx(n), 2)
        for r in range(4):
            if (r >> 1) == t: a("v_and_b32 v%d, v%d, v%d" % (vB[n % 2] + r, S[c], vMask + r))
            else: a("v_and_b32_dpp v%d, v%d, v%d row_ror:8 %s" % (vB[n % 2] + r, S[c], vMask + r, DPP))
    prepB(64)
    tstat = None
    ldS = "buffer_load_dwordx2 v[10:11], v9, %s, s73 offen sc1" % sWS
    for n in range(64, 128):
        ahead(n)
        if tstat is None and issued[0] >= stat_at: tstat = vm.issue(ldS)
        vm.wait(tok[n])
        if svk is not None and n == 127 - svk: assert issued[0] == 128; note("SV: second-layer weights may follow"); a("s_barrier")
        a(MF % (vr(vAcc), vr(slot[n]), vr(vB[n % 2]), "0" if n == 64 else vr(vAcc)))
        free.append(slot[n])
        if n % 2 == 1 and issued[0] < 128 and issued[0] - D(issued[0]) > n: paced()
        if n < 127: prepB(n + 1)
        if tstat and tstat > 0 and vm.done >= tstat:
            note("combine the eight (max, sum) pairs of the row: f = exp(own max - row max) / row sum")
            def stat_valid(): a("v_max_u32 v3, v10, v11"); a("v_cmp_ne_u32 vcc, -1, v3")
            if nost: a("s_branch L_stat_ok")
            stat_valid(); a("s_cmp_eq_u64 vcc, exec"); a("s_cbranch_scc1 L_stat_ok")
            def body(): a(ldS); a("s_waitcnt vmcnt(0)"); stat_valid()
            spin(body, "L_stat")
            a("v_mov_b32 v%d, v10" % vF); allreduce(a, "v_max_f32", vF, 3, [8, 16, 32])
            a("v_sub_f32 v10, v10, v%d" % vF); a("v_sub_f32 v%d, v%d, v%d" % (vF, vM, vF))
            a("v_exp_f32 v10, v10"); a("v_exp_f32 v%d, v%d" % (vF, vF)); a("v_mul_f32 v10, v10, v11")
            paced()
            allreduce(a, "v_add_f32", 10, 3, [8, 16, 32])
            a("v_rcp_f32 v10, v10"); a("v_mul_f32 v%d, v%d, v10" % (vF, vF)); a("v_mov_b32 v%d, v%d" % (vL, vF))
            a("v_bfe_u32 v3, v0, 2, 1"); a("v_mul_u32_u24 v9, 704, v3"); a("v_lshrrev_b32 v4, 4, v0"); a("v_mul_u32_u24 v4, 160, v4"); a("v_add_u32 v9, v9, v4")
            a("v_bfe_u32 v3, v0, 3, 1"); a("v_lshl_add_u32 v9, v3, 4, v9"); a("v_and_b32 v3, 3, v0"); a("v_lshl_add_u32 v9, v3, 2, v9")
            a("s_mul_i32 s4, s3, 1536"); a("s_add_u32 s4, s4, %d" % L_OP); a("v_add_u32 v9, s4, v9")
            a("s_lshr_b32 s4, s3, 1"); a("s_mul_i32 s4, s4, 704"); a("s_and_b32 s5, s3, 1"); a("s_mul_i32 s5, s5, 320"); a("s_add_u32 s4, s4, s5")
            a("v_and_b32 v3, 15, v0"); a("v_lshl_add_u32 v10, v3, 3, v4"); a("v_add_u32 v10, s4, v10"); a("v_lshlrev_b32 v11, 2, v0")
            if opair: a("v_lshlrev_b32 v11, 2, v3"); a("v_lshrrev_b32 v3, 4, v0"); a("v_lshl_or_b32 v11, v3, 10, v11")
            tstat = -1
    assert tstat == -1
    T(6)
    for i in (0, 2): a("v_pk_mul_f32 %s, %s, v[6:7]" % (vr(vAcc + i, 2), vr(vAcc + i, 2)))
    a("ds_write2_b32 v9, v%d, v%d offset0:0 offset1:8" % (vAcc, vAcc + 1))
    a("ds_write2_b32 v9, v%d, v%d offset0:16 offset1:24" % (vAcc + 2, vAcc + 3))
    a("s_waitcnt lgkmcnt(0)"); a("s_barrier")
    a("s_mov_b32 exec_hi, 0")
    for w in range(4): a("ds_read_b64 %s, v10 offset:%d" % (vr(16 + 2 * w, 2), L_OP + 1536 * w))
    a("s_waitcnt lgkmcnt(2)"); a("v_pk_add_f32 v[16:17], v[16:17], v[18:19]")
    a("s_waitcnt lgkmcnt(0)"); a("v_pk_add_f32 v[20:21], v[20:21], v[22:23]"); a("v_pk_add_f32 v[16:17], v[16:17], v[20:21]")
    a("v_cvt_pk_bf16_f32 v3, v16, v17"); a("v_min_u32 v3, -2, v3")
    a("buffer_store_dword v3, v11, %s, s26 offen sc1" % sWS)
    T(5)
    if split: note("the held-back weight loads go out behind these stores"); a("s_barrier")
    if oat < 0: a("s_waitcnt vmcnt(0)")
    T.on = ts
    T.flush()
    a("s_endpgm")

    a("; HBEG")
    a("L_help:")
    vLin, vWo = 1, 2
    a("v_lshlrev_b32 v%d, 4, v0" % vLin)
    a("s_mov_b32 s12, 0x05040100"); a("s_mov_b32 s13, 0x07060302")
    a("s_cmp_eq_u32 s3, 5"); a("s_cbranch_scc1 L_h5")
    vm = VM(a)
    vXN, vAc, vTp, vRing = 8, 44, 244, 116
    a("s_lshr_b32 s101, s2, 3"); a("s_and_b32 s4, s2, 7")
    a("s_cmp_lt_u32 s101, 8"); a("s_movk_i32 s14, 8192"); a("s_cselect_b32 s14, s14, 9216"); a("s_mov_b32 s58, 4718592"); a("s_cselect_b32 s58, s58, 5308416")
    a("s_cselect_b32 s5, 8, 9"); a("s_cselect_b32 s15, 0, 8"); a("s_mul_i32 s4, s4, s5")
    a("s_cmp_lt_u32 s101, 17"); a("s_cselect_b32 s15, s15, 17"); a("s_sub_u32 s15, s101, s15"); a("s_add_u32 s74, s15, s4"); a("s_lshl_b32 s15, s74, 7")
    a("v_lshrrev_b32 v3, 3, v0")
    if not rowb: a("v_lshlrev_b32 v3, 3, v3")
    a("v_mul_u32_u24 v3, s14, v3"); a("v_and_b32 v2, 7, v0"); a("v_lshl_add_u32 v%d, v2, 4, v3" % vWo)
    if not sln: actaddr(3, 4, 1152)
    a("s_sub_u32 s10, s3, 5"); a("s_max_i32 s10, s10, 0"); a("s_mul_i32 s4, s10, 192"); a("s_mul_i32 s4, s4, s14"); a("s_add_u32 s15, s15, s4")
    a("s_lshl_b32 s14, s14, 3" if rowb else "s_mul_i32 s75, s14, 57"); a("s_mov_b32 s59, 0x20000")
    a("s_waitcnt lgkmcnt(0)")
    a("s_cmp_ge_u32 s2, 208"); a("s_cbranch_scc1 L_nol1")
    a("s_cmp_lt_u32 s101, 17"); a("s_cselect_b32 s56, s28, s30"); a("s_cselect_b32 s57, s29, s31")
    a("s_cmp_lt_u32 s101, 8"); a("s_cselect_b32 s56, s22, s56"); a("s_cselect_b32 s57, s23, s57")
    w1 = []
    for n in range(24):
        if n == da1: srd(a, 52, 38, "0x40000000"); a("s_barrier")
        if n >= da1: vm.wait(w1[n - da1])
        w1.append(vm.issue("buffer_load_dwordx4 %s, v%d, %s, s15 offen nt" % (vr(vRing + 4 * n), vWo, sW1)))
        a("s_add_u32 s15, s15, %s" % ("s75" if n % 8 == 7 and not rowb else "s14"))
    if lay: a("s_branch L_amain")
    a("; HEND"); a("L_amain:")
    if not sln: srd(a, 48, 16, 9216)
    a("v_mov_b32 v6, 0"); a("v_mov_b32 v7, 1")
    vm.wait(w1[23 - kw])
    a("s_mov_b64 exec, 1"); a("ds_add_u32 v6, v7 offset:%d" % L_GO); a("s_mov_b64 exec, -1")
    if sln:
        a("s_mul_i32 s4, s10, 3072"); a("v_add_u32 v5, s4, v%d" % vLin)
        def body():
            a("ds_read_b32 v4, v6 offset:%d" % L_X)
            for k in range(3): a("ds_read_b128 %s, v5 offset:%d" % (vr(vXN + 4 * k), L_XN + 1024 * k))
            a("s_waitcnt lgkmcnt(0)"); a("v_cmp_le_u32 vcc, 4, v4")
        spin(body, "L_xw")
    else:
        for i in range(9): tx = vm.issue("buffer_load_dwordx4 %s, v3, %s, 0 offen offset:%d" % (vr(vXN + 4 * i), sX, 128 * i))
        xf = 44
        def unpack_n(n):
            for i in range(n): a("v_lshlrev_b32 v%d, 16, v%d" % (xf + 2 * i, vXN + i)); a("v_and_b32 v%d, 0xffff0000, v%d" % (xf + 2 * i + 1, vXN + i))
        def pack_n(off):
            for i in range(12): a("v_cvt_pk_bf16_f32 v%d, v%d, v%d" % (vXN + i, xf + off + 2 * i, xf + off + 2 * i + 1))
        for i in range(4): a("v_mov_b32 v%d, 0x3f803f80" % (244 + i))
        vm.wait(tx)
        for i in range(9): a(MF % ("v[248:251]", "v[244:247]", vr(vXN + 4 * i), "0" if i == 0 else "v[248:251]"))
        unpack_n(36)
        allreduce(a, "v_add_f32", 248, 249, [0])
        a("v_mul_f32 v248, %s, v248" % f32(1 / 576)); a("v_mov_b32 v4, v248"); round_bf16(a, 4)
        a("v_sub_f32 v248, v248, v4"); a("v_sub_f32 v4, 0, v4"); a("v_mov_b32 v5, v4")
        for i in range(36): a("v_pk_add_f32 %s, %s, v[4:5]" % (vr(xf + 2 * i, 2), vr(xf + 2 * i, 2)))
        for i in range(36):
            acc = vr(244 + 2 * (i % 2), 2); x2 = vr(xf + 2 * i, 2)
            a("v_pk_mul_f32 %s, %s, %s" % (acc, x2, x2) if i < 2 else "v_pk_fma_f32 %s, %s, %s, %s" % (acc, x2, x2, acc))
        a("v_pk_add_f32 v[244:245], v[244:245], v[246:247]"); a("v_add_f32 v4, v244, v245")
        allreduce(a, "v_add_f32", 4, 5, [0, 16, 32])
        a("v_mul_f32 v4, %s, v4" % f32(1 / 576)); a("v_fma_f32 v4, -v248, v248, v4"); a("v_max_f32 v4, 0, v4"); round_bf16(a, 4)
        a("v_add_f32 v4, %s, v4" % f32(1e-5)); round_bf16(a, 4)
        a("v_sqrt_f32 v4, v4"); round_bf16(a, 4); a("v_rcp_f32 v4, v4")
        a("s_cmp_eq_u32 s10, 1"); a("s_cbranch_scc1 L_th1"); a("s_cmp_eq_u32 s10, 2"); a("s_cbranch_scc1 L_th2")
        pack_n(0); a("s_branch L_th"); a("L_th1:"); pack_n(24); a("s_branch L_th"); a("L_th2:"); pack_n(48); a("L_th:")
        a("v_mov_b32 v5, v4"); unpack_n(12)
        for i in range(12): a("v_pk_mul_f32 %s, %s, v[4:5]" % (vr(xf + 2 * i, 2), vr(xf + 2 * i, 2)))
        pack_n(0)
    T(1)
    def flagaddr(): a("v_and_b32 v253, 7, v0"); a("v_and_b32 v254, 24, v0"); a("v_lshl_or_b32 v253, v254, 1, v253"); a("v_lshlrev_b32 v253, 2, v253")
    ldF = "buffer_load_dword v252, v253, %s, 0 offen sc1" % sDBG
    for blk in range(3): vm.wait(w1[8 * blk + 7]); block_mm(vRing + 32 * blk, vTp, vAc, vXN + 4 * blk, blk == 0)
    T(2)
    block_fold(vTp, vAc)
    a("s_cmp_eq_u32 s3, 4"); a("s_cbranch_scc1 L_l1sum")
    a("s_lshl_b32 s4, s10, 11"); a("v_add_u32 v5, s4, v%d" % vLin)
    for x in range(2): a("ds_write_b128 v5, %s offset:%d" % (vr(vTp + 4 * x), L_LP + 1024 * x))
    a("s_mov_b64 exec, 1"); a("s_waitcnt lgkmcnt(0)"); a("ds_add_u32 v6, v7 offset:%d" % L_N); a("s_mov_b64 exec, -1")
    a("s_branch L_h67")
    a("L_l1sum:")
    def body():
        a("ds_read_b32 v8, v6 offset:%d" % L_N)
        for k in range(4): a("ds_read_b128 %s, v%d offset:%d" % (vr(16 + 4 * k), vLin, L_LP + 2048 + 1024 * k))
        a("s_waitcnt lgkmcnt(0)"); a("v_cmp_le_u32 vcc, 2, v8")
    spin(body, "L_l1w")
    for k in range(2):
        for i in range(0, 8, 2): a("v_pk_add_f32 %s, %s, %s" % (vr(vTp + i, 2), vr(vTp + i, 2), vr(16 + 8 * k + i, 2)))
    for q in range(4): a("v_cvt_pk_bf16_f32 v%d, v%d, v%d" % (12 + q, vTp + 2 * q, vTp + 2 * q + 1))
    for q in range(4): a("v_min_u32 v%d, -2, v%d" % (12 + q, 12 + q))
    a("s_branch L_l1done")
    a("L_nol1:")
    srd(a, 52, 38, "0x40000000")
    if ew:
        early_class("s4"); a("s_cbranch_scc0 L_noew")
        roles(); a("s_mov_b32 s27, s101"); a("s_mov_b32 s101, s10"); down_addr(); a("s_mov_b32 s101, s27")
        ve = VM(a); we = []
        for n in range(16):
            if n == da2: a("s_barrier")
            if n >= da2: ve.wait(we[n - da2])
            we.append(down_load(ve, n))
        a("v_mov_b32 v6, 0"); a("v_mov_b32 v7, 1"); ve.wait(we[15 - kw2])
        a("s_mov_b64 exec, 1"); a("ds_add_u32 v6, v7 offset:%d" % L_GO); a("s_mov_b64 exec, -1")
        a("s_branch L_ewd"); a("L_noew:")
    a("s_barrier")
    if ew: a("L_ewd:")
    a("s_cmp_lg_u32 s3, 4"); a("s_cbranch_scc1 L_h67")
    a("L_l1done:")
    T(10)
    roles()
    def modeblock():
        note("all 256 workgroups must have emptied their slots before any hand-off is written or read")
        a("s_mov_b32 s5, 0x88888888")
        def fvalid(): a("v_and_b32 v8, s5, v252"); a("v_cmp_eq_u32 vcc, s5, v8")
        fvalid(); a("s_cmp_eq_u64 vcc, exec"); a("s_cbranch_scc1 L_flags_ok")
        def body(): a(ldF); a("s_waitcnt vmcnt(0)"); fvalid()
        spin(body, "L_flags")
        a("v_readfirstlane_b32 s4, v252"); a("v_cmp_eq_u32 vcc, s4, v252"); a("s_cmp_eq_u64 vcc, exec"); a("s_cselect_b32 s100, %d, 0" % loc)
        a("s_cmp_lg_u32 s100, 0"); a("s_cbranch_scc1 L_mode_ok")
        for i in range(4): a("v_mov_b32 v%d, -1" % (16 + i))
        slots("far", 16, vLin, 20)
        a("s_lshl_b32 s10, s2, 7"); a("s_add_u32 s10, s10, %d" % WS_GO); a("v_lshlrev_b32 v20, 7, v0"); a("v_mov_b32 v21, 1")
        a("s_mov_b64 exec, 1"); a("buffer_store_dword v16, v20, %s, s10 offen sc1" % sWS); a("s_waitcnt vmcnt(0)")
        a("s_and_b32 s5, s2, 3"); a("s_lshl_b32 s5, s5, 6"); a("s_add_u32 s5, s5, 36")
        a("s_mov_b32 s4, 1"); a("s_atomic_add s4, s[36:37], s5 glc"); a("s_waitcnt lgkmcnt(0)")
        a("s_and_b32 s4, s4, 63"); a("s_cmp_lg_u32 s4, 63"); a("s_cbranch_scc1 L_notlast")
        a("s_mov_b32 s4, 1"); a("s_atomic_add s4, s[36:37], 40 glc"); a("s_waitcnt lgkmcnt(0)")
        a("s_and_b32 s4, s4, 3"); a("s_cmp_lg_u32 s4, 3"); a("s_cbranch_scc1 L_notlast")
        a("s_mov_b64 exec, -1")
        for k in range(4): a("s_mov_b32 s4, %d" % (WS_GO + 8192 * k)); a("buffer_store_dword v21, v20, %s, s4 offen sc1" % sWS)
        a("s_mov_b64 exec, 1")
        a("L_notlast:")
        def body(): a("buffer_load_dword v8, v20, %s, s10 offen sc1" % sWS); a("s_waitcnt vmcnt(0)"); a("v_cmp_ne_u32 vcc, -1, v8")
        spin(body, "L_far")
        a("s_mov_b64 exec, -1")
        a("L_mode_ok:")
    if ec:
        a("v_mov_b32 v9, 0")
        def body(): a("ds_read_b32 v8, v9 offset:%d" % L_F); a("s_waitcnt lgkmcnt(0)"); a("v_cmp_ne_u32 vcc, 0, v8")
        spin(body, "L_amode")
        a("v_readfirstlane_b32 s100, v8"); a("s_and_b32 s100, s100, 1")
    else: modeblock()
    T(4)
    l1slot("s72")
    a("s_cmp_ge_u32 s2, 208"); a("s_cbranch_scc1 L_nol1st")
    a("s_sub_u32 s4, s101, 8"); a("s_cmp_lt_u32 s4, 9"); a("s_cbranch_scc1 L_nol1st")
    store2("buffer_store_dwordx4 v[12:15], v%d, %s, s72 offen" % (vLin, sWS))
    a("L_nol1st:")
    if ec: pass
    elif nb1: a("s_add_u32 s4, s100, 2"); a("v_mov_b32 v8, s4"); a("v_mov_b32 v9, 0"); a("ds_write_b32 v9, v8 offset:%d" % L_F)
    else:
        a("v_mov_b32 v8, s100"); a("v_mov_b32 v9, 0"); a("ds_write_b64 v9, v[8:9] offset:%d" % L_F)
        for i in range(4): a("v_mov_b32 v%d, %d" % (16 + i, R - 1))
        a("ds_write_b128 v9, v[16:19] offset:%d" % L_G)
        if pw:
            for i in range(4): a("v_mov_b32 v%d, 0" % (20 + i))
            a("ds_write_b128 v9, v[20:23] offset:%d" % L_C4)
    a("v_bfe_u32 v3, v0, 2, 1"); a("v_lshlrev_b32 v3, 11, v3"); a("v_lshrrev_b32 v4, 5, v0"); a("v_lshl_or_b32 v3, v4, 10, v3")
    a("v_bfe_u32 v4, v0, 4, 1"); a("v_lshl_or_b32 v3, v4, 6, v3"); a("v_and_b32 v4, 3, v0"); a("v_lshl_or_b32 v10, v4, 4, v3")
    a("s_and_b32 s4, s2, 7"); a("s_lshl_b32 s4, s4, 15"); a("s_and_b32 s5, s6, 1"); a("s_lshl_b32 s5, s5, 12"); a("s_add_u32 s4, s4, s5")
    a("s_lshr_b32 s5, s6, 4"); a("s_lshl_b32 s5, s5, 7"); a("s_add_u32 s4, s4, s5")
    def poll4(r, va, label):
        ld = "buffer_load_dwordx4 %s, v%d, %s, s4 offen sc1" % (vr(r), va, sWS)
        a(ld); a("s_waitcnt vmcnt(0)"); mpoll(label, [ld], list(range(r, r + 4)))
    poll4(4, 10, "L_qpoll")
    T(11)
    a("ds_write_b128 v%d, v[4:7] offset:%d" % (vLin, L_Q))
    if nb1: a("s_waitcnt lgkmcnt(0)"); a("ds_write_b32 v9, v8 offset:%d" % L_R); a("s_waitcnt lgkmcnt(0)")
    else: a("s_waitcnt lgkmcnt(0)"); a("s_barrier")
    T(5)
    if x1 & 1: a("s_branch L_noh")
    a("s_sub_u32 s4, s101, 8"); a("s_cmp_ge_u32 s4, 9"); a("s_cbranch_scc1 L_noh")
    a("s_add_u32 s4, s72, %d" % (9 * 1024))
    poll4(16, vLin, "L_upoll")
    a("s_mov_b32 s4, %s" % f32(0.044715)); a("s_mov_b32 s5, %s" % f32(-2 * (2 / 3.141592653589793) ** 0.5 * L2E))
    g, e = list(range(24, 32)), list(range(32, 40))
    def unpack(dst, src):
        for q in range(4): a("v_lshlrev_b32 v%d, 16, v%d" % (dst[2 * q], src + q)); a("v_and_b32 v%d, 0xffff0000, v%d" % (dst[2 * q + 1], src + q))
    def pack(dst, src):
        for q in range(4): a("v_cvt_pk_bf16_f32 v%d, v%d, v%d" % (dst + q, src[2 * q], src[2 * q + 1]))
    unpack(g, 12)
    for i in range(8): a("v_mul_f32 v%d, v%d, v%d" % (e[i], g[i], g[i]))
    for i in range(8): a("v_fma_f32 v%d, v%d, s4, 1.0" % (e[i], e[i]))
    for i in range(8): a("v_mul_f32 v%d, v%d, v%d" % (e[i], e[i], g[i]))
    for i in range(8): a("v_mul_f32 v%d, s5, v%d" % (e[i], e[i]))
    for i in range(8): a("v_exp_f32 v%d, v%d" % (e[i], e[i]))
    for i in range(8): a("v_add_f32 v%d, 1.0, v%d" % (e[i], e[i]))
    for i in range(8): a("v_rcp_f32 v%d, v%d" % (e[i], e[i]))
    for i in range(8): a("v_mul_f32 v%d, v%d, v%d" % (g[i], g[i], e[i]))
    pack(12, g); unpack(g, 12); unpack(e, 16)
    for i in range(8): a("v_mul_f32 v%d, v%d, v%d" % (g[i], g[i], e[i]))
    pack(12, g)
    for q in range(4): a("v_min_u32 v%d, -2, v%d" % (12 + q, 12 + q))
    a("s_lshl_b32 s4, s74, 10"); a("s_add_u32 s4, s4, %d" % WS_H)
    if hlin:
        a("v_bfe_u32 v3, v0, 1, 2"); a("v_lshlrev_b32 v3, 8, v3"); a("v_lshrrev_b32 v4, 3, v0"); a("v_lshl_or_b32 v3, v4, 5, v3"); a("v_and_b32 v4, 1, v0"); a("v_lshl_or_b32 v3, v4, 4, v3")
    a("buffer_store_dwordx4 v[12:15], v%d, %s, s4 offen sc1" % (3 if hlin else vLin, sWS))
    a("L_noh:")
    T(6)
    a("s_cmp_lt_u32 s8, 28"); a("s_cbranch_scc1 L_l2")
    a("s_branch L_hdone")

    a("L_h5:")
    roles()
    for i in range(4): a("v_mov_b32 v%d, 0" % (4 + i))
    for o_ in (L_F, L_N, L_G): a("ds_write_b128 v4, v[4:7] offset:%d" % o_)
    a("s_waitcnt lgkmcnt(0)")
    if e5: a("s_barrier")
    srd(a, 52, 38, "0x40000000")
    for i in range(4): a("v_mov_b32 v%d, -1" % (4 + i))
    oslot("s74"); a("v_lshlrev_b32 v3, 3, v0")
    if opair:
        a("s_mul_i32 s4, s7, %d" % (1024 - 64)); a("s_add_u32 s74, s74, s4")
        a("v_and_b32 v3, 15, v0"); a("v_lshlrev_b32 v3, 3, v3"); a("v_lshrrev_b32 v8, 4, v0"); a("v_lshl_or_b32 v3, v8, 11, v3")
    a("buffer_store_dwordx2 v[4:5], v3, %s, s74 offen sc1" % sWS)
    a("s_lshr_b32 s4, s2, 3"); a("s_sub_u32 s4, s4, 8"); a("s_cmp_ge_u32 s4, 9"); a("s_cbranch_scc1 L_nohcl")
    a("s_and_b32 s5, s2, 7"); a("s_mul_i32 s5, s5, 9"); a("s_add_u32 s4, s4, s5"); a("s_lshl_b32 s4, s4, 10"); a("s_add_u32 s4, s4, %d" % WS_H)
    a("buffer_store_dwordx4 v[4:7], v%d, %s, s4 offen sc1" % (vLin, sWS))
    a("L_nohcl:")
    if not nocl: slots("read", 4, vLin, 8)
    prgaddr("s74", "s72")
    a("s_mov_b64 exec, 1"); a("buffer_load_dword v10, v%d, %s, s74 offen" % (vLin, sWS)); a("s_mov_b64 exec, -1")
    if not e5: a("s_barrier")
    a("s_waitcnt vmcnt(0)")
    if not nocl: slots("near", 4, vLin, 8)
    a("v_mov_b32 v11, %d" % (4 * p0)); a("s_mov_b64 exec, 1"); a("buffer_store_dword v11, v%d, %s, s72 offen" % (vLin, sWS))
    a("s_mov_b64 exec, -1")
    a("s_getreg_b32 s5, hwreg(HW_REG_XCC_ID, 0, 3)"); a("s_or_b32 s5, s5, 8"); a("s_and_b32 s4, s2, 7"); a("s_lshl_b32 s4, s4, 2"); a("s_lshl_b32 s5, s5, s4")
    a("s_bfe_u32 s4, s2, 0x30003"); a("s_lshl_b32 s4, s4, 2"); a("s_and_b32 s10, s2, 192"); a("s_add_u32 s4, s4, s10")
    a("s_waitcnt vmcnt(0)")
    a("s_atomic_or s5, s[36:37], s4"); a("s_waitcnt lgkmcnt(0)")
    if st:
        note("scalar touches warm the address translation of ranges this workgroup reads later")
        a("s_lshl_b32 s4, s6, 21"); a("s_lshl_b32 s5, s7, %d" % amap[8]); a("s_add_u32 s4, s4, s5"); a("s_add_u32 s4, s4, %d" % (6144 * 256))
        r = 40
        if st & 1: a("s_load_dword s%d, s[20:21], s4" % r); r += 1
        for k in range(1, 4):
            a("s_add_u32 s4, s4, 0x20000")
            if st & 2: a("s_load_dword s%d, s[20:21], s4" % r); r += 1
            if st & 4: a("s_load_dword s%d, s[18:19], s4" % r); r += 1
        if st & 8:
            a("s_cmp_lt_u32 s8, 16"); a("s_cselect_b32 s22, s24, s32"); a("s_cselect_b32 s23, s25, s33"); a("s_cselect_b32 s4, 0, 16"); a("s_movk_i32 s5, 256"); a("s_cselect_b32 s5, s5, 384")
            a("s_sub_u32 s4, s8, s4"); a("s_min_u32 s4, s4, 15"); a("s_mul_i32 s4, s4, s5"); a("s_min_u32 s4, s4, 4224"); a("s_mul_i32 s4, s4, 1152")
            a("s_load_dword s56, s[22:23], s4"); a("s_add_u32 s4, s4, %d" % (255 * 1152)); a("s_load_dword s57, s[22:23], s4"); a("s_load_dword s58, s[34:35], 0")
        a("s_waitcnt lgkmcnt(0)")
    T(3)
    a("L_h67:")
    roles()
    a("s_cmp_eq_u32 s3, 7"); a("s_cselect_b32 s4, 0, s8"); a("s_cmp_ge_u32 s4, 28"); a("s_cbranch_scc1 L_hdone")
    if ew: a("s_cmp_eq_u32 s3, 5"); a("s_cselect_b32 s4, s8, 0"); a("s_cmp_ge_u32 s4, 16"); a("s_cbranch_scc1 L_hdone")
    if nb1:
        a("s_cmp_lg_u32 s3, 7"); a("s_cbranch_scc1 L_l2")
        a("v_mov_b32 v9, 0")
        if ec:
            note("read the arrival words once the streams are under way; retries wait for further progress")
            a("s_cmp_ge_u32 s2, 208"); a("s_cselect_b32 s26, %d, %d" % (ecf, ecl))
            if ew: early_class("s4"); a("s_cselect_b32 s26, %d, s26" % ece)
            srd(a, 64, 36, 256); flagaddr(); a("s_mov_b32 s5, 0x88888888")
            a("L_fl:")
            def body(): a("ds_read_b128 v[12:15], v9 offset:%d" % L_G); a("s_waitcnt lgkmcnt(0)"); a("v_min3_u32 v5, v12, v13, v14"); a("v_min_u32 v5, v5, v15"); a("v_cmp_le_u32 vcc, s26, v5")
            spin(body, "L_mwait")
            a(ldF); a("s_waitcnt vmcnt(0)"); a("v_and_b32 v8, s5, v252"); a("v_cmp_eq_u32 vcc, s5, v8"); a("s_cmp_eq_u64 vcc, exec"); a("s_cbranch_scc1 L_flags_ok")
            a("v_readfirstlane_b32 s26, v5"); a("s_add_u32 s26, s26, %d" % bko); a("s_cmp_le_u32 s26, %d" % R); a("s_cbranch_scc1 L_fl")
            modeblock()
            a("s_add_u32 s4, s100, 2"); a("v_mov_b32 v8, s4"); a("v_mov_b32 v9, 0"); a("ds_write_b32 v9, v8 offset:%d" % L_F)
        else:
            def body(): a("ds_read_b32 v4, v9 offset:%d" % L_F); a("ds_read_b128 v[12:15], v9 offset:%d" % L_G); a("s_waitcnt lgkmcnt(0)"); a("v_min3_u32 v5, v12, v13, v14"); a("v_min_u32 v5, v5, v15"); a("v_cmp_le_u32 vcc, %d, v5" % C0); a("v_cndmask_b32 v5, 0, v4, vcc"); a("v_cmp_ne_u32 vcc, 0, v5")
            spin(body, "L_mwait")
            a("v_readfirstlane_b32 s100, v4"); a("s_and_b32 s100, s100, 1")
    else:
        a("s_cmp_lt_u32 s2, 208"); a("s_cbranch_scc1 L_nofb2"); a("s_barrier"); a("L_nofb2:")
        a("s_barrier")
        a("v_mov_b32 v9, 0"); a("ds_read_b32 v4, v9 offset:%d" % L_F); a("s_waitcnt lgkmcnt(0)"); a("v_readfirstlane_b32 s100, v4")
        a("s_cmp_lg_u32 s3, 7"); a("s_cbranch_scc1 L_l2")
    if x1 & 2: a("s_branch L_ctl_done")
    a("s_cmp_eq_u32 s100, 0"); a("s_cbranch_scc1 L_ctl_done")
    prgaddr("s74", "s72")
    a("v_and_b32 v8, 31, v0"); a("v_lshlrev_b32 v8, 2, v8")
    a("s_and_b32 s4, s2, 7"); a("s_cselect_b32 s4, s2, 0"); a("s_cmp_ge_u32 s4, 224"); a("s_cselect_b32 s75, %d, 0" % (32 * lead)); a("s_mov_b32 s15, s75"); a("s_add_u32 s75, s75, %d" % int(32 * bias))
    if leadd: a("s_cmp_ge_u32 s8, 16"); a("s_cselect_b32 s4, 1, -1"); a("s_mul_i32 s4, s4, %d" % int(16 * leadd)); a("s_and_b32 s5, s2, 7"); a("s_cselect_b32 s4, s4, 0"); a("s_add_u32 s75, s75, s4")
    if par:
        note("even dies see slightly longer memory latency than odd ones")
        a("s_getreg_b32 s4, hwreg(HW_REG_XCC_ID, 0, 1)"); a("s_mul_i32 s4, s4, %d" % int(-64 * par)); a("s_add_u32 s4, s4, %d" % int(32 * par)); a("s_add_u32 s75, s75, s4")
    a("s_mov_b32 s11, %d" % SPIN)
    a("L_ctl:")
    a("ds_read_b128 v[12:15], v9 offset:%d" % L_G)
    if pw: a("ds_read_b32 v18, v8 offset:%d" % L_G)
    a("s_waitcnt lgkmcnt(0)")
    a("v_add3_u32 v12, v12, v13, v14"); a("v_add_u32 v12, v12, v15"); a("s_mov_b64 exec, 1")
    a("buffer_store_dword v12, v9, %s, s72 offen" % sWS); a("s_mov_b64 exec, -1")
    a("v_readfirstlane_b32 s14, v12"); a("s_cmp_ge_u32 s14, %d" % (4 * fbend)); a("s_cbranch_scc1 L_ctl_end")
    a("buffer_load_dword v16, v8, %s, s74 offen sc1" % sWS); a("s_waitcnt vmcnt(0)")
    allreduce(a, "v_add_u32", 16, 17, [8, 4, 2, 1, 16])
    a("v_lshrrev_b32 v16, 2, v16"); a("v_lshlrev_b32 v12, 3, v12"); a("v_sub_u32 v16, v16, v12"); a("v_add_u32 v16, s75, v16")
    if leadn: a("s_cmp_lt_u32 s14, %d" % (4 * leadn)); a("s_cselect_b32 s4, s15, 0"); a("v_subrev_u32 v16, s4, v16")
    if nb: a("s_cmp_lt_u32 s14, %d" % (4 * nb)); a("s_cselect_b32 s4, %d, 0" % int(32 * (bias - bias1))); a("v_subrev_u32 v16, s4, v16")
    if pw:
        a("v_lshlrev_b32 v18, 5, v18"); a("v_sub_u32 v18, v12, v18"); a("v_mul_i32_i24 v18, %d, v18" % pw); a("v_ashrrev_i32 v18, 2, v18"); a("v_add_u32 v16, v16, v18")
        a("s_mov_b64 exec, 15"); a("ds_write_b32 v8, v16 offset:%d" % L_C4); a("s_mov_b64 exec, -1")
    else: a("s_mov_b64 exec, 1"); a("ds_write_b32 v9, v16 offset:%d" % L_C); a("s_mov_b64 exec, -1")
    a("s_sub_u32 s11, s11, 1"); a("s_cmp_lg_u32 s11, 0"); a("s_cbranch_scc1 L_ctl")
    a("L_ctl_end:")
    a("v_mov_b32 v13, %d" % (4 * fin)); a("s_mov_b64 exec, 1"); a("buffer_store_dword v13, v9, %s, s72 offen" % sWS); a("s_mov_b64 exec, -1")
    a("L_ctl_done:")
    a("s_cmp_ge_u32 s8, %d" % (28 if ew else 16)); a("s_cbranch_scc1 L_hdone")

    a("L_l2:")
    a("s_sub_u32 s101, s3, 4")
    if ew: a("s_sub_u32 s4, s3, 5"); a("s_max_i32 s4, s4, 0"); a("s_cmp_ge_u32 s8, 16"); a("s_cselect_b32 s101, s4, s101")
    a("s_mul_i32 s73, s9, %d" % (8 * RS)); a("s_lshl_b32 s5, s8, %d" % SH); a("s_add_u32 s73, s73, s5"); a("s_add_u32 s73, s73, %d" % WS_P)
    a("s_lshl_b32 s4, s101, 11"); a("v_add_u32 v5, s4, v%d" % vLin)
    a("s_cmp_ge_u32 s8, 16"); a("s_cbranch_scc1 L_down")
    def publish(n, vE):
        for w in range(n): a("ds_read_b128 %s, v6 offset:%d" % (vr(vE[w]), L_LP + 2048 * w))
        a("s_waitcnt lgkmcnt(%d)" % (n - 2))
        for i in (0, 2): a("v_pk_add_f32 %s, %s, %s" % (vr(vE[0] + i, 2), vr(vE[0] + i, 2), vr(vE[1] + i, 2)))
        a("s_waitcnt lgkmcnt(0)")
        if n == 4:
            for i in (0, 2): a("v_pk_add_f32 %s, %s, %s" % (vr(vE[2] + i, 2), vr(vE[2] + i, 2), vr(vE[3] + i, 2)))
        for i in (0, 2): a("v_pk_add_f32 %s, %s, %s" % (vr(vE[0] + i, 2), vr(vE[0] + i, 2), vr(vE[2] + i, 2)))
        if pb:
            for i in range(2): a("v_cvt_pk_bf16_f32 v%d, v%d, v%d" % (vE[0] + i, vE[0] + 2 * i, vE[0] + 2 * i + 1))
        for i in range(NP): a("v_min_u32 v%d, -2, v%d" % (vE[0] + i, vE[0] + i))
        store2("buffer_store_dwordx%d %s, v7, %s, s73 offen" % (NP, vr(vE[0], NP), sWS))
    vA, vE, vW, vP, A4, Y4, B4, vX = [16, 20], [24, 28, 32, 36], 40, 72, 104, 108, 112, 116
    srd(a, 60, 24, 4718592); srd(a, 48, 16, 9216); srd(a, 68, 34, 9216)
    a("v_lshrrev_b32 v3, 4, v0"); a("v_and_b32 v4, 15, v0"); a("v_lshlrev_b32 v9, %d, v4" % (6 if opair else 9)); a("v_lshl_or_b32 v9, v3, 4, v9")
    a("v_bfe_u32 v8, v0, 3, 1"); a("v_and_b32 v4, 7, v0")
    a("v_mul_u32_u24 v2, %d, v3" % (8 * 1152)); a("v_mul_u32_u24 v6, %d, v8" % (32 * 1152)); a("v_add_u32 v2, v2, v6"); a("v_lshl_add_u32 v2, v4, 4, v2")
    a("v_mul_u32_u24 v7, %d, v3" % (2 * RS)); a("v_lshl_add_u32 v7, v4, %d, v7" % (SH - 3)); a("v_lshl_add_u32 v7, v8, %d, v7" % (SH - 4))
    a("s_lshl_b32 s72, s8, 2"); a("s_add_u32 s72, s72, s101"); a("s_mul_i32 s72, s72, %d" % (64 * 1152)); a("s_lshl_b32 s4, s9, 7"); a("s_add_u32 s72, s72, s4")
    a("s_lshl_b32 s14, s8, 13"); a("s_lshl_b32 s5, s101, %d" % (11 if opair else 7)); a("s_add_u32 s14, s14, s5"); a("s_add_u32 s14, s14, %d" % WS_O)
    a("s_and_b32 s15, s101, 1"); a("s_mul_i32 s4, s15, %d" % RS); a("s_add_u32 s73, s73, s4"); a("s_lshl_b32 s4, s15, 10"); a("v_add_u32 v6, s4, v%d" % vLin)
    a("s_lshr_b32 s4, s8, 1"); a("s_and_b32 s5, s8, 1"); a("s_lshl_b32 s5, s5, 1"); a("s_add_u32 s5, s5, s15")
    a("s_lshl_b32 s74, s9, 3"); a("s_add_u32 s74, s74, s4"); a("s_mul_i32 s74, s74, %d" % RS); a("s_lshl_b32 s15, s5, %d" % (SH - 2)); a("s_add_u32 s74, s74, s15"); a("s_add_u32 s74, s74, %d" % WS_P)
    a("s_mul_i32 s75, s4, 1152"); a("s_lshl_b32 s15, s9, 7"); a("s_add_u32 s75, s75, s15"); a("s_lshl_b32 s15, s5, 5"); a("s_add_u32 s75, s75, s15")
    a("s_add_u32 s15, s74, %d" % (16 << SH)); a("s_add_u32 s10, s72, %d" % (4 * 1152))
    a("v_and_b32 v4, 3, v0"); a("v_lshlrev_b32 v11, 3, v4"); a("v_lshl_or_b32 v11, v3, 1, v11")
    a("v_lshrrev_b32 v3, 2, v0"); a("v_lshlrev_b32 v3, %d, v3" % SH); a("v_lshl_or_b32 v10, v4, %d, v3" % (SH - 4))
    a("buffer_load_ushort v%d, v11, %s, s75 offen" % (vX, sX))
    for i in range(4): a("v_mov_b32 v%d, 0" % (Y4 + i))
    ldO = ["buffer_load_dwordx4 %s, v9, %s, s14 offen offset:%d sc1" % (vr(vA[kb]), sWS, (1024 if opair else 64) * kb) for kb in range(2)]
    ldA, ldB = ("buffer_load_dwordx%d %s, v10, %s, s74 offen sc1" % (NP, vr(r, NP), sWS) for r in (A4, B4))
    ldY = "buffer_load_dwordx%d %s, v10, %s, s15 offen sc1" % (NP, vr(Y4, NP), sWS)
    vm = VM(a); w2 = []
    PR = (list(range(40, 48)) + list(range(56, 60)) + list(range(64, 68)))[:pm]
    def probes():
        for k, r in enumerate(PR): a("s_load_dword s%d, s[22:23], %d glc" % (r, 64 * (k * 16 // pm + (k & 1 if pm < 16 else 0)) + 1084 if opair else 512 * (k * 16 // pm) + 124))
    def getmode(down):
        if not nb1: return
        a("v_mov_b32 v14, 0"); a("ds_read_b32 v14, v14 offset:%d" % L_F); a("s_waitcnt lgkmcnt(0)"); a("v_readfirstlane_b32 s100, v14"); a("s_and_b32 s100, s100, 1")
        if down: a("s_cmp_lt_u32 s2, 224"); a("s_cselect_b32 s100, s100, 0")
    def s2(pr=0):
        if pr == 1: probes()
        a("s_barrier")
        if pr == 2: probes()
        if split: a("s_barrier")
    if probe: a("s_add_u32 s22, s38, s14"); a("s_addc_u32 s23, s39, 0")
    a("s_barrier")
    for j in range(9):
        if j == wsplit: getmode(0); s2(probe)
        if j < 8: w2.append(vm.issue("buffer_load_dwordx4 %s, v2, %s, %s offen offset:%d %s" % (vr(vW + 4 * j), sW2, "s72" if j < 4 else "s10", 1152 * (j % 4), w2f)))
    if oat < 0:
        note("this barrier opens once the streaming waves have ended, i.e. their output stores are acknowledged")
        a("s_barrier")
        for t_ in ldO: vm.issue(t_)
    def pairs(qs, vm, oat):
      for q in qs:
        js = (2 * q, 2 * q + 1)
        for j in js:
            vm.wait(w2[j])
            if j + 1 == oat:
                for t_ in ldO: vm.issue(t_)
        for j in js:
            for r in range(2): a("v_mov_b32 v%d, v%d" % (120 + 2 * j + r, vW + 4 * j + r))
        for j in js:
            for r in range(2): a("v_mov_b32_dpp v%d, v%d row_ror:8 row_mask:0xf bank_mask:0xc" % (vW + 4 * j + r, vW + 4 * j + 2 + r))
        for j in js:
            for r in range(2): a("v_mov_b32_dpp v%d, v%d row_ror:8 row_mask:0xf bank_mask:0x3" % (vW + 4 * j + 2 + r, 120 + 2 * j + r))
        for kb in range(2):
            for i in range(4):
                a("v_perm_b32 v%d, v%d, v%d, s%d" % (vP + 16 * kb + 4 * i + q, vW + 4 * (2 * q + 1) + 2 * kb + i // 2, vW + 4 * (2 * q) + 2 * kb + i // 2, 12 + i % 2))
    if probe:
        note("producers seen complete through uncached probes are gathered at once, otherwise after the next weights land")
        if probe == 3: probes()
        pairs([0], vm, 0)
        a("s_waitcnt lgkmcnt(0)")
        for r in PR[1:]: a("s_max_u32 s%d, s%d, s%d" % (PR[0], PR[0], r))
        a("s_cmp_eq_u32 s%d, -1" % PR[0]); a("s_cbranch_scc1 L_olate")
        v1 = vm.copy()
        for t_ in ldO: v1.issue(t_)
        pairs([1, 2, 3], v1, 0)
        a("s_branch L_ojoin")
        a("L_olate:")
        pairs([1, 2, 3], vm, oat)
    else: pairs(range(4), vm, oat)
    if oat > 8:
        for t_ in ldO: a(t_)
    if probe: a("L_ojoin:")
    a("v_lshlrev_b32 v%d, 16, v%d" % (vX, vX))
    T(7)
    a("s_waitcnt vmcnt(0)")
    mpoll("L_opoll", ldO, list(range(16, 24)))
    T(8)
    if t2:
        def rows(i):
            for x in range(2): a("v_add_f32 v%d, v%d, v%d" % (vW + 4 * x + i, vE[i] + 2 * x, vE[i] + 2 * x + 1))
        for i in range(4):
            for kb in range(2): a(MF % (vr(vE[i]), vr(vA[kb]), vr(vP + 16 * kb + 4 * i), "0" if kb == 0 else vr(vE[i])))
        a("s_cmp_lt_u32 s101, 2"); a("s_cbranch_scc1 L_nopre")
        a("s_mov_b32 exec_hi, 0xffff"); a(ldY); a("s_mov_b32 exec_hi, -1")
        a("L_nopre:")
        for i in range(4): rows(i)
        for x in range(2): a("ds_write_b128 v5, %s offset:%d" % (vr(vW + 4 * x), L_LP + 1024 * x))
    else:
        for kb in range(2):
            for i in range(4): a(MF % (vr(vE[i]), vr(vA[kb]), vr(vP + 16 * kb + 4 * i), "0" if kb == 0 else vr(vE[i])))
        a("s_cmp_lt_u32 s101, 2"); a("s_cbranch_scc1 L_nopre")
        a("s_mov_b32 exec_hi, 0xffff"); a(ldY); a("s_mov_b32 exec_hi, -1")
        a("L_nopre:")
        for x in range(2):
            for i in range(4): a("v_add_f32 v%d, v%d, v%d" % (vW + 4 * x + i, vE[i] + 2 * x, vE[i] + 2 * x + 1))
            a("ds_write_b128 v5, %s offset:%d" % (vr(vW + 4 * x), L_LP + 1024 * x))
    a("s_waitcnt lgkmcnt(0)"); a("s_barrier")
    a("s_cmp_ge_u32 s101, 2"); a("s_cbranch_scc1 L_final")
    publish(4, vE)
    a("s_branch L_hdone")
    a("L_final:")
    def fold(r):
        if pb:
            a("v_lshlrev_b32 v%d, 16, v%d" % (r + 2, r + 1)); a("v_and_b32 v%d, 0xffff0000, v%d" % (r + 3, r + 1))
            a("v_and_b32 v%d, 0xffff0000, v%d" % (r + 1, r)); a("v_lshlrev_b32 v%d, 16, v%d" % (r, r))
        a("v_permlane32_swap_b32 v%d, v%d" % (r, r + 2)); a("v_permlane32_swap_b32 v%d, v%d" % (r + 1, r + 3))
        a("v_pk_add_f32 %s, %s, %s" % (vr(r, 2), vr(r, 2), vr(r + 2, 2)))
        a("v_permlane16_swap_b32 v%d, v%d" % (r, r + 1)); a("v_add_f32 v%d, v%d, v%d" % (r, r, r + 1))
        for k in (8, 4): a("v_add_f32_dpp v%d, v%d, v%d row_ror:%d %s" % (r, r, r, k, DPP))
        round_bf16(a, r)
    def chk(r, tgt):
        a("s_waitcnt vmcnt(1)"); umax(list(range(r, r + NP))); a("v_cmp_eq_u32 vcc, -1, v3"); a("s_cmp_eq_u64 vcc, 0"); a("s_cbranch_scc1 " + tgt)
    a("s_waitcnt vmcnt(0)")
    mpoll("L_ypoll", [ldY], list(range(Y4, Y4 + NP)))
    a(ldA); fold(Y4); a("s_mov_b32 s11, %d" % SPIN)
    a("L_pp:"); a(ldB); chk(A4, "L_ppa"); a(ldA); chk(B4, "L_ppb")
    a("s_sub_u32 s11, s11, 1"); a("s_cmp_lg_u32 s11, 0"); a("s_cbranch_scc1 L_pp")
    a("L_ppb:"); fold(B4); a("v_add_f32 v4, v%d, v%d" % (vX, B4)); a("s_branch L_ppe")
    a("L_ppa:"); fold(A4); a("v_add_f32 v4, v%d, v%d" % (vX, A4))
    a("L_ppe:"); round_bf16(a, 4); a("v_add_f32 v4, v4, v%d" % Y4); a("v_cvt_pk_bf16_f32 v4, v4, v4")
    a("s_mov_b32 exec_lo, 0x000f000f"); a("s_mov_b32 exec_hi, 0x000f000f")
    a("buffer_store_short v4, v11, %s, s75 offen" % sOUT)
    a("s_branch L_hdone")

    a("L_down:")
    vm = VM(a)
    vH, vAc, vTp, vW = 16, 24, 56, 64
    down_addr()
    a("s_lshl_b32 s14, s4, 11"); a("s_add_u32 s14, s14, %d" % WS_H)
    if hlin: a("v_mov_b32 v9, v%d" % vLin)
    else: actaddr(9, 4, 128)
    a("v_lshrrev_b32 v3, 4, v0"); a("v_and_b32 v4, 15, v0"); a("v_mul_u32_u24 v7, %d, v3" % RS); a("v_lshl_add_u32 v7, v4, %d, v7" % (SH - 4))
    a("v_lshlrev_b32 v6, 7, v3"); a("v_bfe_u32 v3, v0, 1, 3"); a("v_lshl_or_b32 v6, v3, 4, v6"); a("v_and_b32 v3, 1, v0"); a("v_lshl_or_b32 v6, v3, 10, v6")
    a("s_lshl_b32 s4, s101, 9"); a("v_add_u32 v6, s4, v6"); a("s_mul_i32 s4, s101, %d" % (4 * RS)); a("s_add_u32 s73, s73, s4")
    if not hsv: a("v_mov_b32 v11, 0"); note("fetch the hidden rows once the streams are well into V")
    def body(): a("ds_read_b32 v8, v11 offset:%d" % L_G); a("s_waitcnt lgkmcnt(0)"); a("v_cmp_le_u32 vcc, %d, v8" % hat)
    if not hsv: spin(body, "L_hwait")
    ldH = ["buffer_load_dwordx4 %s, v9, %s, s14 offen offset:%d sc1" % (vr(vH + 4 * b_), sWS, 1024 * b_) for b_ in range(2)]
    if not x1 & 1 and not hsv:
        for t_ in ldH: a(t_)
        a("s_waitcnt vmcnt(0)")
        mpoll("L_hpoll", ldH, list(range(vH, vH + 8)))
    a("s_barrier")
    w2 = []
    if hsv == 1:
        for t_ in ldH: vm.issue(t_)
    if ew:
        a("s_cmp_lt_u32 s2, 208"); a("s_cbranch_scc1 L_dlate")
        for t_ in ldH: a(t_)
        getmode(1); s2(); a("s_waitcnt vmcnt(0)"); a("s_branch L_djoin"); a("L_dlate:")
    for k in range(17):
        if k == dsplit:
            if hsv == 2:
                for t_ in ldH: th_ = vm.issue(t_)
            getmode(1); s2()
        if k < 16: w2.append(down_load(vm, k))
    if ew: a("L_djoin:")
    for b_ in range(2):
        base, tp = vW + 32 * b_, 128 + 32 * b_
        for q in range(4):
            vm.wait(w2[8 * b_ + 2 * q + 1])
            if hsv and b_ == 0 and q == 3:
                if hsv == 2: vm.wait(th_)
                mpoll("L_hpoll", ldH, list(range(vH, vH + 8)))
            for i in range(8):
                a("v_perm_b32 v%d, v%d, v%d, s%d" % (tp + 4 * i + q, base + 4 * (2 * q + 1) + i // 2, base + 4 * (2 * q) + i // 2, 12 + i % 2))
                if q == 3 and i >= 2: a(MF % (vr(vAc + 4 * (i - 2)), vr(vH + 4 * b_), vr(tp + 4 * (i - 2)), "0" if b_ == 0 else vr(vAc + 4 * (i - 2))))
        for i in (6, 7): a(MF % (vr(vAc + 4 * i), vr(vH + 4 * b_), vr(tp + 4 * i), "0" if b_ == 0 else vr(vAc + 4 * i)))
    T(8)
    block_fold(vTp, vAc)
    for x in range(2): a("ds_write_b128 v5, %s offset:%d" % (vr(vTp + 4 * x), L_LP + 1024 * x))
    a("s_waitcnt lgkmcnt(0)"); a("s_barrier")
    a("s_cmp_ge_u32 s101, 2"); a("s_cbranch_scc1 L_hdone")
    publish(3, [24, 28, 32])
    a("L_hdone:")
    T(9); T.flush()
    a("L_end:")
    a("s_endpgm")
    a("L_codeend:")
    if lay:
        tx_ = [i.text for i in a.ins]; b_, e_, h_ = tx_.index("; HBEG"), tx_.index("; HEND"), tx_.index("; HOIST")
        a.ins = a.ins[:h_] + a.ins[b_:e_] + a.ins[h_:b_] + a.ins[e_:]
    a.ins = [i for i in a.ins if i.text not in ("; HBEG", "; HEND", "; HOIST")]
    a.pad()
    head = open("parallel_sum__sliding_block_cached__geglu_ffn__decode.s.ref").read().split("; Override")[0]
    head += "; @launch grid=(256,1,1) block=(%d,1,1) lds=%d\n" % (64 * NW, LDS_BYTES) + HEADER
    head += '.amdgcn_target "amdgcn-amd-amdhsa--gfx950"\n.text\n' + ('.fill %d, 4, 0xbf810000\n' % (pad // 4) if pad else '') + '.globl %s\n.p2align 8\n.type %s,@function\n' % (KN, KN)
    tail = '.section .rodata,"a"\n.p2align 6\n.amdhsa_kernel %s\n  .amdhsa_next_free_vgpr 256\n  .amdhsa_next_free_sgpr 102\n  .amdhsa_accum_offset 256\n' % KN
    tail += "  .amdhsa_group_segment_fixed_size 0\n  .amdhsa_kernarg_size 96\n  .amdhsa_user_sgpr_count 2\n  .amdhsa_user_sgpr_kernarg_segment_ptr 1\n  .amdhsa_system_sgpr_workgroup_id_x 1\n.end_amdhsa_kernel\n"
    return head + a.text() + tail

RAW = None
def report(t, verbose):
    import gen10, numpy as np
    m_ = t[:, :, :4, 1:12].mean(axis=(0, 1, 2))
    if all(np.diff(m_) > 0):
        print("   event rates: t", m_, "TB/s", np.diff(TSN) * 1.048576 / np.diff(m_)); return
    gen10.report(t, verbose)
    import numpy as np
    ids = np.arange(256); X, J = ids & 7, ids >> 3
    WO = (ids < 128) | (X == 0); unit = np.where(J < 16, J, J - 16); hkv = 2 * X + (J & 1)
    rows = []
    for u in t:
        osent = u[:, :4, 5].max(axis=1); vd = u[:, :4, 6].max(axis=1); gl = np.array([osent[hkv == g].max() for g in range(16)])
        os_ = np.where(WO[:, None], u[:, 4:, 8], -1); c, w = np.unravel_index(os_.argmax(), os_.shape)
        rows.append((os_[c, w] - u[c, 4 + w, 7], os_[c, w] - gl[unit[c]], vd[c] - vd.max(), gl[unit[c]] - osent.max(), u[c, 4 + w, 7] - vd[c]))
    r = np.array(rows)
    print("   crit: seen-perms %.2f seen-grouplast %.2f ownV-Vmax %.2f grouplast-last %.2f perms-ownV %.2f" % tuple(r.mean(axis=0)))
    p1 = r[:, 0] < 0.4
    print("   crit: share near own weights %.2f;" % p1.mean(), "A:", r[p1].mean(axis=0), "B:", r[~p1].mean(axis=0))

if __name__ == "__main__":
    kw = eval("dict(%s)" % (sys.argv[2] if len(sys.argv) > 2 else ""))
    open(sys.argv[1], "w").write(gen(**kw))
```
